```python
import torch

def _softmax(x, axis=-1):
    return torch.softmax(x, dim=axis)
def _gelu(x):
    return torch.nn.functional.gelu(x, approximate="tanh")
def _silu(x):
    return torch.nn.functional.silu(x)
def _sigmoid(x):
    return torch.sigmoid(x)
def _layernorm(x, axis=-1, eps=1e-5):
    m = x.mean(dim=axis, keepdim=True)
    v = x.var(dim=axis, keepdim=True, unbiased=False)
    return (x - m) / torch.sqrt(v + eps)
def _scatter_add(tgt, idx, src, axis=0):
    return tgt.clone().index_add_(axis, idx, src)
def _segment_sum(src, seg, n):
    out = torch.zeros((n,) + src.shape[1:], dtype=src.dtype)
    return out.index_add_(0, seg, src)
def _pad(x, pw):
    flat = tuple(v for pair in reversed(pw) for v in pair)
    return torch.nn.functional.pad(x, flat)

kernel_name = 'standalone__mha_block_cached__near_ridge'

def setup_inputs():

    _w = (lambda a: (lambda t: t.to(torch.bfloat16) if t.is_floating_point() else t)(torch.as_tensor(a)))
    B, Sq, D = 8, 224, 1024
    H, Sk, Dh = 32, 1024, 128
    return {
        "x": _w((lambda *s: torch.randn(*s, dtype=torch.bfloat16) * 0.8)(B, Sq, D)),
        "k_cache": _w((lambda *s: torch.randn(*s, dtype=torch.bfloat16) * 0.8)(B, H, Sk, Dh)),
        "v_cache": _w((lambda *s: torch.randn(*s, dtype=torch.bfloat16) * 0.05)(B, H, Sk, Dh)),
        "wq": _w((lambda *s: torch.randn(*s, dtype=torch.bfloat16) * 0.8)(D, H * Dh) * (D ** -0.5)),
        "wo": _w((lambda *s: torch.randn(*s, dtype=torch.bfloat16) * 0.05)(H * Dh, D) * ((H * Dh) ** -0.5)),
    }

def reference(x, k_cache, v_cache, wq, wo):
    B, Sq, D = x.shape
    H, Dh = 32, 128
    q = (lambda x, *d: x.permute(*d))((x @ wq).reshape(B, Sq, H, Dh), 0, 2, 1, 3)
    scores = torch.einsum("bhqd,bhkd->bhqk", q, k_cache) * (Dh ** -0.5)
    p = _softmax(scores, axis=-1)
    o = torch.einsum("bhqk,bhkd->bhqd", p, v_cache)
    return (lambda x, *d: x.permute(*d))(o, 0, 2, 1, 3).reshape(B, Sq, H * Dh) @ wo
```

```python
import sys, math
NAME = "standalone__mha_block_cached__near_ridge"

class Opt:
    pol_kv = "nt"
    pol_x = ""
    pol_wq = ""
    pol_ost = ""
    pol_old = ""
    pol_wo = ""
    stamps = False
    dbg_q = False
O = Opt()

L = []
def A(s): L.append(s)
def I(s): L.append("  " + s)

def vr(b, n=4): return f"v[{b}:{b+n-1}]"
def ar(b, n=4): return f"a[{b}:{b+n-1}]"
def sr(b, n=2): return f"s[{b}:{b+n-1}]"
def pol(p): return (p + " ") if p else ""

def interleave(mf, fill, start=0, end=None):
    n = len(mf)
    end = n if end is None else end
    slots = [[] for _ in range(n)]
    k = len(fill)
    for j, f in enumerate(fill):
        slots[start + (j * (end - start)) // max(k, 1)].append(f)
    return [(m, s) for m, s in zip(mf, slots)]

def emit_sched(mf, *fills):
    for i, m in enumerate(mf):
        I(m)
        for f in fills:
            for x in f[i]:
                for line in x.split("\n"): I(line)

def spread(items, n, start=0, end=None):
    end = n if end is None else end
    slots = [[] for _ in range(n)]
    k = len(items)
    for j, f in enumerate(items):
        slots[start + (j * (end - start)) // max(k, 1)].append(f)
    return slots

OK_ = 16
VF = 128
SB = 160
PB = 184
NM = 196
LS = 224
V_LANE16 = 1
V_XOFF = 2
V_WOFF = 3
V_KVOFF = 4
V_XB = 8
V_WB = 10
V_KB = 12
V_VB = 13
V_T0 = 14; V_T1 = 15
V_XA = 232
V_WA = 234
V_KA = 236
V_VA = 237
V_AT = 238
V_TMP = 246
OS_ = 0
QA = 112
KF = 224
COL = [0, 1, 0, 1, 0, 1, 2]

S_X = 8; S_K = 12; S_V = 16; S_WQ = 20; S_O = 24
S_WAVE = 28; S_B = 29; S_H = 30; S_R = 31; S_C = 32
S_CI = 33
S_XS = 34
S_WS = 35
S_DST = 36
S_RD = 37
S_I = 38
S_T0 = 39; S_T1 = 40; S_T2 = 41; S_T3 = 42
S_KVG = 43
S_KVD = 44
S_KVR = 45
S_KVR2 = 46
S_FB = 47
S_W4K = 48
S_ST = 60
S_WSP = 50

XT = 28672; WT = 16384; STG = XT + WT
RING = 5
VOFF = 0; KOFF = 16384
FLAG_OFF = 57344 * 2
SCALE = math.log2(math.e) / math.sqrt(128.0)
import struct
def f2u(x): return struct.unpack("<I", struct.pack("<f", x))[0]

nstamp = [0]
def stamp():
    if not O.stamps: return
    k = S_ST + 4 * nstamp[0]
    I(f"s_memtime {sr(k)}"); I(f"s_memrealtime {sr(k+2)}")
    nstamp[0] += 1

def store_stamps(wsoff):
    if not O.stamps: return
    n = nstamp[0]
    I("s_waitcnt lgkmcnt(0)")
    I(f"s_cmp_lg_u32 s{S_WAVE}, 0"); I("s_cbranch_scc1 L_nost%d" % wsoff)
    for i in range(4 * n): I(f"v_mov_b32 v{16+i}, s{S_ST+i}")
    I(f"s_mul_i32 s{S_T0}, s2, {16*n}"); I(f"s_add_u32 s{S_T0}, s{S_T0}, {wsoff}"); I(f"v_mov_b32 v15, s{S_T0}")
    I("v_cmp_eq_u32 vcc, 0, v0"); I(f"s_and_saveexec_b64 {sr(S_T2-1)}, vcc")
    for i in range(n): I(f"global_store_dwordx4 v15, {vr(16+4*i)}, {sr(S_WSP)} offset:{16*i}")
    A("L_nost%d:" % wsoff)

def srd(d, ptr, nbytes):
    I(f"s_mov_b32 s{d}, s{ptr}"); I(f"s_mov_b32 s{d+1}, s{ptr+1}")
    I(f"s_mov_b32 s{d+2}, {nbytes}"); I(f"s_mov_b32 s{d+3}, 0x20000")

def dma_chunk():
    g = []
    for j in range(7):
        pre = ""
        if j == 0:
            pre = f"s_lshl_b32 s{S_T0}, s{S_CI}, 7\ns_add_u32 s{S_T0}, s{S_T0}, s{S_XS}\ns_lshr_b32 s{S_T1}, s{S_W4K}, 2\ns_add_u32 m0, s{S_DST}, s{S_T1}\ns_nop 0\n"
        else:
            pre = f"s_add_u32 m0, m0, 4096\ns_add_u32 s{S_T0}, s{S_T0}, 65536\n"
        g.append(pre + f"buffer_load_dwordx4 v{V_XOFF}, {sr(S_X,4)}, s{S_T0} offen {pol(O.pol_x)}lds")
    for j in range(4):
        if j == 0:
            pre = f"s_lshl_b32 s{S_T0}, s{S_CI}, 19\ns_add_u32 s{S_T0}, s{S_T0}, s{S_WS}\ns_add_u32 s{S_T1}, s{S_DST}, s{S_W4K}\ns_add_u32 m0, s{S_T1}, {XT}\ns_nop 0\n"
        else:
            pre = f"s_add_u32 m0, m0, 1024\ns_add_u32 s{S_T0}, s{S_T0}, 32768\n"
        post = ""
        if j == 3:
            post = (f"\ns_add_u32 s{S_CI}, s{S_CI}, 1\ns_and_b32 s{S_CI}, s{S_CI}, 15"
                    f"\ns_add_u32 s{S_DST}, s{S_DST}, {STG}\ns_cmp_eq_u32 s{S_DST}, {3*STG}\ns_cselect_b32 s{S_DST}, 0, s{S_DST}")
        g.append(pre + f"buffer_load_dwordx4 v{V_WOFF}, {sr(S_WQ,4)}, s{S_T0} offen {pol(O.pol_wq)}lds" + post)
    return g

def dma_kv(which, advance):
    g = []
    s, off = (S_K, KOFF) if which == "K" else (S_V, VOFF)
    for j in range(4):
        pre = f"s_add_u32 m0, s{S_KVD}, {off}\ns_nop 0\n" if j == 0 else ""
        post = ""
        if j == 3 and advance:
            post = (f"\ns_add_u32 s{S_KVG}, s{S_KVG}, 16384\ns_sub_u32 s{S_KVD}, s{S_KVD}, 32768"
                    f"\ns_cselect_b32 s{S_T3}, {RING*32768}, 0\ns_add_u32 s{S_KVD}, s{S_KVD}, s{S_T3}")
        g.append(pre + f"buffer_load_dwordx4 v{V_KVOFF+j}, {sr(s,4)}, s{S_KVG} offen offset:{j*1024} {pol(O.pol_kv)}lds" + post)
    return g

def p1_reads(s, buf):
    fa = OS_ + 44 * buf; fb = fa + 16
    r = []
    for t in range(4):
        kp, a = t // 2, t % 2
        for e in range(2):
            r.append(f"ds_read_b64_tr_b16 {ar(fa+4*t+2*e,2)}, v{V_WA+kp} offset:{XT + s*8192 + e*1024 + a*8}")
    for rt in range(7):
        r.append(f"ds_read_b128 {ar(fb+4*rt)}, v{V_XA+s} offset:{rt*2048}")
    return r[0:2] + r[8:9] + r[2:8] + r[9:]

def p1_mfmas(buf, first=False):
    fa = OS_ + 44 * buf; fb = fa + 16
    m = []
    for rt in range(7):
        for t in range(4):
            d = OK_ + 16 * rt + 4 * t
            c = "0" if first else vr(d)
            m.append(f"v_mfma_f32_16x16x32_bf16 {vr(d)}, {ar(fa+4*t)}, {ar(fb+4*rt)}, {c}")
    return m

def p1_addr_update():
    return [f"s_add_u32 s{S_RD}, s{S_RD}, {STG}\ns_cmp_eq_u32 s{S_RD}, {3*STG}\ns_cselect_b32 s{S_RD}, 0, s{S_RD}",
            f"v_add_u32 v{V_XA}, s{S_RD}, v{V_XB}\nv_add_u32 v{V_WA}, s{S_RD}, v{V_WB}\nv_add_u32 v{V_WA+1}, s{S_RD}, v{V_WB+1}",
            f"v_add_u32 v{V_XA+1}, s{S_RD}, v{V_XB+1}"]

def p1_iter(dma_a, dma_b, vm, last=False, first=False):
    n = 28
    I("s_waitcnt lgkmcnt(0)")
    emit_sched(p1_mfmas(0, first), spread(p1_reads(1, 1), n, 0, 18), spread(dma_a, n, 1, 27))
    up = p1_addr_update()
    I(up[0].split("\n")[0]); I(up[0].split("\n")[1]); I(up[0].split("\n")[2])
    I("s_waitcnt lgkmcnt(0)" + (f" vmcnt({vm})" if vm is not None else ""))
    for x in up[1].split("\n"): I(x)
    I(up[2])
    I("s_barrier")
    rd = [] if last else p1_reads(0, 0)
    emit_sched(p1_mfmas(1), spread(rd, n, 0, 18), spread(dma_b, n, 1, 27))

def k_reads():
    r = []
    for q in range(4):
        for kt in range(2):
            pre = ""
            a = V_KA if q == 0 else V_AT + q
            if kt == 0 and q > 0: pre = f"v_xor_b32 v{a}, {q*64}, v{V_KA}\n"
            r.append((pre, f"ds_read_b128 {ar(KF+4*(2*q+kt))}, v{a} offset:{kt*4096}"))
    return r

def v_reads():
    r = []
    for dq in range(8):
        a = V_VA if dq == 0 else V_AT + dq
        pre = "" if dq == 0 else f"v_xor_b32 v{a}, {dq*32}, v{V_VA}\n"
        r.append((pre, f"ds_read_b64_tr_b16 {vr(VF+4*dq,2)}, v{a}\nds_read_b64_tr_b16 {vr(VF+4*dq+2,2)}, v{a} offset:4096"))
    return r

def oacc(rt, dq):
    return vr(OK_ + 16 * rt + 4 * dq) if dq < 4 else ar(OS_ + 16 * rt + 4 * (dq - 4))

def qk_mfmas(rt, S, usenm=True, kts=(0, 1)):
    m = []
    for q in range(4):
        for kt in kts:
            d = S + 4 * kt
            c = (vr(NM + 4 * rt) if usenm else "0") if q == 0 else vr(d)
            m.append(f"v_mfma_f32_16x16x32_bf16 {vr(d)}, {ar(KF+4*(2*q+kt))}, {ar(QA+16*rt+4*q)}, {c}")
    return m

def pv_mfmas(rt):
    P = PB + 4 * COL[rt]
    return [f"v_mfma_f32_16x16x32_bf16 {oacc(rt,dq)}, {vr(VF+4*dq)}, {vr(P)}, {oacc(rt,dq)}" for dq in range(8)]

def softmax_fill(rt, n=16):
    S = SB + 8 * COL[rt]; P = PB + 4 * COL[rt]
    slots = [[] for _ in range(16)]
    for e in range(8):
        slots[2 * e].append(f"v_exp_f32 v{S+e}, v{S+e}")
        slots[2 * e + 1].append(f"v_add_f32 v{LS+rt}, v{LS+rt}, v{S+e}")
        if e % 2 == 1: slots[2 * e + 1].append(f"v_cvt_pk_bf16_f32 v{P+e//2}, v{S+e-1}, v{S+e}")
    return slots

def ring_dec(s):
    return f"s_sub_u32 s{s}, s{s}, 32768\ns_cselect_b32 s{S_T2}, {RING*32768}, 0\ns_add_u32 s{s}, s{s}, s{S_T2}"

def rowmax_reduce(reg, t):
    I(f"v_mov_b32 v{t}, v{reg}"); I("s_nop 1")
    I(f"v_permlane32_swap_b32 v{reg}, v{t}"); I("s_nop 1")
    I(f"v_max_f32 v{reg}, v{reg}, v{t}")
    I(f"v_mov_b32 v{t}, v{reg}"); I("s_nop 1")
    I(f"v_permlane16_swap_b32 v{reg}, v{t}"); I("s_nop 1")
    I(f"v_max_f32 v{reg}, v{reg}, v{t}")

def multi_reduce(regs, temps, op):
    for sw in ("v_permlane32_swap_b32", "v_permlane16_swap_b32"):
        for r, t in zip(regs, temps): I(f"v_mov_b32 v{t}, v{r}")
        I("s_nop 1")
        for r, t in zip(regs, temps): I(f"{sw} v{r}, v{t}")
        I("s_nop 1")
        for r, t in zip(regs, temps): I(f"{op} v{r}, v{r}, v{t}")

def gen_k1():
    A(".globl k1_kernel\n.p2align 8\n.type k1_kernel,@function\nk1_kernel:")
    I("s_cmp_ge_u32 s2, 256"); I("s_cbranch_scc1 L_k1_done")
    stamp()
    I("s_load_dwordx8 s[52:59], s[0:1], 0")
    I(f"s_load_dwordx2 {sr(S_WSP)}, s[0:1], 56")
    I("s_getpc_b64 s[4:5]")
    I("v_lshlrev_b32 v14, 7, v0")
    I("global_load_dword v15, v14, s[4:5]")
    I("v_lshrrev_b32 v14, 6, v0")
    I(f"v_and_b32 v0, 63, v0")
    I(f"v_readfirstlane_b32 s{S_WAVE}, v14")
    I(f"s_and_b32 s{S_T0}, s2, 7"); I(f"s_lshr_b32 s{S_T1}, s2, 3")
    I(f"s_and_b32 s{S_B}, s{S_T0}, 1"); I(f"s_lshl_b32 s{S_B}, s{S_B}, 2"); I(f"s_and_b32 s{S_T2}, s{S_T1}, 3"); I(f"s_add_u32 s{S_B}, s{S_B}, s{S_T2}")
    I(f"s_lshr_b32 s{S_H}, s{S_T0}, 1"); I(f"s_lshl_b32 s{S_H}, s{S_H}, 3"); I(f"s_lshr_b32 s{S_T3}, s{S_T1}, 2"); I(f"s_add_u32 s{S_H}, s{S_H}, s{S_T3}")
    I(f"s_lshl_b32 s{S_T3}, s{S_T3}, 1"); I(f"s_lshl_b32 s{S_T2}, s{S_T2}, 2"); I(f"s_add_u32 s{S_CI}, s{S_T2}, s{S_T3}"); I(f"s_and_b32 s{S_CI}, s{S_CI}, 15")
    I(f"s_lshr_b32 s{S_R}, s{S_WAVE}, 1"); I(f"s_and_b32 s{S_C}, s{S_WAVE}, 1")
    I(f"s_lshl_b32 s{S_W4K}, s{S_WAVE}, 12")
    I(f"s_mul_i32 s{S_XS}, s{S_B}, 458752"); I(f"s_lshl_b32 s{S_T0}, s{S_WAVE}, 14"); I(f"s_add_u32 s{S_XS}, s{S_XS}, s{S_T0}")
    I(f"s_lshl_b32 s{S_WS}, s{S_H}, 8"); I(f"s_lshl_b32 s{S_T0}, s{S_WAVE}, 17"); I(f"s_add_u32 s{S_WS}, s{S_WS}, s{S_T0}")
    I(f"s_mov_b32 s{S_DST}, 0"); I(f"s_mov_b32 s{S_RD}, 0"); I(f"s_mov_b32 s{S_FB}, 0")
    T = V_TMP
    I(f"v_lshlrev_b32 v{V_LANE16}, 4, v0")
    I(f"v_and_b32 v{T}, 15, v0"); I(f"v_lshrrev_b32 v{T+1}, 4, v0"); I(f"v_bfe_u32 v{T+2}, v0, 2, 2"); I(f"v_and_b32 v{T+3}, 3, v0")
    I(f"v_and_b32 v{T+4}, 7, v0"); I(f"v_xor_b32 v{T+4}, v{T+4}, v{T+1}"); I(f"s_lshl_b32 s{S_T0}, s{S_C}, 2"); I(f"v_xor_b32 v{T+4}, s{S_T0}, v{T+4}")
    I(f"v_lshrrev_b32 v{T+5}, 3, v0"); I(f"v_lshlrev_b32 v{T+5}, 11, v{T+5}"); I(f"v_lshl_add_u32 v{V_XOFF}, v{T+4}, 4, v{T+5}")
    I(f"v_lshlrev_b32 v{T+4}, 2, v{T+1}"); I(f"v_xor_b32 v{T+4}, v{T+4}, v{T}"); I(f"v_lshlrev_b32 v{T+5}, 13, v{T+1}"); I(f"v_lshl_add_u32 v{V_WOFF}, v{T+4}, 4, v{T+5}")
    I("s_waitcnt lgkmcnt(0)")
    srd(S_X, 52, 3670016); srd(S_WQ, 58, 8388608)
    for gtxt in dma_chunk() + dma_chunk():
        for x in gtxt.split("\n"): I(x)
    I(f"s_lshl_b32 s{S_T0}, s{S_B}, 5"); I(f"s_add_u32 s{S_T0}, s{S_T0}, s{S_H}"); I(f"s_lshl_b32 s{S_T0}, s{S_T0}, 18")
    I(f"s_add_u32 s{S_K}, s54, s{S_T0}"); I(f"s_addc_u32 s{S_K+1}, s55, 0"); I(f"s_mov_b32 s{S_K+2}, 262144"); I(f"s_mov_b32 s{S_K+3}, 0x20000")
    I(f"s_add_u32 s{S_V}, s56, s{S_T0}"); I(f"s_addc_u32 s{S_V+1}, s57, 0"); I(f"s_mov_b32 s{S_V+2}, 262144"); I(f"s_mov_b32 s{S_V+3}, 0x20000")
    srd(S_O, S_WSP, 14680064)
    I(f"v_lshlrev_b32 v{T+4}, 1, v{T+1}"); I(f"v_xor_b32 v{T+4}, v{T+4}, v{T}"); I(f"v_lshlrev_b32 v{T+5}, 8, v{T+1}")
    for j in range(4):
        I(f"v_xor_b32 v{T+6}, {8*(j&1) + (j>>1)}, v{T+4}"); I(f"v_lshl_add_u32 v{V_KVOFF+j}, v{T+6}, 4, v{T+5}")
    I(f"s_mov_b32 s{S_KVG}, s{S_W4K}"); I(f"s_add_u32 s{S_KVD}, s{S_W4K}, {(RING-1)*32768}")
    for gtxt in dma_kv("K", False) + dma_chunk():
        for x in gtxt.split("\n"): I(x)
    I(f"v_lshrrev_b32 v{T+4}, 1, v{T}"); I(f"v_xor_b32 v{T+4}, v{T+4}, v{T+1}"); I(f"s_mul_i32 s{S_T0}, s{S_R}, {112*128}")
    I(f"v_lshlrev_b32 v{T+5}, 7, v{T}"); I(f"v_add_u32 v{T+5}, s{S_T0}, v{T+5}"); I(f"v_lshl_add_u32 v{V_XB}, v{T+4}, 4, v{T+5}"); I(f"v_xor_b32 v{V_XB+1}, 64, v{V_XB}")
    I(f"v_lshrrev_b32 v{T+4}, 1, v{T+3}"); I(f"v_and_b32 v{T+5}, 1, v{T+3}"); I(f"v_lshl_add_u32 v{T+4}, v{T+5}, 1, v{T+4}")
    I(f"s_lshl_b32 s{S_T0}, s{S_C}, 1"); I(f"v_xor_b32 v{T+5}, s{S_T0}, v{T+2}"); I(f"v_lshl_add_u32 v{T+4}, v{T+5}, 2, v{T+4}")
    I(f"v_lshl_add_u32 v{T+5}, v{T+1}, 3, v{T+2}"); I(f"v_lshlrev_b32 v{T+5}, 8, v{T+5}"); I(f"v_lshl_add_u32 v{V_WB}, v{T+4}, 4, v{T+5}"); I(f"v_xor_b32 v{V_WB+1}, 64, v{V_WB}")
    I(f"v_lshrrev_b32 v{T+4}, 1, v{T+1}"); I(f"v_and_b32 v{T+5}, 1, v{T+1}"); I(f"v_lshl_add_u32 v{T+4}, v{T+5}, 1, v{T+4}")
    I(f"v_and_b32 v{T+5}, 7, v{T}"); I(f"v_lshrrev_b32 v{T+6}, 3, v{T}"); I(f"v_lshl_add_u32 v{T+5}, v{T+5}, 1, v{T+6}")
    I(f"v_xor_b32 v{T+4}, v{T+4}, v{T+5}"); I(f"s_lshl_b32 s{S_T0}, s{S_C}, 3"); I(f"v_xor_b32 v{T+4}, s{S_T0}, v{T+4}")
    I(f"s_lshl_b32 s{S_T1}, s{S_C}, 13"); I(f"s_add_u32 s{S_T2}, s{S_T1}, {KOFF}")
    I(f"v_lshlrev_b32 v{T+5}, 8, v{T}"); I(f"v_add_u32 v{T+5}, s{S_T2}, v{T+5}"); I(f"v_lshl_add_u32 v{V_KB}, v{T+4}, 4, v{T+5}")
    I(f"v_lshl_add_u32 v{T+6}, v{T+1}, 2, v{T+2}")
    I(f"v_and_b32 v{T+4}, 7, v{T+6}"); I(f"v_lshrrev_b32 v{T+5}, 3, v{T+6}"); I(f"v_lshl_add_u32 v{T+4}, v{T+4}, 1, v{T+5}")
    I(f"v_bfe_u32 v{T+5}, v0, 1, 1"); I(f"v_xor_b32 v{T+4}, v{T+4}, v{T+5}"); I(f"v_xor_b32 v{T+4}, s{S_T0}, v{T+4}")
    I(f"v_lshlrev_b32 v{T+6}, 8, v{T+6}"); I(f"v_add_u32 v{T+6}, s{S_T1}, v{T+6}"); I(f"v_lshl_add_u32 v{T+6}, v{T+4}, 4, v{T+6}")
    I(f"v_and_b32 v{T+5}, 1, v0"); I(f"v_lshl_add_u32 v{V_VB}, v{T+5}, 3, v{T+6}")
    if VOFF: I(f"v_add_u32 v{V_VB}, {VOFF}, v{V_VB}")
    for k in range(2):
        I(f"v_mov_b32 v{V_XA+k}, v{V_XB+k}"); I(f"v_mov_b32 v{V_WA+k}, v{V_WB+k}")
    I("s_waitcnt vmcnt(26)"); I("s_barrier")
    stamp()
    for r in p1_reads(0, 0): I(r)
    d = dma_chunk()
    p1_iter([], d[:6], 11, first=True)
    I(f"s_mov_b32 s{S_I}, 1")
    A("L_p1:")
    p1_iter(d[6:], d[:6], 11)
    I(f"s_add_u32 s{S_I}, s{S_I}, 1"); I(f"s_cmp_lt_u32 s{S_I}, 13"); I("s_cbranch_scc1 L_p1")
    p1_iter(d[6:], [], 11)
    kv = dma_kv("V", True) + dma_kv("K", False) + dma_kv("V", True) + dma_kv("K", False) + dma_kv("V", True)
    p1_iter([], kv[:8], 0)
    p1_iter(kv[8:16], kv[16:], None, last=True)
    stamp()
    I(f"s_mov_b32 s{S_T0}, {f2u(SCALE):#x}"); I(f"s_mov_b32 s{S_T1}, s{S_T0}")
    I(f"s_mul_i32 s{S_T2}, s{S_WAVE}, 14336"); I(f"v_add_u32 v{V_T0}, s{S_T2}, v{V_LANE16}")
    I(f"s_xor_b32 s{S_T3}, s{S_WAVE}, 1"); I(f"s_mul_i32 s{S_T3}, s{S_T3}, 14336"); I(f"v_add_u32 v{V_T1}, s{S_T3}, v{V_LANE16}")
    I("s_nop 4")
    for rt in range(7):
        for kp in range(2):
            b = OK_ + 16 * rt + 8 * kp
            for k in range(8): I(f"v_mul_f32 v{b+k}, s{S_T0}, v{b+k}")
            t = VF + 4 * ((2 * rt + kp) % 8)
            for k in range(4): I(f"v_cvt_pk_bf16_f32 v{t+k}, v{b+2*k}, v{b+2*k+1}")
            I(f"ds_write_b128 v{V_T0}, {vr(t)} offset:{(2*rt+kp)*1024}")
            for k in range(4): I(f"v_accvgpr_write_b32 a{QA+16*rt+4*kp+k}, v{t+k}")
    I(f"s_mov_b32 s{S_KVR}, {(RING-1)*32768}"); I(f"s_mov_b32 s{S_KVR2}, {(RING-1)*32768}")
    I(f"v_add_u32 v{V_KA}, s{S_KVR}, v{V_KB}")
    for pre, rd in k_reads():
        for x in (pre + rd).split("\n"): I(x)
    I("s_waitcnt lgkmcnt(0)"); I("s_barrier")
    for rt in range(7):
        for kp in range(2):
            I(f"ds_read_b128 {ar(QA+16*rt+8+4*kp)}, v{V_T1} offset:{(2*rt+kp)*1024}")
    I("s_waitcnt lgkmcnt(0)"); I("s_barrier")
    for gtxt in dma_kv("K", False) + dma_kv("V", True):
        for x in gtxt.split("\n"): I(x)
    for rt in range(7):
        for m in qk_mfmas(rt, NM + 4 * rt, usenm=False, kts=(0,)): I(m)
    I("s_nop 7")
    for rt in range(7):
        b = NM + 4 * rt
        I(f"v_max3_f32 v{b}, v{b}, v{b+1}, v{b+2}"); I(f"v_max_f32 v{b}, v{b}, v{b+3}")
    A("L_havemax:")
    multi_reduce([NM + 4 * rt for rt in range(7)], [NM + 4 * rt + 1 for rt in range(7)], "v_max_f32")
    for rt in range(7):
        b = NM + 4 * rt
        I(f"v_sub_f32 v{b}, 0, v{b}")
        for k in range(1, 4): I(f"v_mov_b32 v{b+k}, v{b}")
    for k in range(112): I(f"v_mov_b32 v{OK_+k}, 0")
    for k in range(112): I(f"v_accvgpr_write_b32 a{OS_+k}, 0")
    for k in range(32): I(f"v_mov_b32 v{VF+k}, 0")
    for k in range(12): I(f"v_mov_b32 v{PB+k}, 0")
    for k in range(7): I(f"v_mov_b32 v{LS+k}, 0")
    for k in range(8): I(f"v_mov_b32 v{SB+16+k}, 0xf149f2ca")
    I("s_waitcnt vmcnt(24)"); I("s_barrier")
    stamp()
    I(f"s_mov_b32 s{S_I}, 0")
    A(".p2align 6")
    A("L_att:")
    kvd = dma_kv("K", False) + dma_kv("V", True)
    for n in range(7):
        mf = qk_mfmas(n, SB + 8 * COL[n]) + pv_mfmas((n - 2) % 7)
        sm = softmax_fill((n - 1) % 7)
        ex = [[] for _ in range(16)]
        if n == 0: I("s_waitcnt lgkmcnt(0)")
        if n == 1:
            ex[0].append(f"v_add_u32 v{V_VA}, s{S_KVR2}, v{V_VB}")
            vrd = v_reads()
            for dq, (pre, rd) in enumerate(vrd):
                if pre: ex[dq].append(pre.strip())
                ex[8 + dq].append(rd)
            ex[15].append(ring_dec(S_KVR2))
        if n == 2: ex[7].append("s_waitcnt lgkmcnt(0)")
        if n in (2, 3, 4, 5):
            ex[3].append(kvd[2 * (n - 2)]); ex[11].append(kvd[2 * (n - 2) + 1])
        if n == 5:
            ex[4].append(ring_dec(S_KVR))
            ex[6].append(f"v_add_u32 v{V_KA}, s{S_KVR}, v{V_KB}")
            krd = k_reads()
            pres = [p.strip() for p, _ in krd if p]
            for k, p in enumerate(pres): ex[8 + 2 * k].append(p)
            ex[15].append(f"s_waitcnt vmcnt(24)\ns_barrier")
        if n == 6:
            for k, (pre, rd) in enumerate(k_reads()): ex[k].append(rd)
            ex[13].append(f"s_add_u32 s{S_I}, s{S_I}, 1\ns_cmp_lt_u32 s{S_I}, 16")
        emit_sched(mf, sm, ex)
    I("s_cbranch_scc1 L_att")
    sm = softmax_fill(6)
    sm8 = [sm[2 * k] + ["s_nop 0"] + sm[2 * k + 1] for k in range(8)]
    emit_sched(pv_mfmas(5), sm8)
    I("s_nop 1")
    for m in pv_mfmas(6): I(m)
    stamp()
    multi_reduce([LS + rt for rt in range(7)], [V_AT + rt for rt in range(7)], "v_add_f32")
    I(f"v_max3_f32 v{V_TMP}, v{LS}, v{LS+1}, v{LS+2}"); I(f"v_max3_f32 v{V_TMP+1}, v{LS+3}, v{LS+4}, v{LS+5}")
    I(f"v_add_f32 v{V_TMP}, v{LS}, v{LS+1}")
    for k in range(2, 7): I(f"v_add_f32 v{V_TMP}, v{V_TMP}, v{LS+k}")
    I(f"s_mov_b32 s{S_T0}, {f2u(2.0**40):#x}")
    I(f"v_cmp_nlt_f32 vcc, v{V_TMP}, s{S_T0}".replace(f"v{V_TMP}, s{S_T0}", f"v{V_TMP}, s{S_T0}"))
    I("s_waitcnt vmcnt(0) lgkmcnt(0)")
    I("s_barrier")
    I(f"s_cmp_lg_u64 vcc, 0"); I(f"s_cselect_b32 s{S_T1}, 1, 0"); I(f"v_mov_b32 v{V_TMP+1}, s{S_T1}")
    I(f"s_lshl_b32 s{S_T2}, s{S_WAVE}, 2"); I(f"s_add_u32 s{S_T2}, s{S_T2}, {FLAG_OFF}"); I(f"v_mov_b32 v{V_TMP+2}, s{S_T2}")
    I(f"ds_write_b32 v{V_TMP+2}, v{V_TMP+1}")
    I(f"s_mul_i32 s{S_T2}, s{S_WAVE}, 28672"); I(f"v_add_u32 v{V_T0}, s{S_T2}, v{V_LANE16}")
    I(f"s_xor_b32 s{S_T3}, s{S_WAVE}, 1"); I(f"s_mul_i32 s{S_T3}, s{S_T3}, 28672"); I(f"v_add_u32 v{V_T1}, s{S_T3}, v{V_LANE16}")
    for k in range(28): I(f"ds_write_b128 v{V_T0}, {ar(OS_+4*k)} offset:{k*1024}")
    ST = FLAG_OFF + 256
    I(f"s_mul_i32 s{S_T2}, s{S_WAVE}, 3584"); I(f"s_add_u32 s{S_T2}, s{S_T2}, {ST}"); I(f"v_lshrrev_b32 v{V_TMP+3}, 1, v{V_LANE16}"); I(f"v_add_u32 v{V_TMP+4}, s{S_T2}, v{V_TMP+3}")
    I(f"s_xor_b32 s{S_T3}, s{S_WAVE}, 1"); I(f"s_mul_i32 s{S_T3}, s{S_T3}, 3584"); I(f"s_add_u32 s{S_T3}, s{S_T3}, {ST}"); I(f"v_add_u32 v{V_TMP+5}, s{S_T3}, v{V_TMP+3}")
    for rt in range(7):
        I(f"v_mov_b32 v{NM+4*rt+1}, v{LS+rt}")
        I(f"ds_write_b64 v{V_TMP+4}, {vr(NM+4*rt,2)} offset:{rt*512}")
    I(f"v_mov_b32 v{V_TMP+2}, {FLAG_OFF}")
    I("s_waitcnt lgkmcnt(0)"); I("s_barrier")
    I(f"ds_read_b128 {vr(V_AT)}, v{V_TMP+2}")
    for rt in range(7): I(f"ds_read_b64 {vr(NM+4*rt+2,2)}, v{V_TMP+5} offset:{rt*512}")
    I("s_waitcnt lgkmcnt(7)")
    I(f"v_or3_b32 v{V_AT}, v{V_AT}, v{V_AT+1}, v{V_AT+2}"); I(f"v_or_b32 v{V_AT}, v{V_AT}, v{V_AT+3}"); I("s_nop 0")
    I(f"v_readfirstlane_b32 s{S_T0}, v{V_AT}"); I("s_nop 3")
    I(f"s_andn2_b32 s{S_T0}, s{S_T0}, s{S_FB}"); I("s_cbranch_scc1 L_fallback")
    RB = 128
    def recv(rt):
        for dq in range(4): I(f"ds_read_b128 {vr(RB+16*(rt%4)+4*dq)}, v{V_T1} offset:{(4*rt+dq)*1024}")
    for rt in range(3): recv(rt)
    I("s_waitcnt lgkmcnt(12)")
    for rt in range(7):
        b = NM + 4 * rt
        I(f"v_min_f32 v{V_TMP}, v{b}, v{b+2}")
        I(f"v_sub_f32 v{b}, v{V_TMP}, v{b}")
        I(f"v_sub_f32 v{b+2}, v{V_TMP}, v{b+2}")
        I(f"v_exp_f32 v{b}, v{b}"); I(f"v_exp_f32 v{b+2}, v{b+2}"); I("s_nop 0")
        I(f"v_mul_f32 v{b+1}, v{b+1}, v{b}"); I(f"v_fma_f32 v{b+1}, v{b+3}, v{b+2}, v{b+1}")
        I(f"v_rcp_f32 v{b+1}, v{b+1}"); I("s_nop 0")
        I(f"v_mul_f32 v{b}, v{b}, v{b+1}"); I(f"v_mul_f32 v{b+2}, v{b+2}, v{b+1}")
    I(f"s_lshl_b32 s{S_T0}, s{S_B}, 1"); I(f"s_add_u32 s{S_T0}, s{S_T0}, s{S_R}"); I(f"s_lshl_b32 s{S_T0}, s{S_T0}, 5"); I(f"s_add_u32 s{S_T0}, s{S_T0}, s{S_H}")
    I(f"s_lshl_b32 s{S_T0}, s{S_T0}, 1"); I(f"s_add_u32 s{S_T0}, s{S_T0}, s{S_C}"); I(f"s_mul_i32 s{S_T0}, s{S_T0}, 14336")
    for rt in range(7):
        if rt + 3 < 7: recv(rt + 3)
        I(f"s_waitcnt lgkmcnt({4*min(3, 6-rt)})")
        b = NM + 4 * rt; o = OK_ + 16 * rt; rb = RB + 16 * (rt % 4)
        for k in range(16): I(f"v_mul_f32 v{o+k}, v{o+k}, v{b}")
        for k in range(16): I(f"v_fma_f32 v{o+k}, v{rb+k}, v{b+2}, v{o+k}")
        for k in range(8): I(f"v_cvt_pk_bf16_f32 v{o+k}, v{o+2*k}, v{o+2*k+1}")
        I(f"s_add_u32 s{S_T1}, s{S_T0}, {rt*1024}"); I(f"s_add_u32 s{S_T2}, s{S_T0}, {rt*1024+7168}")
        I(f"buffer_store_dwordx4 {vr(o)}, v{V_LANE16}, {sr(S_O,4)}, s{S_T1} offen {O.pol_ost}")
        I(f"buffer_store_dwordx4 {vr(o+4)}, v{V_LANE16}, {sr(S_O,4)}, s{S_T2} offen {O.pol_ost}")
    stamp()
    store_stamps(1 << 26)
    A("L_k1_done:")
    I("s_endpgm")
    A("L_fallback:")
    I(f"s_mov_b32 s{S_FB}, 1")
    I("s_waitcnt lgkmcnt(0)"); I("s_barrier")
    for rt in range(7): I(f"v_mov_b32 v{NM+4*rt}, 0xff800000")
    I(f"s_mov_b32 s{S_KVG}, s{S_W4K}"); I(f"s_mov_b32 s{S_KVD}, s{S_W4K}"); I(f"v_mov_b32 v{V_KA}, v{V_KB}")
    I(f"s_mov_b32 s{S_I}, 0")
    A("L_fb_loop:")
    for gtxt in dma_kv("K", False):
        for x in gtxt.split("\n"): I(x)
    I(f"s_add_u32 s{S_KVG}, s{S_KVG}, 16384")
    I("s_waitcnt vmcnt(0)"); I("s_barrier")
    for pre, rd in k_reads():
        for x in (pre + rd).split("\n"): I(x)
    I("s_waitcnt lgkmcnt(0)"); I("s_barrier")
    for rt in range(7):
        for m in qk_mfmas(rt, SB, usenm=False): I(m)
        I("s_nop 7")
        b = NM + 4 * rt
        for k in range(4): I(f"v_max3_f32 v{b}, v{b}, v{SB+2*k}, v{SB+2*k+1}")
    I(f"s_add_u32 s{S_I}, s{S_I}, 1"); I(f"s_cmp_lt_u32 s{S_I}, 16"); I("s_cbranch_scc1 L_fb_loop")
    I(f"s_mov_b32 s{S_KVG}, s{S_W4K}"); I(f"s_add_u32 s{S_KVD}, s{S_W4K}, {(RING-1)*32768}")
    for st in range(RING - 1):
        for gtxt in dma_kv("K", False) + dma_kv("V", True):
            for x in gtxt.split("\n"): I(x)
    I(f"s_mov_b32 s{S_KVR}, {(RING-1)*32768}"); I(f"s_mov_b32 s{S_KVR2}, {(RING-1)*32768}")
    I(f"v_add_u32 v{V_KA}, s{S_KVR}, v{V_KB}")
    I("s_waitcnt vmcnt(0)"); I("s_barrier")
    for pre, rd in k_reads():
        for x in (pre + rd).split("\n"): I(x)
    I("s_branch L_havemax")

def gen_k2():
    nstamp[0] = 0
    ACC = 16
    AF = 128
    BF = 0
    S_WO = 8; S_OO = 12; S_OUT = 16
    S_OG = 33; S_WG = 34; S_LB = 35; S_RH = 29; S_CG = 30
    V_WOF = 2; V_RA = 3; V_L2 = 4
    A(".globl k2_kernel\n.p2align 8\n.type k2_kernel,@function\nk2_kernel:")
    I("s_cmp_ge_u32 s2, 256"); I("s_cbranch_scc1 L_k2_done")
    stamp()
    I("s_load_dwordx4 s[52:55], s[0:1], 32")
    I(f"s_load_dwordx2 {sr(S_WSP)}, s[0:1], 56")
    I("s_getpc_b64 s[4:5]")
    I("v_lshlrev_b32 v14, 6, v0")
    I("global_load_dword v15, v14, s[4:5]")
    I("v_lshrrev_b32 v14, 6, v0")
    I(f"v_and_b32 v0, 63, v0")
    I(f"v_readfirstlane_b32 s{S_WAVE}, v14")
    I(f"s_and_b32 s{S_T0}, s2, 7"); I(f"s_lshr_b32 s{S_T1}, s2, 3")
    I(f"s_lshr_b32 s{S_RH}, s{S_T0}, 1"); I(f"s_lshl_b32 s{S_RH}, s{S_RH}, 2"); I(f"s_and_b32 s{S_T2}, s{S_T1}, 3"); I(f"s_add_u32 s{S_RH}, s{S_RH}, s{S_T2}")
    I(f"s_and_b32 s{S_CG}, s{S_T0}, 1"); I(f"s_lshl_b32 s{S_CG}, s{S_CG}, 3"); I(f"s_lshr_b32 s{S_T2}, s{S_T1}, 2"); I(f"s_add_u32 s{S_CG}, s{S_CG}, s{S_T2}")
    I(f"s_lshl_b32 s{S_OG}, s{S_RH}, 2"); I(f"s_add_u32 s{S_OG}, s{S_OG}, s{S_WAVE}"); I(f"s_mul_i32 s{S_OG}, s{S_OG}, {32*7168}")
    I(f"s_lshl_b32 s{S_WG}, s{S_WAVE}, 21"); I(f"s_lshl_b32 s{S_T0}, s{S_CG}, 7"); I(f"s_add_u32 s{S_WG}, s{S_WG}, s{S_T0}")
    I(f"s_lshl_b32 s{S_LB}, s{S_WAVE}, 14")
    T = 8
    I(f"v_lshlrev_b32 v{V_LANE16}, 4, v0"); I(f"v_add_u32 v{V_L2}, 4096, v{V_LANE16}")
    I(f"v_lshrrev_b32 v{T}, 4, v0"); I(f"v_lshlrev_b32 v{T+1}, 1, v{T}"); I(f"v_and_b32 v{T+2}, 7, v0"); I(f"v_xor_b32 v{T+1}, v{T+1}, v{T+2}")
    I(f"v_lshrrev_b32 v{T+2}, 3, v0"); I(f"v_lshlrev_b32 v{T+2}, 11, v{T+2}"); I(f"v_lshl_add_u32 v{V_WOF}, v{T+1}, 4, v{T+2}")
    I(f"v_bfe_u32 v{T+1}, v0, 2, 2"); I(f"v_lshl_add_u32 v{T+1}, v{T}, 2, v{T+1}")
    I(f"v_bfe_u32 v{T+2}, v{T+1}, 1, 2"); I(f"v_xor_b32 v{T+2}, s{S_WAVE}, v{T+2}")
    I(f"v_lshlrev_b32 v{T+1}, 7, v{T+1}"); I(f"v_lshl_add_u32 v{T+1}, v{T+2}, 5, v{T+1}"); I(f"v_and_b32 v{T+2}, 3, v0"); I(f"v_lshl_add_u32 v{T+1}, v{T+2}, 3, v{T+1}")
    I(f"v_add_u32 v{T}, s{S_LB}, v{T+1}")
    for cq in range(1, 4): I(f"v_xor_b32 v{T+cq}, {cq*32}, v{T}")
    RA = T
    I("s_waitcnt lgkmcnt(0)")
    srd(S_WO, 52, 8388608); srd(S_OO, S_WSP, 14680064); srd(S_OUT, 54, 3670016)
    def loads(buf):
        g = []
        for j in range(4):
            pre = f"s_add_u32 m0, s{S_LB}, {buf*4096 + j*1024}\n" + (f"s_add_u32 s{S_WG}, s{S_WG}, 16384\n" if j else "s_nop 0\n")
            post = f"\ns_add_u32 s{S_WG}, s{S_WG}, 16384" if j == 3 else ""
            g.append(pre + f"buffer_load_dwordx4 v{V_WOF}, {sr(S_WO,4)}, s{S_WG} offen {pol(O.pol_wo)}lds" + post)
        for rt in range(7):
            va = V_LANE16 if rt < 4 else V_L2
            post = f"\ns_add_u32 s{S_OG}, s{S_OG}, 7168" if rt == 6 else ""
            g.append(f"buffer_load_dwordx4 {ar(BF+28*buf+4*rt)}, v{va}, {sr(S_OO,4)}, s{S_OG} offen offset:{(rt%4)*1024} {O.pol_old}" + post)
        return g
    def areads(buf):
        r = []
        f = AF + 16 * (buf % 2)
        for cq in range(4):
            for e in range(2):
                r.append(f"ds_read_b64_tr_b16 {vr(f+4*cq+2*e,2)}, v{RA+cq} offset:{buf*4096 + e*2048}")
        return r
    def mfmas(buf):
        f = AF + 16 * (buf % 2)
        return [f"v_mfma_f32_16x16x32_bf16 {vr(ACC+16*rt+4*cq)}, {vr(f+4*cq)}, {ar(BF+28*buf+4*rt)}, {vr(ACC+16*rt+4*cq)}" for rt in range(7) for cq in range(4)]
    for buf in range(3):
        for gtxt in loads(buf):
            for x in gtxt.split("\n"): I(x)
    for k in range(112): I(f"v_mov_b32 v{ACC+k}, 0")
    I("s_waitcnt vmcnt(29)")
    stamp()
    for r in areads(0): I(r)
    I(f"s_mov_b32 s{S_I}, 0")
    A(".p2align 6")
    A("L_k2:")
    for buf in range(4):
        I("s_waitcnt vmcnt(18) lgkmcnt(0)")
        ex = spread(areads((buf + 1) % 4), 28, 0, 12)
        ld = spread(loads((buf + 3) % 4), 28, 1, 27)
        if buf == 3: ld[27].append(f"s_add_u32 s{S_I}, s{S_I}, 1\ns_cmp_lt_u32 s{S_I}, 8")
        emit_sched(mfmas(buf), ex, ld)
    I("s_cbranch_scc1 L_k2")
    stamp()
    I("s_waitcnt vmcnt(0) lgkmcnt(0)"); I("s_barrier")
    for cq in range(1, 4):
        I(f"s_xor_b32 s{S_T0}, s{S_WAVE}, {cq}"); I(f"s_mul_i32 s{S_T0}, s{S_T0}, {21*1024}"); I(f"v_add_u32 v{T+cq}, s{S_T0}, v{V_LANE16}")
    I(f"s_mul_i32 s{S_T0}, s{S_WAVE}, {21*1024}"); I(f"v_add_u32 v{T}, s{S_T0}, v{V_LANE16}")
    for cq in range(1, 4):
        for rt in range(7): I(f"ds_write_b128 v{T+cq}, {vr(ACC+16*rt+4*cq)} offset:{((cq-1)*7+rt)*1024}")
    I("s_waitcnt lgkmcnt(0)"); I("s_barrier")
    for rt in range(7):
        for cq in range(1, 4): I(f"ds_read_b128 {vr(ACC+16*rt+4*cq)}, v{T} offset:{((cq-1)*7+rt)*1024}")
    I(f"v_and_b32 v{T+4}, 15, v0"); I(f"v_lshlrev_b32 v{T+4}, 11, v{T+4}"); I(f"v_lshrrev_b32 v{T+5}, 4, v0"); I(f"v_lshl_add_u32 v{T+4}, v{T+5}, 3, v{T+4}")
    I(f"s_mul_i32 s{S_T0}, s{S_RH}, {112*2048}"); I(f"s_lshl_b32 s{S_T1}, s{S_CG}, 7"); I(f"s_add_u32 s{S_T0}, s{S_T0}, s{S_T1}"); I(f"s_lshl_b32 s{S_T1}, s{S_WAVE}, 5"); I(f"s_add_u32 s{S_T0}, s{S_T0}, s{S_T1}")
    for rt in range(7):
        I(f"s_waitcnt lgkmcnt({min(15, 3*(6-rt))})")
        o = ACC + 16 * rt
        for k in range(4):
            I(f"v_add_f32 v{o+k}, v{o+k}, v{o+4+k}"); I(f"v_add_f32 v{o+8+k}, v{o+8+k}, v{o+12+k}")
        for k in range(4): I(f"v_add_f32 v{o+k}, v{o+k}, v{o+8+k}")
        I(f"v_cvt_pk_bf16_f32 v{o}, v{o}, v{o+1}"); I(f"v_cvt_pk_bf16_f32 v{o+1}, v{o+2}, v{o+3}")
        I(f"buffer_store_dwordx2 {vr(o,2)}, v{T+4}, {sr(S_OUT,4)}, s{S_T0} offen")
        I(f"s_add_u32 s{S_T0}, s{S_T0}, {16*2048}")
    stamp()
    store_stamps((1 << 26) + (1 << 20))
    A("L_k2_done:")
    I("s_endpgm")

def kd(name, vg, acc):
    A(f".amdhsa_kernel {name}\n  .amdhsa_next_free_vgpr {vg}\n  .amdhsa_next_free_sgpr 102\n  .amdhsa_accum_offset {acc}\n  .amdhsa_group_segment_fixed_size 0\n  .amdhsa_kernarg_size 64\n  .amdhsa_user_sgpr_count 2\n  .amdhsa_user_sgpr_kernarg_segment_ptr 1\n  .amdhsa_system_sgpr_workgroup_id_x 1\n.end_amdhsa_kernel")

def main(fn):
    del L[:]
    nstamp[0] = 0
    A("; @launch kernel=k1_kernel grid=(256,1,1) block=(256,1,1) lds=163840")
    A("; @launch kernel=k2_kernel grid=(256,1,1) block=(256,1,1) lds=86016")
    A('.amdgcn_target "amdgcn-amd-amdhsa--gfx950"')
    A(".text")
    gen_k1()
    gen_k2()
    A("  .fill 8192, 4, 0xBF800000")
    A('.section .rodata,"a"\n.p2align 6')
    kd("k1_kernel", 512, 256)
    A(".p2align 6")
    kd("k2_kernel", 272, 160)
    open(fn, "w").write("\n".join(L) + "\n")

if __name__ == "__main__":
    fn = sys.argv[1]
    for kv in sys.argv[2:]:
        k, v = kv.split("=")
        cur = getattr(O, k)
        setattr(O, k, (v == "1") if isinstance(cur, bool) else (int(v) if isinstance(cur, int) else v.replace("+", " ")))
    main(fn)
```

```python
import sys, math, struct
NAME = "standalone__mha_block_cached__near_ridge"

class Opt:
    pol_kv = "nt"; pol_x = ""; pol_wq = ""; pol_ost = ""; pol_old = ""; pol_wo = ""
    stamps = False
    rotmul_h = 8; rotmul_b = 8
    k2_depth = 5
    k2_rot_c = 1; k2_rot_r = 2
    pk = True
    k2_hot = False
    abl_nodma = False; abl_nobar = False
O = Opt()

L = []
def A(s): L.append(s)
def I(s):
    for x in s.split("\n"):
        if x.strip(): L.append("  " + x.strip())
def vr(b, n=4): return f"v[{b}:{b+n-1}]"
def ar(b, n=4): return f"a[{b}:{b+n-1}]"
def sr(b, n=2): return f"s[{b}:{b+n-1}]"
def pol(p): return (p + " ") if p else ""
def f2u(x): return struct.unpack("<I", struct.pack("<f", x))[0]
MF = "v_mfma_f32_16x16x32_bf16"

class Gaps:
    def __init__(self, mf):
        self.mf = list(mf); n = len(self.mf)
        self.s = [[] for _ in range(n)]; self.m = [[] for _ in range(n)]; self.v = [[] for _ in range(n)]; self.p = [[] for _ in range(n)]
    def chain(self, instrs, gaps):
        assert len(gaps) >= len(instrs), (instrs, gaps)
        for x, g in zip(instrs, gaps): self.s[g].append(x)
    def emit(self):
        for i, m in enumerate(self.mf):
            I(m)
            for x in self.s[i] + self.m[i] + self.v[i] + self.p[i]: I(x)

OK_ = 16; VF = 128; SB = 160; PB = 184; NM = 196; LS = 224
V_LANE16 = 1
V_KVOFF = 4
V_XB = 8; V_WB = 10; V_KB = 12; V_VB = 13; V_T0 = 14; V_T1 = 15
V_XOFF = 200
V_WOFF = 207
V_XA = 232; V_WA = 234
V_KA = 232
V_VA = 236
V_TMP = 244
OS_ = 0; QA = 112; KF = 224
FR = 112
COL = [0, 1, 0, 1, 0, 1, 2]
S_X = 8; S_K = 12; S_V = 16; S_WQ = 20; S_O = 24
S_WAVE = 28; S_B = 29; S_H = 30; S_R = 31; S_C = 32
S_OX = 33; S_OW = 34; S_DST = 35; S_W7K = 36; S_WXT = 37; S_I = 38
S_T0 = 39; S_T1 = 40; S_T2 = 41; S_T3 = 42
S_KVG = 43; S_SL0 = 44; S_SL1 = 45; S_SL2 = 46
S_FB = 47; S_W4K = 48; S_W4KK = 49
S_WSP = 50; S_ST = 60
XT = 28672; WT = 16384; STG = XT + WT
RING = 5; VOFF = 0; KOFF = 16384
FLAG_OFF = 114688
SCALE = math.log2(math.e) / math.sqrt(128.0)

nstamp = [0]
def stamp():
    if not O.stamps: return
    k = S_ST + 4 * nstamp[0]
    I(f"s_memtime {sr(k)}"); I(f"s_memrealtime {sr(k+2)}"); I("s_waitcnt lgkmcnt(0)")
    nstamp[0] += 1
def store_stamps(wsoff):
    if not O.stamps: return
    n = nstamp[0]
    I(f"s_cmp_lg_u32 s{S_WAVE}, 0"); I("s_cbranch_scc1 L_nost%d" % wsoff)
    I("s_nop 2")
    for i in range(4 * n): I(f"v_mov_b32 v{128+i}, s{S_ST+i}")
    I(f"s_mul_i32 s{S_T0}, s2, {16*n}"); I(f"s_add_u32 s{S_T0}, s{S_T0}, {wsoff}"); I(f"v_mov_b32 v15, s{S_T0}")
    I("v_cmp_eq_u32 vcc, 0, v0"); I(f"s_and_saveexec_b64 {sr(S_T1)}, vcc")
    for i in range(n): I(f"global_store_dwordx4 v15, {vr(128+4*i)}, {sr(S_WSP)} offset:{16*i}")
    A("L_nost%d:" % wsoff)
def srd(d, ptr, nbytes, shift=None):
    if shift is None:
        I(f"s_mov_b32 s{d}, s{ptr}"); I(f"s_mov_b32 s{d+1}, s{ptr+1}"); I(f"s_mov_b32 s{d+2}, {nbytes}")
    else:
        I(f"s_add_u32 s{d}, s{ptr}, s{shift}"); I(f"s_addc_u32 s{d+1}, s{ptr+1}, 0"); I(f"s_sub_u32 s{d+2}, {nbytes}, s{shift}")
    I(f"s_mov_b32 s{d+3}, 0x20000")

def p1_dma():
    g = []
    for j in range(7):
        pre = [f"s_add_u32 m0, s{S_DST}, s{S_W7K}"] if j == 0 else ([f"s_add_u32 m0, m0, 4096"] if j == 4 else [])
        g.append((pre, f"buffer_load_dwordx4 v{V_XOFF+j}, {sr(S_X,4)}, s{S_OX} offen offset:{(j%4)*1024} {pol(O.pol_x)}lds"))
    for j in range(4):
        pre = [f"s_add_u32 m0, s{S_DST}, s{S_WXT}"] if j == 0 else []
        g.append((pre, f"buffer_load_dwordx4 v{V_WOFF+j}, {sr(S_WQ,4)}, s{S_OW} offen offset:{j*1024} {pol(O.pol_wq)}lds"))
    upd = [f"s_add_u32 s{S_OX}, s{S_OX}, 128", f"s_and_b32 s{S_OX}, s{S_OX}, 2047", f"s_lshl_b32 s{S_OW}, s{S_OX}, 12"]
    return g, upd
def dst_upd():
    return [f"s_sub_u32 s{S_DST}, s{S_DST}, {STG}", f"s_cselect_b32 s{S_DST}, {2*STG}, s{S_DST}"]
def emit_dma(g):
    for x in g:
        pre, d = x[0], x[1]
        for p in pre: I(p)
        if pre: I("s_nop 0")
        I(d)
def kv_dma(which, slot):
    s, off = (S_K, S_W4KK) if which == "K" else (S_V, S_W4K)
    return [([f"s_add_u32 m0, {slot}, s{off}"] if j == 0 else [],
             f"buffer_load_dwordx4 v{V_KVOFF+j}, {sr(s,4)}, s{S_KVG} offen offset:{j*1024} {pol(O.pol_kv)}lds") for j in range(4)]
KVG_UPD = f"s_add_u32 s{S_KVG}, s{S_KVG}, 16384"
def p1_acc(rt): return OK_ + 16 * rt if rt < 5 else VF + 16 * (rt - 5)
def p1_reads(s, buf):
    fa = FR + 44 * buf; fb = fa + 16
    r = []
    for t in range(4):
        kp, a = t // 2, t % 2
        for e in range(2):
            r.append(f"ds_read_b64_tr_b16 {ar(fa+4*t+2*e,2)}, v{V_WA+kp} offset:{XT + s*8192 + e*1024 + a*8}")
    for rt in range(7): r.append(f"ds_read_b128 {ar(fb+4*rt)}, v{V_XA+s} offset:{rt*2048}")
    return r[0:2] + r[8:9] + r[2:8] + r[9:]
def p1_mfmas(buf, first=False):
    fa = FR + 44 * buf; fb = fa + 16
    return [f"{MF} {vr(p1_acc(rt)+4*t)}, {ar(fa+4*t)}, {ar(fb+4*rt)}, " + ("0" if first else vr(p1_acc(rt)+4*t)) for rt in range(7) for t in range(4)]
def place_dma(G, dmas, gaps):
    assert len(gaps) >= len(dmas)
    for d, g in zip(dmas, gaps):
        for p in d[0]: G.s[g - 1].append(p)
        G.m[g].append(d[1])
        if len(d) > 2:
            for p in d[2]: G.s[g + 1].append(p)
RD_GAPS = [0, 1, 3, 4, 5, 6, 8, 9, 10, 11, 13, 14, 15, 16, 18]
DM_GAPS = [2, 7, 12, 17, 22, 26]
def p1_iter(dma_a, upd_a, dma_b, vm, last=False, first=False, loop=None, tail_valu=None):
    G = Gaps(p1_mfmas(0, first))
    for k, r in zip(RD_GAPS, p1_reads(1, 1)): G.m[k].append(r)
    place_dma(G, dma_a, DM_GAPS)
    G.chain([f"s_sub_u32 s{S_T0}, s{S_T0}, {STG}", f"s_cselect_b32 s{S_T0}, {2*STG}, s{S_T0}"], [8, 9])
    for k, (d, b) in enumerate([(V_XA, V_XB), (V_WA, V_WB), (V_WA + 1, V_WB + 1), (V_XA + 1, V_XB + 1)]):
        G.v[[19, 19, 20, 20][k]].append(f"v_add_u32 v{d}, s{S_T0}, v{b}")
    G.chain(upd_a, [23, 23, 24, 24, 25, 25])
    G.s[27].append("s_waitcnt lgkmcnt(0)" + (f" vmcnt({vm})" if vm is not None else ""))
    G.s[27].append("s_barrier")
    G.emit()
    G = Gaps(p1_mfmas(1))
    if not last:
        for k, r in zip(RD_GAPS, p1_reads(0, 0)): G.m[k].append(r)
    place_dma(G, dma_b, DM_GAPS)
    if loop:
        G.chain([f"s_add_u32 s{S_I}, s{S_I}, 1"], [9])
        G.s[27].append(f"s_cmp_lt_u32 s{S_I}, {loop}")
    if not last: G.s[27].append("s_waitcnt lgkmcnt(0)")
    if tail_valu:
        for g, x in tail_valu: G.v[g].append(x)
    G.emit()

def k_read(f): return f"ds_read_b128 {ar(KF+4*f)}, v{V_KA+f//2} offset:{(f%2)*4096}"
def v_read(dq, e): return f"ds_read_b64_tr_b16 {vr(VF+4*dq+2*e,2)}, v{V_VA+dq}" + (" offset:4096" if e else "")
def k_addr(slot): return [f"v_add_u32 v{V_KA}, {slot}, v{V_KB}"] + [f"v_xor_b32 v{V_KA+q}, {q*64}, v{V_KA}" for q in range(1, 4)]
def v_addr(slot): return [f"v_add_u32 v{V_VA}, {slot}, v{V_VB}"] + [f"v_xor_b32 v{V_VA+d}, {d*32}, v{V_VA}" for d in range(1, 8)]
def oacc(rt, dq): return vr(OK_ + 16 * rt + 4 * dq) if dq < 4 else ar(OS_ + 16 * rt + 4 * (dq - 4))
def qk_mfmas(rt, S, usenm=True):
    m = []
    for q in range(4):
        for kt in range(2):
            d = S + 4 * kt
            c = (vr(NM + 4 * rt) if usenm else "0") if q == 0 else vr(d)
            m.append(f"{MF} {vr(d)}, {ar(KF+4*(2*q+kt))}, {ar(QA+16*rt+4*q)}, {c}")
    return m
def pv_mfmas(rt, first=False):
    P = PB + 4 * COL[rt]
    return [f"{MF} {oacc(rt,dq)}, {vr(VF+4*dq)}, {vr(P)}, " + ("0" if first else oacc(rt, dq)) for dq in range(8)]
def sm_ops(rt, scol=None):
    S = SB + 8 * (COL[rt] if scol is None else scol); P = PB + 4 * COL[rt]
    e = [f"v_exp_f32 v{S+k}, v{S+k}" for k in range(8)]
    a = [f"v_add_f32 v{LS+rt}, v{LS+rt}, v{S+k}" for k in range(8)]
    c = [f"v_cvt_pk_bf16_f32 v{P+k}, v{S+2*k}, v{S+2*k+1}" for k in range(4)]
    return e, a, c
def put_softmax(G, base, rt):
    e, a, c = sm_ops(rt)
    for k in range(8):
        G.v[base + 2 * k].append(e[k])
        if k % 2 == 1: G.v[base + 2 * k + 1].append(c[k // 2])
        G.v[base + 2 * k + 1].append(a[k])
def sm0_ops(rt):
    scol = 2 if rt == 0 else COL[rt]
    S = SB + 8 * scol; b = NM + 4 * rt; t = V_TMP
    e, a, c = sm_ops(rt, scol)
    a[0] = f"v_mov_b32 v{LS+rt}, v{S}"
    g = [[f"v_max3_f32 v{t}, v{S}, v{S+1}, v{S+2}", f"v_max3_f32 v{t+1}, v{S+3}, v{S+4}, v{S+5}", f"v_max3_f32 v{t}, v{t}, v{S+6}, v{S+7}", f"v_max_f32 v{t}, v{t}, v{t+1}", f"v_mov_b32 v{t+1}, v{t}", "s_nop 0"],
         [f"v_permlane32_swap_b32 v{t}, v{t+1}", "s_nop 0", f"v_max_f32 v{t}, v{t}, v{t+1}", f"v_mov_b32 v{t+1}, v{t}", "s_nop 0"],
         [f"v_permlane16_swap_b32 v{t}, v{t+1}", "s_nop 0", f"v_max_f32 v{t}, v{t}, v{t+1}", f"v_sub_f32 v{S}, v{S}, v{t}", f"v_sub_f32 v{S+1}, v{S+1}, v{t}"]]
    sub = [f"v_sub_f32 v{S+k}, v{S+k}, v{t}" for k in range(8)]
    nm = [f"v_sub_f32 v{b+k}, 0, v{t}" for k in range(4)]
    g += [[e[0], sub[2]], [e[1], sub[3], a[0]], [e[2], sub[4], a[1]], [e[3], sub[5], c[0]], [e[4], sub[6], a[2]], [e[5], sub[7], a[3]],
          [e[6], c[1], a[4]], [e[7], nm[0], a[5]], [c[2], a[6], nm[1]], [c[3], a[7]], [nm[2], nm[3]]]
    return g

def att_iter(kind):
    mf = []; base = []
    for n in range(7):
        base.append(len(mf))
        mf += qk_mfmas(n, SB + 8 * (2 if (kind == "first" and n == 0) else COL[n]), usenm=(kind != "first"))
        if not (kind == "first" and n < 2): mf += pv_mfmas((n - 2) % 7, first=(kind == "first"))
    G = Gaps(mf)
    if kind == "first":
        for k in range(16): G.m[k].append(v_read(k // 2, k % 2))
        for n in range(1, 7):
            g = sm0_ops(n - 1)
            if n == 1:
                pos = [12, 13, 14, 15, 15, 16, 16, 17, 17, 18, 18, 19, 19, 19]
            elif n == 2:
                pos = [base[2] + x for x in [4, 5, 6, 7, 8, 9, 10, 11, 12, 13, 14, 15, 15, 15]]
            else:
                pos = [base[n] + x for x in [0, 1, 2, 3, 4, 5, 6, 7, 8, 9, 10, 11, 12, 13]]
            for grp, p in zip(g, pos):
                for x in grp: G.v[p].append(x)
        G.s[base[2] + 6].append("s_waitcnt lgkmcnt(0)")
        off = lambda g: g - 16
    else:
        for n in range(7): put_softmax(G, 16 * n, (n - 1) % 7)
        off = lambda g: g
        for f, cnt in [(2, 4), (4, 2), (6, 0)]: G.s[f - 2 + 0].append(f"s_waitcnt lgkmcnt({cnt})") if False else None
        G.s[0].append("s_waitcnt lgkmcnt(4)"); G.s[2].append("s_waitcnt lgkmcnt(2)"); G.s[4].append("s_waitcnt lgkmcnt(0)")
        for k in range(16): G.m[24 + k].append(v_read(k // 2, k % 2))
        G.s[38].append("s_waitcnt lgkmcnt(10)")
        G.s[40].append("s_waitcnt lgkmcnt(8)"); G.s[42].append("s_waitcnt lgkmcnt(4)"); G.s[44].append("s_waitcnt lgkmcnt(0)")
        va = v_addr(f"s{S_SL1}")
        for x, g in zip(va[4:], [5, 9, 17, 21]): G.v[g].append(x)
    if kind != "last":
        dm = kv_dma("K", f"s{S_SL0}") + kv_dma("V", f"s{S_SL0}")
        if O.abl_nodma: dm = []
        if kind == "first": place_dma(G, dm, [off(g) for g in [46, 47, 62, 63, 78, 79, 93, 94]])
        else: place_dma(G, dm, [1 + 12, 41, 49, 57, 65, 73, 81, 89])
        G.chain([KVG_UPD], [off(95) if kind == "first" else 90])
        va = v_addr(f"s{S_SL2}"); ka = k_addr(f"s{S_SL2}")
        if kind == "first":
            for x, g in zip(va[:4] + ka, [off(z) for z in [62, 63, 78, 79, 78, 79, 93, 94]]): G.v[g].append(x)
        else:
            for x, g in zip(va[:4], [45, 53, 61, 69]): G.v[g].append(x)
            for x, g in zip(ka, [1, 77, 85, 93]): G.v[g].append(x) if g != 1 else G.v[69].append(x)
        G.s[off(94)].append("s_waitcnt vmcnt(24)") if kind != "first" else G.p[off(94)].append("s_waitcnt vmcnt(24)")
        if not O.abl_nobar: G.s[off(95)].append("s_barrier")
        for f in range(8): G.m[off(97 + 2 * f)].append(k_read(f))
        G.chain([f"s_add_u32 s{S_I}, s{S_I}, 1", f"s_cmp_lt_u32 s{S_I}, 12", f"s_cselect_b32 s{S_SL0}, s{S_SL1}, 0x30000", f"s_mov_b32 s{S_SL1}, s{S_SL2}",
                 f"s_sub_u32 s{S_SL2}, s{S_SL2}, 32768", f"s_cselect_b32 s{S_SL2}, {(RING-1)*32768}, s{S_SL2}", f"s_cmp_lt_u32 s{S_I}, 15", "s_waitcnt lgkmcnt(5)"],
                [off(g) for g in [96, 98, 100, 102, 104, 106, 108, 110]])
    else:
        for rt in range(4):
            for k in range(4): G.m[16 * (rt + 3) + 1 + 4 * k].append(f"ds_write_b128 v{V_T0}, {ar(OS_+16*rt+4*k)} offset:{(4*rt+k)*1024}")
    return G

def multi_reduce(regs, temps, op):
    for sw in ("v_permlane32_swap_b32", "v_permlane16_swap_b32"):
        for r, t in zip(regs, temps): I(f"v_mov_b32 v{t}, v{r}")
        I("s_nop 1")
        for r, t in zip(regs, temps): I(f"{sw} v{r}, v{t}")
        I("s_nop 1")
        for r, t in zip(regs, temps): I(f"{op} v{r}, v{r}, v{t}")

def gen_k1():
    A(".globl k1_kernel\n.p2align 8\n.type k1_kernel,@function\nk1_kernel:")
    I("s_cmp_ge_u32 s2, 256"); I("s_cbranch_scc1 L_k1_done")
    I("s_load_dwordx8 s[52:59], s[0:1], 0")
    I(f"s_load_dwordx2 {sr(S_WSP)}, s[0:1], 56")
    I("s_getpc_b64 s[4:5]")
    I("v_lshlrev_b32 v14, 7, v0")
    I("global_load_dword v15, v14, s[4:5]")
    I("v_lshrrev_b32 v14, 6, v0")
    I("v_and_b32 v0, 63, v0")
    I(f"v_readfirstlane_b32 s{S_WAVE}, v14")
    I(f"s_and_b32 s{S_T0}, s2, 7"); I(f"s_lshr_b32 s{S_T1}, s2, 3")
    I(f"s_and_b32 s{S_B}, s{S_T0}, 1"); I(f"s_lshl_b32 s{S_B}, s{S_B}, 2"); I(f"s_and_b32 s{S_T2}, s{S_T1}, 3"); I(f"s_add_u32 s{S_B}, s{S_B}, s{S_T2}")
    I(f"s_lshr_b32 s{S_H}, s{S_T0}, 1"); I(f"s_lshl_b32 s{S_H}, s{S_H}, 3"); I(f"s_lshr_b32 s{S_T3}, s{S_T1}, 2"); I(f"s_add_u32 s{S_H}, s{S_H}, s{S_T3}")
    I(f"s_mul_i32 s{S_T3}, s{S_T3}, {O.rotmul_h*128}"); I(f"s_mul_i32 s{S_T2}, s{S_T2}, {O.rotmul_b*128}"); I(f"s_add_u32 s{S_OX}, s{S_T2}, s{S_T3}")
    I(f"s_and_b32 s{S_OX}, s{S_OX}, 2047"); I(f"s_lshl_b32 s{S_OW}, s{S_OX}, 12")
    I(f"s_lshr_b32 s{S_R}, s{S_WAVE}, 1"); I(f"s_and_b32 s{S_C}, s{S_WAVE}, 1")
    I(f"s_lshl_b32 s{S_W4K}, s{S_WAVE}, 12"); I(f"s_add_u32 s{S_W4KK}, s{S_W4K}, {KOFF}"); I(f"s_add_u32 s{S_WXT}, s{S_W4K}, {XT}"); I(f"s_mul_i32 s{S_W7K}, s{S_WAVE}, 7168")
    I(f"s_mov_b32 s{S_DST}, 0"); I(f"s_mov_b32 s{S_FB}, 0")
    T = V_TMP
    I(f"v_and_b32 v{T}, 15, v0"); I(f"v_lshrrev_b32 v{T+1}, 4, v0")
    I(f"v_and_b32 v{T+4}, 7, v0"); I(f"v_xor_b32 v{T+4}, v{T+4}, v{T+1}"); I(f"s_lshl_b32 s{S_T0}, s{S_C}, 2"); I(f"v_xor_b32 v{T+4}, s{S_T0}, v{T+4}")
    I(f"v_lshrrev_b32 v{T+5}, 3, v0"); I(f"v_lshlrev_b32 v{T+5}, 11, v{T+5}"); I(f"v_lshl_add_u32 v{V_XOFF}, v{T+4}, 4, v{T+5}"); I(f"v_xor_b32 v{T+5}, 64, v{V_XOFF}")
    for j in range(1, 7): I(f"v_add_u32 v{V_XOFF+j}, {j*16384-(j%4)*1024}, v{V_XOFF if j%2==0 else T+5}")
    I(f"v_lshlrev_b32 v{T+4}, 2, v{T+1}"); I(f"v_xor_b32 v{T+4}, v{T+4}, v{T}"); I(f"v_lshlrev_b32 v{T+5}, 13, v{T+1}"); I(f"v_lshl_add_u32 v{V_WOFF}, v{T+4}, 4, v{T+5}")
    for j in range(1, 4): I(f"v_add_u32 v{V_WOFF+j}, {j*32768-j*1024}, v{V_WOFF}")
    I(f"s_mul_i32 s{S_T0}, s{S_B}, 458752"); I(f"s_mul_i32 s{S_T1}, s{S_WAVE}, {56*2048}"); I(f"s_add_u32 s{S_T0}, s{S_T0}, s{S_T1}")
    I(f"s_lshl_b32 s{S_T1}, s{S_H}, 8"); I(f"s_lshl_b32 s{S_T2}, s{S_WAVE}, 17"); I(f"s_add_u32 s{S_T1}, s{S_T1}, s{S_T2}")
    I("s_waitcnt lgkmcnt(0)")
    stamp()
    srd(S_X, 52, 3670016, S_T0); srd(S_WQ, 58, 8388608, S_T1)
    d, upd = p1_dma()
    for _ in range(2):
        emit_dma(d)
        for u in upd + dst_upd(): I(u)
    I(f"s_lshl_b32 s{S_T0}, s{S_B}, 5"); I(f"s_add_u32 s{S_T0}, s{S_T0}, s{S_H}"); I(f"s_lshl_b32 s{S_T0}, s{S_T0}, 18")
    for s, p in ((S_K, 54), (S_V, 56)):
        I(f"s_add_u32 s{s}, s{p}, s{S_T0}"); I(f"s_addc_u32 s{s+1}, s{p+1}, 0"); I(f"s_mov_b32 s{s+2}, 262144"); I(f"s_mov_b32 s{s+3}, 0x20000")
    srd(S_O, S_WSP, 14680064)
    I(f"v_lshlrev_b32 v{T+4}, 1, v{T+1}"); I(f"v_xor_b32 v{T+4}, v{T+4}, v{T}"); I(f"v_lshlrev_b32 v{T+5}, 8, v{T+1}")
    for j in range(4):
        I(f"v_xor_b32 v{T+6}, {8*(j&1) + (j>>1)}, v{T+4}"); I(f"v_lshl_add_u32 v{V_KVOFF+j}, v{T+6}, 4, v{T+5}")
    I(f"s_mov_b32 s{S_KVG}, s{S_W4K}")
    emit_dma(kv_dma("K", (RING - 1) * 32768))
    emit_dma(d)
    for u in upd + dst_upd(): I(u)
    I(f"v_lshlrev_b32 v{V_LANE16}, 4, v0"); I(f"v_bfe_u32 v{T+2}, v0, 2, 2"); I(f"v_and_b32 v{T+3}, 3, v0")
    I(f"v_lshrrev_b32 v{T+4}, 1, v{T}"); I(f"v_xor_b32 v{T+4}, v{T+4}, v{T+1}"); I(f"s_mul_i32 s{S_T0}, s{S_R}, {112*128}")
    I(f"v_lshlrev_b32 v{T+5}, 7, v{T}"); I(f"v_add_u32 v{T+5}, s{S_T0}, v{T+5}"); I(f"v_lshl_add_u32 v{V_XB}, v{T+4}, 4, v{T+5}"); I(f"v_xor_b32 v{V_XB+1}, 64, v{V_XB}")
    I(f"v_lshrrev_b32 v{T+4}, 1, v{T+3}"); I(f"v_and_b32 v{T+5}, 1, v{T+3}"); I(f"v_lshl_add_u32 v{T+4}, v{T+5}, 1, v{T+4}")
    I(f"s_lshl_b32 s{S_T0}, s{S_C}, 1"); I(f"v_xor_b32 v{T+5}, s{S_T0}, v{T+2}"); I(f"v_lshl_add_u32 v{T+4}, v{T+5}, 2, v{T+4}")
    I(f"v_lshl_add_u32 v{T+5}, v{T+1}, 3, v{T+2}"); I(f"v_lshlrev_b32 v{T+5}, 8, v{T+5}"); I(f"v_lshl_add_u32 v{V_WB}, v{T+4}, 4, v{T+5}"); I(f"v_xor_b32 v{V_WB+1}, 64, v{V_WB}")
    I(f"v_lshrrev_b32 v{T+4}, 1, v{T+1}"); I(f"v_and_b32 v{T+5}, 1, v{T+1}"); I(f"v_lshl_add_u32 v{T+4}, v{T+5}, 1, v{T+4}")
    I(f"v_and_b32 v{T+5}, 7, v{T}"); I(f"v_lshrrev_b32 v{T+6}, 3, v{T}"); I(f"v_lshl_add_u32 v{T+5}, v{T+5}, 1, v{T+6}")
    I(f"v_xor_b32 v{T+4}, v{T+4}, v{T+5}"); I(f"s_lshl_b32 s{S_T0}, s{S_C}, 3"); I(f"v_xor_b32 v{T+4}, s{S_T0}, v{T+4}")
    I(f"s_lshl_b32 s{S_T1}, s{S_C}, 13"); I(f"s_add_u32 s{S_T2}, s{S_T1}, {KOFF}")
    I(f"v_lshlrev_b32 v{T+5}, 8, v{T}"); I(f"v_add_u32 v{T+5}, s{S_T2}, v{T+5}"); I(f"v_lshl_add_u32 v{V_KB}, v{T+4}, 4, v{T+5}")
    I(f"v_lshl_add_u32 v{T+6}, v{T+1}, 2, v{T+2}")
    I(f"v_and_b32 v{T+4}, 7, v{T+6}"); I(f"v_lshrrev_b32 v{T+5}, 3, v{T+6}"); I(f"v_lshl_add_u32 v{T+4}, v{T+4}, 1, v{T+5}")
    I(f"v_bfe_u32 v{T+5}, v0, 1, 1"); I(f"v_xor_b32 v{T+4}, v{T+4}, v{T+5}"); I(f"v_xor_b32 v{T+4}, s{S_T0}, v{T+4}")
    I(f"v_lshlrev_b32 v{T+6}, 8, v{T+6}"); I(f"v_add_u32 v{T+6}, s{S_T1}, v{T+6}"); I(f"v_lshl_add_u32 v{T+6}, v{T+4}, 4, v{T+6}")
    I(f"v_and_b32 v{T+5}, 1, v0"); I(f"v_lshl_add_u32 v{V_VB}, v{T+5}, 3, v{T+6}")
    for k in range(2):
        I(f"v_mov_b32 v{V_XA+k}, v{V_XB+k}"); I(f"v_mov_b32 v{V_WA+k}, v{V_WB+k}")
    for k in range(32): I(f"v_mov_b32 v{OK_+80+k}, 0")
    for k in range(32): I(f"v_accvgpr_write_b32 a{OS_+80+k}, 0")
    for x in v_addr((RING - 1) * 32768): I(x)
    I(f"s_mul_i32 s{S_T2}, s{S_WAVE}, 14336"); I(f"v_add_u32 v{V_T0}, s{S_T2}, v{V_LANE16}")
    I(f"s_xor_b32 s{S_T3}, s{S_WAVE}, 1"); I(f"s_mul_i32 s{S_T3}, s{S_T3}, 14336"); I(f"v_add_u32 v2, s{S_T3}, v{V_LANE16}")
    I(f"s_mov_b32 s{S_T0}, 0")
    I(f"s_mov_b32 s{S_T2}, {f2u(SCALE):#x}")
    I("s_waitcnt vmcnt(26)"); I("s_barrier")
    stamp()
    for r in p1_reads(0, 0): I(r)
    I("s_waitcnt lgkmcnt(0)")
    u2 = upd + dst_upd()
    p1_iter([], [], d[:6], 11, first=True)
    I(f"s_mov_b32 s{S_I}, 1")
    A(".p2align 6"); A("L_p1:")
    p1_iter(d[6:], u2, d[:6], 11, loop=13)
    I("s_cbranch_scc1 L_p1")
    def adv(g): return g[:3] + [(g[3][0], g[3][1], [KVG_UPD])]
    kv = adv(kv_dma("V", 4 * 32768)) + kv_dma("K", 3 * 32768) + adv(kv_dma("V", 3 * 32768)) + kv_dma("K", 2 * 32768) + adv(kv_dma("V", 2 * 32768))
    p1_iter(d[6:], [], kv[:6], 11)
    p1_iter(kv[6:12], [], kv[12:18], 12)
    tail = []
    g = 9
    muls = [f"v_mul_f32 v{p1_acc(rt)+k}, s{S_T2}, v{p1_acc(rt)+k}" for rt in range(7) for k in range(16)]
    nt = 0
    for g in range(9, 28):
        tail += [(g, muls[nt]), (g, muls[nt + 1])]; nt += 2
    p1_iter(kv[18:20], [], [], None, last=True, tail_valu=tail)
    stamp()
    for x in k_addr((RING - 1) * 32768): I(x)
    for f in range(8): I(k_read(f))
    for rt in range(7):
        for kp in range(2):
            b = p1_acc(rt) + 8 * kp
            for k in range(8):
                if 16 * rt + 8 * kp + k >= nt: I(muls[16 * rt + 8 * kp + k])
            t = SB + 4 * ((2 * rt + kp) % 8)
            for k in range(4): I(f"v_cvt_pk_bf16_f32 v{t+k}, v{b+2*k}, v{b+2*k+1}")
            I(f"ds_write_b128 v{V_T0}, {vr(t)} offset:{(2*rt+kp)*1024}")
    for rt in range(7):
        for kp in range(2): I(f"ds_read_b128 {ar(QA+16*rt+4*kp)}, v{V_T0} offset:{(2*rt+kp)*1024}")
    I(f"s_mov_b32 s{S_SL0}, 0"); I(f"s_mov_b32 s{S_SL1}, {4*32768}"); I(f"s_mov_b32 s{S_SL2}, {3*32768}"); I(f"s_mov_b32 s{S_I}, 0")
    I("s_waitcnt lgkmcnt(14) vmcnt(16)"); I("s_barrier")
    for rt in range(7):
        for kp in range(2): I(f"ds_read_b128 {ar(QA+16*rt+8+4*kp)}, v2 offset:{(2*rt+kp)*1024}")
    I(f"s_mul_i32 s{S_T2}, s{S_WAVE}, 28672"); I(f"v_add_u32 v{V_T0}, s{S_T2}, v{V_LANE16}")
    I(f"s_xor_b32 s{S_T3}, s{S_WAVE}, 1"); I(f"s_mul_i32 s{S_T3}, s{S_T3}, 28672"); I(f"v_add_u32 v{V_T1}, s{S_T3}, v{V_LANE16}")
    I("s_waitcnt lgkmcnt(0)"); I("s_barrier")
    emit_dma(kv_dma("K", 32768) + kv_dma("V", 32768)); I(KVG_UPD)
    stamp()
    att_iter("first").emit()
    g = sm0_ops(6)
    S = SB + 8 * COL[6]
    for grp in g[:3]:
        for x in grp: I(x)
        I("s_nop 0")
    for k in range(2, 8): I(f"v_sub_f32 v{S+k}, v{S+k}, v{V_TMP}")
    for k in range(4): I(f"v_sub_f32 v{NM+24+k}, 0, v{V_TMP}")
    I(f"v_mov_b32 v{LS+6}, 0")
    A(".p2align 6"); A("L_att:")
    att_iter("loop").emit()
    I("s_cbranch_scc1 L_att")
    att_iter("last").emit()
    G = Gaps(pv_mfmas(5))
    e, a, c = sm_ops(6)
    for k in range(8):
        G.v[k].append(e[k])
        if k: G.v[k].append(a[k - 1])
        if k in (2, 4, 6): G.v[k].append(c[k // 2 - 1])
    for k in range(4): G.m[1 + 2 * k].append(f"ds_write_b128 v{V_T0}, {ar(OS_+64+4*k)} offset:{(16+k)*1024}")
    G.emit()
    I("s_nop 0"); I(a[7]); I(c[3]); I("s_nop 1")
    G = Gaps(pv_mfmas(6))
    for k in range(7): G.v[k].append(f"v_mov_b32 v{V_TMP+k}, v{LS+k}")
    G.emit()
    stamp()
    regs = [LS + rt for rt in range(7)]; temps = [V_TMP + rt for rt in range(7)]
    for r, t in zip(regs, temps): I(f"v_permlane32_swap_b32 v{r}, v{t}")
    for k in range(4): I(f"ds_write_b128 v{V_T0}, {ar(OS_+80+4*k)} offset:{(20+k)*1024}")
    for r, t in zip(regs, temps): I(f"v_add_f32 v{r}, v{r}, v{t}")
    for r, t in zip(regs, temps): I(f"v_mov_b32 v{t}, v{r}")
    for k in range(4): I(f"ds_write_b128 v{V_T0}, {ar(OS_+96+4*k)} offset:{(24+k)*1024}")
    for r, t in zip(regs, temps): I(f"v_permlane16_swap_b32 v{r}, v{t}")
    I("s_nop 1")
    for rt, (r, t) in enumerate(zip(regs, temps)): I(f"v_add_f32 v{NM+4*rt+1}, v{r}, v{t}")
    ST = FLAG_OFF + 256
    I(f"s_mul_i32 s{S_T2}, s{S_WAVE}, 3584"); I(f"s_add_u32 s{S_T2}, s{S_T2}, {ST}"); I(f"v_lshrrev_b32 v{V_TMP+8}, 1, v{V_LANE16}"); I(f"v_add_u32 v{V_TMP+9}, s{S_T2}, v{V_TMP+8}")
    for rt in range(7): I(f"ds_write_b64 v{V_TMP+9}, {vr(NM+4*rt,2)} offset:{rt*512}")
    I(f"v_add_f32 v{V_TMP}, v{NM+1}, v{NM+5}")
    for k in range(2, 7): I(f"v_add_f32 v{V_TMP}, v{V_TMP}, v{NM+4*k+1}")
    I(f"s_mov_b32 s{S_T0}, {f2u(2.0**40):#x}")
    I(f"v_cmp_nlt_f32 vcc, v{V_TMP}, s{S_T0}")
    I(f"s_xor_b32 s{S_T3}, s{S_WAVE}, 1"); I(f"s_mul_i32 s{S_T3}, s{S_T3}, 3584"); I(f"s_add_u32 s{S_T3}, s{S_T3}, {ST}"); I(f"v_add_u32 v{V_TMP+10}, s{S_T3}, v{V_TMP+8}")
    I(f"s_lshl_b32 s{S_T2}, s{S_WAVE}, 2"); I(f"s_add_u32 s{S_T2}, s{S_T2}, {FLAG_OFF}"); I(f"v_mov_b32 v{V_TMP+2}, s{S_T2}")
    I(f"s_cmp_lg_u64 vcc, 0"); I(f"s_cselect_b32 s{S_T1}, 1, 0"); I(f"v_mov_b32 v{V_TMP+1}, s{S_T1}")
    I(f"ds_write_b32 v{V_TMP+2}, v{V_TMP+1}")
    I(f"v_mov_b32 v{V_TMP+2}, {FLAG_OFF}")
    I("s_waitcnt lgkmcnt(0)"); I("s_barrier")
    I(f"ds_read_b128 {vr(V_TMP+4)}, v{V_TMP+2}")
    for rt in range(7): I(f"ds_read_b64 {vr(NM+4*rt+2,2)}, v{V_TMP+10} offset:{rt*512}")
    RB = 128
    def recv(rt):
        for dq in range(4): I(f"ds_read_b128 {vr(RB+16*(rt%4)+4*dq)}, v{V_T1} offset:{(4*rt+dq)*1024}")
    for rt in range(2): recv(rt)
    I("s_waitcnt lgkmcnt(8)")
    I(f"v_or3_b32 v{V_TMP+4}, v{V_TMP+4}, v{V_TMP+5}, v{V_TMP+6}"); I(f"v_or_b32 v{V_TMP+4}, v{V_TMP+4}, v{V_TMP+7}")
    recv(2)
    I(f"v_readfirstlane_b32 s{S_T0}, v{V_TMP+4}")
    bs = [NM + 4 * rt for rt in range(7)]
    for rt, b in enumerate(bs): I(f"v_min_f32 v{LS+rt}, v{b}, v{b+2}")
    I(f"s_andn2_b32 s{S_T0}, s{S_T0}, s{S_FB}"); I("s_cbranch_scc1 L_fallback")
    for rt, b in enumerate(bs): I(f"v_sub_f32 v{b}, v{LS+rt}, v{b}"); I(f"v_sub_f32 v{b+2}, v{LS+rt}, v{b+2}")
    for b in bs: I(f"v_exp_f32 v{b}, v{b}"); I(f"v_exp_f32 v{b+2}, v{b+2}")
    for b in bs: I(f"v_mul_f32 v{b+1}, v{b+1}, v{b}")
    for b in bs: I(f"v_fma_f32 v{b+1}, v{b+3}, v{b+2}, v{b+1}")
    for b in bs: I(f"v_rcp_f32 v{b+1}, v{b+1}")
    for b in bs: I(f"v_mul_f32 v{b}, v{b}, v{b+1}"); I(f"v_mul_f32 v{b+2}, v{b+2}, v{b+1}")
    I(f"s_lshl_b32 s{S_T0}, s{S_B}, 1"); I(f"s_add_u32 s{S_T0}, s{S_T0}, s{S_R}"); I(f"s_lshl_b32 s{S_T0}, s{S_T0}, 5"); I(f"s_add_u32 s{S_T0}, s{S_T0}, s{S_H}")
    I(f"s_lshl_b32 s{S_T0}, s{S_T0}, 1"); I(f"s_add_u32 s{S_T0}, s{S_T0}, s{S_C}"); I(f"s_mul_i32 s{S_T0}, s{S_T0}, 14336")
    for rt in range(7):
        if rt + 3 < 7: recv(rt + 3)
        I(f"s_waitcnt lgkmcnt({4*min(3, 6-rt)})")
        b = NM + 4 * rt; o = OK_ + 16 * rt; rb = RB + 16 * (rt % 4)
        if O.pk:
            for k in range(0, 16, 2): I(f"v_pk_mul_f32 {vr(o+k,2)}, {vr(o+k,2)}, {vr(b,2)} op_sel_hi:[1,0]")
            for k in range(0, 16, 2): I(f"v_pk_fma_f32 {vr(o+k,2)}, {vr(rb+k,2)}, {vr(b+2,2)}, {vr(o+k,2)} op_sel_hi:[1,0,1]")
        else:
            for k in range(16): I(f"v_mul_f32 v{o+k}, v{o+k}, v{b}")
            for k in range(16): I(f"v_fma_f32 v{o+k}, v{rb+k}, v{b+2}, v{o+k}")
        for k in range(8): I(f"v_cvt_pk_bf16_f32 v{o+k}, v{o+2*k}, v{o+2*k+1}")
        I(f"s_add_u32 s{S_T1}, s{S_T0}, {rt*1024}"); I(f"s_add_u32 s{S_T2}, s{S_T0}, {rt*1024+7168}")
        I(f"buffer_store_dwordx4 {vr(o)}, v{V_LANE16}, {sr(S_O,4)}, s{S_T1} offen {O.pol_ost}")
        I(f"buffer_store_dwordx4 {vr(o+4)}, v{V_LANE16}, {sr(S_O,4)}, s{S_T2} offen {O.pol_ost}")
    stamp()
    store_stamps(1 << 26)
    A("L_k1_done:")
    I("s_endpgm")
    A("L_fallback:")
    I(f"s_mov_b32 s{S_FB}, 1")
    I("s_waitcnt vmcnt(0) lgkmcnt(0)"); I("s_barrier")
    for rt in range(7): I(f"v_mov_b32 v{NM+4*rt}, 0xff800000")
    I(f"s_mov_b32 s{S_KVG}, s{S_W4K}")
    for x in k_addr(0): I(x)
    I(f"s_mov_b32 s{S_I}, 0")
    A("L_fb_loop:")
    emit_dma(kv_dma("K", 0)); I(KVG_UPD)
    I("s_waitcnt vmcnt(0)"); I("s_barrier")
    for f in range(8): I(k_read(f))
    I("s_waitcnt lgkmcnt(0)"); I("s_barrier")
    for rt in range(7):
        for m in qk_mfmas(rt, SB, usenm=False): I(m)
        I("s_nop 7")
        b = NM + 4 * rt
        for k in range(4): I(f"v_max3_f32 v{b}, v{b}, v{SB+2*k}, v{SB+2*k+1}")
    I(f"s_add_u32 s{S_I}, s{S_I}, 1"); I(f"s_cmp_lt_u32 s{S_I}, 16"); I("s_cbranch_scc1 L_fb_loop")
    multi_reduce([NM + 4 * rt for rt in range(7)], [NM + 4 * rt + 1 for rt in range(7)], "v_max_f32")
    for rt in range(7):
        b = NM + 4 * rt
        I(f"v_sub_f32 v{b}, 0, v{b}")
        for k in range(1, 4): I(f"v_mov_b32 v{b+k}, v{b}")
    I(f"s_mov_b32 s{S_KVG}, s{S_W4K}")
    for st in range(RING - 1):
        emit_dma(kv_dma("K", (4 - st) * 32768) + kv_dma("V", (4 - st) * 32768)); I(KVG_UPD)
    for k in range(112): I(f"v_mov_b32 v{OK_+k}, 0")
    for k in range(112): I(f"v_accvgpr_write_b32 a{OS_+k}, 0")
    for k in range(32): I(f"v_mov_b32 v{VF+k}, 0")
    for k in range(12): I(f"v_mov_b32 v{PB+k}, 0")
    for k in range(7): I(f"v_mov_b32 v{LS+k}, 0")
    for k in range(8): I(f"v_mov_b32 v{SB+16+k}, 0xf149f2ca")
    I(f"s_mov_b32 s{S_SL0}, 0"); I(f"s_mov_b32 s{S_SL1}, {4*32768}"); I(f"s_mov_b32 s{S_SL2}, {3*32768}"); I(f"s_mov_b32 s{S_I}, 0")
    for x in k_addr(4 * 32768) + v_addr(4 * 32768): I(x)
    I("s_waitcnt vmcnt(0)"); I("s_barrier")
    for f in range(8): I(k_read(f))
    I("s_waitcnt lgkmcnt(0)")
    I("s_branch L_att")

def gen_k2():
    nstamp[0] = 0
    D = O.k2_depth
    ACC = 16; AF = 128; BF = 0
    S_WO = 8; S_OO = 12; S_OUT = 16
    S_OG = 33; S_WG = 34; S_LB = 35; S_RH = 29; S_CG = 30; S_U = 36; S_WIN = 37
    V_WOF = 160; V_L2 = 4
    A(".globl k2_kernel\n.p2align 8\n.type k2_kernel,@function\nk2_kernel:")
    I("s_cmp_ge_u32 s2, 256"); I("s_cbranch_scc1 L_k2_done")
    I("s_load_dwordx4 s[52:55], s[0:1], 32")
    I(f"s_load_dwordx2 {sr(S_WSP)}, s[0:1], 56")
    I("s_getpc_b64 s[4:5]")
    I("v_lshlrev_b32 v14, 6, v0")
    I("global_load_dword v15, v14, s[4:5]")
    I("v_lshrrev_b32 v14, 6, v0")
    I("v_and_b32 v0, 63, v0")
    I(f"v_readfirstlane_b32 s{S_WAVE}, v14")
    I(f"s_and_b32 s{S_T0}, s2, 7"); I(f"s_lshr_b32 s{S_T1}, s2, 3")
    I(f"s_lshr_b32 s{S_RH}, s{S_T0}, 1"); I(f"s_lshl_b32 s{S_RH}, s{S_RH}, 2"); I(f"s_and_b32 s{S_T2}, s{S_T1}, 3"); I(f"s_add_u32 s{S_RH}, s{S_RH}, s{S_T2}")
    I(f"s_and_b32 s{S_CG}, s{S_T0}, 1"); I(f"s_lshl_b32 s{S_CG}, s{S_CG}, 3"); I(f"s_lshr_b32 s{S_T3}, s{S_T1}, 2"); I(f"s_add_u32 s{S_CG}, s{S_CG}, s{S_T3}")
    I(f"s_mul_i32 s{S_T2}, s{S_T2}, {O.k2_rot_r}"); I(f"s_mul_i32 s{S_T3}, s{S_T3}, {O.k2_rot_c}"); I(f"s_add_u32 s{S_U}, s{S_T2}, s{S_T3}"); I(f"s_and_b32 s{S_U}, s{S_U}, 7")
    I(f"s_mov_b32 s{S_WIN}, 0")
    if O.k2_hot: I(f"s_mov_b32 s{S_RH}, 0"); I(f"s_mov_b32 s{S_CG}, 0")
    I(f"s_lshl_b32 s{S_T0}, s{S_RH}, 2"); I(f"s_add_u32 s{S_T0}, s{S_T0}, s{S_WAVE}"); I(f"s_mul_i32 s{S_T0}, s{S_T0}, {32*7168}")
    I(f"s_lshl_b32 s{S_T1}, s{S_WAVE}, 21"); I(f"s_lshl_b32 s{S_T2}, s{S_CG}, 7"); I(f"s_add_u32 s{S_T1}, s{S_T1}, s{S_T2}")
    I(f"s_lshl_b32 s{S_LB}, s{S_WAVE}, 15")
    T = 8
    I(f"v_lshlrev_b32 v{V_LANE16}, 4, v0"); I(f"v_add_u32 v{V_L2}, 4096, v{V_LANE16}")
    I(f"v_lshrrev_b32 v{T}, 4, v0"); I(f"v_lshlrev_b32 v{T+1}, 1, v{T}"); I(f"v_and_b32 v{T+2}, 7, v0"); I(f"v_xor_b32 v{T+1}, v{T+1}, v{T+2}")
    I(f"v_lshrrev_b32 v{T+2}, 3, v0"); I(f"v_lshlrev_b32 v{T+2}, 11, v{T+2}"); I(f"v_lshl_add_u32 v{V_WOF}, v{T+1}, 4, v{T+2}")
    for j in range(1, 4): I(f"v_add_u32 v{V_WOF+j}, {j*16384-j*1024}, v{V_WOF}")
    I("s_waitcnt lgkmcnt(0)")
    stamp()
    I(f"s_add_u32 s{S_WO}, s52, s{S_T1}"); I(f"s_addc_u32 s{S_WO+1}, s53, 0"); I(f"s_sub_u32 s{S_WO+2}, {1<<21}, s{S_T2}"); I(f"s_mov_b32 s{S_WO+3}, 0x20000")
    I(f"s_add_u32 s{S_OO}, s{S_WSP}, s{S_T0}"); I(f"s_addc_u32 s{S_OO+1}, s{S_WSP+1}, 0"); I(f"s_mov_b32 s{S_OO+2}, {32*7168}"); I(f"s_mov_b32 s{S_OO+3}, 0x20000")
    srd(S_OUT, 54, 3670016)
    def step_pre(n):
        p = [f"s_add_u32 s{S_T3}, s{S_WIN}, s{S_U}", f"s_lshl_b32 s{S_WG}, s{S_T3}, 16", f"s_mul_i32 s{S_OG}, s{S_T3}, 7168",
             f"s_add_u32 s{S_U}, s{S_U}, 1", f"s_and_b32 s{S_U}, s{S_U}, 7", f"s_add_u32 m0, s{S_LB}, {(n%8)*4096}"]
        if n % 8 == 7: p.append(f"s_add_u32 s{S_WIN}, s{S_WIN}, 8")
        return p
    def loads(buf):
        g = [f"buffer_load_dwordx4 v{V_WOF+j}, {sr(S_WO,4)}, s{S_WG} offen offset:{j*1024} {pol(O.pol_wo)}lds" for j in range(4)]
        for rt in range(7):
            va = V_LANE16 if rt < 4 else V_L2
            g.append(f"buffer_load_dwordx4 {ar(BF+28*buf+4*rt)}, v{va}, {sr(S_OO,4)}, s{S_OG} offen offset:{(rt%4)*1024} {O.pol_old}")
        return g
    RA = T
    def areads(buf):
        f = AF + 16 * (buf % 2)
        return [f"ds_read_b64_tr_b16 {vr(f+4*cq+2*e,2)}, v{RA+cq} offset:{buf*4096 + e*2048}" for cq in range(4) for e in range(2)]
    def mfmas(buf):
        f = AF + 16 * (buf % 2)
        return [f"{MF} {vr(ACC+16*rt+4*cq)}, {vr(f+4*cq)}, {ar(BF+28*buf+4*rt)}, {vr(ACC+16*rt+4*cq)}" for rt in range(7) for cq in range(4)]
    for n in range(D):
        for p in step_pre(n): I(p)
        I("s_nop 0")
        for x in loads(n): I(x)
    I(f"v_bfe_u32 v{T+1}, v0, 2, 2"); I(f"v_lshl_add_u32 v{T+1}, v{T}, 2, v{T+1}")
    I(f"v_bfe_u32 v{T+2}, v{T+1}, 1, 2"); I(f"v_xor_b32 v{T+2}, s{S_WAVE}, v{T+2}")
    I(f"v_lshlrev_b32 v{T+1}, 7, v{T+1}"); I(f"v_lshl_add_u32 v{T+1}, v{T+2}, 5, v{T+1}"); I(f"v_and_b32 v{T+2}, 3, v0"); I(f"v_lshl_add_u32 v{T+1}, v{T+2}, 3, v{T+1}")
    I(f"v_add_u32 v{T}, s{S_LB}, v{T+1}")
    for cq in range(1, 4): I(f"v_xor_b32 v{T+cq}, {cq*32}, v{T}")
    for k in range(112): I(f"v_mov_b32 v{ACC+k}, 0")
    I(f"s_waitcnt vmcnt({11*D-4})")
    stamp()
    for r in areads(0): I(r)
    I(f"s_mov_b32 s{S_I}, 0")
    I(f"s_waitcnt vmcnt({11*(D-2)+7}) lgkmcnt(0)")
    A(".p2align 6"); A("L_k2:")
    for buf in range(8):
        G = Gaps(mfmas(buf))
        for k, r in enumerate(areads((buf + 1) % 8)): G.m[k].append(r)
        pre = step_pre(buf + D)
        G.chain(pre, list(range(len(pre))))
        for k, x in enumerate(loads((buf + D) % 8)): G.m[9 + k + k // 2].append(x)
        if buf == 7: G.s[8].append(f"s_add_u32 s{S_I}, s{S_I}, 1"); G.s[26].append(f"s_cmp_lt_u32 s{S_I}, 4")
        G.s[27].append(f"s_waitcnt vmcnt({11*(D-2)+7}) lgkmcnt(0)")
        G.emit()
    I("s_cbranch_scc1 L_k2")
    stamp()
    for cq in range(1, 4):
        I(f"s_xor_b32 s{S_T0}, s{S_WAVE}, {cq}"); I(f"s_mul_i32 s{S_T0}, s{S_T0}, {21*1024}"); I(f"v_add_u32 v{T+cq}, s{S_T0}, v{V_LANE16}")
    I(f"s_mul_i32 s{S_T0}, s{S_WAVE}, {21*1024}"); I(f"v_add_u32 v{T}, s{S_T0}, v{V_LANE16}")
    I("s_waitcnt vmcnt(0) lgkmcnt(0)"); I("s_barrier")
    for cq in range(1, 4):
        for rt in range(7): I(f"ds_write_b128 v{T+cq}, {vr(ACC+16*rt+4*cq)} offset:{((cq-1)*7+rt)*1024}")
    I(f"v_and_b32 v{T+4}, 15, v0"); I(f"v_lshlrev_b32 v{T+4}, 11, v{T+4}"); I(f"v_lshrrev_b32 v{T+5}, 4, v0"); I(f"v_lshl_add_u32 v{T+4}, v{T+5}, 3, v{T+4}")
    I(f"s_mul_i32 s{S_T0}, s{S_RH}, {112*2048}"); I(f"s_lshl_b32 s{S_T1}, s{S_CG}, 7"); I(f"s_add_u32 s{S_T0}, s{S_T0}, s{S_T1}"); I(f"s_lshl_b32 s{S_T1}, s{S_WAVE}, 5"); I(f"s_add_u32 s{S_T0}, s{S_T0}, s{S_T1}")
    I("s_waitcnt lgkmcnt(0)"); I("s_barrier")
    for rt in range(7):
        for cq in range(1, 4): I(f"ds_read_b128 {vr(ACC+16*rt+4*cq)}, v{T} offset:{((cq-1)*7+rt)*1024}")
    for rt in range(7):
        I(f"s_waitcnt lgkmcnt({min(15, 3*(6-rt))})")
        o = ACC + 16 * rt
        for k in range(4):
            I(f"v_add_f32 v{o+k}, v{o+k}, v{o+4+k}"); I(f"v_add_f32 v{o+8+k}, v{o+8+k}, v{o+12+k}")
        for k in range(4): I(f"v_add_f32 v{o+k}, v{o+k}, v{o+8+k}")
        I(f"v_cvt_pk_bf16_f32 v{o}, v{o}, v{o+1}"); I(f"v_cvt_pk_bf16_f32 v{o+1}, v{o+2}, v{o+3}")
        I(f"buffer_store_dwordx2 {vr(o,2)}, v{T+4}, {sr(S_OUT,4)}, s{S_T0} offen")
        I(f"s_add_u32 s{S_T0}, s{S_T0}, {16*2048}")
    stamp()
    store_stamps((1 << 26) + (1 << 20))
    A("L_k2_done:")
    I("s_endpgm")

def kd(name, vg, acc):
    A(f".amdhsa_kernel {name}\n  .amdhsa_next_free_vgpr {vg}\n  .amdhsa_next_free_sgpr 102\n  .amdhsa_accum_offset {acc}\n  .amdhsa_group_segment_fixed_size 0\n  .amdhsa_kernarg_size 64\n  .amdhsa_user_sgpr_count 2\n  .amdhsa_user_sgpr_kernarg_segment_ptr 1\n  .amdhsa_system_sgpr_workgroup_id_x 1\n.end_amdhsa_kernel")

def main(fn):
    del L[:]
    nstamp[0] = 0
    A("; @launch kernel=k1_kernel grid=(256,1,1) block=(256,1,1) lds=163840")
    A("; @launch kernel=k2_kernel grid=(256,1,1) block=(256,1,1) lds=131072")
    A('.amdgcn_target "amdgcn-amd-amdhsa--gfx950"')
    A(".text")
    gen_k1()
    gen_k2()
    A("  .fill 8192, 4, 0xBF800000")
    A('.section .rodata,"a"\n.p2align 6')
    kd("k1_kernel", 512, 256)
    A(".p2align 6")
    kd("k2_kernel", 416, 192)
    open(fn, "w").write("\n".join(L) + "\n")

if __name__ == "__main__":
    fn = sys.argv[1]
    for kv in sys.argv[2:]:
        k, v = kv.split("=")
        cur = getattr(O, k)
        setattr(O, k, (v == "1") if isinstance(cur, bool) else (int(v) if isinstance(cur, int) else v.replace("+", " ")))
    main(fn)
```

```python
import sys, math, struct
NAME = "standalone__mha_block_cached__near_ridge"

class Opt:
    pol_kv = "nt"; pol_x = ""; pol_wq = ""; pol_ost = ""; pol_old = ""; pol_wo = ""
    stamps = False
    rotmul_h = 8; rotmul_b = 8
    k2_depth = 5
    k2_rot_c = 1; k2_rot_r = 2
    pk = True
    k2_hot = False
    dbgst = False
    abl_nodma = False; abl_nobar = False
O = Opt()

L = []
def A(s): L.append(s)
def I(s):
    for x in s.split("\n"):
        if x.strip(): L.append("  " + x.strip())
def vr(b, n=4): return f"v[{b}:{b+n-1}]"
def ar(b, n=4): return f"a[{b}:{b+n-1}]"
def sr(b, n=2): return f"s[{b}:{b+n-1}]"
def pol(p): return (p + " ") if p else ""
def f2u(x): return struct.unpack("<I", struct.pack("<f", x))[0]
MF = "v_mfma_f32_16x16x32_bf16"

class Gaps:
    def __init__(self, mf):
        self.mf = list(mf); n = len(self.mf)
        self.s = [[] for _ in range(n)]; self.m = [[] for _ in range(n)]; self.v = [[] for _ in range(n)]; self.p = [[] for _ in range(n)]
    def chain(self, instrs, gaps):
        assert len(gaps) >= len(instrs), (instrs, gaps)
        for x, g in zip(instrs, gaps): self.s[g].append(x)
    def emit(self):
        for i, m in enumerate(self.mf):
            I(m)
            for x in self.s[i] + self.m[i] + self.v[i] + self.p[i]: I(x)

OK_ = 16; VF = 128; SB = 160; PB = 184; NM = 196; LS = 224
V_LANE16 = 1
V_KVOFF = 4
V_XB = 8; V_WB = 10; V_KB = 12; V_VB = 13; V_T0 = 14; V_T1 = 15
V_XOFF = 200
V_WOFF = 207
V_XA = 232; V_WA = 234
V_KA = 232
V_VA = 236
V_TMP = 244
OS_ = 0; QA = 112; KF = 224
FR = 112
COL = [0, 1, 0, 1, 0, 1, 2]
S_X = 8; S_K = 12; S_V = 16; S_WQ = 20; S_O = 24
S_WAVE = 28; S_B = 29; S_H = 30; S_R = 31; S_C = 32
S_OX = 33; S_OW = 34; S_DST = 35; S_W7K = 36; S_WXT = 37; S_I = 38
S_T0 = 39; S_T1 = 40; S_T2 = 41; S_T3 = 42
S_KVG = 43; S_SL0 = 44; S_SL1 = 45; S_SL2 = 46
S_FB = 47; S_W4K = 48; S_W4KK = 49
S_WSP = 50; S_ST = 60
XT = 28672; WT = 16384; STG = XT + WT
RING = 5; VOFF = 0; KOFF = 16384
FLAG_OFF = 114688
SCALE = math.log2(math.e) / math.sqrt(128.0)

nstamp = [0]
def stamp():
    if not O.stamps: return
    k = S_ST + 4 * nstamp[0]
    I(f"s_memtime {sr(k)}"); I(f"s_memrealtime {sr(k+2)}"); I("s_waitcnt lgkmcnt(0)")
    nstamp[0] += 1
def store_stamps(wsoff):
    if not O.stamps: return
    n = nstamp[0]
    I(f"s_cmp_lg_u32 s{S_WAVE}, 0"); I("s_cbranch_scc1 L_nost%d" % wsoff)
    I("s_nop 2")
    for i in range(4 * n): I(f"v_mov_b32 v{128+i}, s{S_ST+i}")
    I(f"s_mul_i32 s{S_T0}, s2, {16*n}"); I(f"s_add_u32 s{S_T0}, s{S_T0}, {wsoff}"); I(f"v_mov_b32 v15, s{S_T0}")
    I("v_cmp_eq_u32 vcc, 0, v0"); I(f"s_and_saveexec_b64 {sr(S_T1)}, vcc")
    for i in range(n): I(f"global_store_dwordx4 v15, {vr(128+4*i)}, {sr(S_WSP)} offset:{16*i}")
    if O.dbgst:
        I("s_load_dwordx2 s[4:5], s[0:1], 48"); I("v_mov_b32 v14, 0"); I("s_waitcnt lgkmcnt(0)")
        if wsoff == (1 << 26): I("s_add_u32 s4, s4, 512"); I("s_addc_u32 s5, s5, 0")
        I(f"s_mul_i32 s{S_T0}, s2, 33"); I(f"s_and_b32 s{S_T0}, s{S_T0}, 0xf8"); I("s_cbranch_scc1 L_nost%d" % wsoff)
        o = 0 if wsoff == (1 << 26) else 5
        for i in range(1, n):
            I(f"v_sub_u32 v13, v{128+4*i+2}, v{128+4*i-2}")
            I(f"global_atomic_add v14, v13, s[4:5] offset:{4*(o+i-1)}")
            I(f"global_atomic_umax v14, v13, s[4:5] offset:{4*(8+o+i-1)}")
    A("L_nost%d:" % wsoff)
def srd(d, ptr, nbytes, shift=None):
    if shift is None:
        I(f"s_mov_b32 s{d}, s{ptr}"); I(f"s_mov_b32 s{d+1}, s{ptr+1}"); I(f"s_mov_b32 s{d+2}, {nbytes}")
    else:
        I(f"s_add_u32 s{d}, s{ptr}, s{shift}"); I(f"s_addc_u32 s{d+1}, s{ptr+1}, 0"); I(f"s_sub_u32 s{d+2}, {nbytes}, s{shift}")
    I(f"s_mov_b32 s{d+3}, 0x20000")

def p1_dma():
    g = []
    for j in range(7):
        pre = [f"s_add_u32 m0, s{S_DST}, s{S_W7K}"] if j == 0 else ([f"s_add_u32 m0, m0, 4096"] if j == 4 else [])
        g.append((pre, f"buffer_load_dwordx4 v{V_XOFF+j}, {sr(S_X,4)}, s{S_OX} offen offset:{(j%4)*1024} {pol(O.pol_x)}lds"))
    for j in range(4):
        pre = [f"s_add_u32 m0, s{S_DST}, s{S_WXT}"] if j == 0 else []
        g.append((pre, f"buffer_load_dwordx4 v{V_WOFF+j}, {sr(S_WQ,4)}, s{S_OW} offen offset:{j*1024} {pol(O.pol_wq)}lds"))
    upd = [f"s_add_u32 s{S_OX}, s{S_OX}, 128", f"s_and_b32 s{S_OX}, s{S_OX}, 2047", f"s_lshl_b32 s{S_OW}, s{S_OX}, 12"]
    return g, upd
def dst_upd():
    return [f"s_sub_u32 s{S_DST}, s{S_DST}, {STG}", f"s_cselect_b32 s{S_DST}, {2*STG}, s{S_DST}"]
def emit_dma(g):
    for x in g:
        pre, d = x[0], x[1]
        for p in pre: I(p)
        if pre: I("s_nop 0")
        I(d)
def kv_dma(which, slot):
    s, off = (S_K, S_W4KK) if which == "K" else (S_V, S_W4K)
    return [([f"s_add_u32 m0, {slot}, s{off}"] if j == 0 else [],
             f"buffer_load_dwordx4 v{V_KVOFF+j}, {sr(s,4)}, s{S_KVG} offen offset:{j*1024} {pol(O.pol_kv)}lds") for j in range(4)]
KVG_UPD = f"s_add_u32 s{S_KVG}, s{S_KVG}, 16384"
def p1_acc(rt): return OK_ + 16 * rt if rt < 5 else VF + 16 * (rt - 5)
def p1_reads(s, buf):
    fa = FR + 44 * buf; fb = fa + 16
    r = []
    for t in range(4):
        kp, a = t // 2, t % 2
        for e in range(2):
            r.append(f"ds_read_b64_tr_b16 {ar(fa+4*t+2*e,2)}, v{V_WA+kp} offset:{XT + s*8192 + e*1024 + a*8}")
    for rt in range(7): r.append(f"ds_read_b128 {ar(fb+4*rt)}, v{V_XA+s} offset:{rt*2048}")
    return r[0:2] + r[8:9] + r[2:8] + r[9:]
def p1_mfmas(buf, first=False):
    fa = FR + 44 * buf; fb = fa + 16
    return [f"{MF} {vr(p1_acc(rt)+4*t)}, {ar(fa+4*t)}, {ar(fb+4*rt)}, " + ("0" if first else vr(p1_acc(rt)+4*t)) for rt in range(7) for t in range(4)]
def place_dma(G, dmas, gaps):
    assert len(gaps) >= len(dmas)
    for d, g in zip(dmas, gaps):
        for p in d[0]: G.s[g - 1].append(p)
        G.m[g].append(d[1])
        if len(d) > 2:
            for p in d[2]: G.s[g + 1].append(p)
RD_GAPS = [0, 1, 3, 4, 5, 6, 8, 9, 10, 11, 13, 14, 15, 16, 18]
DM_GAPS = [2, 7, 12, 17, 22, 26]
def p1_iter(dma_a, upd_a, dma_b, vm, last=False, first=False, loop=None, tail_valu=None):
    G = Gaps(p1_mfmas(0, first))
    for k, r in zip(RD_GAPS, p1_reads(1, 1)): G.m[k].append(r)
    place_dma(G, dma_a, DM_GAPS)
    G.chain([f"s_sub_u32 s{S_T0}, s{S_T0}, {STG}", f"s_cselect_b32 s{S_T0}, {2*STG}, s{S_T0}"], [8, 9])
    for k, (d, b) in enumerate([(V_XA, V_XB), (V_WA, V_WB), (V_WA + 1, V_WB + 1), (V_XA + 1, V_XB + 1)]):
        G.v[[19, 19, 20, 20][k]].append(f"v_add_u32 v{d}, s{S_T0}, v{b}")
    G.chain(upd_a, [23, 23, 24, 24, 25, 25])
    G.s[27].append("s_waitcnt lgkmcnt(0)" + (f" vmcnt({vm})" if vm is not None else ""))
    G.s[27].append("s_barrier")
    G.emit()
    G = Gaps(p1_mfmas(1))
    if not last:
        for k, r in zip(RD_GAPS, p1_reads(0, 0)): G.m[k].append(r)
    place_dma(G, dma_b, DM_GAPS)
    if loop:
        G.chain([f"s_add_u32 s{S_I}, s{S_I}, 1"], [9])
        G.s[27].append(f"s_cmp_lt_u32 s{S_I}, {loop}")
    if not last: G.s[27].append("s_waitcnt lgkmcnt(0)")
    if tail_valu:
        for g, x in tail_valu: G.v[g].append(x)
    G.emit()

def k_read(f): return f"ds_read_b128 {ar(KF+4*f)}, v{V_KA+f//2} offset:{(f%2)*4096}"
def v_read(dq, e): return f"ds_read_b64_tr_b16 {vr(VF+4*dq+2*e,2)}, v{V_VA+dq}" + (" offset:4096" if e else "")
def k_addr(slot): return [f"v_add_u32 v{V_KA}, {slot}, v{V_KB}"] + [f"v_xor_b32 v{V_KA+q}, {q*64}, v{V_KA}" for q in range(1, 4)]
def v_addr(slot): return [f"v_add_u32 v{V_VA}, {slot}, v{V_VB}"] + [f"v_xor_b32 v{V_VA+d}, {d*32}, v{V_VA}" for d in range(1, 8)]
def oacc(rt, dq): return vr(OK_ + 16 * rt + 4 * dq) if dq < 4 else ar(OS_ + 16 * rt + 4 * (dq - 4))
def qk_mfmas(rt, S, usenm=True):
    m = []
    for q in range(4):
        for kt in range(2):
            d = S + 4 * kt
            c = (vr(NM + 4 * rt) if usenm else "0") if q == 0 else vr(d)
            m.append(f"{MF} {vr(d)}, {ar(KF+4*(2*q+kt))}, {ar(QA+16*rt+4*q)}, {c}")
    return m
def pv_mfmas(rt, first=False):
    P = PB + 4 * COL[rt]
    return [f"{MF} {oacc(rt,dq)}, {vr(VF+4*dq)}, {vr(P)}, " + ("0" if first else oacc(rt, dq)) for dq in range(8)]
def sm_ops(rt, scol=None):
    S = SB + 8 * (COL[rt] if scol is None else scol); P = PB + 4 * COL[rt]
    e = [f"v_exp_f32 v{S+k}, v{S+k}" for k in range(8)]
    a = [f"v_add_f32 v{LS+rt}, v{LS+rt}, v{S+k}" for k in range(8)]
    c = [f"v_cvt_pk_bf16_f32 v{P+k}, v{S+2*k}, v{S+2*k+1}" for k in range(4)]
    return e, a, c
def put_softmax(G, base, rt):
    e, a, c = sm_ops(rt)
    for k in range(8):
        G.v[base + 2 * k].append(e[k])
        if k % 2 == 1: G.v[base + 2 * k + 1].append(c[k // 2])
        G.v[base + 2 * k + 1].append(a[k])
def sm0_ops(rt):
    scol = 2 if rt == 0 else COL[rt]
    S = SB + 8 * scol; b = NM + 4 * rt; t = V_TMP
    e, a, c = sm_ops(rt, scol)
    a[0] = f"v_mov_b32 v{LS+rt}, v{S}"
    g = [[f"v_max3_f32 v{t}, v{S}, v{S+1}, v{S+2}", f"v_max3_f32 v{t+1}, v{S+3}, v{S+4}, v{S+5}", f"v_max3_f32 v{t}, v{t}, v{S+6}, v{S+7}", f"v_max_f32 v{t}, v{t}, v{t+1}", f"v_mov_b32 v{t+1}, v{t}", "s_nop 0"],
         [f"v_permlane32_swap_b32 v{t}, v{t+1}", "s_nop 0", f"v_max_f32 v{t}, v{t}, v{t+1}", f"v_mov_b32 v{t+1}, v{t}", "s_nop 0"],
         [f"v_permlane16_swap_b32 v{t}, v{t+1}", "s_nop 0", f"v_max_f32 v{t}, v{t}, v{t+1}", f"v_sub_f32 v{S}, v{S}, v{t}", f"v_sub_f32 v{S+1}, v{S+1}, v{t}"]]
    sub = [f"v_sub_f32 v{S+k}, v{S+k}, v{t}" for k in range(8)]
    nm = [f"v_sub_f32 v{b+k}, 0, v{t}" for k in range(4)]
    g += [[e[0], sub[2]], [e[1], sub[3], a[0]], [e[2], sub[4], a[1]], [e[3], sub[5], c[0]], [e[4], sub[6], a[2]], [e[5], sub[7], a[3]],
          [e[6], c[1], a[4]], [e[7], nm[0], a[5]], [c[2], a[6], nm[1]], [c[3], a[7]], [nm[2], nm[3]]]
    return g

def att_iter(kind):
    mf = []; base = []
    for n in range(7):
        base.append(len(mf))
        mf += qk_mfmas(n, SB + 8 * (2 if (kind == "first" and n == 0) else COL[n]), usenm=(kind != "first"))
        if not (kind == "first" and n < 2): mf += pv_mfmas((n - 2) % 7, first=(kind == "first"))
    G = Gaps(mf)
    if kind == "first":
        for k in range(16): G.m[k].append(v_read(k // 2, k % 2))
        for n in range(1, 7):
            g = sm0_ops(n - 1)
            if n == 1:
                pos = [12, 13, 14, 15, 15, 16, 16, 17, 17, 18, 18, 19, 19, 19]
            elif n == 2:
                pos = [base[2] + x for x in [4, 5, 6, 7, 8, 9, 10, 11, 12, 13, 14, 15, 15, 15]]
            else:
                pos = [base[n] + x for x in [0, 1, 2, 3, 4, 5, 6, 7, 8, 9, 10, 11, 12, 13]]
            for grp, p in zip(g, pos):
                for x in grp: G.v[p].append(x)
        G.s[base[2] + 6].append("s_waitcnt lgkmcnt(0)")
        off = lambda g: g - 16
    else:
        for n in range(7): put_softmax(G, 16 * n, (n - 1) % 7)
        off = lambda g: g
        for f, cnt in [(2, 4), (4, 2), (6, 0)]: G.s[f - 2 + 0].append(f"s_waitcnt lgkmcnt({cnt})") if False else None
        G.s[0].append("s_waitcnt lgkmcnt(4)"); G.s[2].append("s_waitcnt lgkmcnt(2)"); G.s[4].append("s_waitcnt lgkmcnt(0)")
        for k in range(16): G.m[24 + k].append(v_read(k // 2, k % 2))
        G.s[38].append("s_waitcnt lgkmcnt(10)")
        G.s[40].append("s_waitcnt lgkmcnt(8)"); G.s[42].append("s_waitcnt lgkmcnt(4)"); G.s[44].append("s_waitcnt lgkmcnt(0)")
        va = v_addr(f"s{S_SL1}")
        for x, g in zip(va[4:], [5, 9, 17, 21]): G.v[g].append(x)
    if kind != "last":
        dm = kv_dma("K", f"s{S_SL0}") + kv_dma("V", f"s{S_SL0}")
        if O.abl_nodma: dm = []
        if kind == "first": place_dma(G, dm, [off(g) for g in [46, 47, 62, 63, 78, 79, 93, 94]])
        else: place_dma(G, dm, [1 + 12, 41, 49, 57, 65, 73, 81, 89])
        G.chain([KVG_UPD], [off(95) if kind == "first" else 90])
        va = v_addr(f"s{S_SL2}"); ka = k_addr(f"s{S_SL2}")
        if kind == "first":
            for x, g in zip(va[:4] + ka, [off(z) for z in [62, 63, 78, 79, 78, 79, 93, 94]]): G.v[g].append(x)
        else:
            for x, g in zip(va[:4], [45, 53, 61, 69]): G.v[g].append(x)
            for x, g in zip(ka, [1, 77, 85, 93]): G.v[g].append(x) if g != 1 else G.v[69].append(x)
        G.s[off(94)].append("s_waitcnt vmcnt(24)") if kind != "first" else G.p[off(94)].append("s_waitcnt vmcnt(24)")
        if not O.abl_nobar: G.s[off(95)].append("s_barrier")
        for f in range(8): G.m[off(97 + 2 * f)].append(k_read(f))
        G.chain([f"s_add_u32 s{S_I}, s{S_I}, 1", f"s_cmp_lt_u32 s{S_I}, 12", f"s_cselect_b32 s{S_SL0}, s{S_SL1}, 0x30000", f"s_mov_b32 s{S_SL1}, s{S_SL2}",
                 f"s_sub_u32 s{S_SL2}, s{S_SL2}, 32768", f"s_cselect_b32 s{S_SL2}, {(RING-1)*32768}, s{S_SL2}", f"s_cmp_lt_u32 s{S_I}, 15", "s_waitcnt lgkmcnt(5)"],
                [off(g) for g in [96, 98, 100, 102, 104, 106, 108, 110]])
    else:
        for rt in range(4):
            for k in range(4): G.m[16 * (rt + 3) + 1 + 4 * k].append(f"ds_write_b128 v{V_T0}, {ar(OS_+16*rt+4*k)} offset:{(4*rt+k)*1024}")
    return G

def multi_reduce(regs, temps, op):
    for sw in ("v_permlane32_swap_b32", "v_permlane16_swap_b32"):
        for r, t in zip(regs, temps): I(f"v_mov_b32 v{t}, v{r}")
        I("s_nop 1")
        for r, t in zip(regs, temps): I(f"{sw} v{r}, v{t}")
        I("s_nop 1")
        for r, t in zip(regs, temps): I(f"{op} v{r}, v{r}, v{t}")

def gen_k1():
    A(".globl k1_kernel\n.p2align 8\n.type k1_kernel,@function\nk1_kernel:")
    I("s_cmp_ge_u32 s2, 256"); I("s_cbranch_scc1 L_k1_done")
    I("s_load_dwordx8 s[52:59], s[0:1], 0")
    I(f"s_load_dwordx2 {sr(S_WSP)}, s[0:1], 56")
    I("s_getpc_b64 s[4:5]")
    I("v_lshlrev_b32 v14, 7, v0")
    I("global_load_dword v15, v14, s[4:5]")
    I("v_lshrrev_b32 v14, 6, v0")
    I("v_and_b32 v0, 63, v0")
    I(f"v_readfirstlane_b32 s{S_WAVE}, v14")
    I(f"s_and_b32 s{S_T0}, s2, 7"); I(f"s_lshr_b32 s{S_T1}, s2, 3")
    I(f"s_and_b32 s{S_B}, s{S_T0}, 1"); I(f"s_lshl_b32 s{S_B}, s{S_B}, 2"); I(f"s_and_b32 s{S_T2}, s{S_T1}, 3"); I(f"s_add_u32 s{S_B}, s{S_B}, s{S_T2}")
    I(f"s_lshr_b32 s{S_H}, s{S_T0}, 1"); I(f"s_lshl_b32 s{S_H}, s{S_H}, 3"); I(f"s_lshr_b32 s{S_T3}, s{S_T1}, 2"); I(f"s_add_u32 s{S_H}, s{S_H}, s{S_T3}")
    I(f"s_mul_i32 s{S_T3}, s{S_T3}, {O.rotmul_h*128}"); I(f"s_mul_i32 s{S_T2}, s{S_T2}, {O.rotmul_b*128}"); I(f"s_add_u32 s{S_OX}, s{S_T2}, s{S_T3}")
    I(f"s_and_b32 s{S_OX}, s{S_OX}, 2047"); I(f"s_lshl_b32 s{S_OW}, s{S_OX}, 12")
    I(f"s_lshr_b32 s{S_R}, s{S_WAVE}, 1"); I(f"s_and_b32 s{S_C}, s{S_WAVE}, 1")
    I(f"s_lshl_b32 s{S_W4K}, s{S_WAVE}, 12"); I(f"s_add_u32 s{S_W4KK}, s{S_W4K}, {KOFF}"); I(f"s_add_u32 s{S_WXT}, s{S_W4K}, {XT}"); I(f"s_mul_i32 s{S_W7K}, s{S_WAVE}, 7168")
    I(f"s_mov_b32 s{S_DST}, 0"); I(f"s_mov_b32 s{S_FB}, 0")
    T = V_TMP
    I(f"v_and_b32 v{T}, 15, v0"); I(f"v_lshrrev_b32 v{T+1}, 4, v0")
    I(f"v_and_b32 v{T+4}, 7, v0"); I(f"v_xor_b32 v{T+4}, v{T+4}, v{T+1}"); I(f"s_lshl_b32 s{S_T0}, s{S_C}, 2"); I(f"v_xor_b32 v{T+4}, s{S_T0}, v{T+4}")
    I(f"v_lshrrev_b32 v{T+5}, 3, v0"); I(f"v_lshlrev_b32 v{T+5}, 11, v{T+5}"); I(f"v_lshl_add_u32 v{V_XOFF}, v{T+4}, 4, v{T+5}"); I(f"v_xor_b32 v{T+5}, 64, v{V_XOFF}")
    for j in range(1, 7): I(f"v_add_u32 v{V_XOFF+j}, {j*16384-(j%4)*1024}, v{V_XOFF if j%2==0 else T+5}")
    I(f"v_lshlrev_b32 v{T+4}, 2, v{T+1}"); I(f"v_xor_b32 v{T+4}, v{T+4}, v{T}"); I(f"v_lshlrev_b32 v{T+5}, 13, v{T+1}"); I(f"v_lshl_add_u32 v{V_WOFF}, v{T+4}, 4, v{T+5}")
    for j in range(1, 4): I(f"v_add_u32 v{V_WOFF+j}, {j*32768-j*1024}, v{V_WOFF}")
    I(f"s_mul_i32 s{S_T0}, s{S_B}, 458752"); I(f"s_mul_i32 s{S_T1}, s{S_WAVE}, {56*2048}"); I(f"s_add_u32 s{S_T0}, s{S_T0}, s{S_T1}")
    I(f"s_lshl_b32 s{S_T1}, s{S_H}, 8"); I(f"s_lshl_b32 s{S_T2}, s{S_WAVE}, 17"); I(f"s_add_u32 s{S_T1}, s{S_T1}, s{S_T2}")
    I("s_waitcnt lgkmcnt(0)")
    stamp()
    srd(S_X, 52, 3670016, S_T0); srd(S_WQ, 58, 8388608, S_T1)
    d, upd = p1_dma()
    for _ in range(2):
        emit_dma(d)
        for u in upd + dst_upd(): I(u)
    I(f"s_lshl_b32 s{S_T0}, s{S_B}, 5"); I(f"s_add_u32 s{S_T0}, s{S_T0}, s{S_H}"); I(f"s_lshl_b32 s{S_T0}, s{S_T0}, 18")
    for s, p in ((S_K, 54), (S_V, 56)):
        I(f"s_add_u32 s{s}, s{p}, s{S_T0}"); I(f"s_addc_u32 s{s+1}, s{p+1}, 0"); I(f"s_mov_b32 s{s+2}, 262144"); I(f"s_mov_b32 s{s+3}, 0x20000")
    srd(S_O, S_WSP, 14680064)
    I(f"v_lshlrev_b32 v{T+4}, 1, v{T+1}"); I(f"v_xor_b32 v{T+4}, v{T+4}, v{T}"); I(f"v_lshlrev_b32 v{T+5}, 8, v{T+1}")
    for j in range(4):
        I(f"v_xor_b32 v{T+6}, {8*(j&1) + (j>>1)}, v{T+4}"); I(f"v_lshl_add_u32 v{V_KVOFF+j}, v{T+6}, 4, v{T+5}")
    I(f"s_mov_b32 s{S_KVG}, s{S_W4K}")
    emit_dma(kv_dma("K", (RING - 1) * 32768))
    emit_dma(d)
    for u in upd + dst_upd(): I(u)
    I(f"v_lshlrev_b32 v{V_LANE16}, 4, v0"); I(f"v_bfe_u32 v{T+2}, v0, 2, 2"); I(f"v_and_b32 v{T+3}, 3, v0")
    I(f"v_lshrrev_b32 v{T+4}, 1, v{T}"); I(f"v_xor_b32 v{T+4}, v{T+4}, v{T+1}"); I(f"s_mul_i32 s{S_T0}, s{S_R}, {112*128}")
    I(f"v_lshlrev_b32 v{T+5}, 7, v{T}"); I(f"v_add_u32 v{T+5}, s{S_T0}, v{T+5}"); I(f"v_lshl_add_u32 v{V_XB}, v{T+4}, 4, v{T+5}"); I(f"v_xor_b32 v{V_XB+1}, 64, v{V_XB}")
    I(f"v_lshrrev_b32 v{T+4}, 1, v{T+3}"); I(f"v_and_b32 v{T+5}, 1, v{T+3}"); I(f"v_lshl_add_u32 v{T+4}, v{T+5}, 1, v{T+4}")
    I(f"s_lshl_b32 s{S_T0}, s{S_C}, 1"); I(f"v_xor_b32 v{T+5}, s{S_T0}, v{T+2}"); I(f"v_lshl_add_u32 v{T+4}, v{T+5}, 2, v{T+4}")
    I(f"v_lshl_add_u32 v{T+5}, v{T+1}, 3, v{T+2}"); I(f"v_lshlrev_b32 v{T+5}, 8, v{T+5}"); I(f"v_lshl_add_u32 v{V_WB}, v{T+4}, 4, v{T+5}"); I(f"v_xor_b32 v{V_WB+1}, 64, v{V_WB}")
    I(f"v_lshrrev_b32 v{T+4}, 1, v{T+1}"); I(f"v_and_b32 v{T+5}, 1, v{T+1}"); I(f"v_lshl_add_u32 v{T+4}, v{T+5}, 1, v{T+4}")
    I(f"v_and_b32 v{T+5}, 7, v{T}"); I(f"v_lshrrev_b32 v{T+6}, 3, v{T}"); I(f"v_lshl_add_u32 v{T+5}, v{T+5}, 1, v{T+6}")
    I(f"v_xor_b32 v{T+4}, v{T+4}, v{T+5}"); I(f"s_lshl_b32 s{S_T0}, s{S_C}, 3"); I(f"v_xor_b32 v{T+4}, s{S_T0}, v{T+4}")
    I(f"s_lshl_b32 s{S_T1}, s{S_C}, 13"); I(f"s_add_u32 s{S_T2}, s{S_T1}, {KOFF}")
    I(f"v_lshlrev_b32 v{T+5}, 8, v{T}"); I(f"v_add_u32 v{T+5}, s{S_T2}, v{T+5}"); I(f"v_lshl_add_u32 v{V_KB}, v{T+4}, 4, v{T+5}")
    I(f"v_lshl_add_u32 v{T+6}, v{T+1}, 2, v{T+2}")
    I(f"v_and_b32 v{T+4}, 7, v{T+6}"); I(f"v_lshrrev_b32 v{T+5}, 3, v{T+6}"); I(f"v_lshl_add_u32 v{T+4}, v{T+4}, 1, v{T+5}")
    I(f"v_bfe_u32 v{T+5}, v0, 1, 1"); I(f"v_xor_b32 v{T+4}, v{T+4}, v{T+5}"); I(f"v_xor_b32 v{T+4}, s{S_T0}, v{T+4}")
    I(f"v_lshlrev_b32 v{T+6}, 8, v{T+6}"); I(f"v_add_u32 v{T+6}, s{S_T1}, v{T+6}"); I(f"v_lshl_add_u32 v{T+6}, v{T+4}, 4, v{T+6}")
    I(f"v_and_b32 v{T+5}, 1, v0"); I(f"v_lshl_add_u32 v{V_VB}, v{T+5}, 3, v{T+6}")
    for k in range(2):
        I(f"v_mov_b32 v{V_XA+k}, v{V_XB+k}"); I(f"v_mov_b32 v{V_WA+k}, v{V_WB+k}")
    for k in range(32): I(f"v_mov_b32 v{OK_+80+k}, 0")
    for k in range(32): I(f"v_accvgpr_write_b32 a{OS_+80+k}, 0")
    for x in v_addr((RING - 1) * 32768): I(x)
    I(f"s_mul_i32 s{S_T2}, s{S_WAVE}, 14336"); I(f"v_add_u32 v{V_T0}, s{S_T2}, v{V_LANE16}")
    I(f"s_xor_b32 s{S_T3}, s{S_WAVE}, 1"); I(f"s_mul_i32 s{S_T3}, s{S_T3}, 14336"); I(f"v_add_u32 v2, s{S_T3}, v{V_LANE16}")
    I(f"s_mov_b32 s{S_T0}, 0")
    I(f"s_mov_b32 s{S_T2}, {f2u(SCALE):#x}")
    I("s_waitcnt vmcnt(26)"); I("s_barrier")
    stamp()
    for r in p1_reads(0, 0): I(r)
    I("s_waitcnt lgkmcnt(0)")
    u2 = upd + dst_upd()
    p1_iter([], [], d[:6], 11, first=True)
    I(f"s_mov_b32 s{S_I}, 1")
    A(".p2align 6"); A("L_p1:")
    p1_iter(d[6:], u2, d[:6], 11, loop=13)
    I("s_cbranch_scc1 L_p1")
    def adv(g): return g[:3] + [(g[3][0], g[3][1], [KVG_UPD])]
    kv = adv(kv_dma("V", 4 * 32768)) + kv_dma("K", 3 * 32768) + adv(kv_dma("V", 3 * 32768)) + kv_dma("K", 2 * 32768) + adv(kv_dma("V", 2 * 32768))
    p1_iter(d[6:], [], kv[:6], 11)
    p1_iter(kv[6:12], [], kv[12:18], 12)
    tail = []
    g = 9
    muls = [f"v_mul_f32 v{p1_acc(rt)+k}, s{S_T2}, v{p1_acc(rt)+k}" for rt in range(7) for k in range(16)]
    nt = 0
    for g in range(9, 28):
        tail += [(g, muls[nt]), (g, muls[nt + 1])]; nt += 2
    p1_iter(kv[18:20], [], [], None, last=True, tail_valu=tail)
    stamp()
    for x in k_addr((RING - 1) * 32768): I(x)
    for f in range(8): I(k_read(f))
    for rt in range(7):
        for kp in range(2):
            b = p1_acc(rt) + 8 * kp
            for k in range(8):
                if 16 * rt + 8 * kp + k >= nt: I(muls[16 * rt + 8 * kp + k])
            t = SB + 4 * ((2 * rt + kp) % 8)
            for k in range(4): I(f"v_cvt_pk_bf16_f32 v{t+k}, v{b+2*k}, v{b+2*k+1}")
            I(f"ds_write_b128 v{V_T0}, {vr(t)} offset:{(2*rt+kp)*1024}")
    for rt in range(7):
        for kp in range(2): I(f"ds_read_b128 {ar(QA+16*rt+4*kp)}, v{V_T0} offset:{(2*rt+kp)*1024}")
    I(f"s_mov_b32 s{S_SL0}, 0"); I(f"s_mov_b32 s{S_SL1}, {4*32768}"); I(f"s_mov_b32 s{S_SL2}, {3*32768}"); I(f"s_mov_b32 s{S_I}, 0")
    I("s_waitcnt lgkmcnt(14) vmcnt(16)"); I("s_barrier")
    for rt in range(7):
        for kp in range(2): I(f"ds_read_b128 {ar(QA+16*rt+8+4*kp)}, v2 offset:{(2*rt+kp)*1024}")
    I(f"s_mul_i32 s{S_T2}, s{S_WAVE}, 28672"); I(f"v_add_u32 v{V_T0}, s{S_T2}, v{V_LANE16}")
    I(f"s_xor_b32 s{S_T3}, s{S_WAVE}, 1"); I(f"s_mul_i32 s{S_T3}, s{S_T3}, 28672"); I(f"v_add_u32 v{V_T1}, s{S_T3}, v{V_LANE16}")
    I("s_waitcnt lgkmcnt(0)"); I("s_barrier")
    emit_dma(kv_dma("K", 32768) + kv_dma("V", 32768)); I(KVG_UPD)
    stamp()
    att_iter("first").emit()
    g = sm0_ops(6)
    S = SB + 8 * COL[6]
    for grp in g[:3]:
        for x in grp: I(x)
        I("s_nop 0")
    for k in range(2, 8): I(f"v_sub_f32 v{S+k}, v{S+k}, v{V_TMP}")
    for k in range(4): I(f"v_sub_f32 v{NM+24+k}, 0, v{V_TMP}")
    I(f"v_mov_b32 v{LS+6}, 0")
    A(".p2align 6"); A("L_att:")
    att_iter("loop").emit()
    I("s_cbranch_scc1 L_att")
    att_iter("last").emit()
    G = Gaps(pv_mfmas(5))
    e, a, c = sm_ops(6)
    for k in range(8):
        G.v[k].append(e[k])
        if k: G.v[k].append(a[k - 1])
        if k in (2, 4, 6): G.v[k].append(c[k // 2 - 1])
    for k in range(4): G.m[1 + 2 * k].append(f"ds_write_b128 v{V_T0}, {ar(OS_+64+4*k)} offset:{(16+k)*1024}")
    G.emit()
    I("s_nop 0"); I(a[7]); I(c[3]); I("s_nop 1")
    G = Gaps(pv_mfmas(6))
    for k in range(7): G.v[k].append(f"v_mov_b32 v{V_TMP+k}, v{LS+k}")
    G.emit()
    stamp()
    regs = [LS + rt for rt in range(7)]; temps = [V_TMP + rt for rt in range(7)]
    for r, t in zip(regs, temps): I(f"v_permlane32_swap_b32 v{r}, v{t}")
    for k in range(4): I(f"ds_write_b128 v{V_T0}, {ar(OS_+80+4*k)} offset:{(20+k)*1024}")
    for r, t in zip(regs, temps): I(f"v_add_f32 v{r}, v{r}, v{t}")
    for r, t in zip(regs, temps): I(f"v_mov_b32 v{t}, v{r}")
    for k in range(4): I(f"ds_write_b128 v{V_T0}, {ar(OS_+96+4*k)} offset:{(24+k)*1024}")
    for r, t in zip(regs, temps): I(f"v_permlane16_swap_b32 v{r}, v{t}")
    I("s_nop 1")
    for rt, (r, t) in enumerate(zip(regs, temps)): I(f"v_add_f32 v{NM+4*rt+1}, v{r}, v{t}")
    ST = FLAG_OFF + 256
    I(f"s_mul_i32 s{S_T2}, s{S_WAVE}, 3584"); I(f"s_add_u32 s{S_T2}, s{S_T2}, {ST}"); I(f"v_lshrrev_b32 v{V_TMP+8}, 1, v{V_LANE16}"); I(f"v_add_u32 v{V_TMP+9}, s{S_T2}, v{V_TMP+8}")
    for rt in range(7): I(f"ds_write_b64 v{V_TMP+9}, {vr(NM+4*rt,2)} offset:{rt*512}")
    I(f"v_add_f32 v{V_TMP}, v{NM+1}, v{NM+5}")
    for k in range(2, 7): I(f"v_add_f32 v{V_TMP}, v{V_TMP}, v{NM+4*k+1}")
    I(f"s_mov_b32 s{S_T0}, {f2u(2.0**40):#x}")
    I(f"v_cmp_nlt_f32 vcc, v{V_TMP}, s{S_T0}")
    I(f"s_xor_b32 s{S_T3}, s{S_WAVE}, 1"); I(f"s_mul_i32 s{S_T3}, s{S_T3}, 3584"); I(f"s_add_u32 s{S_T3}, s{S_T3}, {ST}"); I(f"v_add_u32 v{V_TMP+10}, s{S_T3}, v{V_TMP+8}")
    I(f"s_lshl_b32 s{S_T2}, s{S_WAVE}, 2"); I(f"s_add_u32 s{S_T2}, s{S_T2}, {FLAG_OFF}"); I(f"v_mov_b32 v{V_TMP+2}, s{S_T2}")
    I(f"s_cmp_lg_u64 vcc, 0"); I(f"s_cselect_b32 s{S_T1}, 1, 0"); I(f"v_mov_b32 v{V_TMP+1}, s{S_T1}")
    I(f"ds_write_b32 v{V_TMP+2}, v{V_TMP+1}")
    I(f"v_mov_b32 v{V_TMP+2}, {FLAG_OFF}")
    I("s_waitcnt lgkmcnt(0)"); I("s_barrier")
    I(f"ds_read_b128 {vr(V_TMP+4)}, v{V_TMP+2}")
    for rt in range(7): I(f"ds_read_b64 {vr(NM+4*rt+2,2)}, v{V_TMP+10} offset:{rt*512}")
    RB = 128
    def recv(rt):
        for dq in range(4): I(f"ds_read_b128 {vr(RB+16*(rt%4)+4*dq)}, v{V_T1} offset:{(4*rt+dq)*1024}")
    for rt in range(2): recv(rt)
    I("s_waitcnt lgkmcnt(8)")
    I(f"v_or3_b32 v{V_TMP+4}, v{V_TMP+4}, v{V_TMP+5}, v{V_TMP+6}"); I(f"v_or_b32 v{V_TMP+4}, v{V_TMP+4}, v{V_TMP+7}")
    recv(2)
    I(f"v_readfirstlane_b32 s{S_T0}, v{V_TMP+4}")
    bs = [NM + 4 * rt for rt in range(7)]
    for rt, b in enumerate(bs): I(f"v_min_f32 v{LS+rt}, v{b}, v{b+2}")
    I(f"s_andn2_b32 s{S_T0}, s{S_T0}, s{S_FB}"); I("s_cbranch_scc1 L_fallback")
    for rt, b in enumerate(bs): I(f"v_sub_f32 v{b}, v{LS+rt}, v{b}"); I(f"v_sub_f32 v{b+2}, v{LS+rt}, v{b+2}")
    for b in bs: I(f"v_exp_f32 v{b}, v{b}"); I(f"v_exp_f32 v{b+2}, v{b+2}")
    for b in bs: I(f"v_mul_f32 v{b+1}, v{b+1}, v{b}")
    for b in bs: I(f"v_fma_f32 v{b+1}, v{b+3}, v{b+2}, v{b+1}")
    for b in bs: I(f"v_rcp_f32 v{b+1}, v{b+1}")
    for b in bs: I(f"v_mul_f32 v{b}, v{b}, v{b+1}"); I(f"v_mul_f32 v{b+2}, v{b+2}, v{b+1}")
    I(f"s_lshl_b32 s{S_T0}, s{S_B}, 1"); I(f"s_add_u32 s{S_T0}, s{S_T0}, s{S_R}"); I(f"s_lshl_b32 s{S_T0}, s{S_T0}, 5"); I(f"s_add_u32 s{S_T0}, s{S_T0}, s{S_H}")
    I(f"s_lshl_b32 s{S_T0}, s{S_T0}, 1"); I(f"s_add_u32 s{S_T0}, s{S_T0}, s{S_C}"); I(f"s_mul_i32 s{S_T0}, s{S_T0}, 14336")
    for rt in range(7):
        if rt + 3 < 7: recv(rt + 3)
        I(f"s_waitcnt lgkmcnt({4*min(3, 6-rt)})")
        b = NM + 4 * rt; o = OK_ + 16 * rt; rb = RB + 16 * (rt % 4)
        if O.pk:
            for k in range(0, 16, 2): I(f"v_pk_mul_f32 {vr(o+k,2)}, {vr(o+k,2)}, {vr(b,2)} op_sel_hi:[1,0]")
            for k in range(0, 16, 2): I(f"v_pk_fma_f32 {vr(o+k,2)}, {vr(rb+k,2)}, {vr(b+2,2)}, {vr(o+k,2)} op_sel_hi:[1,0,1]")
        else:
            for k in range(16): I(f"v_mul_f32 v{o+k}, v{o+k}, v{b}")
            for k in range(16): I(f"v_fma_f32 v{o+k}, v{rb+k}, v{b+2}, v{o+k}")
        for k in range(8): I(f"v_cvt_pk_bf16_f32 v{o+k}, v{o+2*k}, v{o+2*k+1}")
        I(f"s_add_u32 s{S_T1}, s{S_T0}, {rt*1024}"); I(f"s_add_u32 s{S_T2}, s{S_T0}, {rt*1024+7168}")
        I(f"buffer_store_dwordx4 {vr(o)}, v{V_LANE16}, {sr(S_O,4)}, s{S_T1} offen {O.pol_ost}")
        I(f"buffer_store_dwordx4 {vr(o+4)}, v{V_LANE16}, {sr(S_O,4)}, s{S_T2} offen {O.pol_ost}")
    stamp()
    store_stamps(1 << 26)
    A("L_k1_done:")
    I("s_endpgm")
    A("L_fallback:")
    I(f"s_mov_b32 s{S_FB}, 1")
    I("s_waitcnt vmcnt(0) lgkmcnt(0)"); I("s_barrier")
    for rt in range(7): I(f"v_mov_b32 v{NM+4*rt}, 0xff800000")
    I(f"s_mov_b32 s{S_KVG}, s{S_W4K}")
    for x in k_addr(0): I(x)
    I(f"s_mov_b32 s{S_I}, 0")
    A("L_fb_loop:")
    emit_dma(kv_dma("K", 0)); I(KVG_UPD)
    I("s_waitcnt vmcnt(0)"); I("s_barrier")
    for f in range(8): I(k_read(f))
    I("s_waitcnt lgkmcnt(0)"); I("s_barrier")
    for rt in range(7):
        for m in qk_mfmas(rt, SB, usenm=False): I(m)
        I("s_nop 7")
        b = NM + 4 * rt
        for k in range(4): I(f"v_max3_f32 v{b}, v{b}, v{SB+2*k}, v{SB+2*k+1}")
    I(f"s_add_u32 s{S_I}, s{S_I}, 1"); I(f"s_cmp_lt_u32 s{S_I}, 16"); I("s_cbranch_scc1 L_fb_loop")
    multi_reduce([NM + 4 * rt for rt in range(7)], [NM + 4 * rt + 1 for rt in range(7)], "v_max_f32")
    for rt in range(7):
        b = NM + 4 * rt
        I(f"v_sub_f32 v{b}, 0, v{b}")
        for k in range(1, 4): I(f"v_mov_b32 v{b+k}, v{b}")
    I(f"s_mov_b32 s{S_KVG}, s{S_W4K}")
    for st in range(RING - 1):
        emit_dma(kv_dma("K", (4 - st) * 32768) + kv_dma("V", (4 - st) * 32768)); I(KVG_UPD)
    for k in range(112): I(f"v_mov_b32 v{OK_+k}, 0")
    for k in range(112): I(f"v_accvgpr_write_b32 a{OS_+k}, 0")
    for k in range(32): I(f"v_mov_b32 v{VF+k}, 0")
    for k in range(12): I(f"v_mov_b32 v{PB+k}, 0")
    for k in range(7): I(f"v_mov_b32 v{LS+k}, 0")
    for k in range(8): I(f"v_mov_b32 v{SB+16+k}, 0xf149f2ca")
    I(f"s_mov_b32 s{S_SL0}, 0"); I(f"s_mov_b32 s{S_SL1}, {4*32768}"); I(f"s_mov_b32 s{S_SL2}, {3*32768}"); I(f"s_mov_b32 s{S_I}, 0")
    for x in k_addr(4 * 32768) + v_addr(4 * 32768): I(x)
    I("s_waitcnt vmcnt(0)"); I("s_barrier")
    for f in range(8): I(k_read(f))
    I("s_waitcnt lgkmcnt(0)")
    I("s_branch L_att")

def gen_k2():
    nstamp[0] = 0
    D = O.k2_depth
    ACC = 16; AF = 128; BF = 0
    S_WO = 8; S_OO = 12; S_OUT = 16
    S_OG = 33; S_WG = 34; S_LB = 35; S_RH = 29; S_CG = 30; S_U = 36; S_WIN = 37
    V_WOF = 160; V_L2 = 4
    A(".globl k2_kernel\n.p2align 8\n.type k2_kernel,@function\nk2_kernel:")
    I("s_cmp_ge_u32 s2, 256"); I("s_cbranch_scc1 L_k2_done")
    I("s_load_dwordx4 s[52:55], s[0:1], 32")
    I(f"s_load_dwordx2 {sr(S_WSP)}, s[0:1], 56")
    I("s_getpc_b64 s[4:5]")
    I("v_lshlrev_b32 v14, 6, v0")
    I("global_load_dword v15, v14, s[4:5]")
    I("v_lshrrev_b32 v14, 6, v0")
    I("v_and_b32 v0, 63, v0")
    I(f"v_readfirstlane_b32 s{S_WAVE}, v14")
    I(f"s_and_b32 s{S_T0}, s2, 7"); I(f"s_lshr_b32 s{S_T1}, s2, 3")
    I(f"s_lshr_b32 s{S_RH}, s{S_T0}, 1"); I(f"s_lshl_b32 s{S_RH}, s{S_RH}, 2"); I(f"s_and_b32 s{S_T2}, s{S_T1}, 3"); I(f"s_add_u32 s{S_RH}, s{S_RH}, s{S_T2}")
    I(f"s_and_b32 s{S_CG}, s{S_T0}, 1"); I(f"s_lshl_b32 s{S_CG}, s{S_CG}, 3"); I(f"s_lshr_b32 s{S_T3}, s{S_T1}, 2"); I(f"s_add_u32 s{S_CG}, s{S_CG}, s{S_T3}")
    I(f"s_mul_i32 s{S_T2}, s{S_T2}, {O.k2_rot_r}"); I(f"s_mul_i32 s{S_T3}, s{S_T3}, {O.k2_rot_c}"); I(f"s_add_u32 s{S_U}, s{S_T2}, s{S_T3}"); I(f"s_and_b32 s{S_U}, s{S_U}, 7")
    I(f"s_mov_b32 s{S_WIN}, 0")
    if O.k2_hot: I(f"s_mov_b32 s{S_RH}, 0"); I(f"s_mov_b32 s{S_CG}, 0")
    I(f"s_lshl_b32 s{S_T0}, s{S_RH}, 2"); I(f"s_add_u32 s{S_T0}, s{S_T0}, s{S_WAVE}"); I(f"s_mul_i32 s{S_T0}, s{S_T0}, {32*7168}")
    I(f"s_lshl_b32 s{S_T1}, s{S_WAVE}, 21"); I(f"s_lshl_b32 s{S_T2}, s{S_CG}, 7"); I(f"s_add_u32 s{S_T1}, s{S_T1}, s{S_T2}")
    I(f"s_lshl_b32 s{S_LB}, s{S_WAVE}, 15")
    T = 8
    I(f"v_lshlrev_b32 v{V_LANE16}, 4, v0"); I(f"v_add_u32 v{V_L2}, 4096, v{V_LANE16}")
    I(f"v_lshrrev_b32 v{T}, 4, v0"); I(f"v_lshlrev_b32 v{T+1}, 1, v{T}"); I(f"v_and_b32 v{T+2}, 7, v0"); I(f"v_xor_b32 v{T+1}, v{T+1}, v{T+2}")
    I(f"v_lshrrev_b32 v{T+2}, 3, v0"); I(f"v_lshlrev_b32 v{T+2}, 11, v{T+2}"); I(f"v_lshl_add_u32 v{V_WOF}, v{T+1}, 4, v{T+2}")
    for j in range(1, 4): I(f"v_add_u32 v{V_WOF+j}, {j*16384-j*1024}, v{V_WOF}")
    I("s_waitcnt lgkmcnt(0)")
    stamp()
    I(f"s_add_u32 s{S_WO}, s52, s{S_T1}"); I(f"s_addc_u32 s{S_WO+1}, s53, 0"); I(f"s_sub_u32 s{S_WO+2}, {1<<21}, s{S_T2}"); I(f"s_mov_b32 s{S_WO+3}, 0x20000")
    I(f"s_add_u32 s{S_OO}, s{S_WSP}, s{S_T0}"); I(f"s_addc_u32 s{S_OO+1}, s{S_WSP+1}, 0"); I(f"s_mov_b32 s{S_OO+2}, {32*7168}"); I(f"s_mov_b32 s{S_OO+3}, 0x20000")
    srd(S_OUT, 54, 3670016)
    def step_pre(n):
        p = [f"s_add_u32 s{S_T3}, s{S_WIN}, s{S_U}", f"s_lshl_b32 s{S_WG}, s{S_T3}, 16", f"s_mul_i32 s{S_OG}, s{S_T3}, 7168",
             f"s_add_u32 s{S_U}, s{S_U}, 1", f"s_and_b32 s{S_U}, s{S_U}, 7", f"s_add_u32 m0, s{S_LB}, {(n%8)*4096}"]
        if n % 8 == 7: p.append(f"s_add_u32 s{S_WIN}, s{S_WIN}, 8")
        return p
    def loads(buf):
        g = [f"buffer_load_dwordx4 v{V_WOF+j}, {sr(S_WO,4)}, s{S_WG} offen offset:{j*1024} {pol(O.pol_wo)}lds" for j in range(4)]
        for rt in range(7):
            va = V_LANE16 if rt < 4 else V_L2
            g.append(f"buffer_load_dwordx4 {ar(BF+28*buf+4*rt)}, v{va}, {sr(S_OO,4)}, s{S_OG} offen offset:{(rt%4)*1024} {O.pol_old}")
        return g
    RA = T
    def areads(buf):
        f = AF + 16 * (buf % 2)
        return [f"ds_read_b64_tr_b16 {vr(f+4*cq+2*e,2)}, v{RA+cq} offset:{buf*4096 + e*2048}" for cq in range(4) for e in range(2)]
    def mfmas(buf):
        f = AF + 16 * (buf % 2)
        return [f"{MF} {vr(ACC+16*rt+4*cq)}, {vr(f+4*cq)}, {ar(BF+28*buf+4*rt)}, {vr(ACC+16*rt+4*cq)}" for rt in range(7) for cq in range(4)]
    for n in range(D):
        for p in step_pre(n): I(p)
        I("s_nop 0")
        for x in loads(n): I(x)
    I(f"v_bfe_u32 v{T+1}, v0, 2, 2"); I(f"v_lshl_add_u32 v{T+1}, v{T}, 2, v{T+1}")
    I(f"v_bfe_u32 v{T+2}, v{T+1}, 1, 2"); I(f"v_xor_b32 v{T+2}, s{S_WAVE}, v{T+2}")
    I(f"v_lshlrev_b32 v{T+1}, 7, v{T+1}"); I(f"v_lshl_add_u32 v{T+1}, v{T+2}, 5, v{T+1}"); I(f"v_and_b32 v{T+2}, 3, v0"); I(f"v_lshl_add_u32 v{T+1}, v{T+2}, 3, v{T+1}")
    I(f"v_add_u32 v{T}, s{S_LB}, v{T+1}")
    for cq in range(1, 4): I(f"v_xor_b32 v{T+cq}, {cq*32}, v{T}")
    for k in range(112): I(f"v_mov_b32 v{ACC+k}, 0")
    I(f"s_waitcnt vmcnt({11*D-4})")
    stamp()
    for r in areads(0): I(r)
    I(f"s_mov_b32 s{S_I}, 0")
    I(f"s_waitcnt vmcnt({11*(D-2)+7}) lgkmcnt(0)")
    A(".p2align 6"); A("L_k2:")
    for buf in range(8):
        G = Gaps(mfmas(buf))
        for k, r in enumerate(areads((buf + 1) % 8)): G.m[k].append(r)
        pre = step_pre(buf + D)
        G.chain(pre, list(range(len(pre))))
        for k, x in enumerate(loads((buf + D) % 8)): G.m[9 + k + k // 2].append(x)
        if buf == 7: G.s[8].append(f"s_add_u32 s{S_I}, s{S_I}, 1"); G.s[26].append(f"s_cmp_lt_u32 s{S_I}, 4")
        G.s[27].append(f"s_waitcnt vmcnt({11*(D-2)+7}) lgkmcnt(0)")
        G.emit()
    I("s_cbranch_scc1 L_k2")
    stamp()
    for cq in range(1, 4):
        I(f"s_xor_b32 s{S_T0}, s{S_WAVE}, {cq}"); I(f"s_mul_i32 s{S_T0}, s{S_T0}, {21*1024}"); I(f"v_add_u32 v{T+cq}, s{S_T0}, v{V_LANE16}")
    I(f"s_mul_i32 s{S_T0}, s{S_WAVE}, {21*1024}"); I(f"v_add_u32 v{T}, s{S_T0}, v{V_LANE16}")
    I("s_waitcnt vmcnt(0) lgkmcnt(0)"); I("s_barrier")
    for cq in range(1, 4):
        for rt in range(7): I(f"ds_write_b128 v{T+cq}, {vr(ACC+16*rt+4*cq)} offset:{((cq-1)*7+rt)*1024}")
    I(f"v_and_b32 v{T+4}, 15, v0"); I(f"v_lshlrev_b32 v{T+4}, 11, v{T+4}"); I(f"v_lshrrev_b32 v{T+5}, 4, v0"); I(f"v_lshl_add_u32 v{T+4}, v{T+5}, 3, v{T+4}")
    I(f"s_mul_i32 s{S_T0}, s{S_RH}, {112*2048}"); I(f"s_lshl_b32 s{S_T1}, s{S_CG}, 7"); I(f"s_add_u32 s{S_T0}, s{S_T0}, s{S_T1}"); I(f"s_lshl_b32 s{S_T1}, s{S_WAVE}, 5"); I(f"s_add_u32 s{S_T0}, s{S_T0}, s{S_T1}")
    I("s_waitcnt lgkmcnt(0)"); I("s_barrier")
    for rt in range(7):
        for cq in range(1, 4): I(f"ds_read_b128 {vr(ACC+16*rt+4*cq)}, v{T} offset:{((cq-1)*7+rt)*1024}")
    for rt in range(7):
        I(f"s_waitcnt lgkmcnt({min(15, 3*(6-rt))})")
        o = ACC + 16 * rt
        for k in range(4):
            I(f"v_add_f32 v{o+k}, v{o+k}, v{o+4+k}"); I(f"v_add_f32 v{o+8+k}, v{o+8+k}, v{o+12+k}")
        for k in range(4): I(f"v_add_f32 v{o+k}, v{o+k}, v{o+8+k}")
        I(f"v_cvt_pk_bf16_f32 v{o}, v{o}, v{o+1}"); I(f"v_cvt_pk_bf16_f32 v{o+1}, v{o+2}, v{o+3}")
        I(f"buffer_store_dwordx2 {vr(o,2)}, v{T+4}, {sr(S_OUT,4)}, s{S_T0} offen")
        I(f"s_add_u32 s{S_T0}, s{S_T0}, {16*2048}")
    stamp()
    store_stamps((1 << 26) + (1 << 20))
    A("L_k2_done:")
    I("s_endpgm")

def kd(name, vg, acc):
    A(f".amdhsa_kernel {name}\n  .amdhsa_next_free_vgpr {vg}\n  .amdhsa_next_free_sgpr 102\n  .amdhsa_accum_offset {acc}\n  .amdhsa_group_segment_fixed_size 0\n  .amdhsa_kernarg_size 64\n  .amdhsa_user_sgpr_count 2\n  .amdhsa_user_sgpr_kernarg_segment_ptr 1\n  .amdhsa_system_sgpr_workgroup_id_x 1\n.end_amdhsa_kernel")

def main(fn):
    del L[:]
    nstamp[0] = 0
    A("; @launch kernel=k1_kernel grid=(256,1,1) block=(256,1,1) lds=163840")
    A("; @launch kernel=k2_kernel grid=(256,1,1) block=(256,1,1) lds=131072")
    A('.amdgcn_target "amdgcn-amd-amdhsa--gfx950"')
    A(".text")
    gen_k1()
    gen_k2()
    A("  .fill 8192, 4, 0xBF800000")
    A('.section .rodata,"a"\n.p2align 6')
    kd("k1_kernel", 512, 256)
    A(".p2align 6")
    kd("k2_kernel", 416, 192)
    open(fn, "w").write("\n".join(L) + "\n")

if __name__ == "__main__":
    fn = sys.argv[1]
    for kv in sys.argv[2:]:
        k, v = kv.split("=")
        cur = getattr(O, k)
        setattr(O, k, (v == "1") if isinstance(cur, bool) else (int(v) if isinstance(cur, int) else v.replace("+", " ")))
    main(fn)
```

```python
import sys, math, struct, re
NAME = "standalone__mha_block_cached__near_ridge"

class Opt:
    pol_kv = "nt"; pol_x = ""; pol_wq = ""; pol_ost = "sc1"; pol_old = "sc1"; pol_wo = ""; pol_out = ""
    stamps = False; dbgst = False
    rotmul_h = 8; rotmul_b = 8
    k2_rot_c = 1; k2_rot_r = 2
    wo_pref = 3
    kv_first = 3
    abl_nopoll = False
    wo_early = 3
    kv_rot_j = 1
    kv_rot_x = 2
    lin_map = False
    kv_last = 13
    k0_it = 1
    up_chunks = 2
    nl2 = 1
    pf_pen = 2
    s4_in = True
    p1st = False
    abl_noearly = False
    nskip = 2
    pref_last = True
    loopst = False
    tlbw = 0
    abl_nomfma = False
    kv_noswz = False
    att_vm = 8
    abl_nodma = False
    poll_lead = 3
O = Opt()

L = []
def A(s): L.append(s)
def I(s):
    for x in s.split("\n"):
        if x.strip(): L.append("  " + x.strip())
def vr(b, n=4): return f"v[{b}:{b+n-1}]"
def ar(b, n=4): return f"a[{b}:{b+n-1}]"
def sr(b, n=2): return f"s[{b}:{b+n-1}]"
def pol(p): return (p + " ") if p else ""
def f2u(x): return struct.unpack("<I", struct.pack("<f", x))[0]
MF = "v_mfma_f32_16x16x32_bf16"

class Gaps:
    def __init__(self, mf):
        self.mf = list(mf); n = len(self.mf)
        self.s = [[] for _ in range(n)]; self.m = [[] for _ in range(n)]; self.v = [[] for _ in range(n)]; self.p = [[] for _ in range(n)]
    def chain(self, instrs, gaps):
        assert len(gaps) >= len(instrs), (instrs, gaps)
        for x, g in zip(instrs, gaps): self.s[g].append(x)
    def emit(self):
        for i, m in enumerate(self.mf):
            I(m)
            for x in self.s[i] + self.m[i] + self.v[i] + self.p[i]: I(x)

def resolve(lines):
    vm = []; lg = []; out = []
    for ln in lines:
        t = re.search(r";@(\S+)", ln)
        tag = t.group(1) if t else None
        code = ln.split(";")[0].rstrip() if t else ln
        op = code.strip().split(" ")[0] if code.strip() else ""
        def sub(kind, q, cap):
            def f(m):
                k = m.group(1)
                idx = [i for i, x in enumerate(q) if x == k]
                assert idx, ("unknown tag", k, ln)
                return f"{kind}({min(cap, len(q) - 1 - idx[-1])})"
            return f
        code = re.sub(r"vmcnt\(@(\S+?)\)", sub("vmcnt", vm, 62), code)
        code = re.sub(r"lgkmcnt\(@(\S+?)\)", sub("lgkmcnt", lg, 14), code)
        if tag != "nocount":
            if op.startswith(("buffer_", "global_")): vm.append(tag)
            elif op.startswith("ds_"): lg.append(tag)
        out.append(code)
    return out

OK_ = 16; VF = 128; SB = 160; PB = 184; NM = 196; LS = 224
V_LANE16 = 1; V_QP = 2; V_WOB = 3
V_KVOFF = 4
V_XB = 8; V_WB = 10; V_KB = 12; V_VB = 13; V_T0 = 14; V_T1 = 15
V_XOFF = 200; V_WOFF = 207; V_KW0 = 211; V_KW1 = 253
V_RAB = 231; V_PF = 212
V_XA = 232; V_WA = 234
V_KA = 232; V_VA = 236; V_TMP = 244; V_STAMP = 255
OS_ = 0; QA = 112; KF = 224; FR = 112
COL = [0, 1, 0, 1, 0, 1, 2]
S_X = 8; S_K = 12; S_V = 16; S_WQ = 20; S_O = 24
S_WAVE = 28; S_B = 29; S_H = 30; S_R = 31; S_C = 32
S_OX = 33; S_OW = 34; S_MXA = 36; S_MXB = 3; S_WXT = 37; S_I = 38
S_T0 = 39; S_T1 = 40; S_T2 = 41; S_T3 = 42
S_KVG = 43; S_SL0 = 44; S_SL1 = 45; S_SL2 = 46
S_FB = 47; S_W4K = 48; S_W4KK = 49; S_SCALE = 50; S_OST = 51
P_X = 52; P_K = 54; P_V = 56; P_WQ = 58; P_WO = 60; P_OUT = 62; P_DBG = 64; P_WS = 66
S_WO = 68; S_OO = 72; S_OUT = 76; S_TW = 80; S_TO = 52; S_LB0 = 88; S_LB1 = 89; S_OUTOFF = 90; S_SIG = 91; S_POLL = 92; S_PFO = 93
S_STP = 96
XT = 28672; WT = 16384; STG = XT + WT
RING = 5; KOFF = 16384
FLAG_OFF = 114688
SCALE = math.log2(math.e) / math.sqrt(128.0)

nstamp = [0]
def stamp():
    if not O.stamps: return
    k = nstamp[0]
    I(f"s_memtime {sr(S_STP)}"); I(f"s_memrealtime {sr(S_STP+2)}"); I("s_waitcnt lgkmcnt(0)")
    I(f"v_writelane_b32 v{V_STAMP}, s{S_STP}, {2*k}"); I(f"v_writelane_b32 v{V_STAMP}, s{S_STP+2}, {2*k+1}")
    nstamp[0] += 1
def store_stamps():
    if not O.stamps: return
    I(f"s_cmp_lg_u32 s{S_WAVE}, 0"); I("s_cbranch_scc1 L_done")
    I(f"s_lshl_b32 s{S_T0}, s2, 8"); I(f"s_add_u32 s{S_T0}, s{S_T0}, {1<<26}"); I(f"v_lshl_add_u32 v15, v0, 2, s{S_T0}")
    I(f"global_store_dword v15, v{V_STAMP}, {sr(P_WS)}")
def srd(d, ptr, nbytes, shift=None, sub=True):
    if shift is None:
        I(f"s_mov_b32 s{d}, s{ptr}"); I(f"s_mov_b32 s{d+1}, s{ptr+1}"); I(f"s_mov_b32 s{d+2}, {nbytes}")
    else:
        I(f"s_add_u32 s{d}, s{ptr}, s{shift}"); I(f"s_addc_u32 s{d+1}, s{ptr+1}, 0")
        I(f"s_sub_u32 s{d+2}, {nbytes}, s{shift}" if sub else f"s_mov_b32 s{d+2}, {nbytes}")
    I(f"s_mov_b32 s{d+3}, 0x20000")

def stg(i): return ((-i) % 3) * STG
def d_w(i): return [([f"s_add_u32 m0, {stg(i)}, s{S_WXT}"] if j == 0 else [], f"buffer_load_dwordx4 v{V_WOFF+j}, {sr(S_WQ,4)}, s{S_OW} offen offset:{j*1024} {pol(O.pol_wq)}lds ;@w_{i}") for j in range(4)]
def d_xa(i): return [([f"s_add_u32 m0, {stg(i)}, s{S_MXA}"] if j == 0 else [], f"buffer_load_dwordx4 v{V_XOFF+j}, {sr(S_X,4)}, s{S_OX} offen offset:{j*1024} {pol(O.pol_x)}lds ;@xa{i}") for j in range(4)]
def d_xb(i): return [([f"s_add_u32 m0, {stg(i)}, s{S_MXB}"] if j == 0 else [], f"buffer_load_dwordx4 v{V_XOFF+4+j}, {sr(S_X,4)}, s{S_OX} offen offset:{j*1024} {pol(O.pol_x)}lds ;@xb{i}", P1_UPD if j == 2 else []) for j in range(3)]
P1_UPD = [f"s_add_u32 s{S_OX}, s{S_OX}, 128", f"s_and_b32 s{S_OX}, s{S_OX}, 2047", f"s_lshl_b32 s{S_OW}, s{S_OX}, 12"]
def emit_dma(g, post=False):
    for x in g:
        for p in x[0]: I(p)
        if x[0]: I("s_nop 0")
        I(x[1])
        if post and len(x) > 2:
            for p in x[2]: I(p)
def kv_dma(which, slot, so=None):
    so = S_KVG if so is None else so
    s, off = (S_K, S_W4KK) if which == "K" else (S_V, S_W4K)
    return [([f"s_add_u32 m0, {slot}, s{off}"] if j == 0 else [],
             f"buffer_load_dwordx4 v{V_KVOFF+j}, {sr(s,4)}, s{so} offen offset:{j*1024} {pol(O.pol_kv)}lds") for j in range(4)]
KVG_UPD = f"s_add_u32 s{S_KVG}, s{S_KVG}, 16384\ns_and_b32 s{S_KVG}, s{S_KVG}, 0x3ffff"
S_KV0 = 94; S_KVE = 95; S_MASK = 35; S_DS = S_SL1
def er(reg): return ar(reg) if reg < 256 else vr(reg - 256)
EARLY = [("V", 0, 256 + 160), ("K", 1, 256 + 176), ("V", 1, 0), ("K", 2, 16), ("V", 2, 32), ("K", 3, 48), ("V", 3, 64)]
def early_loads():
    g = []
    for p, (w, st, reg) in enumerate(EARLY):
        for j in range(4):
            post = [KVG_UPD] if (w == "V" and j == 3) else []
            g.append(([], f"buffer_load_dwordx4 {er(reg+4*j)}, v{V_KVOFF+j}, {sr(S_K if w=='K' else S_V,4)}, s{S_KVG} offen offset:{j*1024} {O.pol_kv} ;@e{p}", post))
    return g
def early_writes():
    g = []
    for p, (w, st, reg) in enumerate(EARLY):
        addr = (4 - st) * 32768 + (KOFF if w == "K" else 0)
        base, b0 = (V_KW0, 98304) if addr >= 98304 else (V_KW1, 32768)
        for j in range(4):
            g.append(([f"s_waitcnt vmcnt(@e{p})"] if j == 0 else [], f"ds_write_b128 v{base}, {er(reg+4*j)} offset:{addr-b0+j*1024}"))
    return g
def p1_acc(rt): return OK_ + 16 * rt if rt < 5 else VF + 16 * (rt - 5)
FW = 112; FXA = 176; FXB = 208
def r_w(i):
    return [f"ds_read_b64_tr_b16 {ar(FW+32*(i&1)+16*s+4*t+2*e,2)}, v{V_WA+t//2} offset:{XT + s*8192 + e*1024 + (t%2)*8}" for s in range(2) for t in range(4) for e in range(2)]
def xf(rt, s): return (FXA + 8 * rt + 4 * s) if rt < 4 else (FXB + 8 * (rt - 4) + 4 * s)
def r_x(rts): return [f"ds_read_b128 {ar(xf(rt,s))}, v{V_XA+s} offset:{rt*2048}" for rt in rts for s in range(2)]
def p1_mfmas(i, rts):
    return [f"{MF} {vr(p1_acc(rt)+4*t)}, {ar(FW+32*(i&1)+16*s+4*t)}, {ar(xf(rt,s))}, " + ("0" if (i == 0 and s == 0) else vr(p1_acc(rt)+4*t)) for rt in rts for s in range(2) for t in range(4)]
def place(G, ops, gaps):
    assert len(gaps) >= len(ops), (len(ops), gaps)
    for d, g in zip(ops, gaps):
        for p in d[0]:
            if G.m[g - 1] and "buffer_" in G.m[g - 1][-1] and "lds" in G.m[g - 1][-1] and "m0" in p: G.p[g - 1].append(p)
            else: G.s[g - 1].append(p)
        G.m[g].append(d[1])
        if len(d) > 2:
            pp = [q for p in d[2] for q in p.split(chr(10))]
            nxt = [h for h in gaps[:len(ops)] if h > g]
            for k, p in enumerate(pp): G.s[min(g + 1 + k // 2, nxt[0] if nxt else 10**9)].append(p)
def layout(n, nmem, nrd):
    mg = sorted(set(1 + (k * (n - 3)) // max(nmem, 1) for k in range(nmem)))
    assert len(mg) == nmem
    rg = [g for g in range(n - 2) if g not in mg][:nrd]
    if len(rg) < nrd: rg = sorted(rg + mg[:nrd - len(rg)])
    return mg, rg
def p1_half(mf, mem, reads, addr, wait, valu=None, vstart=0):
    G = Gaps(mf); n = len(mf)
    mg, rg = layout(n, len(mem), len(reads))
    for k, r in zip(rg, reads): G.m[k].append(r)
    place(G, mem, mg)
    for after, x in addr:
        g0 = rg[after] + 1 if after >= 0 else 0
        c = [g for g in range(g0, n - 1) if g not in mg and len(G.v[g]) < (1 if G.m[g] else 2) and not (G.m[g] and G.s[g])]
        G.v[c[0]].append(x)
    if valu is not None:
        for g in range(vstart, n):
            room = 0 if g in mg else (1 if G.m[g] else 2)
            while len(G.v[g]) < room and valu and valu[0][0] <= g: G.v[g].append(valu.pop(0)[1])
    if wait is not None:
        G.s[n - 1].append(wait); G.s[n - 1].append("s_barrier")
    G.emit()

def k_read(f): return f"ds_read_b128 {ar(KF+4*f)}, v{V_KA+f//2} offset:{(f%2)*4096}"
def v_read(dq, e): return f"ds_read_b64_tr_b16 {vr(VF+4*dq+2*e,2)}, v{V_VA+dq}" + (" offset:4096" if e else "")
def k_addr(slot): return [f"v_add_u32 v{V_KA}, {slot}, v{V_KB}"] + [f"v_xor_b32 v{V_KA+q}, {q*64}, v{V_KA}" for q in range(1, 4)]
def v_addr(slot): return [f"v_add_u32 v{V_VA}, {slot}, v{V_VB}"] + [f"v_xor_b32 v{V_VA+d}, {d*32}, v{V_VA}" for d in range(1, 8)]
def oacc(rt, dq): return vr(OK_ + 16 * rt + 4 * dq) if dq < 4 else ar(OS_ + 16 * rt + 4 * (dq - 4))
def qk_mfmas(rt, S, usenm=True):
    m = []
    for q in range(4):
        for kt in range(2):
            d = S + 4 * kt
            c = (vr(NM + 4 * rt) if usenm else "0") if q == 0 else vr(d)
            m.append(f"{MF} {vr(d)}, {ar(KF+4*(2*q+kt))}, {ar(QA+16*rt+4*q)}, {c}")
    return m
def pv_mfmas(rt, first=False):
    P = PB + 4 * COL[rt]
    return [f"{MF} {oacc(rt,dq)}, {vr(VF+4*dq)}, {vr(P)}, " + ("0" if first else oacc(rt, dq)) for dq in range(8)]
def sm_ops(rt, scol=None):
    S = SB + 8 * (COL[rt] if scol is None else scol); P = PB + 4 * COL[rt]
    e = [f"v_exp_f32 v{S+k}, v{S+k}" for k in range(8)]
    a = [f"v_add_f32 v{LS+rt}, v{LS+rt}, v{S+k}" for k in range(8)]
    c = [f"v_cvt_pk_bf16_f32 v{P+k}, v{S+2*k}, v{S+2*k+1}" for k in range(4)]
    return e, a, c
def put_softmax(G, base, rt):
    e, a, c = sm_ops(rt)
    for k in range(8):
        G.v[base + 2 * k].append(e[k])
        if k % 2 == 1: G.v[base + 2 * k + 1].append(c[k // 2])
        G.v[base + 2 * k + 1].append(a[k])
def sm0_ops(rt):
    scol = 2 if rt == 0 else COL[rt]
    S = SB + 8 * scol; b = NM + 4 * rt; t = V_TMP
    e, a, c = sm_ops(rt, scol)
    a[0] = f"v_mov_b32 v{LS+rt}, v{S}"
    g = [[f"v_max3_f32 v{t}, v{S}, v{S+1}, v{S+2}", f"v_max3_f32 v{t+1}, v{S+3}, v{S+4}, v{S+5}", f"v_max3_f32 v{t}, v{t}, v{S+6}, v{S+7}", f"v_max_f32 v{t}, v{t}, v{t+1}", f"v_mov_b32 v{t+1}, v{t}", "s_nop 0"],
         [f"v_permlane32_swap_b32 v{t}, v{t+1}", "s_nop 0", f"v_max_f32 v{t}, v{t}, v{t+1}", f"v_mov_b32 v{t+1}, v{t}", "s_nop 0"],
         [f"v_permlane16_swap_b32 v{t}, v{t+1}", "s_nop 0", f"v_max_f32 v{t}, v{t}, v{t+1}", f"v_sub_f32 v{S}, v{S}, v{t}", f"v_sub_f32 v{S+1}, v{S+1}, v{t}"]]
    sub = [f"v_sub_f32 v{S+k}, v{S+k}, v{t}" for k in range(8)]
    nm = [f"v_sub_f32 v{b+k}, 0, v{t}" for k in range(4)]
    g += [[e[0], sub[2]], [e[1], sub[3], a[0]], [e[2], sub[4], a[1]], [e[3], sub[5], c[0]], [e[4], sub[6], a[2]], [e[5], sub[7], a[3]],
          [e[6], c[1], a[4]], [e[7], nm[0], a[5]], [c[2], a[6], nm[1]], [c[3], a[7]], [nm[2], nm[3]]]
    return g

def next_dma_state():
    return [f"s_add_u32 s{S_I}, s{S_I}, 1", f"s_bitcmp1_b32 s{S_MASK}, s{S_I}", f"s_cselect_b32 s{S_SL0}, s{S_DS}, 0x30000", f"s_cselect_b32 s{S_KVE}, s{S_KVG}, 0x40000000",
            f"s_cselect_b32 s{S_T3}, 32768, 0", f"s_sub_u32 s{S_DS}, s{S_DS}, s{S_T3}", f"s_cselect_b32 s{S_DS}, {(RING-1)*32768}, s{S_DS}",
            f"s_lshr_b32 s{S_T3}, s{S_T3}, 1", f"s_add_u32 s{S_KVG}, s{S_KVG}, s{S_T3}", f"s_and_b32 s{S_KVG}, s{S_KVG}, 0x3ffff"]
V_WOF = 8; V_RA0 = 232; V_RA1 = 236; V_L2 = 240
def att_iter(kind):
    mf = []; base = []
    for n in range(7):
        base.append(len(mf))
        mf += qk_mfmas(n, SB + 8 * (2 if (kind == "first" and n == 0) else COL[n]), usenm=(kind != "first"))
        if not (kind == "first" and n < 2): mf += pv_mfmas((n - 2) % 7, first=(kind == "first"))
    G = Gaps(mf)
    if kind == "first":
        for k in range(16): G.m[k].append(v_read(k // 2, k % 2) + " ;@vf")
        for n in range(1, 7):
            g = sm0_ops(n - 1)
            if n == 1: pos = [12, 13, 14, 15, 15, 16, 16, 17, 17, 18, 18, 19, 19, 19]
            elif n == 2: pos = [base[2] + x for x in [4, 5, 6, 7, 8, 9, 10, 11, 12, 13, 14, 15, 15, 15]]
            else: pos = [base[n] + x for x in range(14)]
            for grp, p in zip(g, pos):
                for x in grp: G.v[p].append(x)
        G.s[base[2] + 6].append("s_waitcnt lgkmcnt(@vf)")
        off = lambda g: g - 16
        place(G, early_writes()[20:], [off(g) for g in [50, 54, 58, 62, 63, 66, 70, 74]])
        G.v[2].append(f"v_lshlrev_b32 v{V_TMP+8}, 11, v0")
        if O.s4_in:
            d4 = kv_dma("K", 0) + kv_dma("V", 0); d4[7] = d4[7] + ([KVG_UPD],)
            place(G, d4, [off(g) for g in [36, 42, 47, 52, 60, 68, 72, 78]])
        for j in range(0 if O.pref_last else O.wo_pref):
            G.m[off(36 + 3 * j)].append(f"buffer_load_dword v{V_QP}, v{V_TMP+8}, {sr(S_WO,4)}, s{S_PFO} offen")
            G.s[off(37 + 3 * j)].append(f"s_add_u32 s{S_PFO}, s{S_PFO}, {8*65536}")
    else:
        for n in range(7): put_softmax(G, 16 * n, (n - 1) % 7)
        off = lambda g: g
        G.s[0].append("s_waitcnt lgkmcnt(4)"); G.s[2].append("s_waitcnt lgkmcnt(2)"); G.s[4].append("s_waitcnt lgkmcnt(0)")
        for k in range(16): G.m[24 + k].append(v_read(k // 2, k % 2))
        G.s[38].append("s_waitcnt lgkmcnt(10)")
        G.s[40].append("s_waitcnt lgkmcnt(8)"); G.s[42].append("s_waitcnt lgkmcnt(4)"); G.s[44].append("s_waitcnt lgkmcnt(0)")
        va = v_addr(f"s{S_SL1}")
        for x, g in zip(va[4:], [5, 9, 17, 21]): G.v[g].append(x)
    if kind != "last":
        va = v_addr(f"s{S_SL2}"); ka = k_addr(f"s{S_SL2}")
        if kind == "first":
            for x, g in zip(va[:4] + ka, [off(z) for z in [46, 47, 62, 63, 78, 79, 93, 94]]): G.v[g].append(x)
        elif kind == "pen":
            G.v[1].append(f"v_lshlrev_b32 v{V_TMP+8}, 11, v0")
            for j in range(O.pf_pen):
                g = [13, 49, 65, 81][j]
                G.s[g - 1].append(f"s_add_u32 s{S_T0}, s{S_PFO}, {j*8*65536}")
                G.m[g].append(f"buffer_load_dword v{V_QP}, v{V_TMP+8}, {sr(S_WO,4)}, s{S_T0} offen")
            for x, g in zip(va[:4], [45, 53, 61, 69]): G.v[g].append(x)
            for x, g in zip(ka, [77, 85, 89, 93]): G.v[g].append(x)
            G.s[94].append(f"s_waitcnt vmcnt({O.pf_pen})")
        else:
            place(G, kv_dma("K", f"s{S_SL0}", S_KVE) + kv_dma("V", f"s{S_SL0}", S_KVE), [1, 13, 41, 49, 57, 65, 73, 81])
            for x, g in zip(va[:4], [45, 53, 61, 69]): G.v[g].append(x)
            for x, g in zip(ka, [77, 85, 89, 93]): G.v[g].append(x)
            G.s[94].append(f"s_waitcnt vmcnt({O.att_vm})")
        G.s[off(95)].append("s_barrier")
        for f in range(8): G.m[off(97 + 2 * f)].append(k_read(f))
        if kind != "pen": G.chain(next_dma_state(), [off(g) for g in [82, 84, 86, 88, 90, 92, 96, 98, 100, 102]])
        G.chain([f"s_sub_u32 s{S_SL2}, s{S_SL2}, 32768", f"s_cselect_b32 s{S_SL2}, {(RING-1)*32768}, s{S_SL2}", f"s_cmp_lt_u32 s{S_I}, 14", "s_waitcnt lgkmcnt(5)"],
                [off(g) for g in [104, 106, 108, 110]])
    else:
        for rt in range(4):
            for k in range(4): G.m[16 * (rt + 3) + 1 + 4 * k].append(f"ds_write_b128 v{V_T0}, {ar(OS_+16*rt+4*k)} offset:{(4*rt+k)*1024}")
        if O.pref_last:
            for j in range(O.pf_pen, O.wo_pref):
                G.s[6 + 4 * (j - O.pf_pen)].append(f"s_add_u32 s{S_T0}, s{S_PFO}, {j*8*65536}")
                G.m[7 + 4 * (j - O.pf_pen)].append(f"buffer_load_dword v{V_QP}, v{V_TMP+8}, {sr(S_WO,4)}, s{S_T0} offen")
        ex = [f"v_add_u32 v{V_RA0}, s{S_LB0}, v{V_RAB}", f"v_mov_b32 v{V_WOF}, v{V_WOB}"]
        for x, g in zip(ex, [1, 13]): G.v[g].append(x)
        ex = [f"v_add_u32 v{V_RA1}, s{S_LB1}, v{V_RAB}", f"v_add_u32 v{V_L2}, 4096, v{V_LANE16}"]
        for x, g in zip(ex, [41, 45]): G.v[g].append(x)
    return G
def p3_addr_rest():
    return ([f"v_xor_b32 v{V_RA0+q}, {q*32}, v{V_RA0}" for q in range(1, 4)] + [f"v_xor_b32 v{V_RA1+q}, {q*32}, v{V_RA1}" for q in range(1, 4)]
            + [f"v_add_u32 v{V_WOF+j}, {j*16384-j*1024}, v{V_WOB}" for j in range(1, 4)])

def multi_reduce(regs, temps, op):
    for sw in ("v_permlane32_swap_b32", "v_permlane16_swap_b32"):
        for r, t in zip(regs, temps): I(f"v_mov_b32 v{t}, v{r}")
        I("s_nop 1")
        for r, t in zip(regs, temps): I(f"{sw} v{r}, v{t}")
        I("s_nop 1")
        for r, t in zip(regs, temps): I(f"{op} v{r}, v{r}, v{t}")

RA_N = 13; RL_N = 9; NB = 5; ACC = 16
def areg(m, k, n):
    e = m % RA_N
    return vr(128 + 16 * e + k, n) if e < 6 else ar(140 + 16 * (e - 6) + k, n)
def bump(s, d): return [f"s_add_u32 s{s}, s{s}, {d}", f"s_addc_u32 s{s+1}, s{s+1}, 0", f"s_sub_u32 s{s+2}, s{s+2}, {d}"]
def wo_dma(m):
    s = m % RL_N
    m0 = f"s_add_u32 m0, s{S_LB0}, {s*4096}" if s < 2 else f"s_add_u32 m0, s{S_LB1}, {(s-2)*4096}"
    pre = (bump(S_WO, 8 * 65536) if (m % 8 == 0 and m) else []) + [m0]
    return [(pre if j == 0 else [], f"buffer_load_dwordx4 v{V_WOF+j}, {sr(S_WO,4)}, s{S_TW+m%8} offen offset:{j*1024} {pol(O.pol_wo)}lds ;@w{m}") for j in range(4)]
def a_reads(m):
    s = m % RL_N
    ra, o = (V_RA0, s * 4096) if s < 2 else (V_RA1, (s - 2) * 4096)
    return [f"ds_read_b64_tr_b16 {areg(m,4*cq+2*e,2)}, v{ra+cq} offset:{o+e*2048} ;@a{m}" for cq in range(4) for e in range(2)]
def b_loads(n):
    pre = bump(S_OO, 8 * 7168) if (n % 8 == 0 and n) else []
    return [(pre if rt == 0 else [], f"buffer_load_dwordx4 {ar(28*(n%NB)+4*rt)}, v{V_LANE16 if rt<4 else V_L2}, {sr(S_OO,4)}, s{S_TO+n%8} offen offset:{(rt%4)*1024} {O.pol_old} ;@b{n}") for rt in range(7)]
def p3_mfmas(n):
    return [f"{MF} {vr(ACC+16*rt+4*cq)}, {areg(n,4*cq,4)}, {ar(28*(n%NB)+4*rt)}, " + ("0" if n == 0 else vr(ACC+16*rt+4*cq)) for rt in range(7) for cq in range(4)]

def gen():
    K = NAME + "_kernel"
    A(f".globl {K}\n.p2align 8\n.type {K},@function\n{K}:")
    I("s_cmp_ge_u32 s2, 256"); I("s_cbranch_scc1 L_done")
    I("s_load_dwordx16 s[52:67], s[0:1], 0")
    I("s_getpc_b64 s[4:5]")
    I("v_lshlrev_b32 v14, 7, v0")
    I("global_load_dword v15, v14, s[4:5]")
    I("v_lshrrev_b32 v14, 1, v14")
    I("v_add_u32 v14, 0x8000, v14")
    I("global_load_dword v15, v14, s[4:5]")
    I("v_lshrrev_b32 v14, 6, v0")
    I("v_and_b32 v0, 63, v0")
    I(f"v_readfirstlane_b32 s{S_WAVE}, v14")
    I(f"s_and_b32 s{S_T0}, s2, 7"); I(f"s_lshr_b32 s{S_T1}, s2, 3")
    I(f"s_and_b32 s{S_B}, s{S_T0}, 1"); I(f"s_lshl_b32 s{S_B}, s{S_B}, 2"); I(f"s_and_b32 s{S_T2}, s{S_T1}, 3"); I(f"s_add_u32 s{S_B}, s{S_B}, s{S_T2}")
    I(f"s_lshr_b32 s{S_H}, s{S_T0}, 1"); I(f"s_lshl_b32 s{S_H}, s{S_H}, 3"); I(f"s_lshr_b32 s{S_T3}, s{S_T1}, 2"); I(f"s_add_u32 s{S_H}, s{S_H}, s{S_T3}")
    if O.lin_map: I(f"s_lshr_b32 s{S_B}, s2, 5"); I(f"s_and_b32 s{S_H}, s2, 31")
    I(f"s_mul_i32 s{S_T3}, s{S_T3}, {O.rotmul_h*128}"); I(f"s_mul_i32 s{S_T2}, s{S_T2}, {O.rotmul_b*128}"); I(f"s_add_u32 s{S_OX}, s{S_T2}, s{S_T3}")
    I(f"s_and_b32 s{S_OX}, s{S_OX}, 2047"); I(f"s_lshl_b32 s{S_OW}, s{S_OX}, 12")
    I(f"s_lshr_b32 s{S_R}, s{S_WAVE}, 1"); I(f"s_and_b32 s{S_C}, s{S_WAVE}, 1")
    I(f"s_lshl_b32 s{S_W4K}, s{S_WAVE}, 12"); I(f"s_add_u32 s{S_W4KK}, s{S_W4K}, {KOFF}"); I(f"s_add_u32 s{S_WXT}, s{S_W4K}, {XT}"); I(f"s_mul_i32 s{S_T0}, s{S_R}, {14*1024}"); I(f"s_lshl_b32 s{S_MXA}, s{S_C}, 12"); I(f"s_add_u32 s{S_MXA}, s{S_MXA}, s{S_T0}")
    I(f"s_mul_i32 s{S_MXB}, s{S_C}, 3072"); I(f"s_add_u32 s{S_MXB}, s{S_MXB}, s{S_T0}"); I(f"s_add_u32 s{S_MXB}, s{S_MXB}, 8192")
    T = V_TMP
    I(f"v_and_b32 v{T}, 15, v0"); I(f"v_lshrrev_b32 v{T+1}, 4, v0")
    I(f"v_and_b32 v{T+4}, 7, v0"); I(f"v_xor_b32 v{T+4}, v{T+4}, v{T+1}")
    I(f"v_lshrrev_b32 v{T+5}, 3, v0"); I(f"v_lshlrev_b32 v{T+7}, 11, v{T+5}"); I(f"v_lshl_add_u32 v{T+4}, v{T+4}, 4, v{T+7}")
    I(f"s_lshl_b32 s{S_T0}, s{S_C}, 16"); I(f"v_add_u32 v{V_XOFF}, s{S_T0}, v{T+4}"); I(f"v_xor_b32 v{T+5}, 64, v{V_XOFF}")
    for j in range(1, 4): I(f"v_add_u32 v{V_XOFF+j}, {j*16384-j*1024}, v{V_XOFF if j%2==0 else T+5}")
    I(f"s_lshl_b32 s{S_T0}, s{S_C}, 6"); I(f"v_xor_b32 v{T+4}, s{S_T0}, v{T+4}"); I(f"s_mul_i32 s{S_T0}, s{S_C}, {24*2048}"); I(f"s_add_u32 s{S_T0}, s{S_T0}, {64*2048}")
    I(f"v_add_u32 v{V_XOFF+4}, s{S_T0}, v{T+4}"); I(f"v_xor_b32 v{T+5}, 64, v{V_XOFF+4}")
    for j in range(1, 3): I(f"v_add_u32 v{V_XOFF+4+j}, {j*16384-j*1024}, v{V_XOFF+4 if j%2==0 else T+5}")
    I(f"v_lshlrev_b32 v{T+4}, 2, v{T+1}"); I(f"v_xor_b32 v{T+4}, v{T+4}, v{T}"); I(f"v_lshlrev_b32 v{T+5}, 13, v{T+1}"); I(f"v_lshl_add_u32 v{V_WOFF}, v{T+4}, 4, v{T+5}")
    for j in range(1, 4): I(f"v_add_u32 v{V_WOFF+j}, {j*32768-j*1024}, v{V_WOFF}")
    I(f"s_mul_i32 s{S_T0}, s{S_B}, 458752"); I(f"s_mul_i32 s{S_T1}, s{S_R}, {112*2048}"); I(f"s_add_u32 s{S_T0}, s{S_T0}, s{S_T1}")
    I(f"s_lshl_b32 s{S_T1}, s{S_H}, 8"); I(f"s_lshl_b32 s{S_T2}, s{S_WAVE}, 17"); I(f"s_add_u32 s{S_T1}, s{S_T1}, s{S_T2}")
    I("s_waitcnt lgkmcnt(0)")
    stamp()
    srd(S_X, P_X, 3670016, S_T0); srd(S_WQ, P_WQ, 8388608, S_T1)
    for i in range(O.up_chunks): emit_dma(d_w(i) + d_xa(i) + d_xb(i), post=True)
    I(f"s_lshl_b32 s{S_T0}, s{S_B}, 5"); I(f"s_add_u32 s{S_T0}, s{S_T0}, s{S_H}"); I(f"s_lshl_b32 s{S_T0}, s{S_T0}, 18")
    srd(S_K, P_K, 262144, S_T0, sub=False); srd(S_V, P_V, 262144, S_T0, sub=False)
    if O.tlbw:
        I(f"s_lshl_b32 s{S_T0}, s{S_WAVE}, 16"); I(f"v_lshlrev_b32 v14, 10, v0")
        I(f"buffer_load_dword v15, v14, {sr(S_K,4)}, s{S_T0} offen {O.pol_kv}"); I(f"buffer_load_dword v15, v14, {sr(S_V,4)}, s{S_T0} offen {O.pol_kv}")
    srd(S_O, P_WS, 14680064); srd(S_OUT, P_OUT, 3670016)
    I(f"s_lshr_b32 s{S_T0}, s2, 3"); I(f"s_mul_i32 s{S_T0}, s{S_T0}, {O.kv_rot_j}"); I(f"s_and_b32 s{S_T1}, s2, 7"); I(f"s_mul_i32 s{S_T1}, s{S_T1}, {O.kv_rot_x}")
    I(f"s_add_u32 s{S_T0}, s{S_T0}, s{S_T1}"); I(f"s_and_b32 s{S_T0}, s{S_T0}, 15"); I(f"s_lshl_b32 s{S_T0}, s{S_T0}, 14"); I(f"s_add_u32 s{S_KV0}, s{S_T0}, s{S_W4K}")
    n_it = 11 + O.nskip
    I(f"s_mov_b32 s{S_MASK}, {((1 << n_it) - 1) << 1:#x}")
    if O.nskip:
        per = (n_it - 1) // O.nskip
        pat = sum(1 << (1 + per * k) for k in range(O.nskip))
        I(f"s_lshr_b32 s{S_T0}, s2, 3"); I(f"s_mul_i32 s{S_T0}, s{S_T0}, {per}"); I(f"s_lshr_b32 s{S_T0}, s{S_T0}, 5"); I(f"s_lshl_b32 s{S_T0}, {pat:#x}, s{S_T0}"); I(f"s_andn2_b32 s{S_MASK}, s{S_MASK}, s{S_T0}")
    I(f"s_mov_b32 s{S_FB}, 0"); I(f"s_mov_b32 s{S_KVG}, s{S_KV0}"); I(f"s_mov_b32 s{S_SCALE}, {f2u(SCALE):#x}")
    I(f"s_lshl_b32 s{S_T0}, s{S_B}, 1"); I(f"s_add_u32 s{S_T0}, s{S_T0}, s{S_R}"); I(f"s_lshl_b32 s{S_T0}, s{S_T0}, 5"); I(f"s_add_u32 s{S_T0}, s{S_T0}, s{S_H}")
    I(f"s_lshl_b32 s{S_T0}, s{S_T0}, 1"); I(f"s_add_u32 s{S_T0}, s{S_T0}, s{S_C}"); I(f"s_mul_i32 s{S_OST}, s{S_T0}, 14336")
    I(f"s_lshl_b32 s{S_SIG}, s{S_B}, 5"); I(f"s_and_b32 s{S_T0}, s{S_H}, 24"); I(f"s_add_u32 s{S_SIG}, s{S_SIG}, s{S_T0}")
    RH = S_SL0; CG = S_SL1; U = S_SL2
    I(f"s_and_b32 s{S_T0}, s2, 7"); I(f"s_lshr_b32 s{S_T1}, s2, 3")
    I(f"s_lshr_b32 s{RH}, s{S_T0}, 1"); I(f"s_lshl_b32 s{RH}, s{RH}, 2"); I(f"s_and_b32 s{S_T2}, s{S_T1}, 3"); I(f"s_add_u32 s{RH}, s{RH}, s{S_T2}")
    I(f"s_and_b32 s{CG}, s{S_T0}, 1"); I(f"s_lshl_b32 s{CG}, s{CG}, 3"); I(f"s_lshr_b32 s{S_T3}, s{S_T1}, 2"); I(f"s_add_u32 s{CG}, s{CG}, s{S_T3}")
    I(f"s_lshl_b32 s{S_PFO}, s{S_T2}, 17")
    I(f"s_mul_i32 s{S_T2}, s{S_T2}, {O.k2_rot_r}"); I(f"s_mul_i32 s{S_T3}, s{S_T3}, {O.k2_rot_c}"); I(f"s_add_u32 s{U}, s{S_T2}, s{S_T3}")
    I(f"s_lshl_b32 s{S_T0}, s{RH}, 2"); I(f"s_add_u32 s{S_T0}, s{S_T0}, s{S_WAVE}"); I(f"s_mul_i32 s{S_T0}, s{S_T0}, {32*7168}")
    srd(S_OO, P_WS, 32 * 7168, S_T0, sub=False)
    I(f"s_lshl_b32 s{S_T1}, s{S_WAVE}, 21"); I(f"s_lshl_b32 s{S_T2}, s{CG}, 7"); I(f"s_add_u32 s{S_T1}, s{S_T1}, s{S_T2}")
    srd(S_WO, P_WO, 8388608, S_T1)
    I(f"s_mul_i32 s{S_OUTOFF}, s{RH}, {112*2048}"); I(f"s_add_u32 s{S_OUTOFF}, s{S_OUTOFF}, s{S_T2}"); I(f"s_lshl_b32 s{S_T1}, s{S_WAVE}, 5"); I(f"s_add_u32 s{S_OUTOFF}, s{S_OUTOFF}, s{S_T1}")
    I(f"s_lshr_b32 s{S_POLL}, s{RH}, 1"); I(f"s_lshl_b32 s{S_POLL}, s{S_POLL}, 5"); I(f"s_lshl_b32 s{S_T1}, s{S_WAVE}, 3"); I(f"s_add_u32 s{S_POLL}, s{S_POLL}, s{S_T1}")
    for u in range(8):
        I(f"s_add_u32 s{S_T0}, s{U}, {u}"); I(f"s_and_b32 s{S_T0}, s{S_T0}, 7"); I(f"s_lshl_b32 s{S_TW+u}, s{S_T0}, 16"); I(f"s_mul_i32 s{S_TO+u}, s{S_T0}, 7168")
    I(f"s_lshl_b32 s{S_LB0}, s{S_WAVE}, 13"); I(f"s_add_u32 s{S_LB0}, s{S_LB0}, 131072"); I(f"s_xor_b32 s{S_T3}, s{S_WAVE}, 1"); I(f"s_mul_i32 s{S_LB1}, s{S_T3}, 28672")
    I(f"v_lshlrev_b32 v{T+4}, 1, v{T+1}"); I(f"v_and_b32 v{T+6}, 7, v0"); I(f"v_xor_b32 v{T+6}, v{T+4}, v{T+6}"); I(f"v_lshl_add_u32 v{V_WOB}, v{T+6}, 4, v{T+7}")
    I(f"v_xor_b32 v{T+4}, v{T+4}, v{T}"); I(f"v_lshlrev_b32 v{T+5}, 8, v{T+1}")
    for j in range(4):
        I(f"v_xor_b32 v{T+6}, {8*(j&1) + (j>>1)}, v{T+4}"); I(f"v_lshl_add_u32 v{V_KVOFF+j}, v{T+6}, 4, v{T+5}")
    if O.kv_noswz:
        for j in range(4): I(f"v_lshlrev_b32 v{V_KVOFF+j}, 4, v0")
    I(f"v_lshlrev_b32 v{V_LANE16}, 4, v0"); I(f"v_bfe_u32 v{T+2}, v0, 2, 2"); I(f"v_and_b32 v{T+3}, 3, v0")
    I(f"v_lshrrev_b32 v{T+4}, 1, v{T}"); I(f"v_xor_b32 v{T+4}, v{T+4}, v{T+1}"); I(f"s_mul_i32 s{S_T0}, s{S_R}, {112*128}")
    I(f"v_lshlrev_b32 v{T+5}, 7, v{T}"); I(f"v_add_u32 v{T+5}, s{S_T0}, v{T+5}"); I(f"v_lshl_add_u32 v{V_XB}, v{T+4}, 4, v{T+5}"); I(f"v_xor_b32 v{V_XB+1}, 64, v{V_XB}")
    I(f"v_lshrrev_b32 v{T+4}, 1, v{T+3}"); I(f"v_and_b32 v{T+5}, 1, v{T+3}"); I(f"v_lshl_add_u32 v{T+4}, v{T+5}, 1, v{T+4}")
    I(f"s_lshl_b32 s{S_T0}, s{S_C}, 1"); I(f"v_xor_b32 v{T+5}, s{S_T0}, v{T+2}"); I(f"v_lshl_add_u32 v{T+4}, v{T+5}, 2, v{T+4}")
    I(f"v_lshl_add_u32 v{T+5}, v{T+1}, 3, v{T+2}"); I(f"v_lshlrev_b32 v{T+5}, 8, v{T+5}"); I(f"v_lshl_add_u32 v{V_WB}, v{T+4}, 4, v{T+5}"); I(f"v_xor_b32 v{V_WB+1}, 64, v{V_WB}")
    I(f"v_lshrrev_b32 v{T+4}, 1, v{T+1}"); I(f"v_and_b32 v{T+5}, 1, v{T+1}"); I(f"v_lshl_add_u32 v{T+4}, v{T+5}, 1, v{T+4}")
    I(f"v_and_b32 v{T+5}, 7, v{T}"); I(f"v_lshrrev_b32 v{T+6}, 3, v{T}"); I(f"v_lshl_add_u32 v{T+5}, v{T+5}, 1, v{T+6}")
    I(f"v_xor_b32 v{T+4}, v{T+4}, v{T+5}"); I(f"s_lshl_b32 s{S_T0}, s{S_C}, 3"); I(f"v_xor_b32 v{T+4}, s{S_T0}, v{T+4}")
    I(f"s_lshl_b32 s{S_T1}, s{S_C}, 13"); I(f"s_add_u32 s{S_T2}, s{S_T1}, {KOFF}")
    I(f"v_lshlrev_b32 v{T+5}, 8, v{T}"); I(f"v_add_u32 v{T+5}, s{S_T2}, v{T+5}"); I(f"v_lshl_add_u32 v{V_KB}, v{T+4}, 4, v{T+5}")
    I(f"v_lshl_add_u32 v{T+6}, v{T+1}, 2, v{T+2}")
    I(f"v_bfe_u32 v{T+4}, v{T+6}, 1, 2"); I(f"v_xor_b32 v{T+4}, s{S_WAVE}, v{T+4}"); I(f"v_lshlrev_b32 v{T+5}, 7, v{T+6}"); I(f"v_lshl_add_u32 v{T+5}, v{T+4}, 5, v{T+5}"); I(f"v_lshl_add_u32 v{V_RAB}, v{T+3}, 3, v{T+5}")
    I(f"v_and_b32 v{T+4}, 7, v{T+6}"); I(f"v_lshrrev_b32 v{T+5}, 3, v{T+6}"); I(f"v_lshl_add_u32 v{T+4}, v{T+4}, 1, v{T+5}")
    I(f"v_bfe_u32 v{T+5}, v0, 1, 1"); I(f"v_xor_b32 v{T+4}, v{T+4}, v{T+5}"); I(f"v_xor_b32 v{T+4}, s{S_T0}, v{T+4}")
    I(f"v_lshlrev_b32 v{T+6}, 8, v{T+6}"); I(f"v_add_u32 v{T+6}, s{S_T1}, v{T+6}"); I(f"v_lshl_add_u32 v{T+6}, v{T+4}, 4, v{T+6}")
    I(f"v_and_b32 v{T+5}, 1, v0"); I(f"v_lshl_add_u32 v{V_VB}, v{T+5}, 3, v{T+6}")
    for k in range(2):
        I(f"v_mov_b32 v{V_XA+k}, v{V_XB+k}"); I(f"v_mov_b32 v{V_WA+k}, v{V_WB+k}")
    for k in range(32): I(f"v_mov_b32 v{OK_+80+k}, 0")
    for k in range(32): I(f"v_accvgpr_write_b32 a{OS_+80+k}, 0")
    for x in v_addr((RING - 1) * 32768): I(x)
    I(f"s_mul_i32 s{S_T2}, s{S_WAVE}, 14336"); I(f"v_add_u32 v{V_T0}, s{S_T2}, v{V_LANE16}")
    I(f"s_mul_i32 s{S_T3}, s{S_T3}, 14336"); I(f"v_add_u32 v{V_QP}, s{S_T3}, v{V_LANE16}")
    I(f"s_add_u32 s{S_T0}, s{S_W4K}, 98304"); I(f"v_add_u32 v{V_KW0}, s{S_T0}, v{V_LANE16}"); I(f"s_add_u32 s{S_T0}, s{S_W4K}, 32768"); I(f"v_add_u32 v{V_KW1}, s{S_T0}, v{V_LANE16}")
    for p in range(O.nl2):
        I(f"s_lshr_b32 s{S_T0}, s2, 3"); I(f"s_add_u32 s{S_T0}, s{S_T0}, {2*p}"); I(f"s_and_b32 s{S_T0}, s{S_T0}, 3"); I(f"s_add_u32 s{S_T0}, s{S_T0}, 5"); I(f"s_lshl_b32 s{S_T0}, s{S_T0}, 14")
        I(f"s_add_u32 s{S_T0}, s{S_T0}, s{S_KV0}")
        I(f"v_and_b32 v{T+4}, 31, v0"); I(f"v_lshlrev_b32 v{T+4}, 7, v{T+4}"); I(f"v_lshrrev_b32 v{T+5}, 5, v0"); I(f"v_lshl_add_u32 v{T+4}, v{T+5}, 16, v{T+4}")
        I(f"v_add_u32 v{T+4}, s{S_T0}, v{T+4}"); I(f"v_and_b32 v{V_PF+p}, 0x3ffff, v{T+4}")
    for i in range(O.up_chunks, 3): emit_dma(d_w(i) + d_xa(i) + d_xb(i), post=True)
    I("s_waitcnt vmcnt(@xa0)"); I("s_barrier")
    stamp()
    for r in r_w(0)[:2] + r_x([0])[:1] + r_w(0)[2:] + r_x(range(4))[1:]: I(r)
    for k in range(2): I(f"v_add_u32 v{V_WA+k}, {stg(1)}, v{V_WB+k}")
    I("s_waitcnt lgkmcnt(0) vmcnt(@w_1)"); I("s_barrier")
    el = early_loads(); ew = early_writes()
    l2 = [([], f"buffer_load_dword v{V_TMP+6}, v{V_PF+p}, {sr(sq,4)}, 0 offen") for p in range(O.nl2) for sq in (S_K, S_V)]
    muls = [f"v_mul_f32 v{p1_acc(rt)+k}, s{S_SCALE}, v{p1_acc(rt)+k}" for rt in range(7) for k in range(16)]
    ne = 0
    nit = O.kv_last - O.kv_first
    for i in range(16):
        if i == 0: ma = d_w(3) + d_xa(3)
        elif i <= 12: ma = d_w(i + 3)[2:] + d_xa(i + 3)
        elif i == 13: ma = el[20:24]
        elif i == 14: ma = ew[6:12]
        else: ma = ew[17:20]
        rd = r_x(range(4, 7)) + (r_w(i + 1) if i < 15 else [])
        addr = [(5, f"v_add_u32 v{V_XA+k}, {stg(i+1)}, v{V_XB+k}") for k in range(2)] if i < 15 else []
        va = [(8 * (k // 16) + 4 + (k % 16) // 4 + 9, m) for k, m in enumerate(muls[:64])] if i == 15 else None
        p1_half(p1_mfmas(i, range(4)), ma, rd, addr, "s_waitcnt lgkmcnt(0)" + (f" vmcnt(@xa{i+1})" if i < 15 else ""), valu=va)
        k = 0
        if O.kv_first <= i < O.kv_last: k = ((i - O.kv_first + 1) * 20) // nit - ne
        mb = el[ne:ne + k]; ne += k
        if i == O.k0_it: mb = kv_dma("K", 4 * 32768) + mb
        if i <= 12: mb += d_xb(i + 3)
        if i <= 11: mb += d_w(i + 4)[:2]
        if i == 13: mb = el[24:28] + ew[0:6]
        if i == 14: mb = l2 + ew[12:17]
        rd = r_x(range(4)) if i < 15 else []
        addr = [(-1, f"v_add_u32 v{V_WA+k}, {stg(i+2)}, v{V_WB+k}") for k in range(2)] if i < 14 else []
        if i == 15:
            va = [(g - 32, m) for g, m in va] + [(8 * (k // 16) + 4 + (k % 16) // 4 + 9, m) for k, m in enumerate(muls[64:])]
        wait = None if i == 15 else "s_waitcnt lgkmcnt(0)" + (f" vmcnt(@w_{i+2})" if i < 14 else " vmcnt(@xb15)")
        p1_half(p1_mfmas(i, range(4, 7)), mb, rd, addr, wait, valu=va)
        if O.p1st and i < 15: stamp()
    assert ne == 20
    nt = 112 - len(va)
    stamp()
    for x in k_addr((RING - 1) * 32768): I(x)
    for f in range(8): I(k_read(f))
    for rt in range(7):
        for kp in range(2):
            b = p1_acc(rt) + 8 * kp
            for k in range(8):
                if 16 * rt + 8 * kp + k >= nt: I(muls[16 * rt + 8 * kp + k])
            t = SB + 4 * ((2 * rt + kp) % 8)
            for k in range(4): I(f"v_cvt_pk_bf16_f32 v{t+k}, v{b+2*k}, v{b+2*k+1}")
            I(f"ds_write_b128 v{V_T0}, {vr(t)} offset:{(2*rt+kp)*1024} ;@qw")
    for rt in range(7):
        for kp in range(2): I(f"ds_read_b128 {ar(QA+16*rt+4*kp)}, v{V_T0} offset:{(2*rt+kp)*1024}")
    I(f"s_mov_b32 s{S_DS}, {4*32768}"); I(f"s_mov_b32 s{S_SL2}, {3*32768}"); I(f"s_mov_b32 s{S_I}, 0")
    I("s_waitcnt lgkmcnt(@qw)"); I("s_barrier")
    for rt in range(7):
        for kp in range(2): I(f"ds_read_b128 {ar(QA+16*rt+8+4*kp)}, v{V_QP} offset:{(2*rt+kp)*1024}")
    I(f"s_mul_i32 s{S_T2}, s{S_WAVE}, 28672"); I(f"v_add_u32 v{V_T0}, s{S_T2}, v{V_LANE16}")
    I(f"v_add_u32 v{V_T1}, s{S_LB1}, v{V_LANE16}")
    I("s_waitcnt lgkmcnt(0)"); I("s_barrier")
    if not O.s4_in: emit_dma(kv_dma("K", 0) + kv_dma("V", 0)); I(KVG_UPD)
    stamp()
    att_iter("first").emit()
    g = sm0_ops(6)
    S = SB + 8 * COL[6]
    for grp in g[:3]:
        for x in grp: I(x)
        I("s_nop 0")
    for k in range(2, 8): I(f"v_sub_f32 v{S+k}, v{S+k}, v{V_TMP}")
    for k in range(4): I(f"v_sub_f32 v{NM+24+k}, 0, v{V_TMP}")
    I(f"v_mov_b32 v{LS+6}, 0")
    A(".p2align 6"); A("L_att:")
    G = att_iter("loop")
    if O.abl_nomfma:
        G.mf = ["s_nop 0"] * len(G.mf); G.v = [[x for x in g if "_u32" in x or "_b32" in x] for g in G.v]
    if O.loopst:
        G.s[92].append("s_memtime s[98:99]"); G.p[94].append("s_memtime s[100:101]"); G.p[95].append("s_memtime s[4:5]")
        G.v[7].append(f"v_cmp_eq_u32 vcc, s{S_I}, v0")
        for k, sg in enumerate((98, 100, 4)):
            G.v[11 + 4 * k].append(f"v_mov_b32 v251, s{sg}"); G.v[11 + 4 * k].append(f"v_cndmask_b32 v{252+k}, v{252+k}, v251, vcc")
    if O.abl_nodma: G.m = [[x for x in g if "buffer_" not in x] for g in G.m]
    G.emit()
    I("s_cbranch_scc1 L_att")
    if O.loopst:
        I(f"s_lshl_b32 s{S_T0}, s2, 12"); I(f"s_lshl_b32 s{S_T1}, s{S_WAVE}, 10"); I(f"s_add_u32 s{S_T0}, s{S_T0}, s{S_T1}"); I(f"s_add_u32 s{S_T0}, s{S_T0}, {(1<<26)+(1<<20)}"); I(f"v_lshl_add_u32 v251, v0, 4, s{S_T0}")
        I(f"global_store_dwordx4 v251, v[252:255], {sr(P_WS)}")
    att_iter("pen").emit()
    att_iter("last").emit()
    G = Gaps(pv_mfmas(5))
    e, a, c = sm_ops(6)
    for k in range(8):
        G.v[k].append(e[k])
        if k: G.v[k].append(a[k - 1])
        if k in (2, 4, 6): G.v[k].append(c[k // 2 - 1])
    for k in range(4): G.m[1 + 2 * k].append(f"ds_write_b128 v{V_T0}, {ar(OS_+64+4*k)} offset:{(16+k)*1024}")
    G.emit()
    I("s_nop 0"); I(a[7]); I(c[3]); I("s_nop 1")
    G = Gaps(pv_mfmas(6))
    for k in range(7): G.v[k].append(f"v_mov_b32 v{V_TMP+k}, v{LS+k}")
    for k, x in enumerate(p3_addr_rest()): G.v[min(k, 7)].append(x)
    G.emit()
    stamp()
    regs = [LS + rt for rt in range(7)]; temps = [V_TMP + rt for rt in range(7)]
    for r, t in zip(regs, temps): I(f"v_permlane32_swap_b32 v{r}, v{t}")
    for k in range(4): I(f"ds_write_b128 v{V_T0}, {ar(OS_+80+4*k)} offset:{(20+k)*1024}")
    for r, t in zip(regs, temps): I(f"v_add_f32 v{r}, v{r}, v{t}")
    for r, t in zip(regs, temps): I(f"v_mov_b32 v{t}, v{r}")
    for k in range(4): I(f"ds_write_b128 v{V_T0}, {ar(OS_+96+4*k)} offset:{(24+k)*1024}")
    for r, t in zip(regs, temps): I(f"v_permlane16_swap_b32 v{r}, v{t}")
    I("s_nop 1")
    for rt, (r, t) in enumerate(zip(regs, temps)): I(f"v_add_f32 v{NM+4*rt+1}, v{r}, v{t}")
    ST = FLAG_OFF + 256
    I(f"s_mul_i32 s{S_T2}, s{S_WAVE}, 3584"); I(f"s_add_u32 s{S_T2}, s{S_T2}, {ST}"); I(f"v_lshrrev_b32 v{V_TMP+8}, 1, v{V_LANE16}"); I(f"v_add_u32 v{V_TMP+9}, s{S_T2}, v{V_TMP+8}")
    for rt in range(7): I(f"ds_write_b64 v{V_TMP+9}, {vr(NM+4*rt,2)} offset:{rt*512}")
    I(f"v_add_f32 v{V_TMP}, v{NM+1}, v{NM+5}")
    for k in range(2, 7): I(f"v_add_f32 v{V_TMP}, v{V_TMP}, v{NM+4*k+1}")
    I(f"s_mov_b32 s{S_T0}, {f2u(2.0**40):#x}")
    I(f"v_cmp_nlt_f32 vcc, v{V_TMP}, s{S_T0}")
    I(f"s_xor_b32 s{S_T3}, s{S_WAVE}, 1"); I(f"s_mul_i32 s{S_T3}, s{S_T3}, 3584"); I(f"s_add_u32 s{S_T3}, s{S_T3}, {ST}"); I(f"v_add_u32 v{V_TMP+10}, s{S_T3}, v{V_TMP+8}")
    I(f"s_lshl_b32 s{S_T2}, s{S_WAVE}, 2"); I(f"s_add_u32 s{S_T2}, s{S_T2}, {FLAG_OFF}"); I(f"v_mov_b32 v{V_TMP+2}, s{S_T2}")
    I(f"s_cmp_lg_u64 vcc, 0"); I(f"s_cselect_b32 s{S_T1}, 1, 0"); I(f"v_mov_b32 v{V_TMP+1}, s{S_T1}")
    I(f"ds_write_b32 v{V_TMP+2}, v{V_TMP+1}")
    I(f"v_mov_b32 v{V_TMP+2}, {FLAG_OFF}")
    I("s_waitcnt lgkmcnt(0)"); I("s_barrier")
    I(f"ds_read_b128 {vr(V_TMP+4)}, v{V_TMP+2}")
    for rt in range(7): I(f"ds_read_b64 {vr(NM+4*rt+2,2)}, v{V_TMP+10} offset:{rt*512} ;@st")
    RB = 128
    def recv(rt):
        for dq in range(4): I(f"ds_read_b128 {vr(RB+16*(rt%4)+4*dq)}, v{V_T1} offset:{(4*rt+dq)*1024} ;@r{rt}")
    for rt in range(2): recv(rt)
    emit_dma(wo_dma(0) + wo_dma(1))
    I("s_waitcnt lgkmcnt(@st)")
    I(f"v_or3_b32 v{V_TMP+4}, v{V_TMP+4}, v{V_TMP+5}, v{V_TMP+6}"); I(f"v_or_b32 v{V_TMP+4}, v{V_TMP+4}, v{V_TMP+7}")
    recv(2)
    I(f"v_readfirstlane_b32 s{S_T0}, v{V_TMP+4}")
    bs = [NM + 4 * rt for rt in range(7)]
    for rt, b in enumerate(bs): I(f"v_min_f32 v{LS+rt}, v{b}, v{b+2}")
    I(f"s_andn2_b32 s{S_T0}, s{S_T0}, s{S_FB}"); I("s_cbranch_scc1 L_fallback")
    for rt, b in enumerate(bs): I(f"v_sub_f32 v{b}, v{LS+rt}, v{b}"); I(f"v_sub_f32 v{b+2}, v{LS+rt}, v{b+2}")
    for b in bs: I(f"v_exp_f32 v{b}, v{b}"); I(f"v_exp_f32 v{b+2}, v{b+2}")
    for b in bs: I(f"v_mul_f32 v{b+1}, v{b+1}, v{b}")
    for b in bs: I(f"v_fma_f32 v{b+1}, v{b+3}, v{b+2}, v{b+1}")
    for b in bs: I(f"v_rcp_f32 v{b+1}, v{b+1}")
    for b in bs: I(f"v_mul_f32 v{b}, v{b}, v{b+1}"); I(f"v_mul_f32 v{b+2}, v{b+2}, v{b+1}")
    for rt in range(7):
        if rt + 3 < 7: recv(rt + 3)
        I(f"s_waitcnt lgkmcnt(@r{rt})")
        if rt < O.wo_early: emit_dma(wo_dma(2 + rt))
        b = NM + 4 * rt; o = OK_ + 16 * rt; rb = RB + 16 * (rt % 4)
        for k in range(0, 16, 2): I(f"v_pk_mul_f32 {vr(o+k,2)}, {vr(o+k,2)}, {vr(b,2)} op_sel_hi:[1,0]")
        for k in range(0, 16, 2): I(f"v_pk_fma_f32 {vr(o+k,2)}, {vr(rb+k,2)}, {vr(b+2,2)}, {vr(o+k,2)} op_sel_hi:[1,0,1]")
        for k in range(8): I(f"v_cvt_pk_bf16_f32 v{o+k}, v{o+2*k}, v{o+2*k+1}")
        I(f"s_add_u32 s{S_T1}, s{S_OST}, {rt*1024}"); I(f"s_add_u32 s{S_T2}, s{S_OST}, {rt*1024+7168}")
        I(f"buffer_store_dwordx4 {vr(o)}, v{V_LANE16}, {sr(S_O,4)}, s{S_T1} offen {O.pol_ost} ;@os")
        I(f"buffer_store_dwordx4 {vr(o+4)}, v{V_LANE16}, {sr(S_O,4)}, s{S_T2} offen {O.pol_ost} ;@os")
    stamp()
    I(f"v_mov_b32 v{V_TMP}, s{S_SIG}"); I(f"v_mov_b32 v{V_TMP+1}, 1"); I(f"v_mov_b32 v{V_TMP+2}, s{S_POLL}")
    ne0 = 2 + O.wo_early
    for m in range(ne0):
        I(f"s_waitcnt vmcnt(@w{m})")
        for r in a_reads(m): I(r)
    I("s_waitcnt vmcnt(0)"); I("s_barrier")
    I(f"s_cmp_lg_u32 s{S_WAVE}, 0"); I("s_cbranch_scc1 L_nosig")
    I("s_mov_b64 exec, 1")
    I(f"global_atomic_add v{V_TMP}, v{V_TMP+1}, {sr(P_DBG)} sc1 ;@nocount")
    I("s_mov_b64 exec, -1")
    A("L_nosig:")
    stamp()
    I("s_waitcnt lgkmcnt(0)")
    for m in range(ne0, ne0 + RL_N): emit_dma(wo_dma(m))
    def refill(m):
        I(f"s_waitcnt lgkmcnt(@a{m})"); emit_dma(wo_dma(m + RL_N))
    for m in range(ne0, RA_N):
        I(f"s_waitcnt vmcnt(@w{m})")
        for r in a_reads(m): I(r)
        if m == RA_N - O.poll_lead: I(f"global_load_dword v{V_TMP+3}, v{V_TMP+2}, {sr(P_DBG)} sc1 ;@poll")
        if m > ne0: refill(m - 1)
    refill(RA_N - 1)
    I("s_waitcnt vmcnt(@poll)")
    stamp()
    I(f"s_mov_b32 s{S_I}, 0")
    A("L_poll:")
    I(f"v_readfirstlane_b32 s{S_T0}, v{V_TMP+3}")
    I(f"s_add_u32 s{S_I}, s{S_I}, 1")
    I(f"s_cmp_ge_u32 s{S_T0}, 8"); I("s_cbranch_scc1 L_ready")
    if O.abl_nopoll: I("s_branch L_ready")
    I(f"s_cmp_ge_u32 s{S_I}, 0x40000"); I("s_cbranch_scc1 L_ready")
    I(f"global_load_dword v{V_TMP+3}, v{V_TMP+2}, {sr(P_DBG)} sc1 ;@nocount")
    I("s_waitcnt vmcnt(0)")
    I("s_branch L_poll")
    A("L_ready:")
    stamp()
    for n in range(NB - 1): emit_dma(b_loads(n))
    RD = V_TMP + 4
    for cq in range(1, 4):
        I(f"s_xor_b32 s{S_T0}, s{S_WAVE}, {cq}"); I(f"s_mul_i32 s{S_T0}, s{S_T0}, {21*1024}"); I(f"v_add_u32 v{RD+cq}, s{S_T0}, v{V_LANE16}")
    I(f"s_mul_i32 s{S_T0}, s{S_WAVE}, {21*1024}"); I(f"v_add_u32 v{RD}, s{S_T0}, v{V_LANE16}")
    I(f"v_and_b32 v{V_TMP}, 15, v0"); I(f"v_lshlrev_b32 v{V_TMP}, 11, v{V_TMP}"); I(f"v_lshrrev_b32 v{V_TMP+1}, 4, v0"); I(f"v_lshl_add_u32 v{V_TMP}, v{V_TMP+1}, 3, v{V_TMP}")
    I("s_waitcnt vmcnt(@b0)")
    stamp()
    wr = [f"ds_write_b128 v{RD+cq}, {vr(ACC+16*rt+4*cq)} offset:{((cq-1)*7+rt)*1024}" for rt in range(7) for cq in range(1, 4)]
    nw = 0
    for n in range(32):
        G = Gaps(p3_mfmas(n))
        mem = []
        if n + NB - 1 < 32: mem += b_loads(n + NB - 1)
        m = n + RA_N - 1
        if n >= 2 and m - 1 + RL_N < 32: mem += wo_dma(m - 1 + RL_N)
        rd = a_reads(m) if (n >= 1 and m < 32) else []
        mgaps = [1, 3, 5, 7, 9, 11, 13, 17, 20, 23, 26][:len(mem)]
        place(G, mem, mgaps)
        if rd:
            G.s[14].append(f"s_waitcnt vmcnt(@w{m})")
            for r, g in zip(rd, [15, 16, 18, 19, 21, 22, 24, 25]): G.m[g].append(r)
        if n == 24: G.s[14].append("s_barrier")
        if n == 31:
            for g in range(10, 28, 2): G.m[g].append(wr[nw]); nw += 1
        if n < 31: G.s[27].append(f"s_waitcnt vmcnt(@b{n+1}) lgkmcnt(0)")
        G.emit()
    stamp()
    for x in wr[nw:]: I(x)
    I("s_waitcnt lgkmcnt(0)"); I("s_barrier")
    for rt in range(7):
        for cq in range(1, 4): I(f"ds_read_b128 {vr(ACC+16*rt+4*cq)}, v{RD} offset:{((cq-1)*7+rt)*1024} ;@f{rt}")
    for rt in range(7):
        I(f"s_waitcnt lgkmcnt(@f{rt})")
        o = ACC + 16 * rt
        for k in (0, 2):
            I(f"v_pk_add_f32 {vr(o+k,2)}, {vr(o+k,2)}, {vr(o+4+k,2)}"); I(f"v_pk_add_f32 {vr(o+8+k,2)}, {vr(o+8+k,2)}, {vr(o+12+k,2)}")
        for k in (0, 2): I(f"v_pk_add_f32 {vr(o+k,2)}, {vr(o+k,2)}, {vr(o+8+k,2)}")
        I(f"v_cvt_pk_bf16_f32 v{o}, v{o}, v{o+1}"); I(f"v_cvt_pk_bf16_f32 v{o+1}, v{o+2}, v{o+3}")
        I(f"buffer_store_dwordx2 {vr(o,2)}, v{V_TMP}, {sr(S_OUT,4)}, s{S_OUTOFF} offen {O.pol_out}")
        I(f"s_add_u32 s{S_OUTOFF}, s{S_OUTOFF}, {16*2048}")
    stamp()
    store_stamps()
    A("L_done:")
    I("s_endpgm")
    A("L_fallback:")
    I(f"s_mov_b32 s{S_FB}, 1")
    I("s_waitcnt vmcnt(0) lgkmcnt(0)"); I("s_barrier")
    for rt in range(7): I(f"v_mov_b32 v{NM+4*rt}, 0xff800000")
    I(f"s_mov_b32 s{S_KVG}, s{S_KV0}")
    for x in k_addr(0): I(x)
    I(f"s_mov_b32 s{S_I}, 0")
    A("L_fb_loop:")
    emit_dma(kv_dma("K", 0)); I(KVG_UPD)
    I("s_waitcnt vmcnt(0)"); I("s_barrier")
    for f in range(8): I(k_read(f))
    I("s_waitcnt lgkmcnt(0)"); I("s_barrier")
    for rt in range(7):
        for m in qk_mfmas(rt, SB, usenm=False): I(m)
        I("s_nop 7")
        b = NM + 4 * rt
        for k in range(4): I(f"v_max3_f32 v{b}, v{b}, v{SB+2*k}, v{SB+2*k+1}")
    I(f"s_add_u32 s{S_I}, s{S_I}, 1"); I(f"s_cmp_lt_u32 s{S_I}, 16"); I("s_cbranch_scc1 L_fb_loop")
    multi_reduce([NM + 4 * rt for rt in range(7)], [NM + 4 * rt + 1 for rt in range(7)], "v_max_f32")
    for rt in range(7):
        b = NM + 4 * rt
        I(f"v_sub_f32 v{b}, 0, v{b}")
        for k in range(1, 4): I(f"v_mov_b32 v{b+k}, v{b}")
    I(f"s_mov_b32 s{S_KVG}, s{S_KV0}")
    for st in range(RING - 1):
        emit_dma(kv_dma("K", (4 - st) * 32768) + kv_dma("V", (4 - st) * 32768)); I(KVG_UPD)
    for k in range(112): I(f"v_mov_b32 v{OK_+k}, 0")
    for k in range(112): I(f"v_accvgpr_write_b32 a{OS_+k}, 0")
    for k in range(32): I(f"v_mov_b32 v{VF+k}, 0")
    for k in range(12): I(f"v_mov_b32 v{PB+k}, 0")
    for k in range(7): I(f"v_mov_b32 v{LS+k}, 0")
    for k in range(8): I(f"v_mov_b32 v{SB+16+k}, 0xf149f2ca")
    I(f"s_mov_b32 s{S_MASK}, 0xfff"); I(f"s_mov_b32 s{S_DS}, 0"); I(f"s_mov_b32 s{S_SL2}, {3*32768}"); I(f"s_mov_b32 s{S_I}, -1")
    for x in next_dma_state(): I(x)
    for x in k_addr(4 * 32768) + v_addr(4 * 32768): I(x)
    I("s_waitcnt vmcnt(0)"); I("s_barrier")
    for f in range(8): I(k_read(f))
    I("s_waitcnt lgkmcnt(0)")
    I("s_branch L_att")

def main(fn):
    del L[:]
    nstamp[0] = 0
    A('.amdgcn_target "amdgcn-amd-amdhsa--gfx950"')
    A(".text")
    gen()
    A("  .fill 4096, 4, 0xBF800000")
    A('.section .rodata,"a"\n.p2align 6')
    A(f".amdhsa_kernel {NAME}_kernel\n  .amdhsa_next_free_vgpr 512\n  .amdhsa_next_free_sgpr 102\n  .amdhsa_accum_offset 256\n  .amdhsa_group_segment_fixed_size 0\n  .amdhsa_kernarg_size 64\n  .amdhsa_user_sgpr_count 2\n  .amdhsa_user_sgpr_kernarg_segment_ptr 1\n  .amdhsa_system_sgpr_workgroup_id_x 1\n.end_amdhsa_kernel")
    head = ["; fused MHA block: per (b,h) workgroup Q-proj + attention, flag hand-off, then a 112x64 tile of the output projection",
            "; @launch grid=(256,1,1) block=(256,1,1) lds=163840"]
    open(fn, "w").write("\n".join(head + resolve(L)) + "\n")

if __name__ == "__main__":
    fn = sys.argv[1]
    for kv in sys.argv[2:]:
        k, v = kv.split("=")
        cur = getattr(O, k)
        setattr(O, k, (v == "1") if isinstance(cur, bool) else (int(v) if isinstance(cur, int) else v.replace("+", " ")))
    main(fn)
```

```python
import sys, math, struct, re
NAME = "standalone__mha_block_cached__near_ridge"

class Opt:
    pol_kv = "nt"; pol_x = ""; pol_wq = ""; pol_ost = "sc1"; pol_old = "sc1"; pol_wo = ""; pol_out = ""
    stamps = False; dbgst = False
    rotmul_h = 8; rotmul_b = 8
    k2_rot_c = 1; k2_rot_r = 2
    wo_pref = 3
    kv_first = 3
    abl_nopoll = False
    wo_early = 3
    kv_rot_j = 1
    kv_rot_x = 2
    lin_map = False
    kv_last = 9
    k0_it = 1
    up_chunks = 2
    nl2 = 1
    l2_base = 5
    cpf = True
    wo_mall = False
    n_up = 22
    n_up0 = 22
    capA = 6
    capB = 5
    capA2 = 9
    capB2 = 8
    rotmul_x = 1
    sig_cnt = False
    gmode = False
    g_start = 12
    g_per = 4
    g_rounds = 3
    l2_at = 29
    pf_pen = 2
    s4_in = True
    p1st = False
    abl_noearly = False
    nskip = 2
    epst = False
    pre_dma = 2
    ra_n = 13
    nb = 5
    accord = True
    ep_dma = '9'
    post_dma = 0
    pf_q = 3
    pf_max = 12
    cpf_at = 14
    pref_last = True
    loopst = False
    tlbw = 0
    abl_nomfma = False
    kv_noswz = False
    att_vm = 24
    abl_nodma = False
    poll_lead = 1
O = Opt()

L = []
def A(s): L.append(s)
def I(s):
    for x in s.split("\n"):
        if x.strip(): L.append("  " + x.strip())
def vr(b, n=4): return f"v[{b}:{b+n-1}]"
def ar(b, n=4): return f"a[{b}:{b+n-1}]"
def sr(b, n=2): return f"s[{b}:{b+n-1}]"
def pol(p): return (p + " ") if p else ""
def f2u(x): return struct.unpack("<I", struct.pack("<f", x))[0]
MF = "v_mfma_f32_16x16x32_bf16"

class Gaps:
    def __init__(self, mf):
        self.mf = list(mf); n = len(self.mf)
        self.s = [[] for _ in range(n)]; self.m = [[] for _ in range(n)]; self.v = [[] for _ in range(n)]; self.p = [[] for _ in range(n)]
    def chain(self, instrs, gaps):
        assert len(gaps) >= len(instrs), (instrs, gaps)
        for x, g in zip(instrs, gaps): self.s[g].append(x)
    def emit(self):
        for i, m in enumerate(self.mf):
            I(m)
            for x in self.s[i] + self.m[i] + self.v[i] + self.p[i]: I(x)

def resolve(lines):
    vm = []; lg = []; out = []
    for ln in lines:
        t = re.search(r";@(\S+)", ln)
        tag = t.group(1) if t else None
        code = ln.split(";")[0].rstrip() if t else ln
        op = code.strip().split(" ")[0] if code.strip() else ""
        def sub(kind, q, cap):
            def f(m):
                k = m.group(1)
                idx = [i for i, x in enumerate(q) if x == k]
                assert idx, ("unknown tag", k, ln)
                return f"{kind}({min(cap, len(q) - 1 - idx[-1])})"
            return f
        code = re.sub(r"vmcnt\(@(\S+?)\)", sub("vmcnt", vm, 62), code)
        code = re.sub(r"lgkmcnt\(@(\S+?)\)", sub("lgkmcnt", lg, 14), code)
        if tag != "nocount":
            if op.startswith(("buffer_", "global_")): vm.append(tag)
            elif op.startswith("ds_"): lg.append(tag)
        out.append(code)
    return out

OK_ = 16; VF = 128; SB = 160; PB = 184; NM = 196; LS = 224
V_LANE16 = 1; V_QP = 2; V_WOB = 3
V_KVOFF = 4
V_XB = 8; V_WB = 10; V_KB = 12; V_VB = 13; V_T0 = 14; V_T1 = 15
V_XOFF = 200; V_WOFF = 207; V_KW0 = 211; V_KW1 = 253
V_RAB = 231; V_PF = 212
V_XA = 232; V_WA = 234
V_KA = 232; V_VA = 236; V_TMP = 244; V_STAMP = 255
OS_ = 0; QA = 112; KF = 224; FR = 112
COL = [0, 1, 0, 1, 0, 1, 2]
S_X = 8; S_K = 12; S_V = 16; S_WQ = 20; S_O = 24
S_WAVE = 28; S_B = 29; S_H = 30; S_R = 31; S_C = 32
S_OX = 33; S_OW = 34; S_MXA = 36; S_MXB = 3; S_WXT = 37; S_I = 38
S_T0 = 39; S_T1 = 40; S_T2 = 41; S_T3 = 42
S_KVG = 43; S_SL0 = 44; S_SL1 = 45; S_SL2 = 46
S_FB = 47; S_W4K = 48; S_W4KK = 49; S_SCALE = 50; S_OST = 51
P_X = 52; P_K = 54; P_V = 56; P_WQ = 58; P_WO = 60; P_OUT = 62; P_DBG = 64; P_WS = 66
S_WO = 68; S_OO = 72; S_OUT = 76; S_TW = 80; S_TO = 52; S_LB0 = 88; S_LB1 = 89; S_OUTOFF = 90; S_SIG = 91; S_POLL = 92; S_PFO = 93
S_STP = 96
XT = 28672; WT = 16384; STG = XT + WT
RING = 5; KOFF = 16384
ST0 = 86016; S_CA = 7; S_STW = 61; V_STW = 241; V_STR = 242; V_FLR = 243
SCALE = math.log2(math.e) / math.sqrt(128.0)

nstamp = [0]
def stamp():
    if not O.stamps: return
    k = nstamp[0]
    I(f"s_memtime {sr(S_STP)}"); I(f"s_memrealtime {sr(S_STP+2)}"); I("s_waitcnt lgkmcnt(0)")
    I(f"v_writelane_b32 v{V_STAMP}, s{S_STP}, {2*k}"); I(f"v_writelane_b32 v{V_STAMP}, s{S_STP+2}, {2*k+1}")
    nstamp[0] += 1
def store_stamps():
    if not O.stamps: return
    I(f"s_cmp_lg_u32 s{S_WAVE}, 0"); I("s_cbranch_scc1 L_done")
    I(f"s_lshl_b32 s{S_T0}, s2, 8"); I(f"s_add_u32 s{S_T0}, s{S_T0}, {1<<26}"); I(f"v_lshl_add_u32 v15, v0, 2, s{S_T0}")
    I(f"global_store_dword v15, v{V_STAMP}, {sr(P_WS)}")
def srd(d, ptr, nbytes, shift=None, sub=True):
    if shift is None:
        I(f"s_mov_b32 s{d}, s{ptr}"); I(f"s_mov_b32 s{d+1}, s{ptr+1}"); I(f"s_mov_b32 s{d+2}, {nbytes}")
    else:
        I(f"s_add_u32 s{d}, s{ptr}, s{shift}"); I(f"s_addc_u32 s{d+1}, s{ptr+1}, 0")
        I(f"s_sub_u32 s{d+2}, {nbytes}, s{shift}" if sub else f"s_mov_b32 s{d+2}, {nbytes}")
    I(f"s_mov_b32 s{d+3}, 0x20000")

def stg(i): return ((-i) % 3) * STG
def d_w(i): return [([f"s_add_u32 m0, {stg(i)}, s{S_WXT}"] if j == 0 else [], f"buffer_load_dwordx4 v{V_WOFF+j}, {sr(S_WQ,4)}, s{S_OW} offen offset:{j*1024} {pol(O.pol_wq)}lds ;@w_{i}") for j in range(4)]
def d_xa(i): return [([f"s_add_u32 m0, {stg(i)}, s{S_MXA}"] if j == 0 else [], f"buffer_load_dwordx4 v{V_XOFF+j}, {sr(S_X,4)}, s{S_OX} offen offset:{j*1024} {pol(O.pol_x)}lds ;@xa{i}") for j in range(4)]
def d_xb(i): return [([f"s_add_u32 m0, {stg(i)}, s{S_MXB}"] if j == 0 else [], f"buffer_load_dwordx4 v{V_XOFF+4+j}, {sr(S_X,4)}, s{S_OX} offen offset:{j*1024} {pol(O.pol_x)}lds ;@xb{i}", P1_UPD if j == 2 else []) for j in range(3)]
P1_UPD = [f"s_add_u32 s{S_OX}, s{S_OX}, 128", f"s_and_b32 s{S_OX}, s{S_OX}, 2047", f"s_lshl_b32 s{S_OW}, s{S_OX}, 12"]
def emit_dma(g, post=False):
    for x in g:
        for p in x[0]: I(p)
        if x[0]: I("s_nop 0")
        I(x[1])
        if post and len(x) > 2:
            for p in x[2]: I(p)
def kv_dma(which, slot, so=None):
    so = S_KVG if so is None else so
    s, off = (S_K, S_W4KK) if which == "K" else (S_V, S_W4K)
    return [([f"s_add_u32 m0, {slot}, s{off}"] if j == 0 else [],
             f"buffer_load_dwordx4 v{V_KVOFF+j}, {sr(s,4)}, s{so} offen offset:{j*1024} {pol(O.pol_kv)}lds") for j in range(4)]
KVG_UPD = f"s_add_u32 s{S_KVG}, s{S_KVG}, 16384\ns_and_b32 s{S_KVG}, s{S_KVG}, 0x3ffff"
S_KV0 = 94; S_KVE = 95; S_MASK = 35; S_DS = S_SL1
def er(reg): return ar(reg) if reg < 256 else vr(reg - 256)
EARLY = [("V", 0, 256 + 160), ("K", 1, 256 + 176), ("V", 1, 0), ("K", 2, 16), ("V", 2, 32), ("K", 3, 48), ("V", 3, 64)]
def early_loads():
    g = []
    for p, (w, st, reg) in enumerate(EARLY):
        for j in range(4):
            post = [KVG_UPD] if (w == "V" and j == 3) else []
            g.append(([], f"buffer_load_dwordx4 {er(reg+4*j)}, v{V_KVOFF+j}, {sr(S_K if w=='K' else S_V,4)}, s{S_KVG} offen offset:{j*1024} {O.pol_kv} ;@e{p}", post))
    return g
def early_writes():
    g = []
    for p, (w, st, reg) in enumerate(EARLY):
        addr = (4 - st) * 32768 + (KOFF if w == "K" else 0)
        base, b0 = (V_KW0, 98304) if addr >= 98304 else (V_KW1, 32768)
        for j in range(4):
            g.append(([f"s_waitcnt vmcnt(@e{p})"] if j == 0 else [], f"ds_write_b128 v{base}, {er(reg+4*j)} offset:{addr-b0+j*1024}"))
    return g
def p1_acc(rt): return OK_ + 16 * rt if rt < 5 else VF + 16 * (rt - 5)
FW = 112; FXA = 176; FXB = 208
def r_w(i):
    return [f"ds_read_b64_tr_b16 {ar(FW+32*(i&1)+16*s+4*t+2*e,2)}, v{V_WA+t//2} offset:{XT + s*8192 + e*1024 + (t%2)*8}" for s in range(2) for t in range(4) for e in range(2)]
def xf(rt, s): return (FXA + 8 * rt + 4 * s) if rt < 4 else (FXB + 8 * (rt - 4) + 4 * s)
def r_x(rts): return [f"ds_read_b128 {ar(xf(rt,s))}, v{V_XA+s} offset:{rt*2048}" for rt in rts for s in range(2)]
def p1_mfmas(i, rts):
    return [f"{MF} {vr(p1_acc(rt)+4*t)}, {ar(FW+32*(i&1)+16*s+4*t)}, {ar(xf(rt,s))}, " + ("0" if (i == 0 and s == 0) else vr(p1_acc(rt)+4*t)) for rt in rts for (s, t) in ([(s, t) for t in range(4) for s in range(2)] if O.accord else [(s, t) for s in range(2) for t in range(4)])]
def place(G, ops, gaps):
    assert len(gaps) >= len(ops), (len(ops), gaps)
    for d, g in zip(ops, gaps):
        for p in d[0]:
            if G.m[g - 1] and "buffer_" in G.m[g - 1][-1] and "lds" in G.m[g - 1][-1] and "m0" in p: G.p[g - 1].append(p)
            else: G.s[g - 1].append(p)
        G.m[g].append(d[1])
        if len(d) > 2:
            pp = [q for p in d[2] for q in p.split(chr(10))]
            nxt = [h for h in gaps[:len(ops)] if h > g]
            for k, p in enumerate(pp): G.s[min(g + 1 + k // 2, nxt[0] if nxt else 10**9)].append(p)
def layout(n, nmem, nrd):
    mg = sorted(set(1 + (k * (n - 3)) // max(nmem, 1) for k in range(nmem)))
    assert len(mg) == nmem
    rg = [g for g in range(n - 2) if g not in mg][:nrd]
    if len(rg) < nrd: rg = sorted(rg + mg[:nrd - len(rg)])
    return mg, rg
def p1_half(mf, mem, reads, addr, wait, valu=None, vstart=0):
    G = Gaps(mf); n = len(mf)
    mg, rg = layout(n, len(mem), len(reads))
    for k, r in zip(rg, reads): G.m[k].append(r)
    place(G, mem, mg)
    for after, x in addr:
        g0 = rg[after] + 1 if after >= 0 else 0
        c = [g for g in range(g0, n - 1) if g not in mg and len(G.v[g]) < (1 if G.m[g] else 2) and not (G.m[g] and G.s[g])]
        G.v[c[0]].append(x)
    if valu is not None:
        for g in range(vstart, n):
            room = 0 if g in mg else (1 if G.m[g] else 2)
            while len(G.v[g]) < room and valu and valu[0][0] <= g: G.v[g].append(valu.pop(0)[1])
    if wait is not None:
        G.s[n - 1].append(wait); G.s[n - 1].append("s_barrier")
    G.emit()

def kq(f): return (f % 4, f // 4) if O.accord else (f // 2, f % 2)
def k_read(f): return f"ds_read_b128 {ar(KF+4*f)}, v{V_KA+kq(f)[0]} offset:{kq(f)[1]*4096}"
def v_read(dq, e): return f"ds_read_b64_tr_b16 {vr(VF+4*dq+2*e,2)}, v{V_VA+dq}" + (" offset:4096" if e else "")
def k_addr(slot): return [f"v_add_u32 v{V_KA}, {slot}, v{V_KB}"] + [f"v_xor_b32 v{V_KA+q}, {q*64}, v{V_KA}" for q in range(1, 4)]
def v_addr(slot): return [f"v_add_u32 v{V_VA}, {slot}, v{V_VB}"] + [f"v_xor_b32 v{V_VA+d}, {d*32}, v{V_VA}" for d in range(1, 8)]
def oacc(rt, dq): return vr(OK_ + 16 * rt + 4 * dq) if dq < 4 else ar(OS_ + 16 * rt + 4 * (dq - 4))
def qk_mfmas(rt, S, usenm=True):
    m = []
    for f in range(8):
        q, kt = kq(f)
        d = S + 4 * kt
        c = (vr(NM + 4 * rt) if usenm else "0") if q == 0 else vr(d)
        m.append(f"{MF} {vr(d)}, {ar(KF+4*f)}, {ar(QA+16*rt+4*q)}, {c}")
    return m
def pv_mfmas(rt, first=False):
    P = PB + 4 * COL[rt]
    return [f"{MF} {oacc(rt,dq)}, {vr(VF+4*dq)}, {vr(P)}, " + ("0" if first else oacc(rt, dq)) for dq in range(8)]
def sm_ops(rt, scol=None):
    S = SB + 8 * (COL[rt] if scol is None else scol); P = PB + 4 * COL[rt]
    e = [f"v_exp_f32 v{S+k}, v{S+k}" for k in range(8)]
    a = [f"v_add_f32 v{LS+rt}, v{LS+rt}, v{S+k}" for k in range(8)]
    c = [f"v_cvt_pk_bf16_f32 v{P+k}, v{S+2*k}, v{S+2*k+1}" for k in range(4)]
    return e, a, c
def put_softmax(G, base, rt):
    e, a, c = sm_ops(rt)
    for k in range(8):
        G.v[base + 2 * k].append(e[k])
        if k % 2 == 1: G.v[base + 2 * k + 1].append(c[k // 2])
        G.v[base + 2 * k + 1].append(a[k])
def sm0_ops(rt):
    scol = 2 if rt == 0 else COL[rt]
    S = SB + 8 * scol; b = NM + 4 * rt; t = V_TMP
    e, a, c = sm_ops(rt, scol)
    a[0] = f"v_mov_b32 v{LS+rt}, v{S}"
    g = [[f"v_max3_f32 v{t}, v{S}, v{S+1}, v{S+2}", f"v_max3_f32 v{t+1}, v{S+3}, v{S+4}, v{S+5}", f"v_max3_f32 v{t}, v{t}, v{S+6}, v{S+7}", f"v_max_f32 v{t}, v{t}, v{t+1}", f"v_mov_b32 v{t+1}, v{t}", "s_nop 0"],
         [f"v_permlane32_swap_b32 v{t}, v{t+1}", "s_nop 0", f"v_max_f32 v{t}, v{t}, v{t+1}", f"v_mov_b32 v{t+1}, v{t}", "s_nop 0"],
         [f"v_permlane16_swap_b32 v{t}, v{t+1}", "s_nop 0", f"v_max_f32 v{t}, v{t}, v{t+1}", f"v_sub_f32 v{S}, v{S}, v{t}", f"v_sub_f32 v{S+1}, v{S+1}, v{t}"]]
    sub = [f"v_sub_f32 v{S+k}, v{S+k}, v{t}" for k in range(8)]
    nm = [f"v_sub_f32 v{b+k}, 0, v{t}" for k in range(4)]
    g += [[e[0], sub[2]], [e[1], sub[3], a[0]], [e[2], sub[4], a[1]], [e[3], sub[5], c[0]], [e[4], sub[6], a[2]], [e[5], sub[7], a[3]],
          [e[6], c[1], a[4]], [e[7], nm[0], a[5]], [c[2], a[6], nm[1]], [c[3], a[7]], [nm[2], nm[3]]]
    return g

def next_dma_state():
    return [f"s_add_u32 s{S_I}, s{S_I}, 1", f"s_bitcmp1_b32 s{S_MASK}, s{S_I}", f"s_cselect_b32 s{S_SL0}, s{S_DS}, 0x30000", f"s_cselect_b32 s{S_KVE}, s{S_KVG}, 0x40000000",
            f"s_cselect_b32 s{S_T3}, 32768, 0", f"s_sub_u32 s{S_DS}, s{S_DS}, s{S_T3}", f"s_cselect_b32 s{S_DS}, {(RING-1)*32768}, s{S_DS}",
            f"s_lshr_b32 s{S_T3}, s{S_T3}, 1", f"s_add_u32 s{S_KVG}, s{S_KVG}, s{S_T3}", f"s_and_b32 s{S_KVG}, s{S_KVG}, 0x3ffff"]
V_WOF = 8; V_RA0 = 232; V_RA1 = 236; V_L2 = 240
pf_cnt = [0, 0]
def put_pf(G, t):
    if t == 12 + O.nskip:
        G.v[1].append(f"v_and_b32 v{V_TMP+8}, 15, v0"); G.v[5].append(f"v_lshlrev_b32 v{V_TMP+8}, 11, v{V_TMP+8}"); pf_cnt[0] = pf_cnt[1] = 0
    if O.cpf and t == O.cpf_at:
        c2 = code_pf("L_last+2048", 6, V_TMP + 5)
        G.chain(c2[0], [6, 8]); G.v[10].append(c2[1]); G.m[11].append(c2[2].replace(f"v{V_TMP+6},", f"v{V_QP},")); pf_cnt[0] += 1
    gl = {1: [13], 2: [13, 57], 3: [13, 47, 81], 4: [13, 41, 63, 87], 5: [13, 41, 55, 71, 87], 6: [13, 23, 41, 55, 71, 87]}[O.pf_q] if O.pf_q else []
    for g in gl:
        if pf_cnt[1] >= O.pf_max: break
        k = pf_cnt[1]
        G.s[g - 1].append(f"s_add_u32 s{S_T0}, s{S_PFO}, {(k // 4) * 8 * 65536 + (k % 4) * 32768}")
        G.m[g].append(f"buffer_load_dword v{V_QP}, v{V_TMP+8}, {sr(S_WO,4)}, s{S_T0} offen")
        pf_cnt[0] += 1; pf_cnt[1] += 1
def att_iter(kind, t=None):
    mf = []; base = []
    for n in range(7):
        base.append(len(mf))
        mf += qk_mfmas(n, SB + 8 * (2 if (kind == "first" and n == 0) else COL[n]), usenm=(kind != "first"))
        if not (kind == "first" and n < 2): mf += pv_mfmas((n - 2) % 7, first=(kind == "first"))
    G = Gaps(mf)
    if kind == "first":
        for k in range(16): G.m[k].append(v_read(k // 2, k % 2) + " ;@vf")
        for n in range(1, 7):
            g = sm0_ops(n - 1)
            if n == 1: pos = [12, 13, 14, 15, 15, 16, 16, 17, 17, 18, 18, 19, 19, 19]
            elif n == 2: pos = [base[2] + x for x in [4, 5, 6, 7, 8, 9, 10, 11, 12, 13, 14, 15, 15, 15]]
            else: pos = [base[n] + x for x in range(14)]
            for grp, p in zip(g, pos):
                for x in grp: G.v[p].append(x)
        G.s[base[2] + 6].append("s_waitcnt lgkmcnt(@vf)")
        off = lambda g: g - 16
        if not O.gmode: place(G, early_writes()[20:], [off(g) for g in [50, 54, 58, 62, 63, 66, 70, 74]])
        else: G.s[off(94)].append("s_waitcnt vmcnt(@s1)")
        G.v[2].append(f"v_lshlrev_b32 v{V_TMP+8}, 11, v0")
        if O.wo_mall:
            G.chain([f"s_lshl_b32 s6, s2, 2", f"s_add_u32 s6, s6, s{S_WAVE}", "s_lshl_b32 s6, s6, 13"], [3, 4, 5])
            G.v[6].append(f"v_lshl_add_u32 v{V_TMP+5}, v0, 7, s6")
            G.m[off(81)].append(f"global_load_dword v{V_TMP+6}, v{V_TMP+5}, {sr(P_WO)}")
        if O.s4_in:
            d4 = kv_dma("K", 0) + kv_dma("V", 0); d4[7] = d4[7] + ([KVG_UPD],)
            if O.gmode:
                d3 = kv_dma("K", 32768) + kv_dma("V", 32768); d3[7] = d3[7] + ([KVG_UPD],)
                place(G, d3 + d4, [off(g) for g in range(34, 82, 3)])
            else: place(G, d4, [off(g) for g in [36, 42, 47, 52, 60, 68, 72, 78]])
        for j in range(0 if O.pref_last else O.wo_pref):
            G.m[off(36 + 3 * j)].append(f"buffer_load_dword v{V_QP}, v{V_TMP+8}, {sr(S_WO,4)}, s{S_PFO} offen")
            G.s[off(37 + 3 * j)].append(f"s_add_u32 s{S_PFO}, s{S_PFO}, {8*65536}")
    else:
        for n in range(7): put_softmax(G, 16 * n, (n - 1) % 7)
        off = lambda g: g
        G.s[0].append("s_waitcnt lgkmcnt(4)"); G.s[2].append("s_waitcnt lgkmcnt(2)"); G.s[4].append("s_waitcnt lgkmcnt(0)")
        for k in range(16): G.m[24 + k].append(v_read(k // 2, k % 2))
        G.s[38].append("s_waitcnt lgkmcnt(10)")
        G.s[40].append("s_waitcnt lgkmcnt(8)"); G.s[42].append("s_waitcnt lgkmcnt(4)"); G.s[44].append("s_waitcnt lgkmcnt(0)")
        va = v_addr(f"s{S_SL1}")
        for x, g in zip(va[4:], [5, 9, 17, 21]): G.v[g].append(x)
    if kind != "last":
        va = v_addr(f"s{S_SL2}"); ka = k_addr(f"s{S_SL2}")
        if kind == "first":
            for x, g in zip(va[:4] + ka, [off(z) for z in [46, 47, 62, 63, 78, 79, 93, 94]]): G.v[g].append(x)
        elif kind == "pen":
            put_pf(G, t)
            if t == 14:
                place(G, wo_dma(0) + wo_dma(1), [1, 19, 41, 49, 57, 65, 73, 91]); pf_cnt[0] += 8
            for x, g in zip(va[:4], [45, 53, 61, 69]): G.v[g].append(x)
            for x, g in zip(ka, [77, 85, 89, 93]): G.v[g].append(x)
            G.s[94].append(f"s_waitcnt vmcnt({8 * (14 - t) + pf_cnt[0]})")
        else:
            place(G, kv_dma("K", f"s{S_SL0}", S_KVE) + kv_dma("V", f"s{S_SL0}", S_KVE), [1, 13, 41, 49, 57, 65, 73, 81])
            for x, g in zip(va[:4], [45, 53, 61, 69]): G.v[g].append(x)
            for x, g in zip(ka, [77, 85, 89, 93]): G.v[g].append(x)
            G.s[94].append(f"s_waitcnt vmcnt({24 - 8 * O.nskip})")
        G.s[off(95)].append("s_barrier")
        for f in range(8): G.m[off(97 + 2 * f)].append(k_read(f))
        if kind != "pen": G.chain(next_dma_state(), [off(g) for g in [82, 84, 86, 88, 90, 92, 96, 98, 100, 102]])
        G.chain([f"s_sub_u32 s{S_SL2}, s{S_SL2}, 32768", f"s_cselect_b32 s{S_SL2}, {(RING-1)*32768}, s{S_SL2}", f"s_cmp_lt_u32 s{S_I}, {12 + O.nskip}", "s_waitcnt lgkmcnt(5)"],
                [off(g) for g in [104, 106, 108, 110]])
    else:
        for rt in range(4):
            for k in range(4): G.m[16 * (rt + 3) + 1 + 4 * k].append(f"ds_write_b128 v{V_T0}, {ar(OS_+16*rt+4*k)} offset:{(4*rt+k)*1024}")
        put_pf(G, 15)
        G.s[46].append("s_barrier")
        ex = [f"v_add_u32 v{V_RA0}, s{S_LB0}, v{V_RAB}"] + [f"v_xor_b32 v{V_RA0+q}, {q*32}, v{V_RA0}" for q in range(1, 4)]
        for x, g in zip(ex, [1, 3, 7, 13]): G.v[g].append(x)
        ex = ([f"v_add_u32 v{V_RA1}, s{S_LB1}, v{V_RAB}", f"v_add_u32 v{V_L2}, 4096, v{V_LANE16}"] + [f"v_xor_b32 v{V_RA1+q}, {q*32}, v{V_RA1}" for q in range(1, 4)]
              + [f"v_and_b32 v{V_STW}, 15, v0", f"v_lshl_add_u32 v{V_STW}, v{V_STW}, 3, s{S_STW}", f"v_xor_b32 v{V_STR}, 1024, v{V_STW}",
                 f"v_and_b32 v{V_FLR}, 3, v0", f"v_lshlrev_b32 v{V_FLR}, 10, v{V_FLR}", f"v_add_u32 v{V_FLR}, {ST0+896}, v{V_FLR}"])
        for x, g in zip(ex, [41, 45, 51, 55, 59, 63, 67, 71, 75, 79, 83]): G.v[g].append(x)
    return G

def code_pf(label, sh, vt):
    return ([f"s_lshl_b32 s6, s{S_WAVE}, {6+sh}", f"s_add_u32 s6, s6, {label}-L_pc"], f"v_lshl_add_u32 v{vt}, v0, {sh}, s6", f"global_load_dword v{V_TMP+6}, v{vt}, s[4:5]")
def multi_reduce(regs, temps, op):
    for sw in ("v_permlane32_swap_b32", "v_permlane16_swap_b32"):
        for r, t in zip(regs, temps): I(f"v_mov_b32 v{t}, v{r}")
        I("s_nop 1")
        for r, t in zip(regs, temps): I(f"{sw} v{r}, v{t}")
        I("s_nop 1")
        for r, t in zip(regs, temps): I(f"{op} v{r}, v{r}, v{t}")

RA_N = 13; RL_N = 9; NB = 5; ACC = 16
slot_of = {0: 0, 1: 1}
def areg(m, k, n):
    e = m % RA_N
    na = (256 - 28 * NB) // 16
    assert RA_N <= na + 6
    return ar(28 * NB + 16 * e + k, n) if e < na else vr(128 + 16 * (e - na) + k, n)
def bump(s, d): return [f"s_add_u32 s{s}, s{s}, {d}", f"s_addc_u32 s{s+1}, s{s+1}, 0", f"s_sub_u32 s{s+2}, s{s+2}, {d}"]
def wo_dma(m):
    s = slot_of[m]
    m0 = f"s_add_u32 m0, s{S_LB0}, {s*4096}" if s < 2 else f"s_add_u32 m0, s{S_LB1}, {(s-2)*4096}"
    pre = (bump(S_WO, 8 * 65536) if (m % 8 == 0 and m) else []) + [m0]
    return [(pre if j == 0 else [], f"buffer_load_dwordx4 v{V_WOF+j}, {sr(S_WO,4)}, s{S_TW+m%8} offen offset:{j*1024} {pol(O.pol_wo)}lds ;@w{m}") for j in range(4)]
def a_reads(m):
    s = slot_of[m]
    ra, o = (V_RA0, s * 4096) if s < 2 else (V_RA1, (s - 2) * 4096)
    return [f"ds_read_b64_tr_b16 {areg(m,4*cq+2*e,2)}, v{ra+cq} offset:{o+e*2048} ;@a{m}" for cq in range(4) for e in range(2)]
def b_loads(n):
    pre = bump(S_OO, 8 * 7168) if (n % 8 == 0 and n) else []
    return [(pre if rt == 0 else [], f"buffer_load_dwordx4 {ar(28*(n%NB)+4*rt)}, v{V_LANE16 if rt<4 else V_L2}, {sr(S_OO,4)}, s{S_TO+n%8} offen offset:{(rt%4)*1024} {O.pol_old} ;@b{n}") for rt in range(7)]
def p3_mfmas(n):
    return [f"{MF} {vr(ACC+16*rt+4*cq)}, {areg(n,4*cq,4)}, {ar(28*(n%NB)+4*rt)}, " + ("0" if n == 0 else vr(ACC+16*rt+4*cq)) for rt in range(7) for cq in range(4)]

def gen():
    K = NAME + "_kernel"
    A(f".globl {K}\n.p2align 8\n.type {K},@function\n{K}:")
    I("s_cmp_ge_u32 s2, 256"); I("s_cbranch_scc1 L_done")
    I("s_load_dwordx16 s[52:67], s[0:1], 0")
    I("s_getpc_b64 s[4:5]")
    A("L_pc:")
    I("v_lshlrev_b32 v14, 7, v0")
    I("global_load_dword v15, v14, s[4:5]")
    I("v_lshrrev_b32 v14, 1, v14")
    I("v_add_u32 v14, 0x8000, v14")
    I("global_load_dword v15, v14, s[4:5]")
    I("v_lshrrev_b32 v14, 6, v0")
    I("v_and_b32 v0, 63, v0")
    I(f"v_readfirstlane_b32 s{S_WAVE}, v14")
    I(f"s_and_b32 s{S_T0}, s2, 7"); I(f"s_lshr_b32 s{S_T1}, s2, 3")
    I(f"s_and_b32 s{S_B}, s{S_T0}, 1"); I(f"s_lshl_b32 s{S_B}, s{S_B}, 2"); I(f"s_and_b32 s{S_T2}, s{S_T1}, 3"); I(f"s_add_u32 s{S_B}, s{S_B}, s{S_T2}")
    I(f"s_lshr_b32 s{S_H}, s{S_T0}, 1"); I(f"s_lshl_b32 s{S_H}, s{S_H}, 3"); I(f"s_lshr_b32 s{S_T3}, s{S_T1}, 2"); I(f"s_add_u32 s{S_H}, s{S_H}, s{S_T3}")
    if O.lin_map: I(f"s_lshr_b32 s{S_B}, s2, 5"); I(f"s_and_b32 s{S_H}, s2, 31")
    I(f"s_mul_i32 s{S_T3}, s{S_T3}, {O.rotmul_h*128}"); I(f"s_mul_i32 s{S_T2}, s{S_T2}, {O.rotmul_b*128}"); I(f"s_add_u32 s{S_OX}, s{S_T2}, s{S_T3}")
    if O.rotmul_x: I(f"s_mul_i32 s{S_T0}, s{S_T0}, {O.rotmul_x*128}"); I(f"s_add_u32 s{S_OX}, s{S_OX}, s{S_T0}")
    I(f"s_and_b32 s{S_OX}, s{S_OX}, 2047"); I(f"s_lshl_b32 s{S_OW}, s{S_OX}, 12")
    I(f"s_lshr_b32 s{S_R}, s{S_WAVE}, 1"); I(f"s_and_b32 s{S_C}, s{S_WAVE}, 1")
    I(f"s_lshl_b32 s{S_W4K}, s{S_WAVE}, 12"); I(f"s_add_u32 s{S_W4KK}, s{S_W4K}, {KOFF}"); I(f"s_add_u32 s{S_WXT}, s{S_W4K}, {XT}"); I(f"s_mul_i32 s{S_T0}, s{S_R}, {14*1024}"); I(f"s_lshl_b32 s{S_MXA}, s{S_C}, 12"); I(f"s_add_u32 s{S_MXA}, s{S_MXA}, s{S_T0}")
    I(f"s_mul_i32 s{S_MXB}, s{S_C}, 3072"); I(f"s_add_u32 s{S_MXB}, s{S_MXB}, s{S_T0}"); I(f"s_add_u32 s{S_MXB}, s{S_MXB}, 8192")
    T = V_TMP
    I(f"v_and_b32 v{T}, 15, v0"); I(f"v_lshrrev_b32 v{T+1}, 4, v0")
    I(f"v_and_b32 v{T+4}, 7, v0"); I(f"v_xor_b32 v{T+4}, v{T+4}, v{T+1}")
    I(f"v_lshrrev_b32 v{T+5}, 3, v0"); I(f"v_lshlrev_b32 v{T+7}, 11, v{T+5}"); I(f"v_lshl_add_u32 v{T+4}, v{T+4}, 4, v{T+7}")
    I(f"s_lshl_b32 s{S_T0}, s{S_C}, 16"); I(f"v_add_u32 v{V_XOFF}, s{S_T0}, v{T+4}"); I(f"v_xor_b32 v{T+5}, 64, v{V_XOFF}")
    for j in range(1, 4): I(f"v_add_u32 v{V_XOFF+j}, {j*16384-j*1024}, v{V_XOFF if j%2==0 else T+5}")
    I(f"s_lshl_b32 s{S_T0}, s{S_C}, 6"); I(f"v_xor_b32 v{T+4}, s{S_T0}, v{T+4}"); I(f"s_mul_i32 s{S_T0}, s{S_C}, {24*2048}"); I(f"s_add_u32 s{S_T0}, s{S_T0}, {64*2048}")
    I(f"v_add_u32 v{V_XOFF+4}, s{S_T0}, v{T+4}"); I(f"v_xor_b32 v{T+5}, 64, v{V_XOFF+4}")
    for j in range(1, 3): I(f"v_add_u32 v{V_XOFF+4+j}, {j*16384-j*1024}, v{V_XOFF+4 if j%2==0 else T+5}")
    I(f"v_lshlrev_b32 v{T+4}, 2, v{T+1}"); I(f"v_xor_b32 v{T+4}, v{T+4}, v{T}"); I(f"v_lshlrev_b32 v{T+5}, 13, v{T+1}"); I(f"v_lshl_add_u32 v{V_WOFF}, v{T+4}, 4, v{T+5}")
    for j in range(1, 4): I(f"v_add_u32 v{V_WOFF+j}, {j*32768-j*1024}, v{V_WOFF}")
    I(f"s_mul_i32 s{S_T0}, s{S_B}, 458752"); I(f"s_mul_i32 s{S_T1}, s{S_R}, {112*2048}"); I(f"s_add_u32 s{S_T0}, s{S_T0}, s{S_T1}")
    I(f"s_lshl_b32 s{S_T1}, s{S_H}, 8"); I(f"s_lshl_b32 s{S_T2}, s{S_WAVE}, 17"); I(f"s_add_u32 s{S_T1}, s{S_T1}, s{S_T2}")
    I("s_waitcnt lgkmcnt(0)")
    stamp()
    srd(S_X, P_X, 3670016, S_T0); srd(S_WQ, P_WQ, 8388608, S_T1)
    Q = []
    for k in range(16):
        Q += [(-1 if k <= 2 else (0 if k == 3 else 2 * (k - 4) + 1), x) for x in d_w(k)]
        Q += [(-1 if k <= 2 else 2 * (k - 3), x) for x in d_xa(k)]
        Q += [(-1 if k <= 2 else 2 * (k - 3) + 1, x) for x in d_xb(k)]
    def take(hh, cap, cap2):
        out = []
        pend = 0
        while pend < len(Q) and Q[pend][0] <= hh: pend += 1
        n = min(pend, cap if (hh < 0 or pend <= cap + (2 if hh % 2 else 0)) else cap2)
        for _ in range(n): out.append(Q.pop(0)[1])
        return out
    emit_dma(take(-1, min(O.n_up, O.n_up0), 0), post=True)
    I(f"s_lshl_b32 s{S_T0}, s{S_B}, 5"); I(f"s_add_u32 s{S_T0}, s{S_T0}, s{S_H}"); I(f"s_lshl_b32 s{S_T0}, s{S_T0}, 18")
    srd(S_K, P_K, 262144, S_T0, sub=False); srd(S_V, P_V, 262144, S_T0, sub=False)
    if O.tlbw:
        I(f"s_lshl_b32 s{S_T0}, s{S_WAVE}, 16"); I(f"v_lshlrev_b32 v14, 10, v0")
        I(f"buffer_load_dword v15, v14, {sr(S_K,4)}, s{S_T0} offen {O.pol_kv}"); I(f"buffer_load_dword v15, v14, {sr(S_V,4)}, s{S_T0} offen {O.pol_kv}")
    srd(S_O, P_WS, 14680064); srd(S_OUT, P_OUT, 3670016)
    I(f"s_lshr_b32 s{S_T0}, s2, 3"); I(f"s_mul_i32 s{S_T0}, s{S_T0}, {O.kv_rot_j}"); I(f"s_and_b32 s{S_T1}, s2, 7"); I(f"s_mul_i32 s{S_T1}, s{S_T1}, {O.kv_rot_x}")
    I(f"s_add_u32 s{S_T0}, s{S_T0}, s{S_T1}"); I(f"s_and_b32 s{S_T0}, s{S_T0}, 15"); I(f"s_lshl_b32 s{S_T0}, s{S_T0}, 14"); I(f"s_add_u32 s{S_KV0}, s{S_T0}, s{S_W4K}")
    n_it = 11 + O.nskip
    I(f"s_mov_b32 s{S_MASK}, {((1 << n_it) - 1) << 1:#x}")
    if O.nskip:
        per = n_it // O.nskip
        pat = sum(1 << (1 + per * k) for k in range(O.nskip))
        I(f"s_mul_i32 s{S_T0}, s2, 37"); I(f"s_and_b32 s{S_T0}, s{S_T0}, 255"); I(f"s_mul_i32 s{S_T0}, s{S_T0}, {per}"); I(f"s_lshr_b32 s{S_T0}, s{S_T0}, 8"); I(f"s_lshl_b32 s{S_T0}, {pat:#x}, s{S_T0}"); I(f"s_andn2_b32 s{S_MASK}, s{S_MASK}, s{S_T0}")
    I(f"s_mov_b32 s{S_FB}, 0"); I(f"s_mov_b32 s{S_KVG}, s{S_KV0}"); I(f"s_mov_b32 s{S_SCALE}, {f2u(SCALE):#x}")
    I(f"s_lshl_b32 s{S_T0}, s{S_B}, 1"); I(f"s_add_u32 s{S_T0}, s{S_T0}, s{S_R}"); I(f"s_lshl_b32 s{S_T0}, s{S_T0}, 5"); I(f"s_add_u32 s{S_T0}, s{S_T0}, s{S_H}")
    I(f"s_lshl_b32 s{S_T0}, s{S_T0}, 1"); I(f"s_add_u32 s{S_T0}, s{S_T0}, s{S_C}"); I(f"s_mul_i32 s{S_OST}, s{S_T0}, 14336")
    I(f"s_lshl_b32 s{S_SIG}, s{S_B}, 5"); I(f"s_and_b32 s{S_T0}, s{S_H}, 24"); I(f"s_add_u32 s{S_SIG}, s{S_SIG}, s{S_T0}")
    RH = S_SL0; CG = S_SL1; U = S_SL2
    I(f"s_and_b32 s{S_T0}, s2, 7"); I(f"s_lshr_b32 s{S_T1}, s2, 3")
    I(f"s_lshr_b32 s{RH}, s{S_T0}, 1"); I(f"s_lshl_b32 s{RH}, s{RH}, 2"); I(f"s_and_b32 s{S_T2}, s{S_T1}, 3"); I(f"s_add_u32 s{RH}, s{RH}, s{S_T2}")
    I(f"s_and_b32 s{CG}, s{S_T0}, 1"); I(f"s_lshl_b32 s{CG}, s{CG}, 3"); I(f"s_lshr_b32 s{S_T3}, s{S_T1}, 2"); I(f"s_add_u32 s{CG}, s{CG}, s{S_T3}")
    I(f"s_lshl_b32 s{S_PFO}, s{S_T2}, 17")
    I(f"s_mul_i32 s{S_T2}, s{S_T2}, {O.k2_rot_r}"); I(f"s_mul_i32 s{S_T3}, s{S_T3}, {O.k2_rot_c}"); I(f"s_add_u32 s{U}, s{S_T2}, s{S_T3}")
    I(f"s_lshl_b32 s{S_T0}, s{RH}, 2"); I(f"s_add_u32 s{S_T0}, s{S_T0}, s{S_WAVE}"); I(f"s_mul_i32 s{S_T0}, s{S_T0}, {32*7168}")
    srd(S_OO, P_WS, 32 * 7168, S_T0, sub=False)
    I(f"s_lshl_b32 s{S_T1}, s{S_WAVE}, 21"); I(f"s_lshl_b32 s{S_T2}, s{CG}, 7"); I(f"s_add_u32 s{S_T1}, s{S_T1}, s{S_T2}")
    srd(S_WO, P_WO, 8388608, S_T1)
    I(f"s_mul_i32 s{S_OUTOFF}, s{RH}, {112*2048}"); I(f"s_add_u32 s{S_OUTOFF}, s{S_OUTOFF}, s{S_T2}"); I(f"s_lshl_b32 s{S_T1}, s{S_WAVE}, 5"); I(f"s_add_u32 s{S_OUTOFF}, s{S_OUTOFF}, s{S_T1}")
    I(f"s_lshr_b32 s{S_POLL}, s{RH}, 1"); I(f"s_lshl_b32 s{S_POLL}, s{S_POLL}, 5"); I(f"s_lshl_b32 s{S_T1}, s{S_WAVE}, 3"); I(f"s_add_u32 s{S_POLL}, s{S_POLL}, s{S_T1}")
    for u in range(8):
        I(f"s_add_u32 s{S_T0}, s{U}, {u}"); I(f"s_and_b32 s{S_T0}, s{S_T0}, 7"); I(f"s_lshl_b32 s{S_TW+u}, s{S_T0}, 16"); I(f"s_mul_i32 s{S_TO+u}, s{S_T0}, 7168")
    I(f"s_lshl_b32 s{S_LB0}, s{S_WAVE}, 13"); I(f"s_add_u32 s{S_LB0}, s{S_LB0}, 98304"); I(f"s_xor_b32 s{S_T3}, s{S_WAVE}, 1")
    I(f"s_mul_i32 s{S_LB1}, s{S_T3}, 28672"); I(f"s_cmp_eq_u32 s{S_T3}, 3"); I(f"s_cselect_b32 s{S_LB1}, 131072, s{S_LB1}")
    I(f"s_mul_i32 s{S_CA}, s{S_WAVE}, 28672"); I(f"s_cmp_eq_u32 s{S_WAVE}, 3"); I(f"s_cselect_b32 s{S_CA}, 131072, s{S_CA}")
    I(f"s_lshl_b32 s{S_STW}, s{S_WAVE}, 10"); I(f"s_add_u32 s{S_STW}, s{S_STW}, {ST0}")
    I(f"v_lshlrev_b32 v{T+4}, 1, v{T+1}"); I(f"v_and_b32 v{T+6}, 7, v0"); I(f"v_xor_b32 v{T+6}, v{T+4}, v{T+6}"); I(f"v_lshl_add_u32 v{V_WOB}, v{T+6}, 4, v{T+7}")
    I(f"v_xor_b32 v{T+4}, v{T+4}, v{T}"); I(f"v_lshlrev_b32 v{T+5}, 8, v{T+1}")
    for j in range(4):
        I(f"v_xor_b32 v{T+6}, {8*(j&1) + (j>>1)}, v{T+4}"); I(f"v_lshl_add_u32 v{V_KVOFF+j}, v{T+6}, 4, v{T+5}")
    if O.kv_noswz:
        for j in range(4): I(f"v_lshlrev_b32 v{V_KVOFF+j}, 4, v0")
    I(f"v_lshlrev_b32 v{V_LANE16}, 4, v0"); I(f"v_bfe_u32 v{T+2}, v0, 2, 2"); I(f"v_and_b32 v{T+3}, 3, v0")
    I(f"v_lshrrev_b32 v{T+4}, 1, v{T}"); I(f"v_xor_b32 v{T+4}, v{T+4}, v{T+1}"); I(f"s_mul_i32 s{S_T0}, s{S_R}, {112*128}")
    I(f"v_lshlrev_b32 v{T+5}, 7, v{T}"); I(f"v_add_u32 v{T+5}, s{S_T0}, v{T+5}"); I(f"v_lshl_add_u32 v{V_XB}, v{T+4}, 4, v{T+5}"); I(f"v_xor_b32 v{V_XB+1}, 64, v{V_XB}")
    I(f"v_lshrrev_b32 v{T+4}, 1, v{T+3}"); I(f"v_and_b32 v{T+5}, 1, v{T+3}"); I(f"v_lshl_add_u32 v{T+4}, v{T+5}, 1, v{T+4}")
    I(f"s_lshl_b32 s{S_T0}, s{S_C}, 1"); I(f"v_xor_b32 v{T+5}, s{S_T0}, v{T+2}"); I(f"v_lshl_add_u32 v{T+4}, v{T+5}, 2, v{T+4}")
    I(f"v_lshl_add_u32 v{T+5}, v{T+1}, 3, v{T+2}"); I(f"v_lshlrev_b32 v{T+5}, 8, v{T+5}"); I(f"v_lshl_add_u32 v{V_WB}, v{T+4}, 4, v{T+5}"); I(f"v_xor_b32 v{V_WB+1}, 64, v{V_WB}")
    I(f"v_lshrrev_b32 v{T+4}, 1, v{T+1}"); I(f"v_and_b32 v{T+5}, 1, v{T+1}"); I(f"v_lshl_add_u32 v{T+4}, v{T+5}, 1, v{T+4}")
    I(f"v_and_b32 v{T+5}, 7, v{T}"); I(f"v_lshrrev_b32 v{T+6}, 3, v{T}"); I(f"v_lshl_add_u32 v{T+5}, v{T+5}, 1, v{T+6}")
    I(f"v_xor_b32 v{T+4}, v{T+4}, v{T+5}"); I(f"s_lshl_b32 s{S_T0}, s{S_C}, 3"); I(f"v_xor_b32 v{T+4}, s{S_T0}, v{T+4}")
    I(f"s_lshl_b32 s{S_T1}, s{S_C}, 13"); I(f"s_add_u32 s{S_T2}, s{S_T1}, {KOFF}")
    I(f"v_lshlrev_b32 v{T+5}, 8, v{T}"); I(f"v_add_u32 v{T+5}, s{S_T2}, v{T+5}"); I(f"v_lshl_add_u32 v{V_KB}, v{T+4}, 4, v{T+5}")
    I(f"v_lshl_add_u32 v{T+6}, v{T+1}, 2, v{T+2}")
    I(f"v_bfe_u32 v{T+4}, v{T+6}, 1, 2"); I(f"v_xor_b32 v{T+4}, s{S_WAVE}, v{T+4}"); I(f"v_lshlrev_b32 v{T+5}, 7, v{T+6}"); I(f"v_lshl_add_u32 v{T+5}, v{T+4}, 5, v{T+5}"); I(f"v_lshl_add_u32 v{V_RAB}, v{T+3}, 3, v{T+5}")
    I(f"v_and_b32 v{T+4}, 7, v{T+6}"); I(f"v_lshrrev_b32 v{T+5}, 3, v{T+6}"); I(f"v_lshl_add_u32 v{T+4}, v{T+4}, 1, v{T+5}")
    I(f"v_bfe_u32 v{T+5}, v0, 1, 1"); I(f"v_xor_b32 v{T+4}, v{T+4}, v{T+5}"); I(f"v_xor_b32 v{T+4}, s{S_T0}, v{T+4}")
    I(f"v_lshlrev_b32 v{T+6}, 8, v{T+6}"); I(f"v_add_u32 v{T+6}, s{S_T1}, v{T+6}"); I(f"v_lshl_add_u32 v{T+6}, v{T+4}, 4, v{T+6}")
    I(f"v_and_b32 v{T+5}, 1, v0"); I(f"v_lshl_add_u32 v{V_VB}, v{T+5}, 3, v{T+6}")
    for k in range(2):
        I(f"v_mov_b32 v{V_XA+k}, v{V_XB+k}"); I(f"v_mov_b32 v{V_WA+k}, v{V_WB+k}")
    for k in range(32): I(f"v_mov_b32 v{OK_+80+k}, 0")
    for k in range(32): I(f"v_accvgpr_write_b32 a{OS_+80+k}, 0")
    for x in v_addr((RING - 1) * 32768): I(x)
    I(f"s_mul_i32 s{S_T2}, s{S_WAVE}, 14336"); I(f"v_add_u32 v{V_T0}, s{S_T2}, v{V_LANE16}")
    I(f"s_mul_i32 s{S_T3}, s{S_T3}, 14336"); I(f"v_add_u32 v{V_QP}, s{S_T3}, v{V_LANE16}")
    I(f"s_add_u32 s{S_T0}, s{S_W4K}, 98304"); I(f"v_add_u32 v{V_KW0}, s{S_T0}, v{V_LANE16}"); I(f"s_add_u32 s{S_T0}, s{S_W4K}, 32768"); I(f"v_add_u32 v{V_KW1}, s{S_T0}, v{V_LANE16}")
    if O.cpf:
        c1 = code_pf("L_trans", 6, 215)
        for x in c1[0] + [c1[1]]: I(x)
    for p in range(O.nl2):
        I(f"s_mul_i32 s{S_T0}, s2, 11"); I(f"s_lshr_b32 s{S_T0}, s{S_T0}, 8")
        for d, t in ((3 * p, S_T1), (3 * p + 5, S_T2)):
            I(f"s_add_u32 s{t}, s{S_T0}, {d + 5}"); I(f"s_cmp_ge_u32 s{t}, 16"); I(f"s_cselect_b32 s6, 11, 0"); I(f"s_sub_u32 s{t}, s{t}, s6")
            I(f"s_lshl_b32 s{t}, s{t}, 14"); I(f"s_add_u32 s{t}, s{t}, s{S_KV0}"); I(f"s_and_b32 s{t}, s{t}, 0x3ffff")
        I(f"v_mov_b32 v{T+4}, s{S_T1}"); I(f"v_mov_b32 v{T+5}, s{S_T2}"); I(f"v_cmp_gt_u32 vcc, 32, v0"); I(f"v_and_b32 v{T+6}, 31, v0"); I("s_nop 0")
        I(f"v_cndmask_b32 v{T+4}, v{T+5}, v{T+4}, vcc"); I(f"v_lshl_add_u32 v{V_PF+p}, v{T+6}, 7, v{T+4}")
    if O.gmode:
        I(f"s_cmp_eq_u32 s{S_R}, 0"); I(f"s_cselect_b32 s4, s{S_K}, s{S_V}"); I(f"s_cselect_b32 s5, s{S_K+1}, s{S_V+1}"); I(f"s_cselect_b32 s{S_T0}, 16384, 0")
        I("s_mov_b32 s6, 262144"); I("s_mov_b32 s7, 0x20000")
        I(f"s_sub_u32 s{S_T1}, s{S_KV0}, s{S_W4K}"); I(f"s_add_u32 s{S_T0}, s{S_T0}, s{S_T1}"); I(f"s_lshl_b32 s{S_T1}, s{S_C}, 13"); I(f"s_add_u32 s{S_T0}, s{S_T0}, s{S_T1}")
        for r in range(O.g_rounds):
            I(f"s_add_u32 s{60+r}, s{S_T0}, {r*16384}"); I(f"s_and_b32 s{60+r}, s{60+r}, 0x3ffff")
        I(f"s_lshr_b32 s100, s2, 3"); I(f"s_mul_i32 s100, s100, {O.g_per}"); I("s_lshr_b32 s100, s100, 5")
        I(f"v_lshlrev_b32 v{V_KW0}, 7, v0")
    emit_dma(take(-1, max(0, O.n_up - O.n_up0), 0), post=True)
    I("s_waitcnt vmcnt(@xa0)"); I("s_barrier")
    stamp()
    for r in r_w(0)[:2] + r_x([0])[:1] + r_w(0)[2:] + r_x(range(4))[1:]: I(r)
    for k in range(2): I(f"v_add_u32 v{V_WA+k}, {stg(1)}, v{V_WB+k}")
    I("s_waitcnt lgkmcnt(0) vmcnt(@w_1)"); I("s_barrier")
    el = early_loads(); ew = early_writes()
    l2 = [([], f"buffer_load_dword v{V_TMP+6}, v{V_PF+p}, {sr(sq,4)}, 0 offen") for p in range(O.nl2) for sq in (S_K, S_V)]
    muls = [f"v_mul_f32 v{p1_acc(rt)+k}, s{S_SCALE}, v{p1_acc(rt)+k}" for rt in range(7) for k in range(16)]
    ne = 0
    nit = O.kv_last - O.kv_first
    def gat(hh):
        k = hh - O.g_start
        if not O.gmode or k < 0 or k >= O.g_per * O.g_rounds: return []
        return [([f"s_cmp_eq_u32 s100, {k % O.g_per}", f"s_cselect_b32 s101, s{60 + k // O.g_per}, 0x40000000"], f"buffer_load_dword v{V_TMP+6}, v{V_KW0}, s[4:7], s101 offen")]
    def tagd(g, t, adv=False):
        g = [(x[0], x[1] + f" ;@{t}") for x in g]
        if adv: g[3] = g[3] + ([KVG_UPD],)
        return g
    late = tagd(kv_dma("V", 4 * 32768), "v0", True) + tagd(kv_dma("K", 3 * 32768), "s1") + tagd(kv_dma("V", 3 * 32768), "s1", True) + tagd(kv_dma("K", 2 * 32768), "s2") + tagd(kv_dma("V", 2 * 32768), "s2", True)
    for i in range(16):
        if i <= 12: ma = take(2 * i, O.capA2 if i == 0 else O.capA, O.capA2)
        elif O.gmode: ma = gat(2 * i) + {13: [], 14: late[6:12], 15: late[18:20]}[i]
        elif i == 13: ma = take(26, 6, 6) + el[20:24]
        elif i == 14: ma = ew[6:12]
        else: ma = ew[17:20]
        if 2 * i == O.l2_at: ma = ma + l2
        rd = r_x(range(4, 7)) + (r_w(i + 1) if i < 15 else [])
        addr = [(5, f"v_add_u32 v{V_XA+k}, {stg(i+1)}, v{V_XB+k}") for k in range(2)] if i < 15 else []
        va = [(8 * (k // 16) + (2 * ((k % 16) // 4) + 1 if O.accord else 4 + (k % 16) // 4) + 9, m) for k, m in enumerate(muls[:64])] if i == 15 else None
        p1_half(p1_mfmas(i, range(4)), ma, rd, addr, "s_waitcnt lgkmcnt(0)" + (f" vmcnt(@xa{i+1})" if i < 15 else ""), valu=va)
        k = 0
        if O.kv_first <= i < O.kv_last and not O.gmode: k = ((i - O.kv_first + 1) * 20) // nit - ne
        mb = el[ne:ne + k] + gat(2 * i + 1); ne += k
        tk = take(2 * i + 1, O.capB2 if i == 0 else O.capB, O.capB2)
        if i == O.k0_it:
            p = [n for n, x in enumerate(tk) if x[0]][0]
            tk = tk[:p] + kv_dma("K", 4 * 32768, S_KV0) + tk[p:]
        mb += tk
        if i == 13: assert not Q and not tk
        if i == 13: mb += late[0:6] if O.gmode else el[24:28] + ew[0:6]
        if i == 14: mb += late[12:18] if O.gmode else ew[12:17]
        if 2 * i + 1 == O.l2_at: mb = mb + l2
        if O.cpf and i == 12: mb = mb + [([], c1[2])]
        rd = r_x(range(4)) if i < 15 else []
        addr = [(-1, f"v_add_u32 v{V_WA+k}, {stg(i+2)}, v{V_WB+k}") for k in range(2)] if i < 14 else []
        if i == 15:
            va = [(g - 32, m) for g, m in va] + [(8 * (k // 16) + (2 * ((k % 16) // 4) + 1 if O.accord else 4 + (k % 16) // 4) + 9, m) for k, m in enumerate(muls[64:])]
        wait = None if i == 15 else "s_waitcnt lgkmcnt(0)" + (f" vmcnt(@w_{i+2})" if i < 14 else " vmcnt(@xb15)")
        p1_half(p1_mfmas(i, range(4, 7)), mb, rd, addr, wait, valu=va)
        if O.p1st and i < 15: stamp()
    nt = 112 - len(va)
    stamp()
    A("L_trans:")
    for x in k_addr((RING - 1) * 32768): I(x)
    for f in range(8): I(k_read(f))
    for rt in range(7):
        for kp in range(2):
            b = p1_acc(rt) + 8 * kp
            for k in range(8):
                if 16 * rt + 8 * kp + k >= nt: I(muls[16 * rt + 8 * kp + k])
            t = SB + 4 * ((2 * rt + kp) % 8)
            for k in range(4): I(f"v_cvt_pk_bf16_f32 v{t+k}, v{b+2*k}, v{b+2*k+1}")
            I(f"ds_write_b128 v{V_T0}, {vr(t)} offset:{(2*rt+kp)*1024} ;@qw")
    for rt in range(7):
        for kp in range(2): I(f"ds_read_b128 {ar(QA+16*rt+4*kp)}, v{V_T0} offset:{(2*rt+kp)*1024}")
    I(f"s_mov_b32 s{S_DS}, {4*32768}"); I(f"s_mov_b32 s{S_SL2}, {3*32768}"); I(f"s_mov_b32 s{S_I}, 0")
    I("s_waitcnt lgkmcnt(@qw)" + (" vmcnt(@v0)" if O.gmode else "")); I("s_barrier")
    for rt in range(7):
        for kp in range(2): I(f"ds_read_b128 {ar(QA+16*rt+8+4*kp)}, v{V_QP} offset:{(2*rt+kp)*1024}")
    I(f"v_add_u32 v{V_T0}, s{S_CA}, v{V_LANE16}")
    I(f"v_add_u32 v{V_T1}, s{S_LB1}, v{V_LANE16}")
    I(f"v_mov_b32 v{V_WOF}, v{V_WOB}")
    for j in range(1, 4): I(f"v_add_u32 v{V_WOF+j}, {j*16384-j*1024}, v{V_WOB}")
    I("s_waitcnt lgkmcnt(0)"); I("s_barrier")
    if not O.s4_in: emit_dma(kv_dma("K", 0) + kv_dma("V", 0)); I(KVG_UPD)
    stamp()
    att_iter("first").emit()
    g = sm0_ops(6)
    S = SB + 8 * COL[6]
    for grp in g[:3]:
        for x in grp: I(x)
        I("s_nop 0")
    for k in range(2, 8): I(f"v_sub_f32 v{S+k}, v{S+k}, v{V_TMP}")
    for k in range(4): I(f"v_sub_f32 v{NM+24+k}, 0, v{V_TMP}")
    I(f"v_mov_b32 v{LS+6}, 0")
    if O.epst: stamp()
    A(".p2align 6"); A("L_att:")
    G = att_iter("loop")
    if O.abl_nomfma:
        G.mf = ["s_nop 0"] * len(G.mf); G.v = [[x for x in g if "_u32" in x or "_b32" in x] for g in G.v]
    if O.loopst:
        G.s[92].append("s_memtime s[98:99]"); G.p[94].append("s_memtime s[100:101]"); G.p[95].append("s_memtime s[62:63]")
        G.v[7].append(f"v_cmp_eq_u32 vcc, s{S_I}, v0")
        for k, sg in enumerate((98, 100, 62)):
            G.v[11 + 4 * k].append(f"v_mov_b32 v251, s{sg}"); G.v[11 + 4 * k].append(f"v_cndmask_b32 v{252+k}, v{252+k}, v251, vcc")
    if O.abl_nodma: G.m = [[x for x in g if "buffer_" not in x] for g in G.m]
    G.emit()
    I("s_cbranch_scc1 L_att")
    if O.epst: stamp()
    if O.loopst:
        I(f"s_lshl_b32 s{S_T0}, s2, 12"); I(f"s_lshl_b32 s{S_T1}, s{S_WAVE}, 10"); I(f"s_add_u32 s{S_T0}, s{S_T0}, s{S_T1}"); I(f"s_add_u32 s{S_T0}, s{S_T0}, {(1<<26)+(1<<20)}"); I(f"v_lshl_add_u32 v251, v0, 4, s{S_T0}")
        I(f"global_store_dwordx4 v251, v[252:255], {sr(P_WS)}")
    for t in range(12 + O.nskip, 15): att_iter("pen", t).emit()
    A("L_last:")
    if O.epst: stamp()
    att_iter("last").emit()
    def sendfirst(m): return m[4:] + m[:4]
    def osend(rt, k): return f"ds_write_b128 v{V_T0}, {ar(OS_+16*rt+4*k)} offset:{(4*rt+k)*1024}"
    G = Gaps(sendfirst(pv_mfmas(5)))
    e, a, c = sm_ops(6)
    for k in range(8):
        G.v[k].append(e[k])
        if k: G.v[k].append(a[k - 1])
        if k in (2, 4, 6): G.v[k].append(c[k // 2 - 1])
    for k in range(4): G.m[1 + 2 * k].append(osend(4, k))
    G.emit()
    I("s_nop 0"); I(c[3]); I(a[7]); I(f"s_mov_b32 s{S_T0}, {f2u(2.0**40):#x}")
    G = Gaps(sendfirst(pv_mfmas(6)))
    for k in range(7): G.v[[1, 1, 3, 3, 5, 5, 7][k]].append(f"v_mov_b32 v{V_TMP+k}, v{LS+k}")
    for k in range(4): G.m[2 * k].append(osend(5, k))
    G.emit()
    stamp()
    regs = [LS + rt for rt in range(7)]; temps = [V_TMP + rt for rt in range(7)]
    I(osend(6, 0)); I(osend(6, 1))
    for r, t in zip(regs, temps): I(f"v_permlane32_swap_b32 v{r}, v{t}")
    I(osend(6, 2))
    for r, t in zip(regs, temps): I(f"v_add_f32 v{r}, v{r}, v{t}")
    for r, t in zip(regs, temps): I(f"v_mov_b32 v{t}, v{r}")
    I(osend(6, 3)); I("s_nop 0")
    for r, t in zip(regs, temps): I(f"v_permlane16_swap_b32 v{r}, v{t}")
    I("s_nop 0")
    for rt, (r, t) in enumerate(zip(regs, temps)): I(f"v_add_f32 v{NM+4*rt+1}, v{r}, v{t}")
    I(f"v_add_f32 v{V_TMP}, v{NM+1}, v{NM+5}"); I(f"v_add_f32 v{V_TMP+1}, v{NM+9}, v{NM+13}"); I(f"v_add_f32 v{V_TMP+2}, v{NM+17}, v{NM+21}")
    I(f"v_add_f32 v{V_TMP}, v{V_TMP}, v{NM+25}"); I(f"v_add_f32 v{V_TMP+1}, v{V_TMP+1}, v{V_TMP+2}"); I(f"v_add_f32 v{V_TMP}, v{V_TMP}, v{V_TMP+1}")
    I(f"v_cmp_nlt_f32 vcc, v{V_TMP}, s{S_T0}")
    for rt in range(7): I(f"ds_write_b64 v{V_STW}, {vr(NM+4*rt,2)} offset:{rt*128}")
    I(f"s_cmp_lg_u64 vcc, 0"); I(f"s_cselect_b32 s{S_T1}, 1, 0"); I(f"s_andn2_b32 s{S_T1}, s{S_T1}, s{S_FB}"); I(f"v_mov_b32 v{V_TMP+1}, s{S_T1}")
    I(f"ds_write_b32 v{V_STW}, v{V_TMP+1} offset:896")
    I("s_waitcnt lgkmcnt(0)"); I("s_barrier")
    if O.epst: stamp()
    I(f"ds_read_b32 v{V_TMP+4}, v{V_FLR} ;@fl")
    for rt in range(7): I(f"ds_read_b64 {vr(NM+4*rt+2,2)}, v{V_STR} offset:{rt*128} ;@st")
    RB = 128
    def recv(rt):
        for dq in range(4): I(f"ds_read_b128 {vr(RB+16*(rt%4)+4*dq)}, v{V_T1} offset:{(4*rt+dq)*1024} ;@r{rt}")
    recv(0)
    I("s_waitcnt lgkmcnt(@fl) vmcnt(@w1)")
    I(f"v_cmp_ne_u32 vcc, 0, v{V_TMP+4}")
    recv(1)
    I("s_cbranch_vccnz L_fallback")
    st = {"dma": 2, "rd": 0}; free = []; pend = []
    def do_read(wait=True):
        m = st["rd"]; st["rd"] += 1
        if wait: I(f"s_waitcnt vmcnt(@w{m})")
        for r in a_reads(m): I(r)
        pend.append(m)
    def release(n=None):
        k = len(pend) if n is None else n
        if not k: return
        I(f"s_waitcnt lgkmcnt(@a{pend[k-1]})")
        for _ in range(k): free.append(slot_of[pend.pop(0)])
    def do_dma():
        m = st["dma"]; st["dma"] += 1
        slot_of[m] = free.pop(0); emit_dma(wo_dma(m))
    do_read(False); do_read(False)
    recv(2)
    I("s_waitcnt lgkmcnt(@st)")
    bs = [NM + 4 * rt for rt in range(7)]
    for rt, b in enumerate(bs): I(f"v_min_f32 v{LS+rt}, v{b}, v{b+2}")
    for rt, b in enumerate(bs): I(f"v_sub_f32 v{b}, v{LS+rt}, v{b}"); I(f"v_sub_f32 v{b+2}, v{LS+rt}, v{b+2}")
    release(); free.extend([2, 3])
    for _ in range(min(2, O.pre_dma)): do_dma()
    for b in bs: I(f"v_exp_f32 v{b}, v{b}"); I(f"v_exp_f32 v{b+2}, v{b+2}")
    if O.pre_dma > 2: do_dma()
    for b in bs: I(f"v_mul_f32 v{b+1}, v{b+1}, v{b}")
    for b in bs: I(f"v_fma_f32 v{b+1}, v{b+3}, v{b+2}, v{b+1}")
    for b in bs: I(f"v_rcp_f32 v{b+1}, v{b+1}")
    if O.pre_dma > 3: do_dma()
    for b in bs: I(f"v_mul_f32 v{b}, v{b}, v{b+1}"); I(f"v_mul_f32 v{b+2}, v{b+2}, v{b+1}")
    for rt in range(7):
        if O.epst: stamp()
        if rt + 3 < 7: recv(rt + 3)
        if rt >= 2:
            I(f"s_waitcnt lgkmcnt(@r{rt})"); free.append(2 + rt)
        if free and str(rt) in O.ep_dma: do_dma()
        b = NM + 4 * rt; o = OK_ + 16 * rt; rb = RB + 16 * (rt % 4)
        for k in range(0, 16, 2): I(f"v_pk_mul_f32 {vr(o+k,2)}, {vr(o+k,2)}, {vr(b,2)} op_sel_hi:[1,0]")
        for k in range(0, 16, 2): I(f"v_pk_fma_f32 {vr(o+k,2)}, {vr(rb+k,2)}, {vr(b+2,2)}, {vr(o+k,2)} op_sel_hi:[1,0,1]")
        for k in range(8): I(f"v_cvt_pk_bf16_f32 v{o+k}, v{o+2*k}, v{o+2*k+1}")
        I(f"s_add_u32 s{S_T1}, s{S_OST}, {rt*1024}"); I(f"s_add_u32 s{S_T2}, s{S_OST}, {rt*1024+7168}")
        I(f"buffer_store_dwordx4 {vr(o)}, v{V_LANE16}, {sr(S_O,4)}, s{S_T1} offen {O.pol_ost} ;@os")
        I(f"buffer_store_dwordx4 {vr(o+4)}, v{V_LANE16}, {sr(S_O,4)}, s{S_T2} offen {O.pol_ost} ;@os")
    stamp()
    I(f"v_mov_b32 v{V_TMP}, s{S_SIG}"); I(f"v_mov_b32 v{V_TMP+1}, 1"); I(f"v_mov_b32 v{V_TMP+2}, s{S_POLL}")
    older = st["dma"]
    for _ in range(min(O.post_dma, len(free))): do_dma()
    while st["rd"] < min(older, RA_N - 1): do_read()
    I("s_waitcnt vmcnt(@os)" if O.sig_cnt else "s_waitcnt vmcnt(0)"); I("s_barrier")
    I(f"s_cmp_lg_u32 s{S_WAVE}, 0"); I("s_cbranch_scc1 L_nosig")
    I("s_mov_b64 exec, 1")
    I(f"global_atomic_add v{V_TMP}, v{V_TMP+1}, {sr(P_DBG)} sc1 ;@nocount")
    I("s_mov_b64 exec, -1")
    A("L_nosig:")
    stamp()
    release()
    while free: do_dma()
    polled = False
    while st["rd"] < RA_N:
        do_read()
        if not polled and st["rd"] > RA_N - O.poll_lead: I(f"global_load_dword v{V_TMP+3}, v{V_TMP+2}, {sr(P_DBG)} sc1 ;@poll"); polled = True
        if len(pend) > 1: release(1); do_dma()
    release()
    while free: do_dma()
    assert st["dma"] == RA_N + RL_N and polled, st
    I("s_waitcnt vmcnt(@poll)")
    stamp()
    I(f"s_mov_b32 s{S_I}, 0")
    A("L_poll:")
    I(f"v_readfirstlane_b32 s{S_T0}, v{V_TMP+3}")
    I(f"s_add_u32 s{S_I}, s{S_I}, 1")
    I(f"s_cmp_ge_u32 s{S_T0}, 8"); I("s_cbranch_scc1 L_ready")
    if O.abl_nopoll: I("s_branch L_ready")
    I(f"s_cmp_ge_u32 s{S_I}, 0x40000"); I("s_cbranch_scc1 L_ready")
    I(f"global_load_dword v{V_TMP+3}, v{V_TMP+2}, {sr(P_DBG)} sc1 ;@nocount")
    I("s_waitcnt vmcnt(0)")
    I("s_branch L_poll")
    A("L_ready:")
    stamp()
    for n in range(NB - 1): emit_dma(b_loads(n))
    RD = V_TMP + 4
    for cq in range(1, 4):
        I(f"s_xor_b32 s{S_T0}, s{S_WAVE}, {cq}"); I(f"s_mul_i32 s{S_T0}, s{S_T0}, {21*1024}"); I(f"v_add_u32 v{RD+cq}, s{S_T0}, v{V_LANE16}")
    I(f"s_mul_i32 s{S_T0}, s{S_WAVE}, {21*1024}"); I(f"v_add_u32 v{RD}, s{S_T0}, v{V_LANE16}")
    I(f"v_and_b32 v{V_TMP}, 15, v0"); I(f"v_lshlrev_b32 v{V_TMP}, 11, v{V_TMP}"); I(f"v_lshrrev_b32 v{V_TMP+1}, 4, v0"); I(f"v_lshl_add_u32 v{V_TMP}, v{V_TMP+1}, 3, v{V_TMP}")
    I("s_waitcnt vmcnt(@b0)")
    stamp()
    wr = [f"ds_write_b128 v{RD+cq}, {vr(ACC+16*rt+4*cq)} offset:{((cq-1)*7+rt)*1024}" for rt in range(7) for cq in range(1, 4)]
    nw = 0
    for n in range(32):
        G = Gaps(p3_mfmas(n))
        mem = []
        if n + NB - 1 < 32: mem += b_loads(n + NB - 1)
        m = n + RA_N - 1
        if n >= 2 and m - 1 + RL_N < 32:
            slot_of[m - 1 + RL_N] = slot_of[m - 1]; mem += wo_dma(m - 1 + RL_N)
        rd = a_reads(m) if (n >= 1 and m < 32) else []
        mgaps = [1, 3, 5, 7, 9, 11, 13, 17, 20, 23, 26][:len(mem)]
        place(G, mem, mgaps)
        if rd:
            G.s[14].append(f"s_waitcnt vmcnt(@w{m})")
            for r, g in zip(rd, [15, 16, 18, 19, 21, 22, 24, 25]): G.m[g].append(r)
        if n == 29: G.s[14].append("s_barrier")
        if n == 31:
            for g in range(10, 28, 2): G.m[g].append(wr[nw]); nw += 1
        if n < 31: G.s[27].append(f"s_waitcnt vmcnt(@b{n+1}) lgkmcnt(0)")
        G.emit()
    stamp()
    for x in wr[nw:]: I(x)
    I("s_waitcnt lgkmcnt(0)"); I("s_barrier")
    for rt in range(7):
        for cq in range(1, 4): I(f"ds_read_b128 {vr(ACC+16*rt+4*cq)}, v{RD} offset:{((cq-1)*7+rt)*1024} ;@f{rt}")
    for rt in range(7):
        I(f"s_waitcnt lgkmcnt(@f{rt})")
        o = ACC + 16 * rt
        for k in (0, 2):
            I(f"v_pk_add_f32 {vr(o+k,2)}, {vr(o+k,2)}, {vr(o+4+k,2)}"); I(f"v_pk_add_f32 {vr(o+8+k,2)}, {vr(o+8+k,2)}, {vr(o+12+k,2)}")
        for k in (0, 2): I(f"v_pk_add_f32 {vr(o+k,2)}, {vr(o+k,2)}, {vr(o+8+k,2)}")
        I(f"v_cvt_pk_bf16_f32 v{o}, v{o}, v{o+1}"); I(f"v_cvt_pk_bf16_f32 v{o+1}, v{o+2}, v{o+3}")
        I(f"buffer_store_dwordx2 {vr(o,2)}, v{V_TMP}, {sr(S_OUT,4)}, s{S_OUTOFF} offen {O.pol_out}")
        I(f"s_add_u32 s{S_OUTOFF}, s{S_OUTOFF}, {16*2048}")
    stamp()
    store_stamps()
    A("L_done:")
    I("s_endpgm")
    A("L_fallback:")
    I(f"s_mov_b32 s{S_FB}, 1")
    I("s_waitcnt vmcnt(0) lgkmcnt(0)"); I("s_barrier")
    for rt in range(7): I(f"v_mov_b32 v{NM+4*rt}, 0xff800000")
    I(f"s_mov_b32 s{S_KVG}, s{S_KV0}")
    for x in k_addr(0): I(x)
    I(f"s_mov_b32 s{S_I}, 0")
    A("L_fb_loop:")
    emit_dma(kv_dma("K", 0)); I(KVG_UPD)
    I("s_waitcnt vmcnt(0)"); I("s_barrier")
    for f in range(8): I(k_read(f))
    I("s_waitcnt lgkmcnt(0)"); I("s_barrier")
    for rt in range(7):
        for m in qk_mfmas(rt, SB, usenm=False): I(m)
        I("s_nop 7")
        b = NM + 4 * rt
        for k in range(4): I(f"v_max3_f32 v{b}, v{b}, v{SB+2*k}, v{SB+2*k+1}")
    I(f"s_add_u32 s{S_I}, s{S_I}, 1"); I(f"s_cmp_lt_u32 s{S_I}, 16"); I("s_cbranch_scc1 L_fb_loop")
    multi_reduce([NM + 4 * rt for rt in range(7)], [NM + 4 * rt + 1 for rt in range(7)], "v_max_f32")
    for rt in range(7):
        b = NM + 4 * rt
        I(f"v_sub_f32 v{b}, 0, v{b}")
        for k in range(1, 4): I(f"v_mov_b32 v{b+k}, v{b}")
    I(f"s_mov_b32 s{S_KVG}, s{S_KV0}")
    for st in range(RING - 1):
        emit_dma(kv_dma("K", (4 - st) * 32768) + kv_dma("V", (4 - st) * 32768)); I(KVG_UPD)
    for k in range(112): I(f"v_mov_b32 v{OK_+k}, 0")
    for k in range(112): I(f"v_accvgpr_write_b32 a{OS_+k}, 0")
    for k in range(32): I(f"v_mov_b32 v{VF+k}, 0")
    for k in range(12): I(f"v_mov_b32 v{PB+k}, 0")
    for k in range(7): I(f"v_mov_b32 v{LS+k}, 0")
    for k in range(8): I(f"v_mov_b32 v{SB+16+k}, 0xf149f2ca")
    I(f"s_mov_b32 s{S_MASK}, 0xfff"); I(f"s_mov_b32 s{S_DS}, 0"); I(f"s_mov_b32 s{S_SL2}, {3*32768}"); I(f"s_mov_b32 s{S_I}, -1")
    for x in next_dma_state(): I(x)
    for x in k_addr(4 * 32768) + v_addr(4 * 32768): I(x)
    I("s_waitcnt vmcnt(0)"); I("s_barrier")
    for f in range(8): I(k_read(f))
    I("s_waitcnt lgkmcnt(0)")
    I("s_branch L_att")

def main(fn):
    global RA_N, NB
    RA_N = O.ra_n; NB = O.nb
    del L[:]
    nstamp[0] = 0
    A('.amdgcn_target "amdgcn-amd-amdhsa--gfx950"')
    A(".text")
    gen()
    A("  .fill 6144, 4, 0xBF800000")
    A('.section .rodata,"a"\n.p2align 6')
    A(f".amdhsa_kernel {NAME}_kernel\n  .amdhsa_next_free_vgpr 512\n  .amdhsa_next_free_sgpr 102\n  .amdhsa_accum_offset 256\n  .amdhsa_group_segment_fixed_size 0\n  .amdhsa_kernarg_size 64\n  .amdhsa_user_sgpr_count 2\n  .amdhsa_user_sgpr_kernarg_segment_ptr 1\n  .amdhsa_system_sgpr_workgroup_id_x 1\n.end_amdhsa_kernel")
    head = ["; fused MHA block: per (b,h) workgroup Q-proj + attention, flag hand-off, then a 112x64 tile of the output projection",
            "; @launch grid=(256,1,1) block=(256,1,1) lds=163840"]
    open(fn, "w").write("\n".join(head + resolve(L)) + "\n")

if __name__ == "__main__":
    fn = sys.argv[1]
    for kv in sys.argv[2:]:
        k, v = kv.split("=")
        cur = getattr(O, k)
        setattr(O, k, (v == "1") if isinstance(cur, bool) else (int(v) if isinstance(cur, int) else v.replace("+", " ")))
    main(fn)
```

```python
import sys, math, struct, re
NAME = "standalone__mha_block_cached__near_ridge"

class Opt:
    pol_kv = "nt"; pol_x = ""; pol_wq = ""; pol_ost = "sc1"; pol_old = "sc1"; pol_wo = ""; pol_out = ""
    stamps = False; dbgst = False
    rotmul_h = 8; rotmul_b = 8
    k2_rot_c = 1; k2_rot_r = 2
    wo_pref = 3
    kv_first = 5
    abl_nopoll = False
    wo_early = 3
    kv_rot_j = 1
    kv_rot_x = 2
    lin_map = False
    kv_last = 13
    k0_it = 1
    up_chunks = 2
    nl2 = 1
    l2_base = 5
    cpf = True
    wo_mall = False
    n_up = 22
    n_up0 = 8
    capA = 6
    capB = 5
    capA2 = 9
    capB2 = 8
    rotmul_x = 1
    sig_cnt = False
    gmode = False
    g_start = 12
    g_per = 4
    g_rounds = 3
    l2_at = 29
    pf_pen = 2
    s4_in = True
    p1st = False
    abl_noearly = False
    nskip = 2
    epst = False
    ta = 6
    f1 = '5,10'
    f2 = '5,10'
    pf_row = True
    cp0 = 1
    tail_n = 8
    e4 = True
    wo_first = 0
    pre_dma = 2
    ra_n = 18
    nb = 2
    tr_early = True
    accord = True
    ep_dma = '9'
    post_dma = 0
    pf_q = 4
    pf_max = 16
    cpf_at = 14
    pref_last = True
    loopst = False
    tlbw = 0
    abl_nomfma = False
    kv_noswz = False
    att_vm = 24
    abl_nodma = False
    poll_lead = 1
O = Opt()

L = []
def A(s): L.append(s)
def I(s):
    for x in s.split("\n"):
        if x.strip(): L.append("  " + x.strip())
def vr(b, n=4): return f"v[{b}:{b+n-1}]"
def ar(b, n=4): return f"a[{b}:{b+n-1}]"
def sr(b, n=2): return f"s[{b}:{b+n-1}]"
def pol(p): return (p + " ") if p else ""
def f2u(x): return struct.unpack("<I", struct.pack("<f", x))[0]
MF = "v_mfma_f32_16x16x32_bf16"

class Gaps:
    def __init__(self, mf):
        self.mf = list(mf); n = len(self.mf)
        self.s = [[] for _ in range(n)]; self.m = [[] for _ in range(n)]; self.v = [[] for _ in range(n)]; self.p = [[] for _ in range(n)]
    def chain(self, instrs, gaps):
        assert len(gaps) >= len(instrs), (instrs, gaps)
        for x, g in zip(instrs, gaps): self.s[g].append(x)
    def emit(self):
        for i, m in enumerate(self.mf):
            I(m)
            for x in self.s[i] + self.m[i] + self.v[i] + self.p[i]: I(x)

def resolve(lines):
    vm = []; lg = []; out = []
    for ln in lines:
        t = re.search(r";@(\S+)", ln)
        tag = t.group(1) if t else None
        code = ln.split(";")[0].rstrip() if t else ln
        op = code.strip().split(" ")[0] if code.strip() else ""
        def sub(kind, q, cap):
            def f(m):
                k = m.group(1)
                idx = [i for i, x in enumerate(q) if x == k]
                assert idx, ("unknown tag", k, ln)
                return f"{kind}({min(cap, len(q) - 1 - idx[-1])})"
            return f
        code = re.sub(r"vmcnt\(@(\S+?)\)", sub("vmcnt", vm, 62), code)
        code = re.sub(r"lgkmcnt\(@(\S+?)\)", sub("lgkmcnt", lg, 14), code)
        if tag != "nocount":
            if op.startswith(("buffer_", "global_")): vm.append(tag)
            elif op.startswith("ds_"): lg.append(tag)
        out.append(code)
    return out

OK_ = 16; VF = 128; SB = 160; PB = 184; NM = 196; LS = 224
V_LANE16 = 1; V_QP = 2; V_WOB = 3
V_KVOFF = 4
V_XB = 8; V_WB = 10; V_KB = 12; V_VB = 13; V_T0 = 14; V_T1 = 15
V_XOFF = 200; V_WOFF = 207; V_KW0 = 211; V_KW1 = 253
V_RAB = 231; V_PF = 212
V_XA = 232; V_WA = 234
V_KA = 232; V_VA = 236; V_TMP = 244; V_STAMP = 255
OS_ = 0; QA = 112; KF = 224; FR = 112
COL = [0, 1, 0, 1, 0, 1, 2]
S_X = 8; S_K = 12; S_V = 16; S_WQ = 20; S_O = 24
S_WAVE = 28; S_B = 29; S_H = 30; S_R = 31; S_C = 32
S_OX = 33; S_OW = 34; S_MXA = 36; S_MXB = 3; S_WXT = 37; S_I = 38
S_T0 = 39; S_T1 = 40; S_T2 = 41; S_T3 = 42
S_KVG = 43; S_SL0 = 44; S_SL1 = 45; S_SL2 = 46
S_FB = 47; S_W4K = 48; S_W4KK = 49; S_SCALE = 50; S_OST = 51
P_X = 52; P_K = 54; P_V = 56; P_WQ = 58; P_WO = 60; P_OUT = 62; P_DBG = 64; P_WS = 66
S_WO = 68; S_OO = 72; S_OUT = 76; S_TW = 80; S_TO = 52; S_LB0 = 88; S_LB1 = 89; S_OUTOFF = 90; S_SIG = 91; S_POLL = 92; S_PFO = 93
S_STP = 96
XT = 28672; WT = 16384; STG = XT + WT
RING = 5; KOFF = 16384
ST0 = 86016; S_CA = 7; S_STW = 61; V_STW = 241; V_STR = 242; V_FLR = 243
SCALE = math.log2(math.e) / math.sqrt(128.0)

nstamp = [0]
def stamp():
    if not O.stamps: return
    k = nstamp[0]
    I(f"s_memtime {sr(S_STP)}"); I(f"s_memrealtime {sr(S_STP+2)}"); I("s_waitcnt lgkmcnt(0)")
    I(f"v_writelane_b32 v{V_STAMP}, s{S_STP}, {2*k}"); I(f"v_writelane_b32 v{V_STAMP}, s{S_STP+2}, {2*k+1}")
    nstamp[0] += 1
def store_stamps():
    if not O.stamps: return
    I(f"s_cmp_lg_u32 s{S_WAVE}, 0"); I("s_cbranch_scc1 L_done")
    I(f"s_lshl_b32 s{S_T0}, s2, 8"); I(f"s_add_u32 s{S_T0}, s{S_T0}, {1<<26}"); I(f"v_lshl_add_u32 v15, v0, 2, s{S_T0}")
    I(f"global_store_dword v15, v{V_STAMP}, {sr(P_WS)}")
def srd(d, ptr, nbytes, shift=None, sub=True):
    if shift is None:
        I(f"s_mov_b32 s{d}, s{ptr}"); I(f"s_mov_b32 s{d+1}, s{ptr+1}"); I(f"s_mov_b32 s{d+2}, {nbytes}")
    else:
        I(f"s_add_u32 s{d}, s{ptr}, s{shift}"); I(f"s_addc_u32 s{d+1}, s{ptr+1}, 0")
        I(f"s_sub_u32 s{d+2}, {nbytes}, s{shift}" if sub else f"s_mov_b32 s{d+2}, {nbytes}")
    I(f"s_mov_b32 s{d+3}, 0x20000")

def stg(i): return ((-i) % 3) * STG
def d_w(i): return [([f"s_add_u32 m0, {stg(i)}, s{S_WXT}"] if j == 0 else [], f"buffer_load_dwordx4 v{V_WOFF+j}, {sr(S_WQ,4)}, s{S_OW} offen offset:{j*1024} {pol(O.pol_wq)}lds ;@w_{i}") for j in range(4)]
def d_xa(i): return [([f"s_add_u32 m0, {stg(i)}, s{S_MXA}"] if j == 0 else [], f"buffer_load_dwordx4 v{V_XOFF+j}, {sr(S_X,4)}, s{S_OX} offen offset:{j*1024} {pol(O.pol_x)}lds ;@xa{i}") for j in range(4)]
def d_xb(i): return [([f"s_add_u32 m0, {stg(i)}, s{S_MXB}"] if j == 0 else [], f"buffer_load_dwordx4 v{V_XOFF+4+j}, {sr(S_X,4)}, s{S_OX} offen offset:{j*1024} {pol(O.pol_x)}lds ;@xb{i}", P1_UPD if j == 2 else []) for j in range(3)]
P1_UPD = [f"s_add_u32 s{S_OX}, s{S_OX}, 128", f"s_and_b32 s{S_OX}, s{S_OX}, 2047", f"s_lshl_b32 s{S_OW}, s{S_OX}, 12"]
def emit_dma(g, post=False):
    for x in g:
        for p in x[0]: I(p)
        if x[0]: I("s_nop 0")
        I(x[1])
        if post and len(x) > 2:
            for p in x[2]: I(p)
def kv_dma(which, slot, so=None):
    so = S_KVG if so is None else so
    s, off = (S_K, S_W4KK) if which == "K" else (S_V, S_W4K)
    return [([f"s_add_u32 m0, {slot}, s{off}"] if j == 0 else [],
             f"buffer_load_dwordx4 v{V_KVOFF+j}, {sr(s,4)}, s{so} offen offset:{j*1024} {pol(O.pol_kv)}lds") for j in range(4)]
KVG_UPD = f"s_add_u32 s{S_KVG}, s{S_KVG}, 16384\ns_and_b32 s{S_KVG}, s{S_KVG}, 0x3ffff"
S_KV0 = 94; S_KVE = 95; S_MASK = 35; S_DS = S_SL1
def er(reg): return ar(reg) if reg < 256 else vr(reg - 256)
EARLY = [("V", 0, 256 + 160), ("K", 1, 256 + 176), ("V", 1, 0), ("K", 2, 16), ("V", 2, 32), ("K", 3, 48), ("V", 3, 64)]
def early_list(): return EARLY + ([("K", 4, 256 + 96), ("V", 4, 256 + 112)] if O.e4 else [])
V_KW2 = 216
def early_loads():
    g = []
    for p, (w, st, reg) in enumerate(early_list()):
        for j in range(4):
            post = [KVG_UPD] if (w == "V" and j == 3) else []
            g.append(([], f"buffer_load_dwordx4 {er(reg+4*j)}, v{V_KVOFF+j}, {sr(S_K if w=='K' else S_V,4)}, s{S_KVG} offen offset:{j*1024} {O.pol_kv} ;@e{p}", post))
    return g
def early_writes():
    g = []
    for p, (w, st, reg) in enumerate(early_list()):
        addr = (4 - st) * 32768 + (KOFF if w == "K" else 0)
        base, b0 = (V_KW2, 131072) if addr >= 131072 else ((V_KW0, 65536) if addr >= 65536 else (V_KW1, 0))
        for j in range(4):
            g.append(([f"s_waitcnt vmcnt(@e{p})"] if j == 0 else [], f"ds_write_b128 v{base}, {er(reg+4*j)} offset:{addr-b0+j*1024} ;@ew"))
    return g
def p1_acc(rt): return OK_ + 16 * rt if rt < 5 else VF + 16 * (rt - 5)
FW = 112; FXA = 176; FXB = 208
def r_w(i):
    return [f"ds_read_b64_tr_b16 {ar(FW+32*(i&1)+16*s+4*t+2*e,2)}, v{V_WA+t//2} offset:{XT + s*8192 + e*1024 + (t%2)*8}" for s in range(2) for t in range(4) for e in range(2)]
def xf(rt, s): return (FXA + 8 * rt + 4 * s) if rt < 4 else (FXB + 8 * (rt - 4) + 4 * s)
def r_x(rts): return [f"ds_read_b128 {ar(xf(rt,s))}, v{V_XA+s} offset:{rt*2048}" for rt in rts for s in range(2)]
def p1_mfmas(i, rts):
    return [f"{MF} {vr(p1_acc(rt)+4*t)}, {ar(FW+32*(i&1)+16*s+4*t)}, {ar(xf(rt,s))}, " + ("0" if (i == 0 and s == 0) else vr(p1_acc(rt)+4*t)) for rt in rts for (s, t) in ([(s, t) for t in range(4) for s in range(2)] if O.accord else [(s, t) for s in range(2) for t in range(4)])]
def place(G, ops, gaps):
    assert len(gaps) >= len(ops), (len(ops), gaps)
    for d, g in zip(ops, gaps):
        for p in d[0]:
            if G.m[g - 1] and "buffer_" in G.m[g - 1][-1] and "lds" in G.m[g - 1][-1] and "m0" in p: G.p[g - 1].append(p)
            else: G.s[g - 1].append(p)
        G.m[g].append(d[1])
        if len(d) > 2:
            pp = [q for p in d[2] for q in p.split(chr(10))]
            nxt = [h for h in gaps[:len(ops)] if h > g]
            for k, p in enumerate(pp): G.s[min(g + 1 + k // 2, nxt[0] if nxt else 10**9)].append(p)
def layout(n, nmem, nrd):
    mg = sorted(set(1 + (k * (n - 3)) // max(nmem, 1) for k in range(nmem)))
    assert len(mg) == nmem
    rg = [g for g in range(n - 2) if g not in mg][:nrd]
    if len(rg) < nrd: rg = sorted(rg + mg[:nrd - len(rg)])
    return mg, rg
pendw = []
def p1_half(mf, mem, reads, addr, wait, valu=None, vstart=0):
    G = Gaps(mf); n = len(mf)
    mg, rg = layout(n, len(mem), len(reads))
    for k, r in zip(rg, reads): G.m[k].append(r)
    place(G, mem, mg)
    for after, x in addr:
        g0 = rg[after] + 1 if after >= 0 else 0
        c = [g for g in range(g0, n - 1) if g not in mg and len(G.v[g]) < (1 if G.m[g] else 2) and not (G.m[g] and G.s[g])]
        G.v[c[0]].append(x)
    if valu is not None:
        work, base = valu
        lastw = -9
        for g in range(n):
            if base and pendw and g - lastw >= 3 and g not in mg and not G.m[g]:
                G.m[g].append(pendw.pop(0)); lastw = g; continue
            room = 0 if g in mg else (1 if G.m[g] else 2)
            while work and work[0][0] <= g + base and (work[0][1] == "w" or len(G.v[g]) < room) and len(pendw) < 7:
                w = work.pop(0)
                if w[1] == "w": pendw.append(w[2])
                else: G.v[g].append(w[2])
    if wait is not None:
        G.s[n - 1].append(wait); G.s[n - 1].append("s_barrier")
    G.emit()

def kq(f): return (f % 4, f // 4) if O.accord else (f // 2, f % 2)
def k_read(f): return f"ds_read_b128 {ar(KF+4*f)}, v{V_KA+kq(f)[0]} offset:{kq(f)[1]*4096}"
def v_read(dq, e): return f"ds_read_b64_tr_b16 {vr(VF+4*dq+2*e,2)}, v{V_VA+dq}" + (" offset:4096" if e else "")
def k_addr(slot): return [f"v_add_u32 v{V_KA}, {slot}, v{V_KB}"] + [f"v_xor_b32 v{V_KA+q}, {q*64}, v{V_KA}" for q in range(1, 4)]
def v_addr(slot): return [f"v_add_u32 v{V_VA}, {slot}, v{V_VB}"] + [f"v_xor_b32 v{V_VA+d}, {d*32}, v{V_VA}" for d in range(1, 8)]
def oacc(rt, dq): return vr(OK_ + 16 * rt + 4 * dq) if dq < 4 else ar(OS_ + 16 * rt + 4 * (dq - 4))
def qk_mfmas(rt, S, usenm=True):
    m = []
    for f in range(8):
        q, kt = kq(f)
        d = S + 4 * kt
        c = (vr(NM + 4 * rt) if usenm else "0") if q == 0 else vr(d)
        m.append(f"{MF} {vr(d)}, {ar(KF+4*f)}, {ar(QA+16*rt+4*q)}, {c}")
    return m
def pv_mfmas(rt, first=False):
    P = PB + 4 * COL[rt]
    return [f"{MF} {oacc(rt,dq)}, {vr(VF+4*dq)}, {vr(P)}, " + ("0" if first else oacc(rt, dq)) for dq in range(8)]
def sm_ops(rt, scol=None):
    S = SB + 8 * (COL[rt] if scol is None else scol); P = PB + 4 * COL[rt]
    e = [f"v_exp_f32 v{S+k}, v{S+k}" for k in range(8)]
    a = [f"v_add_f32 v{LS+rt}, v{LS+rt}, v{S+k}" for k in range(8)]
    c = [f"v_cvt_pk_bf16_f32 v{P+k}, v{S+2*k}, v{S+2*k+1}" for k in range(4)]
    return e, a, c
def put_softmax(G, base, rt):
    e, a, c = sm_ops(rt)
    for k in range(8):
        G.v[base + 2 * k].append(e[k])
        if k % 2 == 1: G.v[base + 2 * k + 1].append(c[k // 2])
        G.v[base + 2 * k + 1].append(a[k])
def sm0_ops(rt):
    scol = 2 if rt == 0 else COL[rt]
    S = SB + 8 * scol; b = NM + 4 * rt; t = V_TMP
    e, a, c = sm_ops(rt, scol)
    a[0] = f"v_mov_b32 v{LS+rt}, v{S}"
    g = [[f"v_max3_f32 v{t}, v{S}, v{S+1}, v{S+2}", f"v_max3_f32 v{t+1}, v{S+3}, v{S+4}, v{S+5}", f"v_max3_f32 v{t}, v{t}, v{S+6}, v{S+7}", f"v_max_f32 v{t}, v{t}, v{t+1}", f"v_mov_b32 v{t+1}, v{t}", "s_nop 0"],
         [f"v_permlane32_swap_b32 v{t}, v{t+1}", "s_nop 0", f"v_max_f32 v{t}, v{t}, v{t+1}", f"v_mov_b32 v{t+1}, v{t}", "s_nop 0"],
         [f"v_permlane16_swap_b32 v{t}, v{t+1}", "s_nop 0", f"v_max_f32 v{t}, v{t}, v{t+1}", f"v_sub_f32 v{S}, v{S}, v{t}", f"v_sub_f32 v{S+1}, v{S+1}, v{t}"]]
    sub = [f"v_sub_f32 v{S+k}, v{S+k}, v{t}" for k in range(8)]
    nm = [f"v_sub_f32 v{b+k}, 0, v{t}" for k in range(4)]
    g += [[e[0], sub[2]], [e[1], sub[3], a[0]], [e[2], sub[4], a[1]], [e[3], sub[5], c[0]], [e[4], sub[6], a[2]], [e[5], sub[7], a[3]],
          [e[6], c[1], a[4]], [e[7], nm[0], a[5]], [c[2], a[6], nm[1]], [c[3], a[7]], [nm[2], nm[3]]]
    return g

def next_dma_state():
    return [f"s_add_u32 s{S_I}, s{S_I}, 1", f"s_bitcmp1_b32 s{S_MASK}, s{S_I}", f"s_cselect_b32 s{S_SL0}, s{S_DS}, 0x30000", f"s_cselect_b32 s{S_KVE}, s{S_KVG}, 0x40000000",
            f"s_cselect_b32 s{S_T3}, 32768, 0", f"s_sub_u32 s{S_DS}, s{S_DS}, s{S_T3}", f"s_cselect_b32 s{S_DS}, {(RING-1)*32768}, s{S_DS}",
            f"s_lshr_b32 s{S_T3}, s{S_T3}, 1", f"s_add_u32 s{S_KVG}, s{S_KVG}, s{S_T3}", f"s_and_b32 s{S_KVG}, s{S_KVG}, 0x3ffff"]
V_WOF = 8; V_RA0 = 232; V_RA1 = 236; V_L2 = 240
pf_cnt = [0, 0]
def put_pf(G, t):
    if t == 12 + O.nskip:
        if O.pf_row:
            G.v[1].append(f"v_and_b32 v{V_TMP+8}, 7, v0"); G.v[3].append(f"v_and_b32 v{V_TMP+7}, 8, v0"); G.v[5].append(f"v_lshl_add_u32 v{V_TMP+8}, v{V_TMP+7}, 1, v{V_TMP+8}"); G.v[7].append(f"v_lshlrev_b32 v{V_TMP+8}, 7, v{V_TMP+8}")
        else:
            G.v[1].append(f"v_and_b32 v{V_TMP+8}, 15, v0"); G.v[5].append(f"v_lshlrev_b32 v{V_TMP+8}, 11, v{V_TMP+8}")
        pf_cnt[0] = 0; pf_cnt[1] = 4 * O.wo_first
    if O.cpf and t == O.cpf_at:
        c2 = code_pf("L_last+2048", 6, V_TMP + 5)
        G.chain(c2[0], [6, 8]); G.v[10].append(c2[1]); G.m[11].append(c2[2].replace(f"v{V_TMP+6},", f"v{V_QP},")); pf_cnt[0] += 1
    gl = {1: [13], 2: [13, 57], 3: [13, 47, 81], 4: [13, 41, 63, 87], 5: [13, 41, 55, 71, 87], 6: [13, 23, 41, 55, 71, 87]}[O.pf_q] if O.pf_q else []
    for g in gl:
        if pf_cnt[1] >= O.pf_max: break
        k = pf_cnt[1]
        G.s[g - 1].append(f"s_add_u32 s{S_T0}, s{S_PFO}, {(k // 4) * 8 * 65536 + (k % 4) * (4096 if O.pf_row else 32768)}")
        G.m[g].append(f"buffer_load_dword v{V_QP}, v{V_TMP+8}, {sr(S_WO,4)}, s{S_T0} offen")
        pf_cnt[0] += 1; pf_cnt[1] += 1
def att_iter(kind, t=None):
    mf = []; base = []
    for n in range(7):
        base.append(len(mf))
        mf += qk_mfmas(n, SB + 8 * (2 if (kind == "first" and n == 0) else COL[n]), usenm=(kind != "first"))
        if not (kind == "first" and n < 2): mf += pv_mfmas((n - 2) % 7, first=(kind == "first"))
    G = Gaps(mf)
    if kind == "first":
        for k in range(16): G.m[k].append(v_read(k // 2, k % 2) + " ;@vf")
        for n in range(1, 7):
            g = sm0_ops(n - 1)
            if n == 1: pos = [12, 13, 14, 15, 15, 16, 16, 17, 17, 18, 18, 19, 19, 19]
            elif n == 2: pos = [base[2] + x for x in [4, 5, 6, 7, 8, 9, 10, 11, 12, 13, 14, 15, 15, 15]]
            else: pos = [base[n] + x for x in range(14)]
            for grp, p in zip(g, pos):
                for x in grp: G.v[p].append(x)
        G.s[base[2] + 6].append("s_waitcnt lgkmcnt(@vf)")
        off = lambda g: g - 16
        G.v[2].append(f"v_lshlrev_b32 v{V_TMP+8}, 11, v0")
        if O.e4:
            place(G, early_writes()[20:], [off(g) for g in [36, 39, 42, 45, 47, 50, 53, 56, 59, 62, 63, 66, 69, 72, 75, 78]])
            G.s[off(81)].append("s_waitcnt lgkmcnt(@ew)")
            for k in range(32): G.v[off([93, 94, 95, 109, 110, 111, 79, 92][k % 8] if k % 8 != 6 else 91)].append(f"v_mov_b32 v{OK_+80+k}, 0")
        else:
            place(G, early_writes()[20:], [off(g) for g in [50, 54, 58, 62, 63, 66, 70, 74]])
            d4 = kv_dma("K", 0) + kv_dma("V", 0); d4[7] = d4[7] + ([KVG_UPD],)
            place(G, d4, [off(g) for g in [36, 42, 47, 52, 60, 68, 72, 78]])
        for j in range(O.wo_first):
            g = off([61, 79][j])
            G.s[g - 1].append(f"s_add_u32 s{S_T0}, s{S_PFO}, {j*8*65536}")
            G.m[g].append(f"buffer_load_dword v{V_QP}, v{V_TMP+8}, {sr(S_WO,4)}, s{S_T0} offen")
        for j in range(0 if O.pref_last else O.wo_pref):
            G.m[off(36 + 3 * j)].append(f"buffer_load_dword v{V_QP}, v{V_TMP+8}, {sr(S_WO,4)}, s{S_PFO} offen")
            G.s[off(37 + 3 * j)].append(f"s_add_u32 s{S_PFO}, s{S_PFO}, {8*65536}")
    else:
        for n in range(7): put_softmax(G, 16 * n, (n - 1) % 7)
        off = lambda g: g
        G.s[0].append("s_waitcnt lgkmcnt(4)"); G.s[2].append("s_waitcnt lgkmcnt(2)"); G.s[4].append("s_waitcnt lgkmcnt(0)")
        for k in range(16): G.m[24 + k].append(v_read(k // 2, k % 2))
        G.s[38].append("s_waitcnt lgkmcnt(10)")
        G.s[40].append("s_waitcnt lgkmcnt(8)"); G.s[42].append("s_waitcnt lgkmcnt(4)"); G.s[44].append("s_waitcnt lgkmcnt(0)")
        va = v_addr(f"s{S_SL1}")
        for x, g in zip(va[4:], [5, 9, 17, 21]): G.v[g].append(x)
    if kind != "last":
        va = v_addr(f"s{S_SL2}"); ka = k_addr(f"s{S_SL2}")
        if kind == "first":
            for x, g in zip(va[:4] + ka, [off(z) for z in [46, 47, 62, 63, 78, 79, 93, 94]]): G.v[g].append(x)
        elif kind == "pen":
            put_pf(G, t)
            if t == 14:
                place(G, wo_dma(0) + wo_dma(1), [1, 19, 41, 49, 57, 65, 73, 91]); pf_cnt[0] += 8
            for x, g in zip(va[:4], [45, 53, 61, 69]): G.v[g].append(x)
            for x, g in zip(ka, [77, 85, 89, 93]): G.v[g].append(x)
            G.s[94].append(f"s_waitcnt vmcnt({8 * (14 - t) + pf_cnt[0]})")
        else:
            place(G, kv_dma("K", f"s{S_SL0}", S_KVE) + kv_dma("V", f"s{S_SL0}", S_KVE), [1, 13, 41, 49, 57, 65, 73, 81])
            for x, g in zip(va[:4], [45, 53, 61, 69]): G.v[g].append(x)
            for x, g in zip(ka, [77, 85, 89, 93]): G.v[g].append(x)
            G.s[94].append(f"s_waitcnt vmcnt({24 if t == 0 else 24 - 8 * O.nskip})")
        G.s[off(95)].append("s_barrier")
        for f in range(8): G.m[off(97 + 2 * f)].append(k_read(f))
        if kind != "pen": G.chain(next_dma_state(), [off(g) for g in [82, 84, 86, 88, 90, 92, 96, 98, 100, 102]])
        G.chain([f"s_sub_u32 s{S_SL2}, s{S_SL2}, 32768", f"s_cselect_b32 s{S_SL2}, {(RING-1)*32768}, s{S_SL2}", f"s_cmp_lt_u32 s{S_I}, {O.ta + 1 if (kind == chr(108)+chr(111)+chr(111)+chr(112) and t == 0) else 12 + O.nskip}", "s_waitcnt lgkmcnt(5)"],
                [off(g) for g in [104, 106, 108, 110]])
    else:
        for rt in range(4):
            for k in range(4): G.m[16 * (rt + 3) + 1 + 4 * k].append(f"ds_write_b128 v{V_T0}, {ar(OS_+16*rt+4*k)} offset:{(4*rt+k)*1024}")
        put_pf(G, 15)
        G.s[46].append("s_barrier")
        ex = [f"v_add_u32 v{V_RA0}, s{S_LB0}, v{V_RAB}"] + [f"v_xor_b32 v{V_RA0+q}, {q*32}, v{V_RA0}" for q in range(1, 4)]
        for x, g in zip(ex, [1, 3, 7, 13]): G.v[g].append(x)
        ex = ([f"v_add_u32 v{V_RA1}, s{S_LB1}, v{V_RAB}", f"v_add_u32 v{V_L2}, 4096, v{V_LANE16}"] + [f"v_xor_b32 v{V_RA1+q}, {q*32}, v{V_RA1}" for q in range(1, 4)]
              + [f"v_and_b32 v{V_STW}, 15, v0", f"v_lshl_add_u32 v{V_STW}, v{V_STW}, 3, s{S_STW}", f"v_xor_b32 v{V_STR}, 1024, v{V_STW}",
                 f"v_and_b32 v{V_FLR}, 3, v0", f"v_lshlrev_b32 v{V_FLR}, 10, v{V_FLR}", f"v_add_u32 v{V_FLR}, {ST0+896}, v{V_FLR}"])
        for x, g in zip(ex, [41, 45, 51, 55, 59, 63, 67, 71, 75, 79, 83]): G.v[g].append(x)
    return G

def code_pf(label, sh, vt):
    return ([f"s_lshl_b32 s6, s{S_WAVE}, {6+sh}", f"s_add_u32 s6, s6, {label}-L_pc"], f"v_lshl_add_u32 v{vt}, v0, {sh}, s6", f"global_load_dword v{V_TMP+6}, v{vt}, s[4:5]")
def multi_reduce(regs, temps, op):
    for sw in ("v_permlane32_swap_b32", "v_permlane16_swap_b32"):
        for r, t in zip(regs, temps): I(f"v_mov_b32 v{t}, v{r}")
        I("s_nop 1")
        for r, t in zip(regs, temps): I(f"{sw} v{r}, v{t}")
        I("s_nop 1")
        for r, t in zip(regs, temps): I(f"{op} v{r}, v{r}, v{t}")

RA_N = 13; RL_N = 9; NB = 5; ACC = 16
slot_of = {0: 0, 1: 1}
def areg(m, k, n):
    e = m % RA_N
    na = (256 - 28 * NB) // 16
    assert RA_N <= na + 6
    return ar(28 * NB + 16 * e + k, n) if e < na else vr(128 + 16 * (e - na) + k, n)
def bump(s, d): return [f"s_add_u32 s{s}, s{s}, {d}", f"s_addc_u32 s{s+1}, s{s+1}, 0", f"s_sub_u32 s{s+2}, s{s+2}, {d}"]
def wo_dma(m):
    s = slot_of[m]
    m0 = f"s_add_u32 m0, s{S_LB0}, {s*4096}" if s < 2 else f"s_add_u32 m0, s{S_LB1}, {(s-2)*4096}"
    pre = (bump(S_WO, 8 * 65536) if (m % 8 == 0 and m) else []) + [m0]
    return [(pre if j == 0 else [], f"buffer_load_dwordx4 v{V_WOF+j}, {sr(S_WO,4)}, s{S_TW+m%8} offen offset:{j*1024} {pol(O.pol_wo)}lds ;@w{m}") for j in range(4)]
def a_reads(m):
    s = slot_of[m]
    ra, o = (V_RA0, s * 4096) if s < 2 else (V_RA1, (s - 2) * 4096)
    return [f"ds_read_b64_tr_b16 {areg(m,4*cq+2*e,2)}, v{ra+cq} offset:{o+e*2048} ;@a{m}" for cq in range(4) for e in range(2)]
def b_loads(n):
    pre = bump(S_OO, 8 * 7168) if (n % 8 == 0 and n) else []
    return [(pre if rt == 0 else [], f"buffer_load_dwordx4 {ar(28*(n%NB)+4*rt)}, v{V_LANE16 if rt<4 else V_L2}, {sr(S_OO,4)}, s{S_TO+n%8} offen offset:{(rt%4)*1024} {O.pol_old} ;@b{n}") for rt in range(7)]
def p3_mfmas(n):
    return [f"{MF} {vr(ACC+16*rt+4*cq)}, {areg(n,4*cq,4)}, {ar(28*(n%NB)+4*rt)}, " + ("0" if n == 0 else vr(ACC+16*rt+4*cq)) for rt in range(7) for cq in range(4)]

def gen():
    K = NAME + "_kernel"
    A(f".globl {K}\n.p2align 8\n.type {K},@function\n{K}:")
    I("s_cmp_ge_u32 s2, 256"); I("s_cbranch_scc1 L_done")
    I("s_load_dwordx16 s[52:67], s[0:1], 0")
    I("s_getpc_b64 s[4:5]")
    A("L_pc:")
    if O.cp0 == 0:
        I("v_lshlrev_b32 v14, 7, v0"); I("global_load_dword v15, v14, s[4:5]"); I("v_lshrrev_b32 v14, 1, v14"); I("v_add_u32 v14, 0x8000, v14"); I("global_load_dword v15, v14, s[4:5]")
    elif O.cp0 == 1:
        I("s_lshl_b32 s6, s2, 9"); I("s_and_b32 s6, s6, 0x3000"); I("v_lshl_add_u32 v14, v0, 4, s6"); I("global_load_dword v15, v14, s[4:5] offset:512")
    I("v_lshrrev_b32 v14, 6, v0")
    I("v_and_b32 v0, 63, v0")
    I(f"v_readfirstlane_b32 s{S_WAVE}, v14")
    I(f"s_and_b32 s{S_T0}, s2, 7"); I(f"s_lshr_b32 s{S_T1}, s2, 3")
    I(f"s_and_b32 s{S_B}, s{S_T0}, 1"); I(f"s_lshl_b32 s{S_B}, s{S_B}, 2"); I(f"s_and_b32 s{S_T2}, s{S_T1}, 3"); I(f"s_add_u32 s{S_B}, s{S_B}, s{S_T2}")
    I(f"s_lshr_b32 s{S_H}, s{S_T0}, 1"); I(f"s_lshl_b32 s{S_H}, s{S_H}, 3"); I(f"s_lshr_b32 s{S_T3}, s{S_T1}, 2"); I(f"s_add_u32 s{S_H}, s{S_H}, s{S_T3}")
    if O.lin_map: I(f"s_lshr_b32 s{S_B}, s2, 5"); I(f"s_and_b32 s{S_H}, s2, 31")
    I(f"s_mul_i32 s{S_T3}, s{S_T3}, {O.rotmul_h*128}"); I(f"s_mul_i32 s{S_T2}, s{S_T2}, {O.rotmul_b*128}"); I(f"s_add_u32 s{S_OX}, s{S_T2}, s{S_T3}")
    if O.rotmul_x: I(f"s_mul_i32 s{S_T0}, s{S_T0}, {O.rotmul_x*128}"); I(f"s_add_u32 s{S_OX}, s{S_OX}, s{S_T0}")
    I(f"s_and_b32 s{S_OX}, s{S_OX}, 2047"); I(f"s_lshl_b32 s{S_OW}, s{S_OX}, 12")
    I(f"s_lshr_b32 s{S_R}, s{S_WAVE}, 1"); I(f"s_and_b32 s{S_C}, s{S_WAVE}, 1")
    I(f"s_lshl_b32 s{S_W4K}, s{S_WAVE}, 12"); I(f"s_add_u32 s{S_W4KK}, s{S_W4K}, {KOFF}"); I(f"s_add_u32 s{S_WXT}, s{S_W4K}, {XT}"); I(f"s_mul_i32 s{S_T0}, s{S_R}, {14*1024}"); I(f"s_lshl_b32 s{S_MXA}, s{S_C}, 12"); I(f"s_add_u32 s{S_MXA}, s{S_MXA}, s{S_T0}")
    I(f"s_mul_i32 s{S_MXB}, s{S_C}, 3072"); I(f"s_add_u32 s{S_MXB}, s{S_MXB}, s{S_T0}"); I(f"s_add_u32 s{S_MXB}, s{S_MXB}, 8192")
    T = V_TMP
    I(f"v_and_b32 v{T}, 15, v0"); I(f"v_lshrrev_b32 v{T+1}, 4, v0")
    I(f"v_and_b32 v{T+4}, 7, v0"); I(f"v_xor_b32 v{T+4}, v{T+4}, v{T+1}")
    I(f"v_lshrrev_b32 v{T+5}, 3, v0"); I(f"v_lshlrev_b32 v{T+7}, 11, v{T+5}"); I(f"v_lshl_add_u32 v{T+4}, v{T+4}, 4, v{T+7}")
    I(f"s_lshl_b32 s{S_T0}, s{S_C}, 16"); I(f"v_add_u32 v{V_XOFF}, s{S_T0}, v{T+4}"); I(f"v_xor_b32 v{T+5}, 64, v{V_XOFF}")
    for j in range(1, 4): I(f"v_add_u32 v{V_XOFF+j}, {j*16384-j*1024}, v{V_XOFF if j%2==0 else T+5}")
    I(f"s_lshl_b32 s{S_T0}, s{S_C}, 6"); I(f"v_xor_b32 v{T+4}, s{S_T0}, v{T+4}"); I(f"s_mul_i32 s{S_T0}, s{S_C}, {24*2048}"); I(f"s_add_u32 s{S_T0}, s{S_T0}, {64*2048}")
    I(f"v_add_u32 v{V_XOFF+4}, s{S_T0}, v{T+4}"); I(f"v_xor_b32 v{T+5}, 64, v{V_XOFF+4}")
    for j in range(1, 3): I(f"v_add_u32 v{V_XOFF+4+j}, {j*16384-j*1024}, v{V_XOFF+4 if j%2==0 else T+5}")
    I(f"v_lshlrev_b32 v{T+4}, 2, v{T+1}"); I(f"v_xor_b32 v{T+4}, v{T+4}, v{T}"); I(f"v_lshlrev_b32 v{T+5}, 13, v{T+1}"); I(f"v_lshl_add_u32 v{V_WOFF}, v{T+4}, 4, v{T+5}")
    for j in range(1, 4): I(f"v_add_u32 v{V_WOFF+j}, {j*32768-j*1024}, v{V_WOFF}")
    I(f"s_mul_i32 s{S_T0}, s{S_B}, 458752"); I(f"s_mul_i32 s{S_T1}, s{S_R}, {112*2048}"); I(f"s_add_u32 s{S_T0}, s{S_T0}, s{S_T1}")
    I(f"s_lshl_b32 s{S_T1}, s{S_H}, 8"); I(f"s_lshl_b32 s{S_T2}, s{S_WAVE}, 17"); I(f"s_add_u32 s{S_T1}, s{S_T1}, s{S_T2}")
    I("s_waitcnt lgkmcnt(0)")
    stamp()
    srd(S_X, P_X, 3670016, S_T0); srd(S_WQ, P_WQ, 8388608, S_T1)
    Q = []
    for k in range(16):
        Q += [(-1 if k <= 2 else (0 if k == 3 else 2 * (k - 4) + 1), x) for x in d_w(k)]
        Q += [(-1 if k <= 2 else 2 * (k - 3), x) for x in d_xa(k)]
        Q += [(-1 if k <= 2 else 2 * (k - 3) + 1, x) for x in d_xb(k)]
    def take(hh, cap, cap2):
        out = []
        pend = 0
        while pend < len(Q) and Q[pend][0] <= hh: pend += 1
        n = min(pend, cap if (hh < 0 or pend <= cap + (2 if hh % 2 else 0)) else cap2)
        for _ in range(n): out.append(Q.pop(0)[1])
        return out
    emit_dma(take(-1, min(O.n_up, O.n_up0), 0), post=True)
    I(f"s_lshl_b32 s{S_T0}, s{S_B}, 5"); I(f"s_add_u32 s{S_T0}, s{S_T0}, s{S_H}"); I(f"s_lshl_b32 s{S_T0}, s{S_T0}, 18")
    srd(S_K, P_K, 262144, S_T0, sub=False); srd(S_V, P_V, 262144, S_T0, sub=False)
    if O.tlbw:
        I("v_mov_b32 v14, 0")
        I(f"buffer_load_dword v15, v14, {sr(S_K,4)}, 0 offen {O.pol_kv}"); I(f"buffer_load_dword v15, v14, {sr(S_V,4)}, 0 offen {O.pol_kv}")
    if O.tlbw > 1:
        I("v_and_b32 v14, 3, v0"); I("v_lshlrev_b32 v14, 21, v14"); I(f"global_load_dword v15, v14, {sr(P_WQ)}")
    if O.tlbw > 2:
        I(f"global_load_dword v15, v14, {sr(P_WO)}")
        I("v_and_b32 v14, 7, v0"); I("v_lshlrev_b32 v14, 21, v14"); I("v_add_u32 v14, 0x1000000, v14"); I("v_subrev_u32 v14, 0x1000000, v14")
    srd(S_O, P_WS, 14680064); srd(S_OUT, P_OUT, 3670016)
    I(f"s_lshr_b32 s{S_T0}, s2, 3"); I(f"s_mul_i32 s{S_T0}, s{S_T0}, {O.kv_rot_j}"); I(f"s_and_b32 s{S_T1}, s2, 7"); I(f"s_mul_i32 s{S_T1}, s{S_T1}, {O.kv_rot_x}")
    I(f"s_add_u32 s{S_T0}, s{S_T0}, s{S_T1}"); I(f"s_and_b32 s{S_T0}, s{S_T0}, 15"); I(f"s_lshl_b32 s{S_T0}, s{S_T0}, 14"); I(f"s_add_u32 s{S_KV0}, s{S_T0}, s{S_W4K}")
    n_it = 11 + O.nskip
    I(f"s_mov_b32 s{S_MASK}, {((1 << n_it) - 1) << 1:#x}")
    if O.nskip:
        span = n_it - O.ta
        I(f"s_mul_i32 s{S_T0}, s2, 37"); I(f"s_and_b32 s{S_T0}, s{S_T0}, 255"); I(f"s_mul_i32 s{S_T0}, s{S_T0}, {span}"); I(f"s_lshr_b32 s{S_T0}, s{S_T0}, 8")
        for k in range(O.nskip):
            I(f"s_add_u32 s{S_T1}, s{S_T0}, {(k * span) // O.nskip}"); I(f"s_cmp_ge_u32 s{S_T1}, {span}"); I(f"s_cselect_b32 s{S_T2}, {span}, 0"); I(f"s_sub_u32 s{S_T1}, s{S_T1}, s{S_T2}")
            I(f"s_add_u32 s{S_T1}, s{S_T1}, {O.ta + 1}"); I(f"s_bitset0_b32 s{S_MASK}, s{S_T1}")
    I(f"s_mov_b32 s{S_FB}, 0"); I(f"s_mov_b32 s{S_KVG}, s{S_KV0}"); I(f"s_mov_b32 s{S_SCALE}, {f2u(SCALE):#x}")
    I(f"s_lshl_b32 s{S_T0}, s{S_B}, 1"); I(f"s_add_u32 s{S_T0}, s{S_T0}, s{S_R}"); I(f"s_lshl_b32 s{S_T0}, s{S_T0}, 5"); I(f"s_add_u32 s{S_T0}, s{S_T0}, s{S_H}")
    I(f"s_lshl_b32 s{S_T0}, s{S_T0}, 1"); I(f"s_add_u32 s{S_T0}, s{S_T0}, s{S_C}"); I(f"s_mul_i32 s{S_OST}, s{S_T0}, 14336")
    I(f"s_lshl_b32 s{S_SIG}, s{S_B}, 5"); I(f"s_and_b32 s{S_T0}, s{S_H}, 24"); I(f"s_add_u32 s{S_SIG}, s{S_SIG}, s{S_T0}")
    RH = S_SL0; CG = S_SL1; U = S_SL2
    I(f"s_and_b32 s{S_T0}, s2, 7"); I(f"s_lshr_b32 s{S_T1}, s2, 3")
    I(f"s_lshr_b32 s{RH}, s{S_T0}, 1"); I(f"s_lshl_b32 s{RH}, s{RH}, 2"); I(f"s_and_b32 s{S_T2}, s{S_T1}, 3"); I(f"s_add_u32 s{RH}, s{RH}, s{S_T2}")
    I(f"s_and_b32 s{CG}, s{S_T0}, 1"); I(f"s_lshl_b32 s{CG}, s{CG}, 3"); I(f"s_lshr_b32 s{S_T3}, s{S_T1}, 2"); I(f"s_add_u32 s{CG}, s{CG}, s{S_T3}")
    if O.pf_row: I(f"s_lshl_b32 s{S_PFO}, s{S_T1}, 14"); I(f"s_lshl_b32 s6, s{S_T3}, 7"); I(f"s_sub_u32 s{S_PFO}, s{S_PFO}, s6")
    else: I(f"s_lshl_b32 s{S_PFO}, s{S_T2}, 17")
    I(f"s_mul_i32 s{S_T2}, s{S_T2}, {O.k2_rot_r}"); I(f"s_mul_i32 s{S_T3}, s{S_T3}, {O.k2_rot_c}"); I(f"s_add_u32 s{U}, s{S_T2}, s{S_T3}")
    I(f"s_lshl_b32 s{S_T0}, s{RH}, 2"); I(f"s_add_u32 s{S_T0}, s{S_T0}, s{S_WAVE}"); I(f"s_mul_i32 s{S_T0}, s{S_T0}, {32*7168}")
    srd(S_OO, P_WS, 32 * 7168, S_T0, sub=False)
    I(f"s_lshl_b32 s{S_T1}, s{S_WAVE}, 21"); I(f"s_lshl_b32 s{S_T2}, s{CG}, 7"); I(f"s_add_u32 s{S_T1}, s{S_T1}, s{S_T2}")
    srd(S_WO, P_WO, 8388608, S_T1)
    I(f"s_mul_i32 s{S_OUTOFF}, s{RH}, {112*2048}"); I(f"s_add_u32 s{S_OUTOFF}, s{S_OUTOFF}, s{S_T2}"); I(f"s_lshl_b32 s{S_T1}, s{S_WAVE}, 5"); I(f"s_add_u32 s{S_OUTOFF}, s{S_OUTOFF}, s{S_T1}")
    I(f"s_lshr_b32 s{S_POLL}, s{RH}, 1"); I(f"s_lshl_b32 s{S_POLL}, s{S_POLL}, 5"); I(f"s_lshl_b32 s{S_T1}, s{S_WAVE}, 3"); I(f"s_add_u32 s{S_POLL}, s{S_POLL}, s{S_T1}")
    for u in range(8):
        I(f"s_add_u32 s{S_T0}, s{U}, {u}"); I(f"s_and_b32 s{S_T0}, s{S_T0}, 7"); I(f"s_lshl_b32 s{S_TW+u}, s{S_T0}, 16"); I(f"s_mul_i32 s{S_TO+u}, s{S_T0}, 7168")
    I(f"s_lshl_b32 s{S_LB0}, s{S_WAVE}, 13"); I(f"s_add_u32 s{S_LB0}, s{S_LB0}, 98304"); I(f"s_xor_b32 s{S_T3}, s{S_WAVE}, 1")
    I(f"s_mul_i32 s{S_LB1}, s{S_T3}, 28672"); I(f"s_cmp_eq_u32 s{S_T3}, 3"); I(f"s_cselect_b32 s{S_LB1}, 131072, s{S_LB1}")
    I(f"s_mul_i32 s{S_CA}, s{S_WAVE}, 28672"); I(f"s_cmp_eq_u32 s{S_WAVE}, 3"); I(f"s_cselect_b32 s{S_CA}, 131072, s{S_CA}")
    I(f"s_lshl_b32 s{S_STW}, s{S_WAVE}, 10"); I(f"s_add_u32 s{S_STW}, s{S_STW}, {ST0}")
    I(f"v_lshlrev_b32 v{T+4}, 1, v{T+1}"); I(f"v_and_b32 v{T+6}, 7, v0"); I(f"v_xor_b32 v{T+6}, v{T+4}, v{T+6}"); I(f"v_lshl_add_u32 v{V_WOB}, v{T+6}, 4, v{T+7}")
    I(f"v_xor_b32 v{T+4}, v{T+4}, v{T}"); I(f"v_lshlrev_b32 v{T+5}, 8, v{T+1}")
    for j in range(4):
        I(f"v_xor_b32 v{T+6}, {8*(j&1) + (j>>1)}, v{T+4}"); I(f"v_lshl_add_u32 v{V_KVOFF+j}, v{T+6}, 4, v{T+5}")
    if O.kv_noswz:
        for j in range(4): I(f"v_lshlrev_b32 v{V_KVOFF+j}, 4, v0")
    I(f"v_lshlrev_b32 v{V_LANE16}, 4, v0"); I(f"v_bfe_u32 v{T+2}, v0, 2, 2"); I(f"v_and_b32 v{T+3}, 3, v0")
    I(f"v_lshrrev_b32 v{T+4}, 1, v{T}"); I(f"v_xor_b32 v{T+4}, v{T+4}, v{T+1}"); I(f"s_mul_i32 s{S_T0}, s{S_R}, {112*128}")
    I(f"v_lshlrev_b32 v{T+5}, 7, v{T}"); I(f"v_add_u32 v{T+5}, s{S_T0}, v{T+5}"); I(f"v_lshl_add_u32 v{V_XB}, v{T+4}, 4, v{T+5}"); I(f"v_xor_b32 v{V_XB+1}, 64, v{V_XB}")
    I(f"v_lshrrev_b32 v{T+4}, 1, v{T+3}"); I(f"v_and_b32 v{T+5}, 1, v{T+3}"); I(f"v_lshl_add_u32 v{T+4}, v{T+5}, 1, v{T+4}")
    I(f"s_lshl_b32 s{S_T0}, s{S_C}, 1"); I(f"v_xor_b32 v{T+5}, s{S_T0}, v{T+2}"); I(f"v_lshl_add_u32 v{T+4}, v{T+5}, 2, v{T+4}")
    I(f"v_lshl_add_u32 v{T+5}, v{T+1}, 3, v{T+2}"); I(f"v_lshlrev_b32 v{T+5}, 8, v{T+5}"); I(f"v_lshl_add_u32 v{V_WB}, v{T+4}, 4, v{T+5}"); I(f"v_xor_b32 v{V_WB+1}, 64, v{V_WB}")
    I(f"v_lshrrev_b32 v{T+4}, 1, v{T+1}"); I(f"v_and_b32 v{T+5}, 1, v{T+1}"); I(f"v_lshl_add_u32 v{T+4}, v{T+5}, 1, v{T+4}")
    I(f"v_and_b32 v{T+5}, 7, v{T}"); I(f"v_lshrrev_b32 v{T+6}, 3, v{T}"); I(f"v_lshl_add_u32 v{T+5}, v{T+5}, 1, v{T+6}")
    I(f"v_xor_b32 v{T+4}, v{T+4}, v{T+5}"); I(f"s_lshl_b32 s{S_T0}, s{S_C}, 3"); I(f"v_xor_b32 v{T+4}, s{S_T0}, v{T+4}")
    I(f"s_lshl_b32 s{S_T1}, s{S_C}, 13"); I(f"s_add_u32 s{S_T2}, s{S_T1}, {KOFF}")
    I(f"v_lshlrev_b32 v{T+5}, 8, v{T}"); I(f"v_add_u32 v{T+5}, s{S_T2}, v{T+5}"); I(f"v_lshl_add_u32 v{V_KB}, v{T+4}, 4, v{T+5}")
    I(f"v_lshl_add_u32 v{T+6}, v{T+1}, 2, v{T+2}")
    I(f"v_bfe_u32 v{T+4}, v{T+6}, 1, 2"); I(f"v_xor_b32 v{T+4}, s{S_WAVE}, v{T+4}"); I(f"v_lshlrev_b32 v{T+5}, 7, v{T+6}"); I(f"v_lshl_add_u32 v{T+5}, v{T+4}, 5, v{T+5}"); I(f"v_lshl_add_u32 v{V_RAB}, v{T+3}, 3, v{T+5}")
    I(f"v_and_b32 v{T+4}, 7, v{T+6}"); I(f"v_lshrrev_b32 v{T+5}, 3, v{T+6}"); I(f"v_lshl_add_u32 v{T+4}, v{T+4}, 1, v{T+5}")
    I(f"v_bfe_u32 v{T+5}, v0, 1, 1"); I(f"v_xor_b32 v{T+4}, v{T+4}, v{T+5}"); I(f"v_xor_b32 v{T+4}, s{S_T0}, v{T+4}")
    I(f"v_lshlrev_b32 v{T+6}, 8, v{T+6}"); I(f"v_add_u32 v{T+6}, s{S_T1}, v{T+6}"); I(f"v_lshl_add_u32 v{T+6}, v{T+4}, 4, v{T+6}")
    I(f"v_and_b32 v{T+5}, 1, v0"); I(f"v_lshl_add_u32 v{V_VB}, v{T+5}, 3, v{T+6}")
    for k in range(2):
        I(f"v_mov_b32 v{V_XA+k}, v{V_XB+k}"); I(f"v_mov_b32 v{V_WA+k}, v{V_WB+k}")
    if not O.e4:
        for k in range(32): I(f"v_mov_b32 v{OK_+80+k}, 0")
    for k in range(32): I(f"v_accvgpr_write_b32 a{OS_+80+k}, 0")
    for x in v_addr((RING - 1) * 32768): I(x)
    I(f"s_mul_i32 s{S_T2}, s{S_WAVE}, 14336"); I(f"v_add_u32 v{V_T0}, s{S_T2}, v{V_LANE16}")
    I(f"s_mul_i32 s{S_T3}, s{S_T3}, 14336"); I(f"v_add_u32 v{V_QP}, s{S_T3}, v{V_LANE16}")
    I(f"v_add_u32 v{V_KW1}, s{S_W4K}, v{V_LANE16}"); I(f"v_add_u32 v{V_KW0}, 0x10000, v{V_KW1}"); I(f"v_add_u32 v{V_KW2}, 0x20000, v{V_KW1}")
    if O.cpf:
        c1 = code_pf("L_trans", 6, 215)
        for x in c1[0] + [c1[1]]: I(x)
    for p in range(O.nl2):
        same = O.f1 == O.f2
        for rng, t, h in ((O.f1, S_T1, 0), (O.f2, S_T2, 1)):
            lo, hi = [int(z) for z in rng.split(",")]; n = hi - lo + 1
            I(f"s_add_u32 s{t}, s2, {128 if h else 0}"); I(f"s_and_b32 s{t}, s{t}, 255"); I(f"s_mul_i32 s{t}, s{t}, {n}"); I(f"s_lshr_b32 s{t}, s{t}, 8"); I(f"s_add_u32 s{t}, s{t}, {lo}")
            I(f"s_lshl_b32 s{t}, s{t}, 14"); I(f"s_add_u32 s{t}, s{t}, s{S_KV0}"); I(f"s_and_b32 s{t}, s{t}, 0x3ffff")
        I(f"v_mov_b32 v{T+4}, s{S_T1}"); I(f"v_mov_b32 v{T+5}, s{S_T2}"); I(f"v_cmp_gt_u32 vcc, 32, v0"); I(f"v_and_b32 v{T+6}, 31, v0"); I("s_nop 0")
        I(f"v_cndmask_b32 v{T+4}, v{T+5}, v{T+4}, vcc"); I(f"v_lshl_add_u32 v{V_PF+p}, v{T+6}, 7, v{T+4}")
    if O.gmode:
        I(f"s_cmp_eq_u32 s{S_R}, 0"); I(f"s_cselect_b32 s4, s{S_K}, s{S_V}"); I(f"s_cselect_b32 s5, s{S_K+1}, s{S_V+1}"); I(f"s_cselect_b32 s{S_T0}, 16384, 0")
        I("s_mov_b32 s6, 262144"); I("s_mov_b32 s7, 0x20000")
        I(f"s_sub_u32 s{S_T1}, s{S_KV0}, s{S_W4K}"); I(f"s_add_u32 s{S_T0}, s{S_T0}, s{S_T1}"); I(f"s_lshl_b32 s{S_T1}, s{S_C}, 13"); I(f"s_add_u32 s{S_T0}, s{S_T0}, s{S_T1}")
        for r in range(O.g_rounds):
            I(f"s_add_u32 s{60+r}, s{S_T0}, {r*16384}"); I(f"s_and_b32 s{60+r}, s{60+r}, 0x3ffff")
        I(f"s_lshr_b32 s100, s2, 3"); I(f"s_mul_i32 s100, s100, {O.g_per}"); I("s_lshr_b32 s100, s100, 5")
        I(f"v_lshlrev_b32 v{V_KW0}, 7, v0")
    emit_dma(take(-1, max(0, O.n_up - O.n_up0), 0), post=True)
    I("s_waitcnt vmcnt(@xa0)"); I("s_barrier")
    stamp()
    for r in r_w(0)[:2] + r_x([0])[:1] + r_w(0)[2:] + r_x(range(4))[1:]: I(r)
    for k in range(2): I(f"v_add_u32 v{V_WA+k}, {stg(1)}, v{V_WB+k}")
    I("s_waitcnt lgkmcnt(0) vmcnt(@w_1)"); I("s_barrier")
    el = early_loads(); ew = early_writes()
    l2 = [([], f"buffer_load_dword v{V_TMP+6}, v{V_PF+p}, {sr(sq,4)}, 0 offen") for p in range(O.nl2) for sq in (S_K, S_V)]
    qwork = []
    for rt in range(7):
        for kp in range(2):
            b = p1_acc(rt) + 8 * kp; t = SB + 4 * ((2 * rt + kp) % 8)
            rdy = 8 * rt + (4 * kp + 3 if O.accord else 5 + 2 * kp) + 9
            qwork += [(rdy, "v", f"v_mul_f32 v{b+k}, s{S_SCALE}, v{b+k}") for k in range(8)]
            if O.tr_early: qwork += [(rdy, "v", f"v_cvt_pk_bf16_f32 v{t+k}, v{b+2*k}, v{b+2*k+1}") for k in range(4)] + [(rdy, "w", f"ds_write_b128 v{V_T0}, {vr(t)} offset:{(2*rt+kp)*1024} ;@qw")]
    ne = 0
    NE = len(el) - O.tail_n
    nit = O.kv_last - O.kv_first
    def gat(hh):
        k = hh - O.g_start
        if not O.gmode or k < 0 or k >= O.g_per * O.g_rounds: return []
        return [([f"s_cmp_eq_u32 s100, {k % O.g_per}", f"s_cselect_b32 s101, s{60 + k // O.g_per}, 0x40000000"], f"buffer_load_dword v{V_TMP+6}, v{V_KW0}, s[4:7], s101 offen")]
    def tagd(g, t, adv=False):
        g = [(x[0], x[1] + f" ;@{t}") for x in g]
        if adv: g[3] = g[3] + ([KVG_UPD],)
        return g
    late = tagd(kv_dma("V", 4 * 32768), "v0", True) + tagd(kv_dma("K", 3 * 32768), "s1") + tagd(kv_dma("V", 3 * 32768), "s1", True) + tagd(kv_dma("K", 2 * 32768), "s2") + tagd(kv_dma("V", 2 * 32768), "s2", True)
    for i in range(16):
        if i <= 12: ma = take(2 * i, O.capA2 if i == 0 else O.capA, O.capA2)
        elif O.gmode: ma = gat(2 * i) + {13: [], 14: late[6:12], 15: late[18:20]}[i]
        elif i == 13: ma = take(26, 6, 6) + el[NE:NE + 4]
        elif i == 14: ma = ew[6:12]
        else: ma = ew[17:20]
        if 2 * i == O.l2_at: ma = ma + l2
        rd = r_x(range(4, 7)) + (r_w(i + 1) if i < 15 else [])
        addr = [(5, f"v_add_u32 v{V_XA+k}, {stg(i+1)}, v{V_XB+k}") for k in range(2)] if i < 15 else []
        va = (qwork, 0) if i == 15 else None
        p1_half(p1_mfmas(i, range(4)), ma, rd, addr, "s_waitcnt lgkmcnt(0)" + (f" vmcnt(@xa{i+1})" if i < 15 else ""), valu=va)
        k = 0
        if O.kv_first <= i < O.kv_last and not O.gmode: k = ((i - O.kv_first + 1) * NE) // nit - ne
        mb = el[ne:ne + k] + gat(2 * i + 1); ne += k
        tk = take(2 * i + 1, O.capB2 if i == 0 else O.capB, O.capB2)
        if i == O.k0_it:
            p = [n for n, x in enumerate(tk) if x[0]][0]
            tk = tk[:p] + kv_dma("K", 4 * 32768, S_KV0) + tk[p:]
        mb += tk
        if i == 13: assert not Q and not tk
        if i == 13: mb += late[0:6] if O.gmode else el[NE + 4:] + ew[0:6]
        if i == 14: mb += late[12:18] if O.gmode else ew[12:17]
        if 2 * i + 1 == O.l2_at: mb = mb + l2
        if O.cpf and i == 12: mb = mb + [([], c1[2])]
        rd = r_x(range(4)) if i < 15 else []
        addr = [(-1, f"v_add_u32 v{V_WA+k}, {stg(i+2)}, v{V_WB+k}") for k in range(2)] if i < 14 else []
        if i == 15: va = (qwork, 32)
        wait = None if i == 15 else "s_waitcnt lgkmcnt(0)" + (f" vmcnt(@w_{i+2})" if i < 14 else " vmcnt(@xb15)")
        p1_half(p1_mfmas(i, range(4, 7)), mb, rd, addr, wait, valu=va)
        if O.p1st and i < 15: stamp()
    stamp()
    A("L_trans:")
    for x in k_addr((RING - 1) * 32768): I(x)
    for f in range(8): I(k_read(f))
    assert O.tr_early
    for x in pendw: I(x)
    del pendw[:]
    for w in qwork: I(w[2])
    for rt in range(7):
        for kp in range(2): I(f"ds_read_b128 {ar(QA+16*rt+4*kp)}, v{V_T0} offset:{(2*rt+kp)*1024}")
    I(f"s_mov_b32 s{S_DS}, {4*32768}"); I(f"s_mov_b32 s{S_SL2}, {3*32768}"); I(f"s_mov_b32 s{S_I}, 0")
    I("s_waitcnt lgkmcnt(@qw)" + (" vmcnt(@v0)" if O.gmode else "")); I("s_barrier")
    for rt in range(7):
        for kp in range(2): I(f"ds_read_b128 {ar(QA+16*rt+8+4*kp)}, v{V_QP} offset:{(2*rt+kp)*1024}")
    I(f"v_add_u32 v{V_T0}, s{S_CA}, v{V_LANE16}")
    I(f"v_add_u32 v{V_T1}, s{S_LB1}, v{V_LANE16}")
    I(f"v_mov_b32 v{V_WOF}, v{V_WOB}")
    for j in range(1, 4): I(f"v_add_u32 v{V_WOF+j}, {j*16384-j*1024}, v{V_WOB}")
    I("s_waitcnt lgkmcnt(0)"); I("s_barrier")
    if not O.s4_in: emit_dma(kv_dma("K", 0) + kv_dma("V", 0)); I(KVG_UPD)
    stamp()
    att_iter("first").emit()
    g = sm0_ops(6)
    S = SB + 8 * COL[6]
    for grp in g[:3]:
        for x in grp: I(x)
        I("s_nop 0")
    for k in range(2, 8): I(f"v_sub_f32 v{S+k}, v{S+k}, v{V_TMP}")
    for k in range(4): I(f"v_sub_f32 v{NM+24+k}, 0, v{V_TMP}")
    I(f"v_mov_b32 v{LS+6}, 0")
    if O.epst: stamp()
    A(".p2align 6"); A("L_att:")
    for lp in ((0, 1) if O.ta else (1,)):
        if lp and O.ta: A(".p2align 6"); A("L_att2:")
        G = att_iter("loop", lp)
        if O.loopst:
            G.s[92].append("s_memtime s[98:99]"); G.p[94].append("s_memtime s[100:101]"); G.p[95].append("s_memtime s[62:63]")
            G.v[7].append(f"v_cmp_eq_u32 vcc, s{S_I}, v0")
            for k, sg in enumerate((98, 100, 62)):
                G.v[11 + 4 * k].append(f"v_mov_b32 v251, s{sg}"); G.v[11 + 4 * k].append(f"v_cndmask_b32 v{252+k}, v{252+k}, v251, vcc")
        G.emit()
        I("s_cbranch_scc1 " + ("L_att2" if (lp and O.ta) else "L_att"))
    if O.epst: stamp()
    if O.loopst:
        I(f"s_lshl_b32 s{S_T0}, s2, 12"); I(f"s_lshl_b32 s{S_T1}, s{S_WAVE}, 10"); I(f"s_add_u32 s{S_T0}, s{S_T0}, s{S_T1}"); I(f"s_add_u32 s{S_T0}, s{S_T0}, {(1<<26)+(1<<20)}"); I(f"v_lshl_add_u32 v251, v0, 4, s{S_T0}")
        I(f"global_store_dwordx4 v251, v[252:255], {sr(P_WS)}")
    for t in range(12 + O.nskip, 15): att_iter("pen", t).emit()
    A("L_last:")
    if O.epst: stamp()
    att_iter("last").emit()
    def sendfirst(m): return m[4:] + m[:4]
    def osend(rt, k): return f"ds_write_b128 v{V_T0}, {ar(OS_+16*rt+4*k)} offset:{(4*rt+k)*1024}"
    G = Gaps(sendfirst(pv_mfmas(5)))
    e, a, c = sm_ops(6)
    for k in range(8):
        G.v[k].append(e[k])
        if k: G.v[k].append(a[k - 1])
        if k in (2, 4, 6): G.v[k].append(c[k // 2 - 1])
    for k in range(4): G.m[1 + 2 * k].append(osend(4, k))
    G.emit()
    I("s_nop 0"); I(c[3]); I(a[7]); I(f"s_mov_b32 s{S_T0}, {f2u(2.0**40):#x}")
    G = Gaps(sendfirst(pv_mfmas(6)))
    for k in range(7): G.v[[1, 1, 3, 3, 5, 5, 7][k]].append(f"v_mov_b32 v{V_TMP+k}, v{LS+k}")
    for k in range(4): G.m[2 * k].append(osend(5, k))
    G.emit()
    stamp()
    regs = [LS + rt for rt in range(7)]; temps = [V_TMP + rt for rt in range(7)]
    I(osend(6, 0)); I(osend(6, 1))
    for r, t in zip(regs, temps): I(f"v_permlane32_swap_b32 v{r}, v{t}")
    I(osend(6, 2))
    for r, t in zip(regs, temps): I(f"v_add_f32 v{r}, v{r}, v{t}")
    for r, t in zip(regs, temps): I(f"v_mov_b32 v{t}, v{r}")
    I(osend(6, 3)); I("s_nop 0")
    for r, t in zip(regs, temps): I(f"v_permlane16_swap_b32 v{r}, v{t}")
    I("s_nop 0")
    for rt, (r, t) in enumerate(zip(regs, temps)): I(f"v_add_f32 v{NM+4*rt+1}, v{r}, v{t}")
    I(f"v_add_f32 v{V_TMP}, v{NM+1}, v{NM+5}"); I(f"v_add_f32 v{V_TMP+1}, v{NM+9}, v{NM+13}"); I(f"v_add_f32 v{V_TMP+2}, v{NM+17}, v{NM+21}")
    I(f"v_add_f32 v{V_TMP}, v{V_TMP}, v{NM+25}"); I(f"v_add_f32 v{V_TMP+1}, v{V_TMP+1}, v{V_TMP+2}"); I(f"v_add_f32 v{V_TMP}, v{V_TMP}, v{V_TMP+1}")
    I(f"v_cmp_nlt_f32 vcc, v{V_TMP}, s{S_T0}")
    for rt in range(7): I(f"ds_write_b64 v{V_STW}, {vr(NM+4*rt,2)} offset:{rt*128}")
    I(f"s_cmp_lg_u64 vcc, 0"); I(f"s_cselect_b32 s{S_T1}, 1, 0"); I(f"s_andn2_b32 s{S_T1}, s{S_T1}, s{S_FB}"); I(f"v_mov_b32 v{V_TMP+1}, s{S_T1}")
    I(f"ds_write_b32 v{V_STW}, v{V_TMP+1} offset:896")
    I("s_waitcnt lgkmcnt(0)"); I("s_barrier")
    if O.epst: stamp()
    I(f"ds_read_b32 v{V_TMP+4}, v{V_FLR} ;@fl")
    for rt in range(7): I(f"ds_read_b64 {vr(NM+4*rt+2,2)}, v{V_STR} offset:{rt*128} ;@st")
    RB = 128
    def recv(rt):
        for dq in range(4): I(f"ds_read_b128 {vr(RB+16*(rt%4)+4*dq)}, v{V_T1} offset:{(4*rt+dq)*1024} ;@r{rt}")
    recv(0)
    I("s_waitcnt lgkmcnt(@fl) vmcnt(@w1)")
    I(f"v_cmp_ne_u32 vcc, 0, v{V_TMP+4}")
    recv(1)
    I("s_cbranch_vccnz L_fallback")
    st = {"dma": 2, "rd": 0}; free = []; pend = []
    def do_read(wait=True):
        m = st["rd"]; st["rd"] += 1
        if wait: I(f"s_waitcnt vmcnt(@w{m})")
        for r in a_reads(m): I(r)
        pend.append(m)
    def release(n=None):
        k = len(pend) if n is None else n
        if not k: return
        I(f"s_waitcnt lgkmcnt(@a{pend[k-1]})")
        for _ in range(k): free.append(slot_of[pend.pop(0)])
    def do_dma():
        m = st["dma"]; st["dma"] += 1
        slot_of[m] = free.pop(0); emit_dma(wo_dma(m))
    do_read(False); do_read(False)
    recv(2)
    I("s_waitcnt lgkmcnt(@st)")
    bs = [NM + 4 * rt for rt in range(7)]
    for rt, b in enumerate(bs): I(f"v_min_f32 v{LS+rt}, v{b}, v{b+2}")
    for rt, b in enumerate(bs): I(f"v_sub_f32 v{b}, v{LS+rt}, v{b}"); I(f"v_sub_f32 v{b+2}, v{LS+rt}, v{b+2}")
    release(); free.extend([2, 3])
    for _ in range(min(2, O.pre_dma)): do_dma()
    for b in bs: I(f"v_exp_f32 v{b}, v{b}"); I(f"v_exp_f32 v{b+2}, v{b+2}")
    if O.pre_dma > 2: do_dma()
    for b in bs: I(f"v_mul_f32 v{b+1}, v{b+1}, v{b}")
    for b in bs: I(f"v_fma_f32 v{b+1}, v{b+3}, v{b+2}, v{b+1}")
    for b in bs: I(f"v_rcp_f32 v{b+1}, v{b+1}")
    if O.pre_dma > 3: do_dma()
    for b in bs: I(f"v_mul_f32 v{b}, v{b}, v{b+1}"); I(f"v_mul_f32 v{b+2}, v{b+2}, v{b+1}")
    for rt in range(7):
        if O.epst: stamp()
        if rt + 3 < 7: recv(rt + 3)
        if rt >= 2:
            I(f"s_waitcnt lgkmcnt(@r{rt})"); free.append(2 + rt)
        if free and str(rt) in O.ep_dma: do_dma()
        b = NM + 4 * rt; o = OK_ + 16 * rt; rb = RB + 16 * (rt % 4)
        for k in range(0, 16, 2): I(f"v_pk_mul_f32 {vr(o+k,2)}, {vr(o+k,2)}, {vr(b,2)} op_sel_hi:[1,0]")
        for k in range(0, 16, 2): I(f"v_pk_fma_f32 {vr(o+k,2)}, {vr(rb+k,2)}, {vr(b+2,2)}, {vr(o+k,2)} op_sel_hi:[1,0,1]")
        for k in range(8): I(f"v_cvt_pk_bf16_f32 v{o+k}, v{o+2*k}, v{o+2*k+1}")
        I(f"s_add_u32 s{S_T1}, s{S_OST}, {rt*1024}"); I(f"s_add_u32 s{S_T2}, s{S_OST}, {rt*1024+7168}")
        I(f"buffer_store_dwordx4 {vr(o)}, v{V_LANE16}, {sr(S_O,4)}, s{S_T1} offen {O.pol_ost} ;@os")
        I(f"buffer_store_dwordx4 {vr(o+4)}, v{V_LANE16}, {sr(S_O,4)}, s{S_T2} offen {O.pol_ost} ;@os")
    stamp()
    I(f"v_mov_b32 v{V_TMP}, s{S_SIG}"); I(f"v_mov_b32 v{V_TMP+1}, 1"); I(f"v_mov_b32 v{V_TMP+2}, s{S_POLL}")
    older = st["dma"]
    for _ in range(min(O.post_dma, len(free))): do_dma()
    while st["rd"] < min(older, RA_N - 1): do_read()
    I("s_waitcnt vmcnt(@os)" if O.sig_cnt else "s_waitcnt vmcnt(0)"); I("s_barrier")
    I(f"s_cmp_lg_u32 s{S_WAVE}, 0"); I("s_cbranch_scc1 L_nosig")
    I("s_mov_b64 exec, 1")
    I(f"global_atomic_add v{V_TMP}, v{V_TMP+1}, {sr(P_DBG)} sc1 ;@nocount")
    I("s_mov_b64 exec, -1")
    A("L_nosig:")
    stamp()
    release()
    while free: do_dma()
    polled = False
    while st["rd"] < RA_N:
        do_read()
        if not polled and st["rd"] > RA_N - O.poll_lead: I(f"global_load_dword v{V_TMP+3}, v{V_TMP+2}, {sr(P_DBG)} sc1 ;@poll"); polled = True
        if len(pend) > 1: release(1); do_dma()
    release()
    while free: do_dma()
    assert st["dma"] == RA_N + RL_N and polled, st
    I("s_waitcnt vmcnt(@poll)")
    stamp()
    I(f"s_mov_b32 s{S_I}, 0")
    A("L_poll:")
    I(f"v_readfirstlane_b32 s{S_T0}, v{V_TMP+3}")
    I(f"s_add_u32 s{S_I}, s{S_I}, 1")
    I(f"s_cmp_ge_u32 s{S_T0}, 8"); I("s_cbranch_scc1 L_ready")
    if O.abl_nopoll: I("s_branch L_ready")
    I(f"s_cmp_ge_u32 s{S_I}, 0x40000"); I("s_cbranch_scc1 L_ready")
    I(f"global_load_dword v{V_TMP+3}, v{V_TMP+2}, {sr(P_DBG)} sc1 ;@nocount")
    I("s_waitcnt vmcnt(0)")
    I("s_branch L_poll")
    A("L_ready:")
    stamp()
    def bl(n, rt):
        x = b_loads(n)[rt]
        return (x[0], x[1].replace(f";@b{n}", f";@b{n}_{rt}"))
    for N in range(NB // 2):
        for rt in range(7): emit_dma([bl(2 * N, rt), bl(2 * N + 1, rt)])
    RD = V_TMP + 4
    for cq in range(1, 4):
        I(f"s_xor_b32 s{S_T0}, s{S_WAVE}, {cq}"); I(f"s_mul_i32 s{S_T0}, s{S_T0}, {21*1024}"); I(f"v_add_u32 v{RD+cq}, s{S_T0}, v{V_LANE16}")
    I(f"s_mul_i32 s{S_T0}, s{S_WAVE}, {21*1024}"); I(f"v_add_u32 v{RD}, s{S_T0}, v{V_LANE16}")
    I(f"v_and_b32 v{V_TMP}, 15, v0"); I(f"v_lshlrev_b32 v{V_TMP}, 11, v{V_TMP}"); I(f"v_lshrrev_b32 v{V_TMP+1}, 4, v0"); I(f"v_lshl_add_u32 v{V_TMP}, v{V_TMP+1}, 3, v{V_TMP}")
    I("s_waitcnt vmcnt(@b1_0)")
    stamp()
    wr = [f"ds_write_b128 v{RD+cq}, {vr(ACC+16*rt+4*cq)} offset:{((cq-1)*7+rt)*1024}" for rt in range(7) for cq in range(1, 4)]
    nw = 0
    assert RA_N % 2 == 0 and NB % 2 == 0
    carry = []
    for N in range(16):
        n = 2 * N
        m0, m1 = p3_mfmas(n), p3_mfmas(n + 1)
        order = [1, 2, 3, 0] if N == 15 else [0, 1, 2, 3]
        G = Gaps([x for rt in range(7) for cq in order for x in (m0[4 * rt + cq], m1[4 * rt + cq])])
        place(G, carry, [1, 3][:len(carry)]); carry = []
        if n + NB < 32:
            for rt in range(7):
                ops = [bl(n + NB, rt), bl(n + NB + 1, rt)]
                if rt < 6: place(G, ops, [8 * rt + 9, 8 * rt + 11])
                else: carry = ops
        for rt in range(1, 7): G.s[8 * rt - 1].append(f"s_waitcnt vmcnt(@b{n+1}_{rt})")
        for h in range(2):
            m = n + RA_N - 2 + h
            if N >= 1 and m < 32:
                G.s[3 + 24 * h].append(f"s_waitcnt vmcnt(@w{m})")
                for r, g in zip(a_reads(m), [4, 5, 6, 12, 14, 20, 22, 24]): G.m[g + 24 * h].append(r)
            mo = m - 2
            if N >= 2 and mo + RL_N < 32:
                slot_of[mo + RL_N] = slot_of[mo]
                place(G, wo_dma(mo + RL_N), [g + 24 * h for g in [8, 13, 16, 21]])
        if N == 14: G.s[30].append("s_barrier")
        if N == 15:
            for rt in range(6):
                for k in range(3): G.m[8 * rt + 10 + 2 * k].append(wr[nw]); nw += 1
        if N < 15: G.p[55].append(f"s_waitcnt vmcnt(@b{n+3}_0) lgkmcnt(0)")
        G.emit()
    stamp()
    I("s_nop 4")
    for x in wr[nw:]: I(x)
    I("s_waitcnt lgkmcnt(0)"); I("s_barrier")
    for rt in range(7):
        for cq in range(1, 4): I(f"ds_read_b128 {vr(ACC+16*rt+4*cq)}, v{RD} offset:{((cq-1)*7+rt)*1024} ;@f{rt}")
    for rt in range(7):
        I(f"s_waitcnt lgkmcnt(@f{rt})")
        o = ACC + 16 * rt
        for k in (0, 2):
            I(f"v_pk_add_f32 {vr(o+k,2)}, {vr(o+k,2)}, {vr(o+4+k,2)}"); I(f"v_pk_add_f32 {vr(o+8+k,2)}, {vr(o+8+k,2)}, {vr(o+12+k,2)}")
        for k in (0, 2): I(f"v_pk_add_f32 {vr(o+k,2)}, {vr(o+k,2)}, {vr(o+8+k,2)}")
        I(f"v_cvt_pk_bf16_f32 v{o}, v{o}, v{o+1}"); I(f"v_cvt_pk_bf16_f32 v{o+1}, v{o+2}, v{o+3}")
        I(f"buffer_store_dwordx2 {vr(o,2)}, v{V_TMP}, {sr(S_OUT,4)}, s{S_OUTOFF} offen {O.pol_out}")
        I(f"s_add_u32 s{S_OUTOFF}, s{S_OUTOFF}, {16*2048}")
    stamp()
    store_stamps()
    A("L_done:")
    I("s_endpgm")
    A("L_fallback:")
    I(f"s_mov_b32 s{S_FB}, 1")
    I("s_waitcnt vmcnt(0) lgkmcnt(0)"); I("s_barrier")
    for rt in range(7): I(f"v_mov_b32 v{NM+4*rt}, 0xff800000")
    I(f"s_mov_b32 s{S_KVG}, s{S_KV0}")
    for x in k_addr(0): I(x)
    I(f"s_mov_b32 s{S_I}, 0")
    A("L_fb_loop:")
    emit_dma(kv_dma("K", 0)); I(KVG_UPD)
    I("s_waitcnt vmcnt(0)"); I("s_barrier")
    for f in range(8): I(k_read(f))
    I("s_waitcnt lgkmcnt(0)"); I("s_barrier")
    for rt in range(7):
        for m in qk_mfmas(rt, SB, usenm=False): I(m)
        I("s_nop 7")
        b = NM + 4 * rt
        for k in range(4): I(f"v_max3_f32 v{b}, v{b}, v{SB+2*k}, v{SB+2*k+1}")
    I(f"s_add_u32 s{S_I}, s{S_I}, 1"); I(f"s_cmp_lt_u32 s{S_I}, 16"); I("s_cbranch_scc1 L_fb_loop")
    multi_reduce([NM + 4 * rt for rt in range(7)], [NM + 4 * rt + 1 for rt in range(7)], "v_max_f32")
    for rt in range(7):
        b = NM + 4 * rt
        I(f"v_sub_f32 v{b}, 0, v{b}")
        for k in range(1, 4): I(f"v_mov_b32 v{b+k}, v{b}")
    I(f"s_mov_b32 s{S_KVG}, s{S_KV0}")
    for st in range(RING - 1):
        emit_dma(kv_dma("K", (4 - st) * 32768) + kv_dma("V", (4 - st) * 32768)); I(KVG_UPD)
    for k in range(112): I(f"v_mov_b32 v{OK_+k}, 0")
    for k in range(112): I(f"v_accvgpr_write_b32 a{OS_+k}, 0")
    for k in range(32): I(f"v_mov_b32 v{VF+k}, 0")
    for k in range(12): I(f"v_mov_b32 v{PB+k}, 0")
    for k in range(7): I(f"v_mov_b32 v{LS+k}, 0")
    for k in range(8): I(f"v_mov_b32 v{SB+16+k}, 0xf149f2ca")
    I(f"s_mov_b32 s{S_MASK}, 0xfff"); I(f"s_mov_b32 s{S_DS}, 0"); I(f"s_mov_b32 s{S_SL2}, {3*32768}"); I(f"s_mov_b32 s{S_I}, -1")
    for x in next_dma_state(): I(x)
    for x in k_addr(4 * 32768) + v_addr(4 * 32768): I(x)
    I("s_waitcnt vmcnt(0)"); I("s_barrier")
    for f in range(8): I(k_read(f))
    I("s_waitcnt lgkmcnt(0)")
    I("s_branch L_att")

def main(fn):
    global RA_N, NB
    RA_N = O.ra_n; NB = O.nb
    del L[:]
    nstamp[0] = 0
    A('.amdgcn_target "amdgcn-amd-amdhsa--gfx950"')
    A(".text")
    gen()
    A("  .fill 6144, 4, 0xBF800000")
    A('.section .rodata,"a"\n.p2align 6')
    A(f".amdhsa_kernel {NAME}_kernel\n  .amdhsa_next_free_vgpr 512\n  .amdhsa_next_free_sgpr 102\n  .amdhsa_accum_offset 256\n  .amdhsa_group_segment_fixed_size 0\n  .amdhsa_kernarg_size 64\n  .amdhsa_user_sgpr_count 2\n  .amdhsa_user_sgpr_kernarg_segment_ptr 1\n  .amdhsa_system_sgpr_workgroup_id_x 1\n.end_amdhsa_kernel")
    head = ["; fused MHA block: per (b,h) workgroup Q-proj + attention, flag hand-off, then a 112x64 tile of the output projection",
            "; @launch grid=(256,1,1) block=(256,1,1) lds=163840"]
    open(fn, "w").write("\n".join(head + resolve(L)) + "\n")

if __name__ == "__main__":
    fn = sys.argv[1]
    for kv in sys.argv[2:]:
        k, v = kv.split("=")
        cur = getattr(O, k)
        setattr(O, k, (v == "1") if isinstance(cur, bool) else (int(v) if isinstance(cur, int) else v.replace("+", " ")))
    main(fn)
```

```python
import sys, math, struct, re
NAME = "standalone__mha_block_cached__near_ridge"

class Opt:
    pol_kv = "nt"; pol_x = ""; pol_wq = ""; pol_ost = "sc1"; pol_old = "sc1"; pol_wo = ""; pol_out = ""
    stamps = False; dbgst = False
    rotmul_h = 8; rotmul_b = 8
    k2_rot_c = 1; k2_rot_r = 2
    wo_pref = 3
    kv_first = 5
    abl_nopoll = False
    wo_early = 3
    kv_rot_j = 1
    kv_rot_x = 2
    lin_map = False
    kv_last = 13
    k0_it = 1
    up_chunks = 2
    nl2 = 1
    l2_base = 5
    cpf = True
    wo_mall = False
    n_up = 22
    n_up0 = 8
    capA = 6
    capB = 5
    capA2 = 9
    capB2 = 8
    rotmul_x = 1
    sig_cnt = False
    gmode = False
    g_start = 12
    g_per = 4
    g_rounds = 3
    l2_at = 27
    pf_pen = 2
    s4_in = True
    p1st = False
    abl_noearly = False
    nskip = 2
    epst = False
    ta = 6
    f1 = '5,10'
    f2 = '5,10'
    pf_row = True
    cp0 = 1
    p2_at = 13
    clr = 0
    p3st = False
    s2_g = 52
    p2_g = 12
    fin2 = True
    tail_n = 8
    e4 = True
    wo_first = 0
    pre_dma = 2
    ra_n = 16
    r0 = 10
    nb = 2
    tr_early = True
    accord = True
    ep_dma = '9'
    post_dma = 0
    pf_q = 4
    pf_max = 8
    cpf_at = 14
    pref_last = True
    loopst = False
    tlbw = 0
    abl_nomfma = False
    kv_noswz = False
    att_vm = 24
    abl_nodma = False
    poll_lead = 2
O = Opt()

L = []
def A(s): L.append(s)
def I(s):
    for x in s.split("\n"):
        if x.strip(): L.append("  " + x.strip())
def vr(b, n=4): return f"v[{b}:{b+n-1}]"
def ar(b, n=4): return f"a[{b}:{b+n-1}]"
def sr(b, n=2): return f"s[{b}:{b+n-1}]"
def pol(p): return (p + " ") if p else ""
def f2u(x): return struct.unpack("<I", struct.pack("<f", x))[0]
MF = "v_mfma_f32_16x16x32_bf16"

class Gaps:
    def __init__(self, mf):
        self.mf = list(mf); n = len(self.mf)
        self.s = [[] for _ in range(n)]; self.m = [[] for _ in range(n)]; self.v = [[] for _ in range(n)]; self.p = [[] for _ in range(n)]
    def chain(self, instrs, gaps):
        assert len(gaps) >= len(instrs), (instrs, gaps)
        for x, g in zip(instrs, gaps): self.s[g].append(x)
    def emit(self):
        for i, m in enumerate(self.mf):
            I(m)
            for x in self.s[i] + self.m[i] + self.v[i] + self.p[i]: I(x)

def resolve(lines):
    vm = []; lg = []; out = []
    for ln in lines:
        t = re.search(r";@(\S+)", ln)
        tag = t.group(1) if t else None
        code = ln.split(";")[0].rstrip() if t else ln
        op = code.strip().split(" ")[0] if code.strip() else ""
        def sub(kind, q, cap):
            def f(m):
                k = m.group(1)
                idx = [i for i, x in enumerate(q) if x == k]
                assert idx, ("unknown tag", k, ln)
                return f"{kind}({min(cap, len(q) - 1 - idx[-1])})"
            return f
        code = re.sub(r"vmcnt\(@(\S+?)\)", sub("vmcnt", vm, 62), code)
        code = re.sub(r"lgkmcnt\(@(\S+?)\)", sub("lgkmcnt", lg, 14), code)
        if tag != "nocount":
            if op.startswith(("buffer_", "global_")): vm.append(tag)
            elif op.startswith("ds_"): lg.append(tag)
        out.append(code)
    return out

OK_ = 16; VF = 128; SB = 160; PB = 184; NM = 196; LS = 224
V_LANE16 = 1; V_QP = 2; V_WOB = 3
V_KVOFF = 4
V_XB = 8; V_WB = 10; V_KB = 12; V_VB = 13; V_T0 = 14; V_T1 = 15
V_XOFF = 200; V_WOFF = 207; V_KW0 = 211; V_KW1 = 253
V_RAB = 231; V_PF = 212
V_XA = 232; V_WA = 234
V_KA = 232; V_VA = 236; V_TMP = 244; V_STAMP = 255
OS_ = 0; QA = 112; KF = 224; FR = 112
COL = [0, 1, 0, 1, 0, 1, 2]
S_X = 8; S_K = 12; S_V = 16; S_WQ = 20; S_O = 24
S_WAVE = 28; S_B = 29; S_H = 30; S_R = 31; S_C = 32
S_OX = 33; S_OW = 34; S_MXA = 36; S_MXB = 3; S_WXT = 37; S_I = 38
S_T0 = 39; S_T1 = 40; S_T2 = 41; S_T3 = 42
S_KVG = 43; S_SL0 = 44; S_SL1 = 45; S_SL2 = 46
S_FB = 47; S_W4K = 48; S_W4KK = 49; S_SCALE = 50; S_OST = 51
P_X = 52; P_K = 54; P_V = 56; P_WQ = 58; P_WO = 60; P_OUT = 62; P_DBG = 64; P_WS = 66
S_WO = 68; S_OO = 72; S_OUT = 76; S_TW = 80; S_TO = 52; S_LB0 = 88; S_LB1 = 89; S_OUTOFF = 90; S_SIG = 91; S_POLL = 92; S_PFO = 93
S_STP = 96
XT = 28672; WT = 16384; STG = XT + WT
RING = 5; KOFF = 16384; PART = 1 << 24; FLG = 3 << 23
ST0 = 86016; S_CA = 7; S_STW = 61; V_STW = 241; V_STR = 242; V_FLR = 243
SCALE = math.log2(math.e) / math.sqrt(128.0)

nstamp = [0]
def stamp():
    if not O.stamps: return
    k = nstamp[0]
    I(f"s_memtime {sr(S_STP)}"); I(f"s_memrealtime {sr(S_STP+2)}"); I("s_waitcnt lgkmcnt(0)")
    I(f"v_writelane_b32 v{V_STAMP}, s{S_STP}, {2*k}"); I(f"v_writelane_b32 v{V_STAMP}, s{S_STP+2}, {2*k+1}")
    nstamp[0] += 1
def store_stamps():
    if not O.stamps: return
    I(f"s_cmp_lg_u32 s{S_WAVE}, 0"); I("s_cbranch_scc1 L_done")
    I(f"s_lshl_b32 s{S_T0}, s2, 8"); I(f"s_add_u32 s{S_T0}, s{S_T0}, {1<<26}"); I(f"v_lshl_add_u32 v15, v0, 2, s{S_T0}")
    I(f"global_store_dword v15, v{V_STAMP}, {sr(P_WS)}")
def srd(d, ptr, nbytes, shift=None, sub=True):
    if shift is None:
        I(f"s_mov_b32 s{d}, s{ptr}"); I(f"s_mov_b32 s{d+1}, s{ptr+1}"); I(f"s_mov_b32 s{d+2}, {nbytes}")
    else:
        I(f"s_add_u32 s{d}, s{ptr}, s{shift}"); I(f"s_addc_u32 s{d+1}, s{ptr+1}, 0")
        I(f"s_sub_u32 s{d+2}, {nbytes}, s{shift}" if sub else f"s_mov_b32 s{d+2}, {nbytes}")
    I(f"s_mov_b32 s{d+3}, 0x20000")

def stg(i): return ((-i) % 3) * STG
def d_w(i): return [([f"s_add_u32 m0, {stg(i)}, s{S_WXT}"] if j == 0 else [], f"buffer_load_dwordx4 v{V_WOFF+j}, {sr(S_WQ,4)}, s{S_OW} offen offset:{j*1024} {pol(O.pol_wq)}lds ;@w_{i}") for j in range(4)]
def d_xa(i): return [([f"s_add_u32 m0, {stg(i)}, s{S_MXA}"] if j == 0 else [], f"buffer_load_dwordx4 v{V_XOFF+j}, {sr(S_X,4)}, s{S_OX} offen offset:{j*1024} {pol(O.pol_x)}lds ;@xa{i}") for j in range(4)]
def d_xb(i): return [([f"s_add_u32 m0, {stg(i)}, s{S_MXB}"] if j == 0 else [], f"buffer_load_dwordx4 v{V_XOFF+4+j}, {sr(S_X,4)}, s{S_OX} offen offset:{j*1024} {pol(O.pol_x)}lds ;@xb{i}", P1_UPD if j == 2 else []) for j in range(3)]
P1_UPD = [f"s_add_u32 s{S_OX}, s{S_OX}, 128", f"s_and_b32 s{S_OX}, s{S_OX}, 2047", f"s_lshl_b32 s{S_OW}, s{S_OX}, 12"]
def emit_dma(g, post=False):
    for x in g:
        for p in x[0]: I(p)
        if x[0]: I("s_nop 0")
        I(x[1])
        if post and len(x) > 2:
            for p in x[2]: I(p)
def kv_dma(which, slot, so=None):
    so = S_KVG if so is None else so
    s, off = (S_K, S_W4KK) if which == "K" else (S_V, S_W4K)
    return [([f"s_add_u32 m0, {slot}, s{off}"] if j == 0 else [],
             f"buffer_load_dwordx4 v{V_KVOFF+j}, {sr(s,4)}, s{so} offen offset:{j*1024} {pol(O.pol_kv)}lds") for j in range(4)]
KVG_UPD = f"s_add_u32 s{S_KVG}, s{S_KVG}, 16384\ns_and_b32 s{S_KVG}, s{S_KVG}, 0x3ffff"
S_KV0 = 94; S_KVE = 95; S_MASK = 35; S_DS = S_SL1
def er(reg): return ar(reg) if reg < 256 else vr(reg - 256)
EARLY = [("V", 0, 256 + 160), ("K", 1, 256 + 176), ("V", 1, 0), ("K", 2, 16), ("V", 2, 32), ("K", 3, 48), ("V", 3, 64)]
def early_list(): return EARLY + ([("K", 4, 256 + 96), ("V", 4, 256 + 112)] if O.e4 else [])
V_KW2 = 216; V_ZR = 217; S_INB = 100
def early_loads():
    g = []
    for p, (w, st, reg) in enumerate(early_list()):
        for j in range(4):
            post = [KVG_UPD] if (w == "V" and j == 3) else []
            g.append(([], f"buffer_load_dwordx4 {er(reg+4*j)}, v{V_KVOFF+j}, {sr(S_K if w=='K' else S_V,4)}, s{S_KVG} offen offset:{j*1024} {O.pol_kv} ;@e{p}", post))
    return g
def early_writes():
    g = []
    for p, (w, st, reg) in enumerate(early_list()):
        addr = (4 - st) * 32768 + (KOFF if w == "K" else 0)
        base, b0 = (V_KW2, 131072) if addr >= 131072 else ((V_KW0, 65536) if addr >= 65536 else (V_KW1, 0))
        for j in range(4):
            g.append(([f"s_waitcnt vmcnt(@e{p})"] if j == 0 else [], f"ds_write_b128 v{base}, {er(reg+4*j)} offset:{addr-b0+j*1024} ;@ew"))
    return g
def p1_acc(rt): return OK_ + 16 * rt if rt < 5 else VF + 16 * (rt - 5)
FW = 112; FXA = 176; FXB = 208
def r_w(i):
    return [f"ds_read_b64_tr_b16 {ar(FW+32*(i&1)+16*s+4*t+2*e,2)}, v{V_WA+t//2} offset:{XT + s*8192 + e*1024 + (t%2)*8}" for s in range(2) for t in range(4) for e in range(2)]
def xf(rt, s): return (FXA + 8 * rt + 4 * s) if rt < 4 else (FXB + 8 * (rt - 4) + 4 * s)
def r_x(rts): return [f"ds_read_b128 {ar(xf(rt,s))}, v{V_XA+s} offset:{rt*2048}" for rt in rts for s in range(2)]
def p1_mfmas(i, rts):
    return [f"{MF} {vr(p1_acc(rt)+4*t)}, {ar(FW+32*(i&1)+16*s+4*t)}, {ar(xf(rt,s))}, " + ("0" if (i == 0 and s == 0) else vr(p1_acc(rt)+4*t)) for rt in rts for (s, t) in ([(s, t) for t in range(4) for s in range(2)] if O.accord else [(s, t) for s in range(2) for t in range(4)])]
def place(G, ops, gaps):
    assert len(gaps) >= len(ops), (len(ops), gaps)
    for d, g in zip(ops, gaps):
        for p in d[0]:
            if G.m[g - 1] and "buffer_" in G.m[g - 1][-1] and "lds" in G.m[g - 1][-1] and "m0" in p: G.p[g - 1].append(p)
            else: G.s[g - 1].append(p)
        G.m[g].append(d[1])
        if len(d) > 2:
            pp = [q for p in d[2] for q in p.split(chr(10))]
            nxt = [h for h in gaps[:len(ops)] if h > g]
            for k, p in enumerate(pp): G.s[min(g + 1 + k // 2, nxt[0] if nxt else 10**9)].append(p)
def layout(n, nmem, nrd):
    mg = sorted(set(1 + (k * (n - 3)) // max(nmem, 1) for k in range(nmem)))
    assert len(mg) == nmem
    rg = [g for g in range(n - 2) if g not in mg][:nrd]
    if len(rg) < nrd: rg = sorted(rg + mg[:nrd - len(rg)])
    return mg, rg
pendw = []
def p1_half(mf, mem, reads, addr, wait, valu=None, vstart=0):
    G = Gaps(mf); n = len(mf)
    mg, rg = layout(n, len(mem), len(reads))
    for k, r in zip(rg, reads): G.m[k].append(r)
    place(G, mem, mg)
    for after, x in addr:
        g0 = rg[after] + 1 if after >= 0 else 0
        c = [g for g in range(g0, n - 1) if g not in mg and len(G.v[g]) < (1 if G.m[g] else 2) and not (G.m[g] and G.s[g])]
        G.v[c[0]].append(x)
    if valu is not None:
        work, base = valu
        lastw = -9
        for g in range(n):
            if base and pendw and g - lastw >= 3 and g not in mg and not G.m[g]:
                G.m[g].append(pendw.pop(0)); lastw = g; continue
            room = 0 if g in mg else (1 if G.m[g] else 2)
            while work and work[0][0] <= g + base and (work[0][1] == "w" or len(G.v[g]) < room) and len(pendw) < 7:
                w = work.pop(0)
                if w[1] == "w": pendw.append(w[2])
                else: G.v[g].append(w[2])
    if wait is not None:
        G.s[n - 1].append(wait); G.s[n - 1].append("s_barrier")
    G.emit()

def kq(f): return (f % 4, f // 4) if O.accord else (f // 2, f % 2)
def k_read(f): return f"ds_read_b128 {ar(KF+4*f)}, v{V_KA+kq(f)[0]} offset:{kq(f)[1]*4096}"
def v_read(dq, e): return f"ds_read_b64_tr_b16 {vr(VF+4*dq+2*e,2)}, v{V_VA+dq}" + (" offset:4096" if e else "")
def k_addr(slot): return [f"v_add_u32 v{V_KA}, {slot}, v{V_KB}"] + [f"v_xor_b32 v{V_KA+q}, {q*64}, v{V_KA}" for q in range(1, 4)]
def v_addr(slot): return [f"v_add_u32 v{V_VA}, {slot}, v{V_VB}"] + [f"v_xor_b32 v{V_VA+d}, {d*32}, v{V_VA}" for d in range(1, 8)]
def oacc(rt, dq): return vr(OK_ + 16 * rt + 4 * dq) if dq < 4 else ar(OS_ + 16 * rt + 4 * (dq - 4))
def qk_mfmas(rt, S, usenm=True):
    m = []
    for f in range(8):
        q, kt = kq(f)
        d = S + 4 * kt
        c = (vr(NM + 4 * rt) if usenm else "0") if q == 0 else vr(d)
        m.append(f"{MF} {vr(d)}, {ar(KF+4*f)}, {ar(QA+16*rt+4*q)}, {c}")
    return m
def pv_mfmas(rt, first=False):
    P = PB + 4 * COL[rt]
    return [f"{MF} {oacc(rt,dq)}, {vr(VF+4*dq)}, {vr(P)}, " + ("0" if first else oacc(rt, dq)) for dq in range(8)]
def sm_ops(rt, scol=None):
    S = SB + 8 * (COL[rt] if scol is None else scol); P = PB + 4 * COL[rt]
    e = [f"v_exp_f32 v{S+k}, v{S+k}" for k in range(8)]
    a = [f"v_add_f32 v{LS+rt}, v{LS+rt}, v{S+k}" for k in range(8)]
    c = [f"v_cvt_pk_bf16_f32 v{P+k}, v{S+2*k}, v{S+2*k+1}" for k in range(4)]
    return e, a, c
def put_softmax(G, base, rt):
    e, a, c = sm_ops(rt)
    for k in range(8):
        G.v[base + 2 * k].append(e[k])
        if k % 2 == 1: G.v[base + 2 * k + 1].append(c[k // 2])
        G.v[base + 2 * k + 1].append(a[k])
def sm0_nm(rt):
    t = V_TMP + 2 * (rt & 1)
    return [f"v_sub_f32 v{NM+4*rt+k}, 0, v{t}" for k in range(4)]
def sm0_ops(rt):
    scol = 2 if rt == 0 else COL[rt]
    S = SB + 8 * scol; t = V_TMP + 2 * (rt & 1)
    e, a, c = sm_ops(rt, scol)
    a[1] = f"v_add_f32 v{LS+rt}, v{S}, v{S+1}"
    pn = sm0_nm(rt - 1) if rt else ["s_nop 0", "s_nop 0", None, None]
    sub = [f"v_sub_f32 v{S+k}, v{S+k}, v{t}" for k in range(8)]
    g = [[f"v_max3_f32 v{t}, v{S}, v{S+1}, v{S+2}", f"v_max3_f32 v{t+1}, v{S+3}, v{S+4}, v{S+5}", f"v_max3_f32 v{t}, v{t}, v{S+6}, v{S+7}"],
         [f"v_max_f32 v{t}, v{t}, v{t+1}", f"v_max_f32 v{t+1}, v{t}, v{t+1}", pn[0]],
         [f"v_permlane32_swap_b32 v{t}, v{t+1}", f"v_max_f32 v{t}, v{t}, v{t+1}", f"v_mov_b32 v{t+1}, v{t}", pn[1]],
         [f"v_permlane16_swap_b32 v{t}, v{t+1}", f"v_max_f32 v{t}, v{t}, v{t+1}", sub[0]],
         [e[0], sub[1]], [e[1], sub[2]], [e[2], sub[3]], [e[3], sub[4], a[1]], [e[4], sub[5], c[0]], [e[5], sub[6], a[2]], [e[6], sub[7], a[3]],
         [e[7], c[1], a[4]], [c[2], a[5], pn[2]], [c[3], a[6]], [a[7], pn[3]]]
    return [[x for x in grp if x] for grp in g]

def next_dma_state():
    return [f"s_add_u32 s{S_I}, s{S_I}, 1", f"s_bitcmp1_b32 s{S_MASK}, s{S_I}", f"s_cselect_b32 s{S_SL0}, s{S_DS}, 0x30000", f"s_cselect_b32 s{S_KVE}, s{S_KVG}, 0x40000000",
            f"s_cselect_b32 s{S_T3}, 32768, 0", f"s_sub_u32 s{S_DS}, s{S_DS}, s{S_T3}", f"s_cselect_b32 s{S_DS}, {(RING-1)*32768}, s{S_DS}",
            f"s_lshr_b32 s{S_T3}, s{S_T3}, 1", f"s_add_u32 s{S_KVG}, s{S_KVG}, s{S_T3}", f"s_and_b32 s{S_KVG}, s{S_KVG}, 0x3ffff"]
V_WOF = 8; V_RA0 = 232; V_RA1 = 236; V_L2 = 240
pf_cnt = [0, 0]
def put_pf(G, t):
    if t == 12 + O.nskip:
        if O.pf_row:
            G.v[1].append(f"v_and_b32 v{V_TMP+8}, 7, v0"); G.v[3].append(f"v_and_b32 v{V_TMP+7}, 8, v0"); G.v[5].append(f"v_lshl_add_u32 v{V_TMP+8}, v{V_TMP+7}, 1, v{V_TMP+8}"); G.v[7].append(f"v_lshlrev_b32 v{V_TMP+8}, 7, v{V_TMP+8}")
        else:
            G.v[1].append(f"v_and_b32 v{V_TMP+8}, 15, v0"); G.v[5].append(f"v_lshlrev_b32 v{V_TMP+8}, 11, v{V_TMP+8}")
        pf_cnt[0] = 0; pf_cnt[1] = 4 * O.wo_first
    if O.cpf and t == O.cpf_at:
        c2 = code_pf("L_last+2048", 6, V_TMP + 5)
        G.chain(c2[0], [6, 8]); G.v[10].append(c2[1]); G.m[11].append(c2[2].replace(f"v{V_TMP+6},", f"v{V_QP},")); pf_cnt[0] += 1
    gl = {1: [13], 2: [13, 57], 3: [13, 47, 81], 4: [13, 41, 63, 87], 5: [13, 41, 55, 71, 87], 6: [13, 23, 41, 55, 71, 87]}[O.pf_q] if O.pf_q else []
    for g in gl:
        if pf_cnt[1] >= O.pf_max: break
        k = pf_cnt[1]
        G.s[g - 1].append(f"s_add_u32 s{S_T0}, s{S_PFO}, {(k // 4) * 8 * 65536 + (k % 4) * (4096 if O.pf_row else 32768)}")
        G.m[g].append(f"buffer_load_dword v{V_QP}, v{V_TMP+8}, {sr(S_WO,4)}, s{S_T0} offen")
        pf_cnt[0] += 1; pf_cnt[1] += 1
def att_iter(kind, t=None):
    mf = []; base = []
    for n in range(7):
        base.append(len(mf))
        mf += qk_mfmas(n, SB + 8 * (2 if (kind == "first" and n == 0) else COL[n]), usenm=(kind != "first"))
        if not (kind == "first" and n < 2): mf += pv_mfmas((n - 2) % 7, first=(kind == "first"))
    G = Gaps(mf)
    if kind == "first":
        for k in range(16): G.m[k].append(v_read(k // 2, k % 2) + " ;@vf")
        for n in range(1, 7):
            g = sm0_ops(n - 1)
            if n == 1: pos = [11, 12, 13, 14, 15, 15, 16, 16, 17, 17, 18, 18, 19, 19, 20]
            elif n == 2: pos = [base[2] + x for x in [4, 5, 6, 7, 8, 8, 9, 10, 11, 12, 13, 14, 15, 15, 15]]
            else: pos = [base[n] + x for x in range(15)]
            for grp, p in zip(g, pos):
                for x in grp: G.v[p].append(x)
        G.s[base[2] + 6].append("s_waitcnt lgkmcnt(@vf)")
        off = lambda g: g - 16
        G.v[2].append(f"v_lshlrev_b32 v{V_TMP+8}, 11, v0")
        if O.e4:
            place(G, early_writes()[20:], [off(g) for g in [37, 41, 44, 47, 52, 54, 58, 61, 63, 68, 70, 74, 77, 79, 84, 86]])
            G.s[off(91)].append("s_waitcnt lgkmcnt(@ew)")
            for k in range(32): G.v[off([93, 94, 95, 95, 100, 102, 109, 110, 111, 110][k % 10])].append(f"v_mov_b32 v{OK_+80+k}, 0")
        else:
            place(G, early_writes()[20:], [off(g) for g in [50, 54, 58, 62, 63, 66, 70, 74]])
            d4 = kv_dma("K", 0) + kv_dma("V", 0); d4[7] = d4[7] + ([KVG_UPD],)
            place(G, d4, [off(g) for g in [36, 42, 47, 52, 60, 68, 72, 78]])
        for j in range(O.wo_first):
            g = off([61, 79][j])
            G.s[g - 1].append(f"s_add_u32 s{S_T0}, s{S_PFO}, {j*8*65536}")
            G.m[g].append(f"buffer_load_dword v{V_QP}, v{V_TMP+8}, {sr(S_WO,4)}, s{S_T0} offen")
        for j in range(0 if O.pref_last else O.wo_pref):
            G.m[off(36 + 3 * j)].append(f"buffer_load_dword v{V_QP}, v{V_TMP+8}, {sr(S_WO,4)}, s{S_PFO} offen")
            G.s[off(37 + 3 * j)].append(f"s_add_u32 s{S_PFO}, s{S_PFO}, {8*65536}")
    else:
        for n in range(7): put_softmax(G, 16 * n, (n - 1) % 7)
        off = lambda g: g
        G.s[0].append("s_waitcnt lgkmcnt(4)"); G.s[2].append("s_waitcnt lgkmcnt(2)"); G.s[4].append("s_waitcnt lgkmcnt(0)")
        for k in range(16): G.m[24 + k].append(v_read(k // 2, k % 2))
        G.s[38].append("s_waitcnt lgkmcnt(10)")
        G.s[40].append("s_waitcnt lgkmcnt(8)"); G.s[42].append("s_waitcnt lgkmcnt(4)"); G.s[44].append("s_waitcnt lgkmcnt(0)")
        va = v_addr(f"s{S_SL1}")
        for x, g in zip(va[4:], [5, 9, 17, 21]): G.v[g].append(x)
    if kind != "last":
        va = v_addr(f"s{S_SL2}"); ka = k_addr(f"s{S_SL2}")
        if kind == "first":
            for x, g in zip(va[:4] + ka, [off(z) for z in [53, 62, 62, 69, 78, 78, 85, 94]]): G.v[g].append(x)
        elif kind == "pen":
            put_pf(G, t)
            if t == 14:
                place(G, wo_dma(0) + wo_dma(1), [1, 19, 41, 49, 57, 65, 73, 91]); pf_cnt[0] += 8
            for x, g in zip(va[:4], [45, 53, 61, 69]): G.v[g].append(x)
            for x, g in zip(ka, [77, 85, 89, 93]): G.v[g].append(x)
            G.s[94].append(f"s_waitcnt vmcnt({8 * (14 - t) + pf_cnt[0]})")
        else:
            place(G, kv_dma("K", f"s{S_SL0}", S_KVE) + kv_dma("V", f"s{S_SL0}", S_KVE), [1, 13, 41, 49, 57, 65, 73, 81])
            for x, g in zip(va[:4], [45, 53, 61, 69]): G.v[g].append(x)
            for x, g in zip(ka, [77, 85, 89, 93]): G.v[g].append(x)
            G.s[94].append(f"s_waitcnt vmcnt({24 if t == 0 else 24 - 8 * O.nskip})")
        G.s[off(95)].append("s_barrier")
        for f in range(8): G.m[off(97 + 2 * f)].append(k_read(f))
        if kind != "pen": G.chain(next_dma_state(), [off(g) for g in [82, 84, 86, 88, 90, 92, 96, 98, 100, 102]])
        G.chain([f"s_sub_u32 s{S_SL2}, s{S_SL2}, 32768", f"s_cselect_b32 s{S_SL2}, {(RING-1)*32768}, s{S_SL2}", f"s_cmp_lt_u32 s{S_I}, {O.ta + 1 if (kind == chr(108)+chr(111)+chr(111)+chr(112) and t == 0) else 12 + O.nskip}", "s_waitcnt lgkmcnt(5)"],
                [off(g) for g in [104, 106, 108, 110]])
    else:
        for rt in range(4):
            for k in range(4): G.m[16 * (rt + 3) + 1 + 4 * k].append(f"ds_write_b128 v{V_T0}, {ar(OS_+16*rt+4*k)} offset:{(4*rt+k)*1024}")
        put_pf(G, 15)
        G.s[46].append("s_barrier")
        G.v[9].append(f"v_mov_b32 v{V_TMP+9}, 0"); G.m[17].append(f"global_load_dword v{V_TMP+10}, v{V_TMP+9}, {sr(P_DBG)} sc1 ;@st0")
        ex = [f"v_add_u32 v{V_RA0}, s{S_LB0}, v{V_RAB}"] + [f"v_xor_b32 v{V_RA0+q}, {q*32}, v{V_RA0}" for q in range(1, 4)]
        for x, g in zip(ex, [1, 3, 7, 13]): G.v[g].append(x)
        ex = ([f"v_add_u32 v{V_RA1}, s{S_LB1}, v{V_RAB}", f"v_add_u32 v{V_L2}, 4096, v{V_LANE16}"] + [f"v_xor_b32 v{V_RA1+q}, {q*32}, v{V_RA1}" for q in range(1, 4)]
              + [f"v_and_b32 v{V_STW}, 15, v0", f"v_lshl_add_u32 v{V_STW}, v{V_STW}, 3, s{S_STW}", f"v_xor_b32 v{V_STR}, 1024, v{V_STW}",
                 f"v_and_b32 v{V_FLR}, 3, v0", f"v_lshlrev_b32 v{V_FLR}, 10, v{V_FLR}", f"v_add_u32 v{V_FLR}, {ST0+896}, v{V_FLR}"])
        for x, g in zip(ex, [41, 45, 51, 55, 59, 63, 67, 71, 75, 79, 83]): G.v[g].append(x)
    return G

def code_pf(label, sh, vt):
    return ([f"s_lshl_b32 s6, s{S_WAVE}, {6+sh}", f"s_add_u32 s6, s6, {label}-L_pc"], f"v_lshl_add_u32 v{vt}, v0, {sh}, s6", f"global_load_dword v{V_TMP+6}, v{vt}, s[4:5]")
def multi_reduce(regs, temps, op):
    for sw in ("v_permlane32_swap_b32", "v_permlane16_swap_b32"):
        for r, t in zip(regs, temps): I(f"v_mov_b32 v{t}, v{r}")
        I("s_nop 1")
        for r, t in zip(regs, temps): I(f"{sw} v{r}, v{t}")
        I("s_nop 1")
        for r, t in zip(regs, temps): I(f"{op} v{r}, v{r}, v{t}")

RA_N = 13; RL_N = 9; NB = 5; ACC = 16
slot_of = {0: 0, 1: 1}
def areg(m, k, n):
    e = m % RA_N
    na = (256 - 28 * NB) // 16
    assert RA_N <= na + 6
    return ar(28 * NB + 16 * e + k, n) if e < na else vr(128 + 16 * (e - na) + k, n)
def bump(s, d): return [f"s_add_u32 s{s}, s{s}, {d}", f"s_addc_u32 s{s+1}, s{s+1}, 0", f"s_sub_u32 s{s+2}, s{s+2}, {d}"]
def wo_dma(m):
    s = slot_of[m]
    m0 = f"s_add_u32 m0, s{S_LB0}, {s*4096}" if s < 2 else f"s_add_u32 m0, s{S_LB1}, {(s-2)*4096}"
    pre = (bump(S_WO, 8 * 65536) if (m % 8 == 0 and m) else []) + [m0]
    return [(pre if j == 0 else [], f"buffer_load_dwordx4 v{V_WOF+j}, {sr(S_WO,4)}, s{S_TW+m%8} offen offset:{j*1024} {pol(O.pol_wo)}lds ;@w{m}") for j in range(4)]
def a_reads(m):
    s = slot_of[m]
    ra, o = (V_RA0, s * 4096) if s < 2 else (V_RA1, (s - 2) * 4096)
    return [f"ds_read_b64_tr_b16 {areg(m,4*cq+2*e,2)}, v{ra+cq} offset:{o+e*2048} ;@a{m}" for cq in range(4) for e in range(2)]
S_WBO = 8; S_SO = 33; S_PST = 20; S_PLD = 21; S_BIT = 22
def b_loads(n):
    pre = [f"s_add_u32 s{S_SO+n%2}, s{S_WBO+n//8}, s{S_TO+n%8}"]
    return [(pre if rt == 0 else [], f"buffer_load_dwordx4 {ar(28*(n%NB)+4*rt)}, v{V_LANE16 if rt<4 else V_L2}, {sr(S_OO,4)}, s{S_SO+n%2} offen offset:{(rt%4)*1024} {O.pol_old} ;@b{n}") for rt in range(7)]
def p3_mfmas(n):
    return [f"{MF} {vr(ACC+16*rt+4*cq)}, {areg(n,4*cq,4)}, {ar(28*(n%NB)+4*rt)}, " + ("0" if n % 16 == 0 else vr(ACC+16*rt+4*cq)) for rt in range(7) for cq in range(4)]

def gen():
    K = NAME + "_kernel"
    A(f".globl {K}\n.p2align 8\n.type {K},@function\n{K}:")
    I("s_cmp_ge_u32 s2, 256"); I("s_cbranch_scc1 L_done")
    I("s_load_dwordx16 s[52:67], s[0:1], 0")
    I("s_getpc_b64 s[4:5]")
    A("L_pc:")
    if O.cp0 == 0:
        I("v_lshlrev_b32 v14, 7, v0"); I("global_load_dword v15, v14, s[4:5]"); I("v_lshrrev_b32 v14, 1, v14"); I("v_add_u32 v14, 0x8000, v14"); I("global_load_dword v15, v14, s[4:5]")
    elif O.cp0 == 1:
        I("s_lshl_b32 s6, s2, 9"); I("s_and_b32 s6, s6, 0x3000"); I("v_lshl_add_u32 v14, v0, 4, s6"); I("global_load_dword v15, v14, s[4:5] offset:512")
    I("v_lshrrev_b32 v14, 6, v0")
    I("v_and_b32 v0, 63, v0")
    I(f"v_readfirstlane_b32 s{S_WAVE}, v14")
    I(f"s_and_b32 s{S_T0}, s2, 7"); I(f"s_lshr_b32 s{S_T1}, s2, 3")
    I(f"s_and_b32 s{S_B}, s{S_T0}, 1"); I(f"s_lshl_b32 s{S_B}, s{S_B}, 2"); I(f"s_and_b32 s{S_T2}, s{S_T1}, 3"); I(f"s_add_u32 s{S_B}, s{S_B}, s{S_T2}")
    I(f"s_lshr_b32 s{S_H}, s{S_T0}, 1"); I(f"s_lshl_b32 s{S_H}, s{S_H}, 3"); I(f"s_lshr_b32 s{S_T3}, s{S_T1}, 2"); I(f"s_add_u32 s{S_H}, s{S_H}, s{S_T3}")
    if O.lin_map: I(f"s_lshr_b32 s{S_B}, s2, 5"); I(f"s_and_b32 s{S_H}, s2, 31")
    I(f"s_mul_i32 s{S_T3}, s{S_T3}, {O.rotmul_h*128}"); I(f"s_mul_i32 s{S_T2}, s{S_T2}, {O.rotmul_b*128}"); I(f"s_add_u32 s{S_OX}, s{S_T2}, s{S_T3}")
    if O.rotmul_x: I(f"s_mul_i32 s{S_T0}, s{S_T0}, {O.rotmul_x*128}"); I(f"s_add_u32 s{S_OX}, s{S_OX}, s{S_T0}")
    I(f"s_and_b32 s{S_OX}, s{S_OX}, 2047"); I(f"s_lshl_b32 s{S_OW}, s{S_OX}, 12")
    I(f"s_lshr_b32 s{S_R}, s{S_WAVE}, 1"); I(f"s_and_b32 s{S_C}, s{S_WAVE}, 1")
    I(f"s_lshl_b32 s{S_W4K}, s{S_WAVE}, 12"); I(f"s_add_u32 s{S_W4KK}, s{S_W4K}, {KOFF}"); I(f"s_add_u32 s{S_WXT}, s{S_W4K}, {XT}"); I(f"s_mul_i32 s{S_T0}, s{S_R}, {14*1024}"); I(f"s_lshl_b32 s{S_MXA}, s{S_C}, 12"); I(f"s_add_u32 s{S_MXA}, s{S_MXA}, s{S_T0}")
    I(f"s_mul_i32 s{S_MXB}, s{S_C}, 3072"); I(f"s_add_u32 s{S_MXB}, s{S_MXB}, s{S_T0}"); I(f"s_add_u32 s{S_MXB}, s{S_MXB}, 8192")
    T = V_TMP
    I(f"v_and_b32 v{T}, 15, v0"); I(f"v_lshrrev_b32 v{T+1}, 4, v0")
    I(f"v_and_b32 v{T+4}, 7, v0"); I(f"v_xor_b32 v{T+4}, v{T+4}, v{T+1}")
    I(f"v_lshrrev_b32 v{T+5}, 3, v0"); I(f"v_lshlrev_b32 v{T+7}, 11, v{T+5}"); I(f"v_lshl_add_u32 v{T+4}, v{T+4}, 4, v{T+7}")
    I(f"s_lshl_b32 s{S_T0}, s{S_C}, 16"); I(f"v_add_u32 v{V_XOFF}, s{S_T0}, v{T+4}"); I(f"v_xor_b32 v{T+5}, 64, v{V_XOFF}")
    for j in range(1, 4): I(f"v_add_u32 v{V_XOFF+j}, {j*16384-j*1024}, v{V_XOFF if j%2==0 else T+5}")
    I(f"s_lshl_b32 s{S_T0}, s{S_C}, 6"); I(f"v_xor_b32 v{T+4}, s{S_T0}, v{T+4}"); I(f"s_mul_i32 s{S_T0}, s{S_C}, {24*2048}"); I(f"s_add_u32 s{S_T0}, s{S_T0}, {64*2048}")
    I(f"v_add_u32 v{V_XOFF+4}, s{S_T0}, v{T+4}"); I(f"v_xor_b32 v{T+5}, 64, v{V_XOFF+4}")
    for j in range(1, 3): I(f"v_add_u32 v{V_XOFF+4+j}, {j*16384-j*1024}, v{V_XOFF+4 if j%2==0 else T+5}")
    I(f"v_lshlrev_b32 v{T+4}, 2, v{T+1}"); I(f"v_xor_b32 v{T+4}, v{T+4}, v{T}"); I(f"v_lshlrev_b32 v{T+5}, 13, v{T+1}"); I(f"v_lshl_add_u32 v{V_WOFF}, v{T+4}, 4, v{T+5}")
    for j in range(1, 4): I(f"v_add_u32 v{V_WOFF+j}, {j*32768-j*1024}, v{V_WOFF}")
    I(f"s_mul_i32 s{S_T0}, s{S_B}, 458752"); I(f"s_mul_i32 s{S_T1}, s{S_R}, {112*2048}"); I(f"s_add_u32 s{S_T0}, s{S_T0}, s{S_T1}")
    I(f"s_lshl_b32 s{S_T1}, s{S_H}, 8"); I(f"s_lshl_b32 s{S_T2}, s{S_WAVE}, 17"); I(f"s_add_u32 s{S_T1}, s{S_T1}, s{S_T2}")
    I("s_waitcnt lgkmcnt(0)")
    stamp()
    srd(S_X, P_X, 3670016, S_T0); srd(S_WQ, P_WQ, 8388608, S_T1)
    Q = []
    for k in range(16):
        Q += [(-1 if k <= 2 else (0 if k == 3 else 2 * (k - 4) + 1), x) for x in d_w(k)]
        Q += [(-1 if k <= 2 else 2 * (k - 3), x) for x in d_xa(k)]
        Q += [(-1 if k <= 2 else 2 * (k - 3) + 1, x) for x in d_xb(k)]
    def take(hh, cap, cap2):
        out = []
        pend = 0
        while pend < len(Q) and Q[pend][0] <= hh: pend += 1
        n = min(pend, cap if (hh < 0 or pend <= cap + (2 if hh % 2 else 0)) else cap2)
        for _ in range(n): out.append(Q.pop(0)[1])
        return out
    emit_dma(take(-1, min(O.n_up, O.n_up0), 0), post=True)
    I(f"s_lshl_b32 s{S_T0}, s{S_B}, 5"); I(f"s_add_u32 s{S_T0}, s{S_T0}, s{S_H}"); I(f"s_lshl_b32 s{S_T0}, s{S_T0}, 18")
    srd(S_K, P_K, 262144, S_T0, sub=False); srd(S_V, P_V, 262144, S_T0, sub=False)
    if O.tlbw:
        I("v_mov_b32 v14, 0")
        I(f"buffer_load_dword v15, v14, {sr(S_K,4)}, 0 offen {O.pol_kv}"); I(f"buffer_load_dword v15, v14, {sr(S_V,4)}, 0 offen {O.pol_kv}")
    if O.tlbw > 1:
        I("v_and_b32 v14, 3, v0"); I("v_lshlrev_b32 v14, 21, v14"); I(f"global_load_dword v15, v14, {sr(P_WQ)}")
    if O.tlbw > 2:
        I(f"global_load_dword v15, v14, {sr(P_WO)}")
        I("v_and_b32 v14, 7, v0"); I("v_lshlrev_b32 v14, 21, v14"); I("v_add_u32 v14, 0x1000000, v14"); I("v_subrev_u32 v14, 0x1000000, v14")
    srd(S_O, P_WS, PART + 256 * 28672); srd(S_OUT, P_OUT, 3670016)
    I(f"s_lshr_b32 s{S_T0}, s2, 3"); I(f"s_mul_i32 s{S_T0}, s{S_T0}, {O.kv_rot_j}"); I(f"s_and_b32 s{S_T1}, s2, 7"); I(f"s_mul_i32 s{S_T1}, s{S_T1}, {O.kv_rot_x}")
    I(f"s_add_u32 s{S_T0}, s{S_T0}, s{S_T1}"); I(f"s_and_b32 s{S_T0}, s{S_T0}, 15"); I(f"s_lshl_b32 s{S_T0}, s{S_T0}, 14"); I(f"s_add_u32 s{S_KV0}, s{S_T0}, s{S_W4K}")
    n_it = 11 + O.nskip
    I(f"s_mov_b32 s{S_MASK}, {((1 << n_it) - 1) << 1:#x}")
    if O.nskip:
        span = n_it - O.ta
        I(f"s_mul_i32 s{S_T0}, s2, 37"); I(f"s_and_b32 s{S_T0}, s{S_T0}, 255"); I(f"s_mul_i32 s{S_T0}, s{S_T0}, {span}"); I(f"s_lshr_b32 s{S_T0}, s{S_T0}, 8")
        for k in range(O.nskip):
            I(f"s_add_u32 s{S_T1}, s{S_T0}, {(k * span) // O.nskip}"); I(f"s_cmp_ge_u32 s{S_T1}, {span}"); I(f"s_cselect_b32 s{S_T2}, {span}, 0"); I(f"s_sub_u32 s{S_T1}, s{S_T1}, s{S_T2}")
            I(f"s_add_u32 s{S_T1}, s{S_T1}, {O.ta + 1}"); I(f"s_bitset0_b32 s{S_MASK}, s{S_T1}")
    I(f"s_mov_b32 s{S_FB}, 0"); I(f"s_mov_b32 s{S_KVG}, s{S_KV0}"); I(f"s_mov_b32 s{S_SCALE}, {f2u(SCALE):#x}")
    I(f"s_lshl_b32 s{S_T0}, s{S_B}, 1"); I(f"s_add_u32 s{S_T0}, s{S_T0}, s{S_R}"); I(f"s_lshl_b32 s{S_T0}, s{S_T0}, 5"); I(f"s_add_u32 s{S_T0}, s{S_T0}, s{S_H}")
    I(f"s_lshl_b32 s{S_T0}, s{S_T0}, 1"); I(f"s_add_u32 s{S_T0}, s{S_T0}, s{S_C}"); I(f"s_mul_i32 s{S_OST}, s{S_T0}, 14336")
    I(f"s_lshl_b32 s{S_T0}, s{S_B}, 5"); I(f"s_add_u32 s{S_T0}, s{S_T0}, s{S_H}")
    I(f"s_lshr_b32 s{S_SIG}, s{S_T0}, 2"); I(f"s_lshl_b32 s{S_SIG}, s{S_SIG}, 7"); I(f"s_and_b32 s{S_T1}, s{S_H}, 3"); I(f"s_lshl_b32 s{S_T1}, s{S_T1}, 2"); I(f"s_add_u32 s{S_SIG}, s{S_SIG}, s{S_T1}"); I(f"s_add_u32 s{S_SIG}, s{S_SIG}, {FLG}")
    I(f"s_lshl_b32 s{S_T0}, s{S_T0}, 2"); I(f"s_add_u32 s{S_T0}, s{S_T0}, s{S_WAVE}"); I(f"s_mul_i32 s{S_INB}, s{S_T0}, 7168"); I(f"s_add_u32 s{S_INB}, s{S_INB}, {PART}")
    I(f"s_lshl_b32 s101, s{S_T0}, 7"); I(f"s_add_u32 s101, s101, {FLG + 65536}")
    KH = S_SL0; CG = S_SL1; U = S_SL2
    I(f"s_bfe_u32 s{KH}, s{S_H}, 0x10003"); I(f"s_and_b32 s{S_T3}, s{S_H}, 7"); I(f"s_lshr_b32 s{CG}, s{S_H}, 4"); I(f"s_lshl_b32 s{CG}, s{CG}, 3"); I(f"s_add_u32 s{CG}, s{CG}, s{S_T3}")
    I(f"s_lshr_b32 s{S_T1}, s2, 3"); I(f"s_and_b32 s{S_T2}, s{S_B}, 3")
    I(f"s_lshl_b32 s{S_PFO}, s{S_T1}, 14"); I(f"s_lshl_b32 s6, s{S_T3}, 7"); I(f"s_sub_u32 s{S_PFO}, s{S_PFO}, s6")
    I(f"s_mul_i32 s{S_T2}, s{S_T2}, {O.k2_rot_r}"); I(f"s_mul_i32 s{S_T3}, s{S_T3}, {O.k2_rot_c}"); I(f"s_add_u32 s{U}, s{S_T2}, s{S_T3}")
    I(f"s_xor_b32 s{S_T1}, s{KH}, 1"); I(f"s_lshl_b32 s{S_T1}, s{S_T1}, 1"); I(f"s_add_u32 s{S_T1}, s{S_T1}, s{S_C}"); I(f"s_lshl_b32 s{S_T2}, s{S_R}, 2"); I(f"s_add_u32 s{S_T1}, s{S_T1}, s{S_T2}")
    I(f"s_lshl_b32 s{S_T0}, s{S_B}, 4"); I(f"s_add_u32 s{S_T0}, s{S_T0}, s{S_T1}"); I(f"s_mul_i32 s{S_T0}, s{S_T0}, {16*7168}")
    srd(S_OO, P_WS, 144 * 7168, S_T0, sub=False)
    I(f"s_lshl_b32 s{S_POLL}, s{S_B}, 3"); I(f"s_add_u32 s{S_POLL}, s{S_POLL}, s{S_T1}"); I(f"s_lshl_b32 s{S_POLL}, s{S_POLL}, 7"); I(f"s_add_u32 s{S_POLL}, s{S_POLL}, {FLG}")
    I(f"s_lshl_b32 s{S_T1}, s{S_T1}, 20"); I(f"s_lshl_b32 s{S_T2}, s{CG}, 7"); I(f"s_add_u32 s{S_T1}, s{S_T1}, s{S_T2}")
    srd(S_WO, P_WO, 8388608, S_T1)
    I(f"s_lshl_b32 s{S_T0}, s{S_B}, 1"); I(f"s_add_u32 s{S_T0}, s{S_T0}, s{KH}")
    I(f"s_mul_i32 s{S_OUTOFF}, s{S_T0}, {112*2048}"); I(f"s_add_u32 s{S_OUTOFF}, s{S_OUTOFF}, s{S_T2}"); I(f"s_lshl_b32 s{S_T1}, s{S_WAVE}, 5"); I(f"s_add_u32 s{S_OUTOFF}, s{S_OUTOFF}, s{S_T1}")
    for u in range(8):
        I(f"s_add_u32 s{S_T0}, s{U}, {u}"); I(f"s_and_b32 s{S_T0}, s{S_T0}, 7"); I(f"s_lshl_b32 s{S_TW+u}, s{S_T0}, 16"); I(f"s_mul_i32 s{S_TO+u}, s{S_T0}, 7168")
    I(f"s_lshl_b32 s{S_LB0}, s{S_WAVE}, 13"); I(f"s_add_u32 s{S_LB0}, s{S_LB0}, 98304"); I(f"s_xor_b32 s{S_T3}, s{S_WAVE}, 1")
    I(f"s_mul_i32 s{S_LB1}, s{S_T3}, 28672"); I(f"s_cmp_eq_u32 s{S_T3}, 3"); I(f"s_cselect_b32 s{S_LB1}, 131072, s{S_LB1}")
    I(f"s_mul_i32 s{S_CA}, s{S_WAVE}, 28672"); I(f"s_cmp_eq_u32 s{S_WAVE}, 3"); I(f"s_cselect_b32 s{S_CA}, 131072, s{S_CA}")
    I(f"s_lshl_b32 s{S_STW}, s{S_WAVE}, 10"); I(f"s_add_u32 s{S_STW}, s{S_STW}, {ST0}")
    I(f"v_lshlrev_b32 v{T+4}, 1, v{T+1}"); I(f"v_and_b32 v{T+6}, 7, v0"); I(f"v_xor_b32 v{T+6}, v{T+4}, v{T+6}"); I(f"v_lshl_add_u32 v{V_WOB}, v{T+6}, 4, v{T+7}")
    I(f"v_xor_b32 v{T+4}, v{T+4}, v{T}"); I(f"v_lshlrev_b32 v{T+5}, 8, v{T+1}")
    for j in range(4):
        I(f"v_xor_b32 v{T+6}, {8*(j&1) + (j>>1)}, v{T+4}"); I(f"v_lshl_add_u32 v{V_KVOFF+j}, v{T+6}, 4, v{T+5}")
    if O.kv_noswz:
        for j in range(4): I(f"v_lshlrev_b32 v{V_KVOFF+j}, 4, v0")
    I(f"v_lshlrev_b32 v{V_LANE16}, 4, v0"); I(f"v_bfe_u32 v{T+2}, v0, 2, 2"); I(f"v_and_b32 v{T+3}, 3, v0")
    I(f"v_lshrrev_b32 v{T+4}, 1, v{T}"); I(f"v_xor_b32 v{T+4}, v{T+4}, v{T+1}"); I(f"s_mul_i32 s{S_T0}, s{S_R}, {112*128}")
    I(f"v_lshlrev_b32 v{T+5}, 7, v{T}"); I(f"v_add_u32 v{T+5}, s{S_T0}, v{T+5}"); I(f"v_lshl_add_u32 v{V_XB}, v{T+4}, 4, v{T+5}"); I(f"v_xor_b32 v{V_XB+1}, 64, v{V_XB}")
    I(f"v_lshrrev_b32 v{T+4}, 1, v{T+3}"); I(f"v_and_b32 v{T+5}, 1, v{T+3}"); I(f"v_lshl_add_u32 v{T+4}, v{T+5}, 1, v{T+4}")
    I(f"s_lshl_b32 s{S_T0}, s{S_C}, 1"); I(f"v_xor_b32 v{T+5}, s{S_T0}, v{T+2}"); I(f"v_lshl_add_u32 v{T+4}, v{T+5}, 2, v{T+4}")
    I(f"v_lshl_add_u32 v{T+5}, v{T+1}, 3, v{T+2}"); I(f"v_lshlrev_b32 v{T+5}, 8, v{T+5}"); I(f"v_lshl_add_u32 v{V_WB}, v{T+4}, 4, v{T+5}"); I(f"v_xor_b32 v{V_WB+1}, 64, v{V_WB}")
    I(f"v_lshrrev_b32 v{T+4}, 1, v{T+1}"); I(f"v_and_b32 v{T+5}, 1, v{T+1}"); I(f"v_lshl_add_u32 v{T+4}, v{T+5}, 1, v{T+4}")
    I(f"v_and_b32 v{T+5}, 7, v{T}"); I(f"v_lshrrev_b32 v{T+6}, 3, v{T}"); I(f"v_lshl_add_u32 v{T+5}, v{T+5}, 1, v{T+6}")
    I(f"v_xor_b32 v{T+4}, v{T+4}, v{T+5}"); I(f"s_lshl_b32 s{S_T0}, s{S_C}, 3"); I(f"v_xor_b32 v{T+4}, s{S_T0}, v{T+4}")
    I(f"s_lshl_b32 s{S_T1}, s{S_C}, 13"); I(f"s_add_u32 s{S_T2}, s{S_T1}, {KOFF}")
    I(f"v_lshlrev_b32 v{T+5}, 8, v{T}"); I(f"v_add_u32 v{T+5}, s{S_T2}, v{T+5}"); I(f"v_lshl_add_u32 v{V_KB}, v{T+4}, 4, v{T+5}")
    I(f"v_lshl_add_u32 v{T+6}, v{T+1}, 2, v{T+2}")
    I(f"v_bfe_u32 v{T+4}, v{T+6}, 1, 2"); I(f"v_xor_b32 v{T+4}, s{S_WAVE}, v{T+4}"); I(f"v_lshlrev_b32 v{T+5}, 7, v{T+6}"); I(f"v_lshl_add_u32 v{T+5}, v{T+4}, 5, v{T+5}"); I(f"v_lshl_add_u32 v{V_RAB}, v{T+3}, 3, v{T+5}")
    I(f"v_and_b32 v{T+4}, 7, v{T+6}"); I(f"v_lshrrev_b32 v{T+5}, 3, v{T+6}"); I(f"v_lshl_add_u32 v{T+4}, v{T+4}, 1, v{T+5}")
    I(f"v_bfe_u32 v{T+5}, v0, 1, 1"); I(f"v_xor_b32 v{T+4}, v{T+4}, v{T+5}"); I(f"v_xor_b32 v{T+4}, s{S_T0}, v{T+4}")
    I(f"v_lshlrev_b32 v{T+6}, 8, v{T+6}"); I(f"v_add_u32 v{T+6}, s{S_T1}, v{T+6}"); I(f"v_lshl_add_u32 v{T+6}, v{T+4}, 4, v{T+6}")
    I(f"v_and_b32 v{T+5}, 1, v0"); I(f"v_lshl_add_u32 v{V_VB}, v{T+5}, 3, v{T+6}")
    for k in range(2):
        I(f"v_mov_b32 v{V_XA+k}, v{V_XB+k}"); I(f"v_mov_b32 v{V_WA+k}, v{V_WB+k}")
    if not O.e4:
        for k in range(32): I(f"v_mov_b32 v{OK_+80+k}, 0")
    for k in range(32): I(f"v_accvgpr_write_b32 a{OS_+80+k}, 0")
    for x in v_addr((RING - 1) * 32768): I(x)
    I(f"s_mul_i32 s{S_T2}, s{S_WAVE}, 14336"); I(f"v_add_u32 v{V_T0}, s{S_T2}, v{V_LANE16}")
    I(f"s_mul_i32 s{S_T3}, s{S_T3}, 14336"); I(f"v_add_u32 v{V_QP}, s{S_T3}, v{V_LANE16}")
    I(f"v_add_u32 v{V_KW1}, s{S_W4K}, v{V_LANE16}"); I(f"v_add_u32 v{V_KW0}, 0x10000, v{V_KW1}"); I(f"v_add_u32 v{V_KW2}, 0x20000, v{V_KW1}")
    if O.cpf:
        c1 = code_pf("L_trans", 6, 215)
        for x in c1[0] + [c1[1]]: I(x)
    for p in range(O.nl2):
        same = O.f1 == O.f2
        for rng, t, h in ((O.f1, S_T1, 0), (O.f2, S_T2, 1)):
            lo, hi = [int(z) for z in rng.split(",")]; n = hi - lo + 1
            I(f"s_add_u32 s{t}, s2, {128 if h else 0}"); I(f"s_and_b32 s{t}, s{t}, 255"); I(f"s_mul_i32 s{t}, s{t}, {n}"); I(f"s_lshr_b32 s{t}, s{t}, 8"); I(f"s_add_u32 s{t}, s{t}, {lo}")
            I(f"s_lshl_b32 s{t}, s{t}, 14"); I(f"s_add_u32 s{t}, s{t}, s{S_KV0}"); I(f"s_and_b32 s{t}, s{t}, 0x3ffff")
        I(f"v_mov_b32 v{T+4}, s{S_T1}"); I(f"v_mov_b32 v{T+5}, s{S_T2}"); I(f"v_cmp_gt_u32 vcc, 32, v0"); I(f"v_and_b32 v{T+6}, 31, v0"); I("s_nop 0")
        I(f"v_cndmask_b32 v{T+4}, v{T+5}, v{T+4}, vcc"); I(f"v_lshl_add_u32 v{V_PF+p}, v{T+6}, 7, v{T+4}")
    if O.gmode:
        I(f"s_cmp_eq_u32 s{S_R}, 0"); I(f"s_cselect_b32 s4, s{S_K}, s{S_V}"); I(f"s_cselect_b32 s5, s{S_K+1}, s{S_V+1}"); I(f"s_cselect_b32 s{S_T0}, 16384, 0")
        I("s_mov_b32 s6, 262144"); I("s_mov_b32 s7, 0x20000")
        I(f"s_sub_u32 s{S_T1}, s{S_KV0}, s{S_W4K}"); I(f"s_add_u32 s{S_T0}, s{S_T0}, s{S_T1}"); I(f"s_lshl_b32 s{S_T1}, s{S_C}, 13"); I(f"s_add_u32 s{S_T0}, s{S_T0}, s{S_T1}")
        for r in range(O.g_rounds):
            I(f"s_add_u32 s{60+r}, s{S_T0}, {r*16384}"); I(f"s_and_b32 s{60+r}, s{60+r}, 0x3ffff")
        I(f"s_lshr_b32 s100, s2, 3"); I(f"s_mul_i32 s100, s100, {O.g_per}"); I("s_lshr_b32 s100, s100, 5")
        I(f"v_lshlrev_b32 v{V_KW0}, 7, v0")
    emit_dma(take(-1, max(0, O.n_up - O.n_up0), 0), post=True)
    I("s_waitcnt vmcnt(@xa0)"); I("s_barrier")
    stamp()
    for r in r_w(0)[:2] + r_x([0])[:1] + r_w(0)[2:] + r_x(range(4))[1:]: I(r)
    for k in range(2): I(f"v_add_u32 v{V_WA+k}, {stg(1)}, v{V_WB+k}")
    I("s_waitcnt lgkmcnt(0) vmcnt(@w_1)"); I("s_barrier")
    el = early_loads(); ew = early_writes()
    l2 = [([], f"buffer_load_dword v{V_TMP+6}, v{V_PF+p}, {sr(sq,4)}, 0 offen") for p in range(O.nl2) for sq in (S_K, S_V)]
    qwork = []
    for rt in range(7):
        for kp in range(2):
            b = p1_acc(rt) + 8 * kp; t = SB + 4 * ((2 * rt + kp) % 8)
            rdy = 8 * rt + (4 * kp + 3 if O.accord else 5 + 2 * kp) + 9
            qwork += [(rdy, "v", f"v_mul_f32 v{b+k}, s{S_SCALE}, v{b+k}") for k in range(8)]
            if O.tr_early: qwork += [(rdy, "v", f"v_cvt_pk_bf16_f32 v{t+k}, v{b+2*k}, v{b+2*k+1}") for k in range(4)] + [(rdy, "w", f"ds_write_b128 v{V_T0}, {vr(t)} offset:{(2*rt+kp)*1024} ;@qw")]
    ne = 0
    NE = len(el) - O.tail_n
    nit = O.kv_last - O.kv_first
    def gat(hh):
        k = hh - O.g_start
        if not O.gmode or k < 0 or k >= O.g_per * O.g_rounds: return []
        return [([f"s_cmp_eq_u32 s100, {k % O.g_per}", f"s_cselect_b32 s101, s{60 + k // O.g_per}, 0x40000000"], f"buffer_load_dword v{V_TMP+6}, v{V_KW0}, s[4:7], s101 offen")]
    def tagd(g, t, adv=False):
        g = [(x[0], x[1] + f" ;@{t}") for x in g]
        if adv: g[3] = g[3] + ([KVG_UPD],)
        return g
    late = tagd(kv_dma("V", 4 * 32768), "v0", True) + tagd(kv_dma("K", 3 * 32768), "s1") + tagd(kv_dma("V", 3 * 32768), "s1", True) + tagd(kv_dma("K", 2 * 32768), "s2") + tagd(kv_dma("V", 2 * 32768), "s2", True)
    for i in range(16):
        if i <= 12: ma = take(2 * i, O.capA2 if i == 0 else O.capA, O.capA2)
        elif O.gmode: ma = gat(2 * i) + {13: [], 14: late[6:12], 15: late[18:20]}[i]
        elif i == 13: ma = take(26, 6, 6) + el[NE:NE + 4]
        elif i == 14: ma = ew[6:12]
        else: ma = ew[17:20]
        if 2 * i == O.l2_at: ma = ma + l2
        rd = r_x(range(4, 7)) + (r_w(i + 1) if i < 15 else [])
        addr = [(5, f"v_add_u32 v{V_XA+k}, {stg(i+1)}, v{V_XB+k}") for k in range(2)] if i < 15 else []
        va = (qwork, 0) if i == 15 else None
        p1_half(p1_mfmas(i, range(4)), ma, rd, addr, "s_waitcnt lgkmcnt(0)" + (f" vmcnt(@xa{i+1})" if i < 15 else ""), valu=va)
        k = 0
        if O.kv_first <= i < O.kv_last and not O.gmode: k = ((i - O.kv_first + 1) * NE) // nit - ne
        mb = el[ne:ne + k] + gat(2 * i + 1); ne += k
        tk = take(2 * i + 1, O.capB2 if i == 0 else O.capB, O.capB2)
        if i == O.k0_it:
            p = [n for n, x in enumerate(tk) if x[0]][0]
            tk = tk[:p] + kv_dma("K", 4 * 32768, S_KV0) + tk[p:]
        mb += tk
        if i == 13: assert not Q and not tk
        if i == 13: mb += late[0:6] if O.gmode else el[NE + 4:] + ew[0:6]
        if i == 14: mb += late[12:18] if O.gmode else ew[12:17]
        if 2 * i + 1 == O.l2_at: mb = mb + l2
        if O.cpf and i == 12: mb = mb + [([], c1[2])]
        rd = r_x(range(4)) if i < 15 else []
        addr = [(-1, f"v_add_u32 v{V_WA+k}, {stg(i+2)}, v{V_WB+k}") for k in range(2)] if i < 14 else []
        if i == 15: va = (qwork, 32)
        wait = None if i == 15 else "s_waitcnt lgkmcnt(0)" + (f" vmcnt(@w_{i+2})" if i < 14 else " vmcnt(@xb15)")
        p1_half(p1_mfmas(i, range(4, 7)), mb, rd, addr, wait, valu=va)
        if O.p1st and i < 15: stamp()
    stamp()
    A("L_trans:")
    for x in k_addr((RING - 1) * 32768): I(x)
    for f in range(8): I(k_read(f))
    assert O.tr_early
    for x in pendw: I(x)
    del pendw[:]
    for w in qwork: I(w[2])
    for rt in range(7):
        for kp in range(2): I(f"ds_read_b128 {ar(QA+16*rt+4*kp)}, v{V_T0} offset:{(2*rt+kp)*1024}")
    I(f"s_mov_b32 s{S_DS}, {4*32768}"); I(f"s_mov_b32 s{S_SL2}, {3*32768}"); I(f"s_mov_b32 s{S_I}, 0")
    I("s_waitcnt lgkmcnt(@qw)" + (" vmcnt(@v0)" if O.gmode else "")); I("s_barrier")
    for rt in range(7):
        for kp in range(2): I(f"ds_read_b128 {ar(QA+16*rt+8+4*kp)}, v{V_QP} offset:{(2*rt+kp)*1024}")
    I(f"v_add_u32 v{V_T0}, s{S_CA}, v{V_LANE16}")
    I(f"v_add_u32 v{V_T1}, s{S_LB1}, v{V_LANE16}")
    I(f"v_mov_b32 v{V_WOF}, v{V_WOB}")
    for j in range(1, 4): I(f"v_add_u32 v{V_WOF+j}, {j*16384-j*1024}, v{V_WOB}")
    I("s_waitcnt lgkmcnt(0)"); I("s_barrier")
    if not O.s4_in: emit_dma(kv_dma("K", 0) + kv_dma("V", 0)); I(KVG_UPD)
    stamp()
    att_iter("first").emit()
    g = sm0_ops(6)
    S = SB + 8 * COL[6]; pn = sm0_nm(5)
    for x in g[0] + g[1] + [pn[2]] + g[2] + [pn[3]] + g[3]: I(x)
    for k in range(1, 8): I(f"v_sub_f32 v{S+k}, v{S+k}, v{V_TMP}")
    for x in sm0_nm(6): I(x)
    I(f"v_mov_b32 v{LS+6}, 0")
    def clear_code():
        I(f"v_mov_b32 v{V_TMP+4}, s{S_SIG}"); I(f"v_mov_b32 v{V_TMP+5}, 0"); I(f"v_writelane_b32 v{V_TMP+4}, s101, 1"); I("s_mov_b64 exec, 3")
        I(f"global_store_dword v{V_TMP+4}, v{V_TMP+5}, {sr(P_WS)} sc1"); I("s_mov_b64 exec, -1")
    def count_code():
        I(f"s_or_b32 s{S_T0}, s{S_WAVE}, s{S_FB}"); I("s_cbranch_scc1 L_nosig0")
        I(f"v_mov_b32 v{V_TMP+5}, 0"); I(f"v_mov_b32 v{V_TMP+7}, 1"); I("s_mov_b64 exec, 1")
        I(f"global_atomic_add v{V_TMP+5}, v{V_TMP+7}, {sr(P_DBG)} sc1 ;@nocount")
        I("s_mov_b64 exec, -1")
        A("L_nosig0:")
    assert O.ta >= 4
    if O.clr == 0: clear_code()
    if O.epst: stamp()
    A(".p2align 6"); A("L_att:")
    for lp in ((0, 1) if O.ta else (1,)):
        if lp and O.clr == 0: count_code()
        if lp and O.clr == 1:
            I(f"s_cmp_lg_u32 s{S_FB}, 0"); I("s_cbranch_scc1 L_noclr"); clear_code(); A("L_noclr:")
        if lp and O.ta: A(".p2align 6"); A("L_att2:")
        G = att_iter("loop", lp)
        if O.loopst:
            G.s[92].append("s_memtime s[98:99]"); G.p[94].append("s_memtime s[100:101]"); G.p[95].append("s_memtime s[62:63]")
            G.v[7].append(f"v_cmp_eq_u32 vcc, s{S_I}, v0")
            for k, sg in enumerate((98, 100, 62)):
                G.v[11 + 4 * k].append(f"v_mov_b32 v251, s{sg}"); G.v[11 + 4 * k].append(f"v_cndmask_b32 v{252+k}, v{252+k}, v251, vcc")
        G.emit()
        I("s_cbranch_scc1 " + ("L_att2" if (lp and O.ta) else "L_att"))
    if O.epst: stamp()
    if O.loopst:
        I(f"s_lshl_b32 s{S_T0}, s2, 12"); I(f"s_lshl_b32 s{S_T1}, s{S_WAVE}, 10"); I(f"s_add_u32 s{S_T0}, s{S_T0}, s{S_T1}"); I(f"s_add_u32 s{S_T0}, s{S_T0}, {(1<<26)+(1<<20)}"); I(f"v_lshl_add_u32 v251, v0, 4, s{S_T0}")
        I(f"global_store_dwordx4 v251, v[252:255], {sr(P_WS)}")
    if O.clr == 1: count_code()
    for t in range(12 + O.nskip, 15): att_iter("pen", t).emit()
    A("L_last:")
    if O.epst: stamp()
    att_iter("last").emit()
    def sendfirst(m): return m[4:] + m[:4]
    def osend(rt, k): return f"ds_write_b128 v{V_T0}, {ar(OS_+16*rt+4*k)} offset:{(4*rt+k)*1024}"
    I("s_nop 0")
    G = Gaps(sendfirst(pv_mfmas(5)))
    e, a, c = sm_ops(6)
    for k in range(8):
        G.v[k].append(e[k])
        if k: G.v[k].append(a[k - 1])
        if k in (2, 4, 6): G.v[k].append(c[k // 2 - 1])
    for k in range(4): G.m[1 + 2 * k].append(osend(4, k))
    G.emit()
    I("s_nop 0"); I(c[3]); I(a[7]); I(f"s_mov_b32 s{S_T0}, {f2u(2.0**40):#x}")
    G = Gaps(sendfirst(pv_mfmas(6)))
    for k in range(7): G.v[[1, 1, 3, 3, 5, 5, 7][k]].append(f"v_mov_b32 v{V_TMP+k}, v{LS+k}")
    for k in range(4): G.m[2 * k].append(osend(5, k))
    G.emit()
    stamp()
    regs = [LS + rt for rt in range(7)]; temps = [V_TMP + rt for rt in range(7)]
    I(osend(6, 0)); I(osend(6, 1))
    for r, t in zip(regs, temps): I(f"v_permlane32_swap_b32 v{r}, v{t}")
    I(osend(6, 2))
    for r, t in zip(regs, temps): I(f"v_add_f32 v{r}, v{r}, v{t}")
    for r, t in zip(regs, temps): I(f"v_mov_b32 v{t}, v{r}")
    I(osend(6, 3)); I("s_nop 0")
    for r, t in zip(regs, temps): I(f"v_permlane16_swap_b32 v{r}, v{t}")
    I("s_nop 0")
    for rt, (r, t) in enumerate(zip(regs, temps)): I(f"v_add_f32 v{NM+4*rt+1}, v{r}, v{t}")
    I(f"v_add_f32 v{V_TMP}, v{NM+1}, v{NM+5}"); I(f"v_add_f32 v{V_TMP+1}, v{NM+9}, v{NM+13}"); I(f"v_add_f32 v{V_TMP+2}, v{NM+17}, v{NM+21}")
    I(f"v_add_f32 v{V_TMP}, v{V_TMP}, v{NM+25}"); I(f"v_add_f32 v{V_TMP+1}, v{V_TMP+1}, v{V_TMP+2}"); I(f"v_add_f32 v{V_TMP}, v{V_TMP}, v{V_TMP+1}")
    I(f"v_cmp_nlt_f32 vcc, v{V_TMP}, s{S_T0}")
    for rt in range(7): I(f"ds_write_b64 v{V_STW}, {vr(NM+4*rt,2)} offset:{rt*128}")
    I(f"s_cmp_lg_u64 vcc, 0"); I(f"s_cselect_b32 s{S_T1}, 1, 0"); I(f"s_andn2_b32 s{S_T1}, s{S_T1}, s{S_FB}"); I(f"v_mov_b32 v{V_TMP+1}, s{S_T1}")
    I(f"ds_write_b32 v{V_STW}, v{V_TMP+1} offset:896")
    I("s_waitcnt lgkmcnt(0)"); I("s_barrier")
    if O.epst: stamp()
    I(f"ds_read_b32 v{V_TMP+4}, v{V_FLR} ;@fl")
    for rt in range(7): I(f"ds_read_b64 {vr(NM+4*rt+2,2)}, v{V_STR} offset:{rt*128} ;@st")
    RB = 128
    def recv(rt):
        for dq in range(4): I(f"ds_read_b128 {vr(RB+16*(rt%4)+4*dq)}, v{V_T1} offset:{(4*rt+dq)*1024} ;@r{rt}")
    recv(0)
    I("s_waitcnt lgkmcnt(@fl) vmcnt(@w1)")
    I(f"v_cmp_ne_u32 vcc, 0, v{V_TMP+4}")
    recv(1)
    I("s_cbranch_vccnz L_fallback")
    st = {"dma": 2, "rd": 0}; free = []; pend = []
    def do_read(wait=True):
        m = st["rd"]; st["rd"] += 1
        if wait: I(f"s_waitcnt vmcnt(@w{m})")
        for r in a_reads(m): I(r)
        pend.append(m)
    def release(n=None):
        k = len(pend) if n is None else n
        if not k: return
        I(f"s_waitcnt lgkmcnt(@a{pend[k-1]})")
        for _ in range(k): free.append(slot_of[pend.pop(0)])
    def do_dma():
        m = st["dma"]; st["dma"] += 1
        slot_of[m] = free.pop(0); emit_dma(wo_dma(m))
    do_read(False); do_read(False)
    recv(2)
    I("s_waitcnt lgkmcnt(@st)")
    bs = [NM + 4 * rt for rt in range(7)]
    for rt, b in enumerate(bs): I(f"v_min_f32 v{LS+rt}, v{b}, v{b+2}")
    for rt, b in enumerate(bs): I(f"v_sub_f32 v{b}, v{LS+rt}, v{b}"); I(f"v_sub_f32 v{b+2}, v{LS+rt}, v{b+2}")
    release(); free.extend([2, 3])
    for _ in range(min(2, O.pre_dma)): do_dma()
    for b in bs: I(f"v_exp_f32 v{b}, v{b}"); I(f"v_exp_f32 v{b+2}, v{b+2}")
    if O.pre_dma > 2: do_dma()
    for b in bs: I(f"v_mul_f32 v{b+1}, v{b+1}, v{b}")
    for b in bs: I(f"v_fma_f32 v{b+1}, v{b+3}, v{b+2}, v{b+1}")
    for b in bs: I(f"v_rcp_f32 v{b+1}, v{b+1}")
    if O.pre_dma > 3: do_dma()
    for b in bs: I(f"v_mul_f32 v{b}, v{b}, v{b+1}"); I(f"v_mul_f32 v{b+2}, v{b+2}, v{b+1}")
    for rt in range(7):
        if O.epst: stamp()
        if rt + 3 < 7: recv(rt + 3)
        if rt >= 2:
            I(f"s_waitcnt lgkmcnt(@r{rt})"); free.append(2 + rt)
        if free and str(rt) in O.ep_dma: do_dma()
        b = NM + 4 * rt; o = OK_ + 16 * rt; rb = RB + 16 * (rt % 4)
        for k in range(0, 16, 2): I(f"v_pk_mul_f32 {vr(o+k,2)}, {vr(o+k,2)}, {vr(b,2)} op_sel_hi:[1,0]")
        for k in range(0, 16, 2): I(f"v_pk_fma_f32 {vr(o+k,2)}, {vr(rb+k,2)}, {vr(b+2,2)}, {vr(o+k,2)} op_sel_hi:[1,0,1]")
        for k in range(8): I(f"v_cvt_pk_bf16_f32 v{o+k}, v{o+2*k}, v{o+2*k+1}")
        I(f"s_add_u32 s{S_T1}, s{S_OST}, {rt*1024}"); I(f"s_add_u32 s{S_T2}, s{S_OST}, {rt*1024+7168}")
        I(f"buffer_store_dwordx4 {vr(o)}, v{V_LANE16}, {sr(S_O,4)}, s{S_T1} offen {O.pol_ost} ;@os")
        I(f"buffer_store_dwordx4 {vr(o+4)}, v{V_LANE16}, {sr(S_O,4)}, s{S_T2} offen {O.pol_ost} ;@os")
    stamp()
    assert RA_N == 16 and NB == 2
    def poll_loop(name, reg, addr, base, test):
        t = [f"s_mov_b32 s{S_I}, 0", f"L_poll{name}:"] + test + [f"s_cbranch_scc1 L_ready{name}", f"s_add_u32 s{S_I}, s{S_I}, 1",
             f"s_cmp_ge_u32 s{S_I}, 0x40000", f"s_cbranch_scc1 L_ready{name}", "s_sleep 2", f"global_load_dword v{reg}, v{addr}, {sr(base)} sc1 ;@nocount", "s_waitcnt vmcnt(0)", f"s_branch L_poll{name}", f"L_ready{name}:"]
        return chr(10).join(t)
    allset = [f"v_cmp_ne_u32 vcc, 1, v{V_TMP+3}", "s_nop 1", "s_cmp_eq_u64 vcc, 0"]
    I(f"v_mov_b32 v{V_TMP}, s{S_SIG}"); I(f"v_mov_b32 v{V_TMP+1}, 1"); I(f"v_and_b32 v{V_TMP+2}, 3, v0"); I(f"v_lshl_add_u32 v{V_TMP+2}, v{V_TMP+2}, 2, s{S_POLL}")
    I(f"s_bfe_u32 s{S_T0}, s{S_H}, 0x10003"); I(f"s_mul_i32 s{S_WBO+2}, s{S_T0}, {128*7168}"); I(f"s_sub_u32 s{S_WBO}, {128*7168}, s{S_WBO+2}")
    I(f"s_add_u32 s{S_WBO+1}, s{S_WBO}, {8*7168}"); I(f"s_add_u32 s{S_WBO+3}, s{S_WBO+2}, {8*7168}")
    I(f"s_lshl_b32 s{S_T0}, s{S_B}, 5"); I(f"s_add_u32 s{S_T0}, s{S_T0}, s{S_H}"); I(f"s_lshl_b32 s{S_T0}, s{S_T0}, 2"); I(f"s_add_u32 s{S_T0}, s{S_T0}, s{S_WAVE}")
    I(f"s_xor_b32 s{S_T0}, s{S_T0}, 32"); I(f"s_mul_i32 s{S_PST}, s{S_T0}, 7168"); I(f"s_add_u32 s{S_PST}, s{S_PST}, {PART}")
    older = st["dma"]
    while st["rd"] < older: do_read()
    I("s_waitcnt vmcnt(0)"); I("s_barrier")
    I(f"s_cmp_lg_u32 s{S_WAVE}, 0"); I("s_cbranch_scc1 L_nosig")
    I("s_mov_b64 exec, 1")
    I(f"global_store_dword v{V_TMP}, v{V_TMP+1}, {sr(P_WS)} sc1 ;@nocount")
    I("s_mov_b64 exec, -1")
    A("L_nosig:")
    I(poll_loop("0", V_TMP + 10, V_TMP + 9, P_DBG, [f"v_readfirstlane_b32 s{S_T0}, v{V_TMP+10}", "s_nop 0", f"s_cmp_ge_u32 s{S_T0}, 256"]))
    stamp()
    release()
    pol_ = [False]
    def maybe_poll():
        if not pol_[0] and st["dma"] >= 16 - O.poll_lead:
            I(f"global_load_dword v{V_TMP+3}, v{V_TMP+2}, {sr(P_WS)} sc1 ;@poll"); pol_[0] = st["dma"]
    while free and st["dma"] < 16: maybe_poll(); do_dma()
    while st["dma"] < 16:
        do_read()
        if len(pend) > 1: release(1); maybe_poll(); do_dma()
    maybe_poll()
    RD = V_TMP + 4
    for cq in range(4):
        I(f"s_xor_b32 s{S_T0}, s{S_WAVE}, {cq}"); I(f"s_mul_i32 s{S_T0}, s{S_T0}, 28672"); I(f"v_add_u32 v{RD+cq}, s{S_T0}, v{V_LANE16}")
    V_OA = V_TMP + 8
    I(f"v_and_b32 v{V_OA}, 15, v0"); I(f"v_lshlrev_b32 v{V_OA}, 11, v{V_OA}"); I(f"v_lshrrev_b32 v{V_TMP+9}, 4, v0"); I(f"v_lshl_add_u32 v{V_OA}, v{V_TMP+9}, 3, v{V_OA}")
    I(f"v_mov_b32 v{V_TMP+9}, s101"); I(f"v_xor_b32 v{V_TMP}, {32*128}, v{V_TMP+9}")
    while st["rd"] < pol_[0]: do_read()
    I("s_waitcnt vmcnt(@poll)")
    stamp()
    I(poll_loop("1", V_TMP + 3, V_TMP + 2, P_WS, allset))
    stamp()
    def bl(n, rt):
        x = b_loads(n)[rt]
        return (x[0], x[1].replace(f";@b{n}", f";@b{n}_{rt}"))
    for rt in range(7): emit_dma([bl(0, rt), bl(1, rt)])
    while st["rd"] < 16: do_read()
    I("s_waitcnt vmcnt(@b1_0) lgkmcnt(0)")
    stamp()
    def wr_(rt, cq, tag): return f"ds_write_b128 v{RD+cq}, {vr(ACC+16*rt+4*cq)} offset:{(cq*7+rt)*1024} ;@{tag}"
    FR_ = [f"ds_read_b128 {vr(ACC+16*rt+4*cq)}, v{RD} offset:{(cq*7+rt)*1024} ;@f{rt}" for rt in range(7) for cq in range(1, 4)]
    wr = [wr_(rt, cq, f"fw{rt}") for rt in range(7) for cq in range(1, 4)]
    PR = 192; SC = 220
    GS = []
    for N in range(16):
        n = 2 * N
        m0, m1 = p3_mfmas(n), p3_mfmas(n + 1)
        order = [1, 2, 3, 0] if N == 15 else [0, 1, 2, 3]
        GS += [x for rt in range(7) for cq in order for x in (m0[4 * rt + cq], m1[4 * rt + cq])]
    G = Gaps(GS)
    for N in range(16):
        n = 2 * N; g0 = 56 * N
        if n + 2 < 32:
            for rt in range(7): place(G, [bl(n + 2, rt), bl(n + 3, rt)], [g0 + 8 * rt + 9, g0 + 8 * rt + 11])
        for rt in range(7):
            if g0 + 8 * rt - 1 >= 0: G.s[g0 + 8 * rt - 1].append(f"s_waitcnt vmcnt(@b{n+1}_{rt})")
    G.s[56 * 5].append("s_barrier")
    k = 0
    for rt in range(7):
        for j in range(4): G.v[56 * 7 + 8 * rt + 13 + 2 * (j // 2)].append(f"v_mov_b32 v{PR+4*rt+j}, v{ACC+16*rt+j}")
        for cq in range(1, 4):
            g = 56 * 7 + 16 + 4 * k; k += 1
            assert 56 * 7 + 8 * rt + 2 * cq + 10 <= g < 56 * 8 + 8 * rt + 2 * cq - 1, (rt, cq)
            G.m[g].append(wr_(rt, cq, "mw"))
    g = 56 * 8 + 45
    G.s[g].append("s_waitcnt lgkmcnt(0)"); G.s[g].append("s_barrier")
    for rt in range(7):
        g = 56 * 8 + 48 + 16 * rt
        for cq in range(1, 4): G.m[g + 2 * cq - 2].append(f"ds_read_b128 {vr(SC+4*(cq-1))}, v{RD} offset:{(cq*7+rt)*1024}")
        G.s[g + 8].append("s_waitcnt lgkmcnt(0)")
        ad = [f"v_add_f32 v{PR+4*rt+k}, v{PR+4*rt+k}, v{SC+k}" for k in range(4)] + [f"v_add_f32 v{SC+4+k}, v{SC+4+k}, v{SC+8+k}" for k in range(4)] + [f"v_add_f32 v{PR+4*rt+k}, v{PR+4*rt+k}, v{SC+4+k}" for k in range(4)]
        for k, x in enumerate(ad): G.v[g + [8, 8, 10, 10, 12, 12, 13, 13, 14, 14, 15, 15][k]].append(x)
    g = 56 * 10 + 52
    for rt in range(7):
        G.m[g + [0, 1, 2, 4, 6, 8, 9][rt]].append(f"buffer_store_dwordx4 {vr(PR+4*rt)}, v{V_LANE16 if rt<4 else V_L2}, {sr(S_O,4)}, s{S_PST} offen offset:{(rt%4)*1024} {O.pol_ost} ;@ps")
    g = 56 * 11 + O.s2_g
    G.s[g].append("s_waitcnt vmcnt(@ps)"); G.s[g].append("s_mov_b64 exec, 1")
    G.m[g].append(f"global_store_dword v{V_TMP}, v{V_TMP+1}, {sr(P_WS)} sc1"); G.p[g].append("s_mov_b64 exec, -1")
    G.s[56 * 13 + 4].append("s_barrier")
    G.m[56 * 14 + O.p2_g].append(f"global_load_dword v{V_TMP+3}, v{V_TMP+9}, {sr(P_WS)} sc1 ;@poll2")
    G.p[56 * 15 + 3].append("s_waitcnt vmcnt(@poll2)"); G.p[56 * 15 + 3].append(poll_loop("2", V_TMP + 3, V_TMP + 9, P_WS, allset))
    PL = [f"buffer_load_dwordx4 {vr(PR+4*rt)}, v{V_LANE16 if rt<4 else V_L2}, {sr(S_O,4)}, s{S_INB} offen offset:{(rt%4)*1024} {O.pol_old}" for rt in range(7)]
    for rt in range(7): G.m[56 * 15 + [4, 5, 6, 8, 9, 11, 13][rt]].append(PL[rt] + " ;@pl")
    nw = 0; g0 = 56 * 15
    for rt in range(6):
        for k in range(3): G.m[g0 + 8 * rt + 10 + 2 * k].append(wr[nw]); nw += 1
    if O.fin2:
        G.s[g0 + 43].append("s_waitcnt lgkmcnt(@fw3)"); G.s[g0 + 43].append("s_barrier")
        for g, x in zip([45, 47, 48, 49, 51, 53, 55, 55, 55], FR_[:9]): G.m[g0 + g].append(x)
    if O.p3st:
        for N in range(1, 16):
            k = nstamp[0]; nstamp[0] += 1
            G.p[56 * N - 2].append(f"s_memtime {sr(S_STP)}\ns_memrealtime {sr(S_STP+2)}\ns_waitcnt lgkmcnt(0)\nv_writelane_b32 v{V_STAMP}, s{S_STP}, {2*k}\nv_writelane_b32 v{V_STAMP}, s{S_STP+2}, {2*k+1}")
    G.emit()
    stamp()
    I("s_nop 4")
    def fin(rt):
        I(f"s_waitcnt lgkmcnt(@f{rt})")
        o = ACC + 16 * rt
        for k in (0, 2):
            I(f"v_pk_add_f32 {vr(o+k,2)}, {vr(o+k,2)}, {vr(o+4+k,2)}"); I(f"v_pk_add_f32 {vr(o+8+k,2)}, {vr(o+8+k,2)}, {vr(o+12+k,2)}")
        for k in (0, 2): I(f"v_pk_add_f32 {vr(o+k,2)}, {vr(o+k,2)}, {vr(PR+4*rt+k,2)}")
        for k in (0, 2): I(f"v_pk_add_f32 {vr(o+k,2)}, {vr(o+k,2)}, {vr(o+8+k,2)}")
        I(f"v_cvt_pk_bf16_f32 v{o}, v{o}, v{o+1}"); I(f"v_cvt_pk_bf16_f32 v{o+1}, v{o+2}, v{o+3}")
        I(f"buffer_store_dwordx2 {vr(o,2)}, v{V_OA}, {sr(S_OUT,4)}, s{S_OUTOFF} offen {O.pol_out}")
        I(f"s_add_u32 s{S_OUTOFF}, s{S_OUTOFF}, {16*2048}")
    for x in wr[nw:]: I(x)
    I("s_waitcnt vmcnt(@pl)")
    if O.fin2:
        for x in FR_[9:12]: I(x)
        fin(0); fin(1)
        I("s_waitcnt lgkmcnt(@fw6)"); I("s_barrier")
        for x in FR_[12:]: I(x)
        for rt in range(2, 7): fin(rt)
    else:
        I("s_waitcnt lgkmcnt(0)"); I("s_barrier")
        for x in FR_: I(x)
        for rt in range(7): fin(rt)
    stamp()
    store_stamps()
    A("L_done:")
    I("s_endpgm")
    A("L_fallback:")
    I(f"s_mov_b32 s{S_FB}, 1")
    I("s_waitcnt vmcnt(0) lgkmcnt(0)"); I("s_barrier")
    for rt in range(7): I(f"v_mov_b32 v{NM+4*rt}, 0xff800000")
    I(f"s_mov_b32 s{S_KVG}, s{S_KV0}")
    for x in k_addr(0): I(x)
    I(f"s_mov_b32 s{S_I}, 0")
    A("L_fb_loop:")
    emit_dma(kv_dma("K", 0)); I(KVG_UPD)
    I("s_waitcnt vmcnt(0)"); I("s_barrier")
    for f in range(8): I(k_read(f))
    I("s_waitcnt lgkmcnt(0)"); I("s_barrier")
    for rt in range(7):
        for m in qk_mfmas(rt, SB, usenm=False): I(m)
        I("s_nop 7")
        b = NM + 4 * rt
        for k in range(4): I(f"v_max3_f32 v{b}, v{b}, v{SB+2*k}, v{SB+2*k+1}")
    I(f"s_add_u32 s{S_I}, s{S_I}, 1"); I(f"s_cmp_lt_u32 s{S_I}, 16"); I("s_cbranch_scc1 L_fb_loop")
    multi_reduce([NM + 4 * rt for rt in range(7)], [NM + 4 * rt + 1 for rt in range(7)], "v_max_f32")
    for rt in range(7):
        b = NM + 4 * rt
        I(f"v_sub_f32 v{b}, 0, v{b}")
        for k in range(1, 4): I(f"v_mov_b32 v{b+k}, v{b}")
    I(f"s_mov_b32 s{S_KVG}, s{S_KV0}")
    for st in range(RING - 1):
        emit_dma(kv_dma("K", (4 - st) * 32768) + kv_dma("V", (4 - st) * 32768)); I(KVG_UPD)
    for k in range(112): I(f"v_mov_b32 v{OK_+k}, 0")
    for k in range(112): I(f"v_accvgpr_write_b32 a{OS_+k}, 0")
    for k in range(32): I(f"v_mov_b32 v{VF+k}, 0")
    for k in range(12): I(f"v_mov_b32 v{PB+k}, 0")
    for k in range(7): I(f"v_mov_b32 v{LS+k}, 0")
    for k in range(8): I(f"v_mov_b32 v{SB+16+k}, 0xf149f2ca")
    I(f"s_mov_b32 s{S_MASK}, 0xfff"); I(f"s_mov_b32 s{S_DS}, 0"); I(f"s_mov_b32 s{S_SL2}, {3*32768}"); I(f"s_mov_b32 s{S_I}, -1")
    for x in next_dma_state(): I(x)
    for x in k_addr(4 * 32768) + v_addr(4 * 32768): I(x)
    I("s_waitcnt vmcnt(0)"); I("s_barrier")
    for f in range(8): I(k_read(f))
    I("s_waitcnt lgkmcnt(0)")
    I("s_branch L_att")

def main(fn):
    global RA_N, NB
    RA_N = O.ra_n; NB = O.nb
    del L[:]
    nstamp[0] = 0
    A('.amdgcn_target "amdgcn-amd-amdhsa--gfx950"')
    A(".text")
    gen()
    A("  .fill 6144, 4, 0xBF800000")
    A('.section .rodata,"a"\n.p2align 6')
    A(f".amdhsa_kernel {NAME}_kernel\n  .amdhsa_next_free_vgpr 512\n  .amdhsa_next_free_sgpr 102\n  .amdhsa_accum_offset 256\n  .amdhsa_group_segment_fixed_size 0\n  .amdhsa_kernarg_size 64\n  .amdhsa_user_sgpr_count 2\n  .amdhsa_user_sgpr_kernarg_segment_ptr 1\n  .amdhsa_system_sgpr_workgroup_id_x 1\n.end_amdhsa_kernel")
    head = ["; fused MHA block: per (b,h) workgroup Q-proj + attention, flag hand-off, then a 112x64 tile of the output projection",
            "; @launch grid=(256,1,1) block=(256,1,1) lds=163840"]
    open(fn, "w").write("\n".join(head + resolve(L)) + "\n")

if __name__ == "__main__":
    fn = sys.argv[1]
    for kv in sys.argv[2:]:
        k, v = kv.split("=")
        cur = getattr(O, k)
        setattr(O, k, (v == "1") if isinstance(cur, bool) else (int(v) if isinstance(cur, int) else v.replace("+", " ")))
    main(fn)
```

```python
import sys, math, struct, re
NAME = "standalone__mha_block_cached__near_ridge"

class Opt:
    pol_kv = "nt"; pol_x = ""; pol_wq = ""; pol_ost = "sc1"; pol_old = "sc1"; pol_wo = ""; pol_out = ""
    stamps = False; dbgst = False
    rotmul_h = 0; rotmul_b = 0
    k2_rot_c = 1; k2_rot_r = 2
    wo_pref = 3
    kv_first = 6
    abl_nopoll = False
    wo_early = 3
    kv_rot_j = 1
    kv_rot_x = 2
    lin_map = False
    kv_last = 13
    k0_it = 1
    up_chunks = 2
    nl2 = 1
    l2_base = 5
    cpf = True
    wo_mall = False
    n_up = 22
    n_up0 = 8
    capA = 6
    capB = 5
    capA2 = 9
    capB2 = 8
    rotmul_x = 1
    sig_cnt = False
    gmode = False
    g_start = 12
    g_per = 4
    g_rounds = 3
    l2_at = 27
    pf_pen = 2
    s4_in = True
    p1st = False
    abl_noearly = False
    nskip = 2
    epst = False
    ta = 6
    f1 = '5,10'
    f2 = '5,10'
    pf_row = True
    cp0 = 1
    fast_ep = False
    xp = 2
    xd = 4
    xb = 1
    p2_at = 13
    clr = 0
    p3st = False
    s2_g = 52
    p2_g = 12
    fin2 = True
    tail_n = 8
    e4 = True
    wo_first = 0
    pre_dma = 2
    ra_n = 16
    r0 = 10
    nb = 2
    tr_early = True
    accord = True
    ep_dma = '9'
    post_dma = 0
    pf_q = 4
    pf_max = 8
    cpf_at = 14
    pref_last = True
    loopst = False
    tlbw = 0
    abl_nomfma = False
    kv_noswz = False
    att_vm = 24
    abl_nodma = False
    poll_lead = 2
O = Opt()

L = []
def A(s): L.append(s)
def I(s):
    for x in s.split("\n"):
        if x.strip(): L.append("  " + x.strip())
def vr(b, n=4): return f"v[{b}:{b+n-1}]"
def ar(b, n=4): return f"a[{b}:{b+n-1}]"
def sr(b, n=2): return f"s[{b}:{b+n-1}]"
def pol(p): return (p + " ") if p else ""
def f2u(x): return struct.unpack("<I", struct.pack("<f", x))[0]
MF = "v_mfma_f32_16x16x32_bf16"

class Gaps:
    def __init__(self, mf):
        self.mf = list(mf); n = len(self.mf)
        self.s = [[] for _ in range(n)]; self.m = [[] for _ in range(n)]; self.v = [[] for _ in range(n)]; self.p = [[] for _ in range(n)]
    def chain(self, instrs, gaps):
        assert len(gaps) >= len(instrs), (instrs, gaps)
        for x, g in zip(instrs, gaps): self.s[g].append(x)
    def emit(self):
        for i, m in enumerate(self.mf):
            I(m)
            for x in self.s[i] + self.m[i] + self.v[i] + self.p[i]: I(x)

def resolve(lines):
    vm = []; lg = []; out = []
    for ln in lines:
        t = re.search(r";@(\S+)", ln)
        tag = t.group(1) if t else None
        code = ln.split(";")[0].rstrip() if t else ln
        op = code.strip().split(" ")[0] if code.strip() else ""
        def sub(kind, q, cap):
            def f(m):
                k = m.group(1)
                idx = [i for i, x in enumerate(q) if x == k]
                assert idx, ("unknown tag", k, ln)
                return f"{kind}({min(cap, len(q) - 1 - idx[-1])})"
            return f
        code = re.sub(r"vmcnt\(@(\S+?)\)", sub("vmcnt", vm, 62), code)
        code = re.sub(r"lgkmcnt\(@(\S+?)\)", sub("lgkmcnt", lg, 14), code)
        if tag != "nocount":
            if op.startswith(("buffer_", "global_")): vm.append(tag)
            elif op.startswith("ds_"): lg.append(tag)
        out.append(code)
    return out

OK_ = 16; VF = 128; SB = 160; PB = 184; NM = 196; LS = 224
V_LANE16 = 1; V_QP = 2; V_WOB = 3
V_KVOFF = 4
V_XB = 8; V_WB = 10; V_KB = 12; V_VB = 13; V_T0 = 14; V_T1 = 15
V_XOFF = 200; V_WOFF = 207; V_KW0 = 211; V_KW1 = 253
V_RAB = 231; V_PF = 212
V_XA = 232; V_WA = 234
V_KA = 232; V_VA = 236; V_TMP = 244; V_STAMP = 255
OS_ = 0; QA = 112; KF = 224; FR = 112
COL = [0, 1, 0, 1, 0, 1, 2]
S_X = 8; S_K = 12; S_V = 16; S_WQ = 20; S_O = 24
S_WAVE = 28; S_B = 29; S_H = 30; S_R = 31; S_C = 32
S_OX = 33; S_OW = 34; S_MXA = 36; S_MXB = 3; S_WXT = 37; S_I = 38
S_T0 = 39; S_T1 = 40; S_T2 = 41; S_T3 = 42
S_KVG = 43; S_SL0 = 44; S_SL1 = 45; S_SL2 = 46
S_FB = 47; S_W4K = 48; S_W4KK = 49; S_SCALE = 50; S_OST = 51
P_X = 52; P_K = 54; P_V = 56; P_WQ = 58; P_WO = 60; P_OUT = 62; P_DBG = 64; P_WS = 66
S_WO = 68; S_OO = 72; S_OUT = 76; S_TW = 80; S_TO = 52; S_LB0 = 88; S_LB1 = 89; S_OUTOFF = 90; S_SIG = 91; S_POLL = 92; S_PFO = 93
S_STP = 96
XT = 28672; WT = 16384; STG = XT + WT
RING = 5; KOFF = 16384; PART = 1 << 24; FLG = 3 << 23
ST0 = 86016; S_CA = 7; S_STW = 61; V_STW = 241; V_STR = 242; V_FLR = 243
SCALE = math.log2(math.e) / math.sqrt(128.0)

nstamp = [0]
def stamp():
    if not O.stamps: return
    k = nstamp[0]
    I(f"s_memtime {sr(S_STP)}"); I("s_waitcnt lgkmcnt(0)"); I(f"v_writelane_b32 v{V_STAMP}, s{S_STP}, {2*k}")
    I(f"s_memrealtime {sr(S_STP)}"); I("s_waitcnt lgkmcnt(0)"); I(f"v_writelane_b32 v{V_STAMP}, s{S_STP}, {2*k+1}")
    nstamp[0] += 1
def store_stamps():
    if not O.stamps: return
    I(f"s_cmp_lg_u32 s{S_WAVE}, 0"); I("s_cbranch_scc1 L_done")
    I(f"s_lshl_b32 s{S_T0}, s2, 8"); I(f"s_add_u32 s{S_T0}, s{S_T0}, {1<<26}"); I(f"v_lshl_add_u32 v15, v0, 2, s{S_T0}")
    I(f"global_store_dword v15, v{V_STAMP}, {sr(P_WS)}")
def srd(d, ptr, nbytes, shift=None, sub=True):
    if shift is None:
        I(f"s_mov_b32 s{d}, s{ptr}"); I(f"s_mov_b32 s{d+1}, s{ptr+1}"); I(f"s_mov_b32 s{d+2}, {nbytes}")
    else:
        I(f"s_add_u32 s{d}, s{ptr}, s{shift}"); I(f"s_addc_u32 s{d+1}, s{ptr+1}, 0")
        I(f"s_sub_u32 s{d+2}, {nbytes}, s{shift}" if sub else f"s_mov_b32 s{d+2}, {nbytes}")
    I(f"s_mov_b32 s{d+3}, 0x20000")

def stg(i): return ((-i) % 3) * STG
def d_w(i): return [([f"s_add_u32 m0, {stg(i)}, s{S_WXT}"] if j == 0 else [], f"buffer_load_dwordx4 v{V_WOFF+j}, {sr(S_WQ,4)}, s{S_OW} offen offset:{j*1024} {pol(O.pol_wq)}lds ;@w_{i}") for j in range(4)]
def d_xa(i): return [([f"s_add_u32 m0, {stg(i)}, s{S_MXA}"] if j == 0 else [], f"buffer_load_dwordx4 v{V_XOFF+j}, {sr(S_X,4)}, s{S_OX} offen offset:{j*1024} {pol(O.pol_x)}lds ;@xa{i}") for j in range(4)]
def d_xb(i): return [([f"s_add_u32 m0, {stg(i)}, s{S_MXB}"] if j == 0 else [], f"buffer_load_dwordx4 v{V_XOFF+4+j}, {sr(S_X,4)}, s{S_OX} offen offset:{j*1024} {pol(O.pol_x)}lds ;@xb{i}", P1_UPD if j == 2 else []) for j in range(3)]
S_OC = 38; S_XM = 95
S_XR = 99
P1_UPD = [f"s_add_u32 s{S_OC}, s{S_OC}, 128", f"s_xor_b32 s{S_OX}, s{S_OC}, s{S_XM}", f"s_add_u32 s{S_OX}, s{S_OX}, s{S_XR}", f"s_and_b32 s{S_OX}, s{S_OX}, 2047", f"s_lshl_b32 s{S_OW}, s{S_OX}, 12"]
def emit_dma(g, post=False):
    for x in g:
        for p in x[0]: I(p)
        if x[0]: I("s_nop 0")
        I(x[1])
        if post and len(x) > 2:
            for p in x[2]: I(p)
def kv_dma(which, slot, so=None):
    so = S_KVG if so is None else so
    s, off = (S_K, S_W4KK) if which == "K" else (S_V, S_W4K)
    return [([f"s_add_u32 m0, {slot}, s{off}"] if j == 0 else [],
             f"buffer_load_dwordx4 v{V_KVOFF+j}, {sr(s,4)}, s{so} offen offset:{j*1024} {pol(O.pol_kv)}lds") for j in range(4)]
KVG_UPD = f"s_add_u32 s{S_KVG}, s{S_KVG}, 16384\ns_and_b32 s{S_KVG}, s{S_KVG}, 0x3ffff"
S_KV0 = 94; S_KVE = 95; S_MASK = 35; S_DS = S_SL1
def er(reg): return ar(reg) if reg < 256 else vr(reg - 256)
EARLY = [("V", 0, 256 + 160), ("K", 1, 256 + 176), ("V", 1, 0), ("K", 2, 16), ("V", 2, 32), ("K", 3, 48), ("V", 3, 64)]
def early_list(): return EARLY + ([("K", 4, 256 + 96), ("V", 4, 256 + 112)] if O.e4 else [])
V_KW2 = 216; V_ZR = 217; S_INB = 100
def early_loads():
    g = []
    for p, (w, st, reg) in enumerate(early_list()):
        for j in range(4):
            post = [KVG_UPD] if (w == "V" and j == 3) else []
            g.append(([], f"buffer_load_dwordx4 {er(reg+4*j)}, v{V_KVOFF+j}, {sr(S_K if w=='K' else S_V,4)}, s{S_KVG} offen offset:{j*1024} {O.pol_kv} ;@e{p}", post))
    return g
def early_writes():
    g = []
    for p, (w, st, reg) in enumerate(early_list()):
        addr = (4 - st) * 32768 + (KOFF if w == "K" else 0)
        base, b0 = (V_KW2, 131072) if addr >= 131072 else ((V_KW0, 65536) if addr >= 65536 else (V_KW1, 0))
        for j in range(4):
            g.append(([f"s_waitcnt vmcnt(@e{p})"] if j == 0 else [], f"ds_write_b128 v{base}, {er(reg+4*j)} offset:{addr-b0+j*1024} ;@ew"))
    return g
def p1_acc(rt): return OK_ + 16 * rt if rt < 5 else VF + 16 * (rt - 5)
FW = 112; FXA = 176; FXB = 208
def r_w(i):
    return [f"ds_read_b64_tr_b16 {ar(FW+32*(i&1)+16*s+4*t+2*e,2)}, v{V_WA+t//2} offset:{XT + s*8192 + e*1024 + (t%2)*8}" for s in range(2) for t in range(4) for e in range(2)]
def xf(rt, s): return (FXA + 8 * rt + 4 * s) if rt < 4 else (FXB + 8 * (rt - 4) + 4 * s)
def r_x(rts): return [f"ds_read_b128 {ar(xf(rt,s))}, v{V_XA+s} offset:{rt*2048}" for rt in rts for s in range(2)]
def p1_mfmas(i, rts):
    return [f"{MF} {vr(p1_acc(rt)+4*t)}, {ar(FW+32*(i&1)+16*s+4*t)}, {ar(xf(rt,s))}, " + ("0" if (i == 0 and s == 0) else vr(p1_acc(rt)+4*t)) for rt in rts for (s, t) in ([(s, t) for t in range(4) for s in range(2)] if O.accord else [(s, t) for s in range(2) for t in range(4)])]
def place(G, ops, gaps):
    assert len(gaps) >= len(ops), (len(ops), gaps)
    for d, g in zip(ops, gaps):
        for p in d[0]:
            if G.m[g - 1] and "buffer_" in G.m[g - 1][-1] and "lds" in G.m[g - 1][-1] and "m0" in p: G.p[g - 1].append(p)
            else: G.s[g - 1].append(p)
        G.m[g].append(d[1])
        if len(d) > 2:
            pp = [q for p in d[2] for q in p.split(chr(10))]
            nxt = [h for h in gaps[:len(ops)] if h > g]
            for k, p in enumerate(pp): G.s[min(g + 1 + k // 2, nxt[0] if nxt else 10**9)].append(p)
def layout(n, nmem, nrd):
    mg = sorted(set(1 + (k * (n - 3)) // max(nmem, 1) for k in range(nmem)))
    assert len(mg) == nmem
    rg = [g for g in range(n - 2) if g not in mg][:nrd]
    if len(rg) < nrd: rg = sorted(rg + mg[:nrd - len(rg)])
    return mg, rg
pendw = []
def p1_half(mf, mem, reads, addr, wait, valu=None, vstart=0):
    G = Gaps(mf); n = len(mf)
    mg, rg = layout(n, len(mem), len(reads))
    for k, r in zip(rg, reads): G.m[k].append(r)
    place(G, mem, mg)
    for after, x in addr:
        g0 = rg[after] + 1 if after >= 0 else 0
        c = [g for g in range(g0, n - 1) if g not in mg and len(G.v[g]) < (1 if G.m[g] else 2) and not (G.m[g] and G.s[g])]
        G.v[c[0]].append(x)
    if valu is not None:
        work, base = valu
        lastw = -9
        for g in range(n):
            if base and pendw and g - lastw >= 3 and g not in mg and not G.m[g]:
                G.m[g].append(pendw.pop(0)); lastw = g; continue
            room = 0 if g in mg else (1 if G.m[g] else 2)
            while work and work[0][0] <= g + base and (work[0][1] == "w" or len(G.v[g]) < room) and len(pendw) < 7:
                w = work.pop(0)
                if w[1] == "w": pendw.append(w[2])
                else: G.v[g].append(w[2])
    if wait is not None:
        G.s[n - 1].append(wait); G.s[n - 1].append("s_barrier")
    G.emit()

def kq(f): return (f % 4, f // 4) if O.accord else (f // 2, f % 2)
def k_read(f): return f"ds_read_b128 {ar(KF+4*f)}, v{V_KA+kq(f)[0]} offset:{kq(f)[1]*4096}"
def v_read(dq, e): return f"ds_read_b64_tr_b16 {vr(VF+4*dq+2*e,2)}, v{V_VA+dq}" + (" offset:4096" if e else "")
def k_addr(slot): return [f"v_add_u32 v{V_KA}, {slot}, v{V_KB}"] + [f"v_xor_b32 v{V_KA+q}, {q*64}, v{V_KA}" for q in range(1, 4)]
def v_addr(slot): return [f"v_add_u32 v{V_VA}, {slot}, v{V_VB}"] + [f"v_xor_b32 v{V_VA+d}, {d*32}, v{V_VA}" for d in range(1, 8)]
def oacc(rt, dq): return vr(OK_ + 16 * rt + 4 * dq) if dq < 4 else ar(OS_ + 16 * rt + 4 * (dq - 4))
def qk_mfmas(rt, S, usenm=True):
    m = []
    for f in range(8):
        q, kt = kq(f)
        d = S + 4 * kt
        c = (vr(NM + 4 * rt) if usenm else "0") if q == 0 else vr(d)
        m.append(f"{MF} {vr(d)}, {ar(KF+4*f)}, {ar(QA+16*rt+4*q)}, {c}")
    return m
def pv_mfmas(rt, first=False):
    P = PB + 4 * COL[rt]
    return [f"{MF} {oacc(rt,dq)}, {vr(VF+4*dq)}, {vr(P)}, " + ("0" if first else oacc(rt, dq)) for dq in range(8)]
def sm_ops(rt, scol=None):
    S = SB + 8 * (COL[rt] if scol is None else scol); P = PB + 4 * COL[rt]
    e = [f"v_exp_f32 v{S+k}, v{S+k}" for k in range(8)]
    a = [f"v_add_f32 v{LS+rt}, v{LS+rt}, v{S+k}" for k in range(8)]
    c = [f"v_cvt_pk_bf16_f32 v{P+k}, v{S+2*k}, v{S+2*k+1}" for k in range(4)]
    return e, a, c
def put_softmax(G, base, rt):
    e, a, c = sm_ops(rt)
    for k in range(8):
        G.v[base + 2 * k].append(e[k])
        if k % 2 == 1: G.v[base + 2 * k + 1].append(c[k // 2])
        G.v[base + 2 * k + 1].append(a[k])
def sm0_nm(rt):
    t = V_TMP + 2 * (rt & 1)
    return [f"v_sub_f32 v{NM+4*rt+k}, 0, v{t}" for k in range(4)]
def sm0_ops(rt):
    scol = 2 if rt == 0 else COL[rt]
    S = SB + 8 * scol; t = V_TMP + 2 * (rt & 1)
    e, a, c = sm_ops(rt, scol)
    a[1] = f"v_add_f32 v{LS+rt}, v{S}, v{S+1}"
    pn = sm0_nm(rt - 1) if rt else ["s_nop 0", "s_nop 0", None, None]
    sub = [f"v_sub_f32 v{S+k}, v{S+k}, v{t}" for k in range(8)]
    g = [[f"v_max3_f32 v{t}, v{S}, v{S+1}, v{S+2}", f"v_max3_f32 v{t+1}, v{S+3}, v{S+4}, v{S+5}", f"v_max3_f32 v{t}, v{t}, v{S+6}, v{S+7}"],
         [f"v_max_f32 v{t}, v{t}, v{t+1}", f"v_max_f32 v{t+1}, v{t}, v{t+1}", pn[0]],
         [f"v_permlane32_swap_b32 v{t}, v{t+1}", f"v_max_f32 v{t}, v{t}, v{t+1}", f"v_mov_b32 v{t+1}, v{t}", pn[1]],
         [f"v_permlane16_swap_b32 v{t}, v{t+1}", f"v_max_f32 v{t}, v{t}, v{t+1}", sub[0]],
         [e[0], sub[1]], [e[1], sub[2]], [e[2], sub[3]], [e[3], sub[4], a[1]], [e[4], sub[5], c[0]], [e[5], sub[6], a[2]], [e[6], sub[7], a[3]],
         [e[7], c[1], a[4]], [c[2], a[5], pn[2]], [c[3], a[6]], [a[7], pn[3]]]
    return [[x for x in grp if x] for grp in g]

def next_dma_state():
    return [f"s_add_u32 s{S_I}, s{S_I}, 1", f"s_bitcmp1_b32 s{S_MASK}, s{S_I}", f"s_cselect_b32 s{S_SL0}, s{S_DS}, 0x30000", f"s_cselect_b32 s{S_KVE}, s{S_KVG}, 0x40000000",
            f"s_cselect_b32 s{S_T3}, 32768, 0", f"s_sub_u32 s{S_DS}, s{S_DS}, s{S_T3}", f"s_cselect_b32 s{S_DS}, {(RING-1)*32768}, s{S_DS}",
            f"s_lshr_b32 s{S_T3}, s{S_T3}, 1", f"s_add_u32 s{S_KVG}, s{S_KVG}, s{S_T3}", f"s_and_b32 s{S_KVG}, s{S_KVG}, 0x3ffff"]
V_WOF = 8; V_RA0 = 232; V_RA1 = 236; V_L2 = 240
pf_cnt = [0, 0]
def put_pf(G, t):
    if t == 12 + O.nskip:
        if O.pf_row:
            G.v[1].append(f"v_and_b32 v{V_TMP+8}, 7, v0"); G.v[3].append(f"v_and_b32 v{V_TMP+7}, 8, v0"); G.v[5].append(f"v_lshl_add_u32 v{V_TMP+8}, v{V_TMP+7}, 1, v{V_TMP+8}"); G.v[7].append(f"v_lshlrev_b32 v{V_TMP+8}, 7, v{V_TMP+8}")
        else:
            G.v[1].append(f"v_and_b32 v{V_TMP+8}, 15, v0"); G.v[5].append(f"v_lshlrev_b32 v{V_TMP+8}, 11, v{V_TMP+8}")
        pf_cnt[0] = 0; pf_cnt[1] = 4 * O.wo_first
    if O.cpf and t == O.cpf_at:
        c2 = code_pf("L_last+2048", 6, V_TMP + 5)
        G.chain(c2[0], [6, 8]); G.v[10].append(c2[1]); G.m[11].append(c2[2].replace(f"v{V_TMP+6},", f"v{V_QP},")); pf_cnt[0] += 1
    gl = {1: [13], 2: [13, 57], 3: [13, 47, 81], 4: [13, 41, 63, 87], 5: [13, 41, 55, 71, 87], 6: [13, 23, 41, 55, 71, 87]}[O.pf_q] if O.pf_q else []
    for g in gl:
        if pf_cnt[1] >= O.pf_max: break
        k = pf_cnt[1]
        G.s[g - 1].append(f"s_add_u32 s{S_T0}, s{S_PFO}, {(k // 4) * 8 * 65536 + (k % 4) * (4096 if O.pf_row else 32768)}")
        G.m[g].append(f"buffer_load_dword v{V_QP}, v{V_TMP+8}, {sr(S_WO,4)}, s{S_T0} offen")
        pf_cnt[0] += 1; pf_cnt[1] += 1
def att_iter(kind, t=None):
    mf = []; base = []
    for n in range(7):
        base.append(len(mf))
        mf += qk_mfmas(n, SB + 8 * (2 if (kind == "first" and n == 0) else COL[n]), usenm=(kind != "first"))
        if not (kind == "first" and n < 2): mf += pv_mfmas((n - 2) % 7, first=(kind == "first"))
    G = Gaps(mf)
    if kind == "first":
        for k in range(16): G.m[k].append(v_read(k // 2, k % 2) + " ;@vf")
        for n in range(1, 7):
            g = sm0_ops(n - 1)
            if n == 1: pos = [11, 12, 13, 14, 15, 15, 16, 16, 17, 17, 18, 18, 19, 19, 20]
            elif n == 2: pos = [base[2] + x for x in [4, 5, 6, 7, 8, 8, 9, 10, 11, 12, 13, 14, 15, 15, 15]]
            else: pos = [base[n] + x for x in range(15)]
            for grp, p in zip(g, pos):
                for x in grp: G.v[p].append(x)
        G.s[base[2] + 6].append("s_waitcnt lgkmcnt(@vf)")
        off = lambda g: g - 16
        G.v[2].append(f"v_lshlrev_b32 v{V_TMP+8}, 11, v0")
        if O.e4:
            place(G, early_writes()[20:], [off(g) for g in [37, 41, 44, 47, 52, 54, 58, 61, 63, 68, 70, 74, 77, 79, 84, 86]])
            G.s[off(91)].append("s_waitcnt lgkmcnt(@ew)")
            for k in range(32): G.v[off([93, 94, 95, 95, 100, 102, 109, 110, 111, 110][k % 10])].append(f"v_mov_b32 v{OK_+80+k}, 0")
        else:
            place(G, early_writes()[20:], [off(g) for g in [50, 54, 58, 62, 63, 66, 70, 74]])
            d4 = kv_dma("K", 0) + kv_dma("V", 0); d4[7] = d4[7] + ([KVG_UPD],)
            place(G, d4, [off(g) for g in [36, 42, 47, 52, 60, 68, 72, 78]])
        for j in range(O.wo_first):
            g = off([61, 79][j])
            G.s[g - 1].append(f"s_add_u32 s{S_T0}, s{S_PFO}, {j*8*65536}")
            G.m[g].append(f"buffer_load_dword v{V_QP}, v{V_TMP+8}, {sr(S_WO,4)}, s{S_T0} offen")
        for j in range(0 if O.pref_last else O.wo_pref):
            G.m[off(36 + 3 * j)].append(f"buffer_load_dword v{V_QP}, v{V_TMP+8}, {sr(S_WO,4)}, s{S_PFO} offen")
            G.s[off(37 + 3 * j)].append(f"s_add_u32 s{S_PFO}, s{S_PFO}, {8*65536}")
    else:
        for n in range(7): put_softmax(G, 16 * n, (n - 1) % 7)
        off = lambda g: g
        G.s[0].append("s_waitcnt lgkmcnt(4)"); G.s[2].append("s_waitcnt lgkmcnt(2)"); G.s[4].append("s_waitcnt lgkmcnt(0)")
        for k in range(16): G.m[24 + k].append(v_read(k // 2, k % 2))
        G.s[38].append("s_waitcnt lgkmcnt(10)")
        G.s[40].append("s_waitcnt lgkmcnt(8)"); G.s[42].append("s_waitcnt lgkmcnt(4)"); G.s[44].append("s_waitcnt lgkmcnt(0)")
        va = v_addr(f"s{S_SL1}")
        for x, g in zip(va[4:], [5, 9, 17, 21]): G.v[g].append(x)
    if kind != "last":
        va = v_addr(f"s{S_SL2}"); ka = k_addr(f"s{S_SL2}")
        if kind == "first":
            for x, g in zip(va[:4] + ka, [off(z) for z in [53, 62, 62, 69, 78, 78, 85, 94]]): G.v[g].append(x)
        elif kind == "pen":
            put_pf(G, t)
            if t == 14:
                place(G, wo_dma(0) + wo_dma(1), [1, 19, 41, 49, 57, 65, 73, 91]); pf_cnt[0] += 8
            for x, g in zip(va[:4], [45, 53, 61, 69]): G.v[g].append(x)
            for x, g in zip(ka, [77, 85, 89, 93]): G.v[g].append(x)
            G.s[94].append(f"s_waitcnt vmcnt({8 * (14 - t) + pf_cnt[0]})")
        else:
            place(G, kv_dma("K", f"s{S_SL0}", S_KVE) + kv_dma("V", f"s{S_SL0}", S_KVE), [1, 13, 41, 49, 57, 65, 73, 81])
            for x, g in zip(va[:4], [45, 53, 61, 69]): G.v[g].append(x)
            for x, g in zip(ka, [77, 85, 89, 93]): G.v[g].append(x)
            G.s[94].append(f"s_waitcnt vmcnt({24 if t == 0 else 24 - 8 * O.nskip})")
        G.s[off(95)].append("s_barrier")
        for f in range(8): G.m[off(97 + 2 * f)].append(k_read(f))
        if kind != "pen": G.chain(next_dma_state(), [off(g) for g in [82, 84, 86, 88, 90, 92, 96, 98, 100, 102]])
        G.chain([f"s_sub_u32 s{S_SL2}, s{S_SL2}, 32768", f"s_cselect_b32 s{S_SL2}, {(RING-1)*32768}, s{S_SL2}", f"s_cmp_lt_u32 s{S_I}, {O.ta + 1 if (kind == chr(108)+chr(111)+chr(111)+chr(112) and t == 0) else 12 + O.nskip}", "s_waitcnt lgkmcnt(5)"],
                [off(g) for g in [104, 106, 108, 110]])
    else:
        for rt in range(4):
            for k in range(4): G.m[16 * (rt + 3) + 1 + 4 * k].append(f"ds_write_b128 v{V_T0}, {ar(OS_+16*rt+4*k)} offset:{(4*rt+k)*1024}")
        put_pf(G, 15)
        G.s[46].append("s_barrier")
        G.v[9].append(f"v_mov_b32 v{V_TMP+9}, 0"); G.m[17].append(f"global_load_dword v{V_TMP+10}, v{V_TMP+9}, {sr(P_DBG)} sc1 ;@st0")
        ex = [f"v_add_u32 v{V_RA0}, s{S_LB0}, v{V_RAB}"] + [f"v_xor_b32 v{V_RA0+q}, {q*32}, v{V_RA0}" for q in range(1, 4)]
        for x, g in zip(ex, [1, 3, 7, 13]): G.v[g].append(x)
        ex = ([f"v_add_u32 v{V_RA1}, s{S_LB1}, v{V_RAB}", f"v_add_u32 v{V_L2}, 4096, v{V_LANE16}"] + [f"v_xor_b32 v{V_RA1+q}, {q*32}, v{V_RA1}" for q in range(1, 4)]
              + [f"v_and_b32 v{V_STW}, 15, v0", f"v_lshl_add_u32 v{V_STW}, v{V_STW}, 3, s{S_STW}", f"v_xor_b32 v{V_STR}, 1024, v{V_STW}",
                 f"v_and_b32 v{V_FLR}, 3, v0", f"v_lshlrev_b32 v{V_FLR}, 10, v{V_FLR}", f"v_add_u32 v{V_FLR}, {ST0+896}, v{V_FLR}"])
        for x, g in zip(ex, [41, 45, 51, 55, 59, 63, 67, 71, 75, 79, 83]): G.v[g].append(x)
    return G

def code_pf(label, sh, vt):
    return ([f"s_lshl_b32 s6, s{S_WAVE}, {6+sh}", f"s_add_u32 s6, s6, {label}-L_pc"], f"v_lshl_add_u32 v{vt}, v0, {sh}, s6", f"global_load_dword v{V_TMP+6}, v{vt}, s[4:5]")
def multi_reduce(regs, temps, op):
    for sw in ("v_permlane32_swap_b32", "v_permlane16_swap_b32"):
        for r, t in zip(regs, temps): I(f"v_mov_b32 v{t}, v{r}")
        I("s_nop 1")
        for r, t in zip(regs, temps): I(f"{sw} v{r}, v{t}")
        I("s_nop 1")
        for r, t in zip(regs, temps): I(f"{op} v{r}, v{r}, v{t}")

RA_N = 13; RL_N = 9; NB = 5; ACC = 16
slot_of = {0: 0, 1: 1}
def areg(m, k, n):
    e = m % RA_N
    na = (256 - 28 * NB) // 16
    assert RA_N <= na + 6
    return ar(28 * NB + 16 * e + k, n) if e < na else vr(128 + 16 * (e - na) + k, n)
def bump(s, d): return [f"s_add_u32 s{s}, s{s}, {d}", f"s_addc_u32 s{s+1}, s{s+1}, 0", f"s_sub_u32 s{s+2}, s{s+2}, {d}"]
def wo_dma(m):
    s = slot_of[m]
    m0 = f"s_add_u32 m0, s{S_LB0}, {s*4096}" if s < 2 else f"s_add_u32 m0, s{S_LB1}, {(s-2)*4096}"
    pre = (bump(S_WO, 8 * 65536) if (m % 8 == 0 and m) else []) + [m0]
    return [(pre if j == 0 else [], f"buffer_load_dwordx4 v{V_WOF+j}, {sr(S_WO,4)}, s{S_TW+m%8} offen offset:{j*1024} {pol(O.pol_wo)}lds ;@w{m}") for j in range(4)]
def a_reads(m):
    s = slot_of[m]
    ra, o = (V_RA0, s * 4096) if s < 2 else (V_RA1, (s - 2) * 4096)
    return [f"ds_read_b64_tr_b16 {areg(m,4*cq+2*e,2)}, v{ra+cq} offset:{o+e*2048} ;@a{m}" for cq in range(4) for e in range(2)]
S_WBO = 8; S_SO = 33; S_PST = 20; S_PLD = 21; S_BIT = 22
def b_loads(n):
    pre = [f"s_add_u32 s{S_SO+n%2}, s{S_WBO+n//8}, s{S_TO+n%8}"]
    return [(pre if rt == 0 else [], f"buffer_load_dwordx4 {ar(28*(n%NB)+4*rt)}, v{V_LANE16 if rt<4 else V_L2}, {sr(S_OO,4)}, s{S_SO+n%2} offen offset:{(rt%4)*1024} {O.pol_old} ;@b{n}") for rt in range(7)]
def p3_mfmas(n):
    return [f"{MF} {vr(ACC+16*rt+4*cq)}, {areg(n,4*cq,4)}, {ar(28*(n%NB)+4*rt)}, " + ("0" if n % 16 == 0 else vr(ACC+16*rt+4*cq)) for rt in range(7) for cq in range(4)]

def gen():
    K = NAME + "_kernel"
    A(f".globl {K}\n.p2align 8\n.type {K},@function\n{K}:")
    I("s_cmp_ge_u32 s2, 256"); I("s_cbranch_scc1 L_done")
    I("s_load_dwordx16 s[52:67], s[0:1], 0")
    I("s_getpc_b64 s[4:5]")
    A("L_pc:")
    if O.cp0 == 0:
        I("v_lshlrev_b32 v14, 7, v0"); I("global_load_dword v15, v14, s[4:5]"); I("v_lshrrev_b32 v14, 1, v14"); I("v_add_u32 v14, 0x8000, v14"); I("global_load_dword v15, v14, s[4:5]")
    elif O.cp0 == 1:
        I("s_lshl_b32 s6, s2, 9"); I("s_and_b32 s6, s6, 0x3000"); I("v_lshl_add_u32 v14, v0, 4, s6"); I("global_load_dword v15, v14, s[4:5] offset:512")
    I("v_lshrrev_b32 v14, 6, v0")
    I("v_and_b32 v0, 63, v0")
    I(f"v_readfirstlane_b32 s{S_WAVE}, v14")
    I(f"s_and_b32 s{S_T0}, s2, 7"); I(f"s_lshr_b32 s{S_T1}, s2, 3")
    I(f"s_and_b32 s{S_B}, s{S_T0}, 1"); I(f"s_lshl_b32 s{S_B}, s{S_B}, 2"); I(f"s_and_b32 s{S_T2}, s{S_T1}, 3"); I(f"s_add_u32 s{S_B}, s{S_B}, s{S_T2}")
    I(f"s_lshr_b32 s{S_H}, s{S_T0}, 1"); I(f"s_lshl_b32 s{S_H}, s{S_H}, 3"); I(f"s_lshr_b32 s{S_T3}, s{S_T1}, 2"); I(f"s_add_u32 s{S_H}, s{S_H}, s{S_T3}")
    if O.lin_map: I(f"s_lshr_b32 s{S_B}, s2, 5"); I(f"s_and_b32 s{S_H}, s2, 31")
    I(f"s_mul_i32 s{S_XM}, s{S_T2}, {O.xb}"); I(f"s_add_u32 s{S_XM}, s{S_XM}, s{S_T3}"); I(f"s_and_b32 s{S_XM}, s{S_XM}, {O.xp-1}"); I(f"s_mul_i32 s{S_XM}, s{S_XM}, {O.xd*128}")
    I(f"s_mul_i32 s{S_T3}, s{S_T3}, {O.rotmul_h*128}"); I(f"s_mul_i32 s{S_T2}, s{S_T2}, {O.rotmul_b*128}"); I(f"s_add_u32 s{S_OX}, s{S_T2}, s{S_T3}")
    if O.rotmul_x: I(f"s_mul_i32 s{S_T0}, s{S_T0}, {O.rotmul_x*128}"); I(f"s_add_u32 s{S_OX}, s{S_OX}, s{S_T0}")
    I(f"s_and_b32 s{S_XR}, s{S_OX}, 2047"); I(f"s_mov_b32 s{S_OC}, 0")
    I(f"s_add_u32 s{S_OX}, s{S_XM}, s{S_XR}"); I(f"s_and_b32 s{S_OX}, s{S_OX}, 2047"); I(f"s_lshl_b32 s{S_OW}, s{S_OX}, 12")
    I(f"s_lshr_b32 s{S_R}, s{S_WAVE}, 1"); I(f"s_and_b32 s{S_C}, s{S_WAVE}, 1")
    I(f"s_lshl_b32 s{S_W4K}, s{S_WAVE}, 12"); I(f"s_add_u32 s{S_W4KK}, s{S_W4K}, {KOFF}"); I(f"s_add_u32 s{S_WXT}, s{S_W4K}, {XT}"); I(f"s_mul_i32 s{S_T0}, s{S_R}, {14*1024}"); I(f"s_lshl_b32 s{S_MXA}, s{S_C}, 12"); I(f"s_add_u32 s{S_MXA}, s{S_MXA}, s{S_T0}")
    I(f"s_mul_i32 s{S_MXB}, s{S_C}, 3072"); I(f"s_add_u32 s{S_MXB}, s{S_MXB}, s{S_T0}"); I(f"s_add_u32 s{S_MXB}, s{S_MXB}, 8192")
    T = V_TMP
    I(f"v_and_b32 v{T}, 15, v0"); I(f"v_lshrrev_b32 v{T+1}, 4, v0")
    I(f"v_and_b32 v{T+4}, 7, v0"); I(f"v_xor_b32 v{T+4}, v{T+4}, v{T+1}")
    I(f"v_lshrrev_b32 v{T+5}, 3, v0"); I(f"v_lshlrev_b32 v{T+7}, 11, v{T+5}"); I(f"v_lshl_add_u32 v{T+4}, v{T+4}, 4, v{T+7}")
    I(f"s_lshl_b32 s{S_T0}, s{S_C}, 16"); I(f"v_add_u32 v{V_XOFF}, s{S_T0}, v{T+4}"); I(f"v_xor_b32 v{T+5}, 64, v{V_XOFF}")
    for j in range(1, 4): I(f"v_add_u32 v{V_XOFF+j}, {j*16384-j*1024}, v{V_XOFF if j%2==0 else T+5}")
    I(f"s_lshl_b32 s{S_T0}, s{S_C}, 6"); I(f"v_xor_b32 v{T+4}, s{S_T0}, v{T+4}"); I(f"s_mul_i32 s{S_T0}, s{S_C}, {24*2048}"); I(f"s_add_u32 s{S_T0}, s{S_T0}, {64*2048}")
    I(f"v_add_u32 v{V_XOFF+4}, s{S_T0}, v{T+4}"); I(f"v_xor_b32 v{T+5}, 64, v{V_XOFF+4}")
    for j in range(1, 3): I(f"v_add_u32 v{V_XOFF+4+j}, {j*16384-j*1024}, v{V_XOFF+4 if j%2==0 else T+5}")
    I(f"v_lshlrev_b32 v{T+4}, 2, v{T+1}"); I(f"v_xor_b32 v{T+4}, v{T+4}, v{T}"); I(f"v_lshlrev_b32 v{T+5}, 13, v{T+1}"); I(f"v_lshl_add_u32 v{V_WOFF}, v{T+4}, 4, v{T+5}")
    for j in range(1, 4): I(f"v_add_u32 v{V_WOFF+j}, {j*32768-j*1024}, v{V_WOFF}")
    I(f"s_mul_i32 s{S_T0}, s{S_B}, 458752"); I(f"s_mul_i32 s{S_T1}, s{S_R}, {112*2048}"); I(f"s_add_u32 s{S_T0}, s{S_T0}, s{S_T1}")
    I(f"s_lshl_b32 s{S_T1}, s{S_H}, 8"); I(f"s_lshl_b32 s{S_T2}, s{S_WAVE}, 17"); I(f"s_add_u32 s{S_T1}, s{S_T1}, s{S_T2}")
    I("s_waitcnt lgkmcnt(0)")
    stamp()
    srd(S_X, P_X, 3670016, S_T0); srd(S_WQ, P_WQ, 8388608, S_T1)
    Q = []
    for k in range(16):
        Q += [(-1 if k <= 2 else (0 if k == 3 else 2 * (k - 4) + 1), x) for x in d_w(k)]
        Q += [(-1 if k <= 2 else 2 * (k - 3), x) for x in d_xa(k)]
        Q += [(-1 if k <= 2 else 2 * (k - 3) + 1, x) for x in d_xb(k)]
    def take(hh, cap, cap2):
        out = []
        pend = 0
        while pend < len(Q) and Q[pend][0] <= hh: pend += 1
        n = min(pend, cap if (hh < 0 or pend <= cap + (2 if hh % 2 else 0)) else cap2)
        for _ in range(n): out.append(Q.pop(0)[1])
        return out
    emit_dma(take(-1, min(O.n_up, O.n_up0), 0), post=True)
    I(f"s_lshl_b32 s{S_T0}, s{S_B}, 5"); I(f"s_add_u32 s{S_T0}, s{S_T0}, s{S_H}"); I(f"s_lshl_b32 s{S_T0}, s{S_T0}, 18")
    srd(S_K, P_K, 262144, S_T0, sub=False); srd(S_V, P_V, 262144, S_T0, sub=False)
    if O.tlbw:
        I("v_mov_b32 v14, 0")
        I(f"buffer_load_dword v15, v14, {sr(S_K,4)}, 0 offen {O.pol_kv}"); I(f"buffer_load_dword v15, v14, {sr(S_V,4)}, 0 offen {O.pol_kv}")
    if O.tlbw > 1:
        I("v_and_b32 v14, 3, v0"); I("v_lshlrev_b32 v14, 21, v14"); I(f"global_load_dword v15, v14, {sr(P_WQ)}")
    if O.tlbw > 2:
        I(f"global_load_dword v15, v14, {sr(P_WO)}")
        I("v_and_b32 v14, 7, v0"); I("v_lshlrev_b32 v14, 21, v14"); I("v_add_u32 v14, 0x1000000, v14"); I("v_subrev_u32 v14, 0x1000000, v14")
    srd(S_O, P_WS, PART + 256 * 28672); srd(S_OUT, P_OUT, 3670016)
    I(f"s_lshr_b32 s{S_T0}, s2, 3"); I(f"s_mul_i32 s{S_T0}, s{S_T0}, {O.kv_rot_j}"); I(f"s_and_b32 s{S_T1}, s2, 7"); I(f"s_mul_i32 s{S_T1}, s{S_T1}, {O.kv_rot_x}")
    I(f"s_add_u32 s{S_T0}, s{S_T0}, s{S_T1}"); I(f"s_and_b32 s{S_T0}, s{S_T0}, 15"); I(f"s_lshl_b32 s{S_T0}, s{S_T0}, 14"); I(f"s_add_u32 s{S_KV0}, s{S_T0}, s{S_W4K}")
    n_it = 11 + O.nskip
    I(f"s_mov_b32 s{S_MASK}, {((1 << n_it) - 1) << 1:#x}")
    if O.nskip:
        span = n_it - O.ta
        I(f"s_mul_i32 s{S_T0}, s2, 37"); I(f"s_and_b32 s{S_T0}, s{S_T0}, 255"); I(f"s_mul_i32 s{S_T0}, s{S_T0}, {span}"); I(f"s_lshr_b32 s{S_T0}, s{S_T0}, 8")
        for k in range(O.nskip):
            I(f"s_add_u32 s{S_T1}, s{S_T0}, {(k * span) // O.nskip}"); I(f"s_cmp_ge_u32 s{S_T1}, {span}"); I(f"s_cselect_b32 s{S_T2}, {span}, 0"); I(f"s_sub_u32 s{S_T1}, s{S_T1}, s{S_T2}")
            I(f"s_add_u32 s{S_T1}, s{S_T1}, {O.ta + 1}"); I(f"s_bitset0_b32 s{S_MASK}, s{S_T1}")
    I(f"s_mov_b32 s{S_FB}, 0"); I(f"s_mov_b32 s{S_KVG}, s{S_KV0}"); I(f"s_mov_b32 s{S_SCALE}, {f2u(SCALE):#x}")
    I(f"s_lshl_b32 s{S_T0}, s{S_B}, 1"); I(f"s_add_u32 s{S_T0}, s{S_T0}, s{S_R}"); I(f"s_lshl_b32 s{S_T0}, s{S_T0}, 5"); I(f"s_add_u32 s{S_T0}, s{S_T0}, s{S_H}")
    I(f"s_lshl_b32 s{S_T0}, s{S_T0}, 1"); I(f"s_add_u32 s{S_T0}, s{S_T0}, s{S_C}"); I(f"s_mul_i32 s{S_OST}, s{S_T0}, 14336")
    I(f"s_lshl_b32 s{S_T0}, s{S_B}, 5"); I(f"s_add_u32 s{S_T0}, s{S_T0}, s{S_H}")
    I(f"s_lshr_b32 s{S_SIG}, s{S_T0}, 2"); I(f"s_lshl_b32 s{S_SIG}, s{S_SIG}, 7"); I(f"s_and_b32 s{S_T1}, s{S_H}, 3"); I(f"s_lshl_b32 s{S_T1}, s{S_T1}, 2"); I(f"s_add_u32 s{S_SIG}, s{S_SIG}, s{S_T1}"); I(f"s_add_u32 s{S_SIG}, s{S_SIG}, {FLG}")
    I(f"s_lshl_b32 s{S_T0}, s{S_T0}, 2"); I(f"s_add_u32 s{S_T0}, s{S_T0}, s{S_WAVE}"); I(f"s_mul_i32 s{S_INB}, s{S_T0}, 7168"); I(f"s_add_u32 s{S_INB}, s{S_INB}, {PART}")
    I(f"s_lshl_b32 s101, s{S_T0}, 7"); I(f"s_add_u32 s101, s101, {FLG + 65536}")
    KH = S_SL0; CG = S_SL1; U = S_SL2
    I(f"s_bfe_u32 s{KH}, s{S_H}, 0x10003"); I(f"s_and_b32 s{S_T3}, s{S_H}, 7"); I(f"s_lshr_b32 s{CG}, s{S_H}, 4"); I(f"s_lshl_b32 s{CG}, s{CG}, 3"); I(f"s_add_u32 s{CG}, s{CG}, s{S_T3}")
    I(f"s_lshr_b32 s{S_T1}, s2, 3"); I(f"s_and_b32 s{S_T2}, s{S_B}, 3")
    I(f"s_lshl_b32 s{S_PFO}, s{S_T1}, 14"); I(f"s_lshl_b32 s6, s{S_T3}, 7"); I(f"s_sub_u32 s{S_PFO}, s{S_PFO}, s6")
    I(f"s_mul_i32 s{S_T2}, s{S_T2}, {O.k2_rot_r}"); I(f"s_mul_i32 s{S_T3}, s{S_T3}, {O.k2_rot_c}"); I(f"s_add_u32 s{U}, s{S_T2}, s{S_T3}")
    I(f"s_xor_b32 s{S_T1}, s{KH}, 1"); I(f"s_lshl_b32 s{S_T1}, s{S_T1}, 1"); I(f"s_add_u32 s{S_T1}, s{S_T1}, s{S_C}"); I(f"s_lshl_b32 s{S_T2}, s{S_R}, 2"); I(f"s_add_u32 s{S_T1}, s{S_T1}, s{S_T2}")
    I(f"s_lshl_b32 s{S_T0}, s{S_B}, 4"); I(f"s_add_u32 s{S_T0}, s{S_T0}, s{S_T1}"); I(f"s_mul_i32 s{S_T0}, s{S_T0}, {16*7168}")
    srd(S_OO, P_WS, 144 * 7168, S_T0, sub=False)
    I(f"s_lshl_b32 s{S_POLL}, s{S_B}, 3"); I(f"s_add_u32 s{S_POLL}, s{S_POLL}, s{S_T1}"); I(f"s_lshl_b32 s{S_POLL}, s{S_POLL}, 7"); I(f"s_add_u32 s{S_POLL}, s{S_POLL}, {FLG}")
    I(f"s_lshl_b32 s{S_T1}, s{S_T1}, 20"); I(f"s_lshl_b32 s{S_T2}, s{CG}, 7"); I(f"s_add_u32 s{S_T1}, s{S_T1}, s{S_T2}")
    srd(S_WO, P_WO, 8388608, S_T1)
    I(f"s_lshl_b32 s{S_T0}, s{S_B}, 1"); I(f"s_add_u32 s{S_T0}, s{S_T0}, s{KH}")
    I(f"s_mul_i32 s{S_OUTOFF}, s{S_T0}, {112*2048}"); I(f"s_add_u32 s{S_OUTOFF}, s{S_OUTOFF}, s{S_T2}"); I(f"s_lshl_b32 s{S_T1}, s{S_WAVE}, 5"); I(f"s_add_u32 s{S_OUTOFF}, s{S_OUTOFF}, s{S_T1}")
    for u in range(8):
        I(f"s_add_u32 s{S_T0}, s{U}, {u}"); I(f"s_and_b32 s{S_T0}, s{S_T0}, 7"); I(f"s_lshl_b32 s{S_TW+u}, s{S_T0}, 16"); I(f"s_mul_i32 s{S_TO+u}, s{S_T0}, 7168")
    I(f"s_lshl_b32 s{S_LB0}, s{S_WAVE}, 13"); I(f"s_add_u32 s{S_LB0}, s{S_LB0}, 98304"); I(f"s_xor_b32 s{S_T3}, s{S_WAVE}, 1")
    I(f"s_mul_i32 s{S_LB1}, s{S_T3}, 28672"); I(f"s_cmp_eq_u32 s{S_T3}, 3"); I(f"s_cselect_b32 s{S_LB1}, 131072, s{S_LB1}")
    I(f"s_mul_i32 s{S_CA}, s{S_WAVE}, 28672"); I(f"s_cmp_eq_u32 s{S_WAVE}, 3"); I(f"s_cselect_b32 s{S_CA}, 131072, s{S_CA}")
    I(f"s_lshl_b32 s{S_STW}, s{S_WAVE}, 10"); I(f"s_add_u32 s{S_STW}, s{S_STW}, {ST0}")
    I(f"v_lshlrev_b32 v{T+4}, 1, v{T+1}"); I(f"v_and_b32 v{T+6}, 7, v0"); I(f"v_xor_b32 v{T+6}, v{T+4}, v{T+6}"); I(f"v_lshl_add_u32 v{V_WOB}, v{T+6}, 4, v{T+7}")
    I(f"v_xor_b32 v{T+4}, v{T+4}, v{T}"); I(f"v_lshlrev_b32 v{T+5}, 8, v{T+1}")
    for j in range(4):
        I(f"v_xor_b32 v{T+6}, {8*(j&1) + (j>>1)}, v{T+4}"); I(f"v_lshl_add_u32 v{V_KVOFF+j}, v{T+6}, 4, v{T+5}")
    if O.kv_noswz:
        for j in range(4): I(f"v_lshlrev_b32 v{V_KVOFF+j}, 4, v0")
    I(f"v_lshlrev_b32 v{V_LANE16}, 4, v0"); I(f"v_bfe_u32 v{T+2}, v0, 2, 2"); I(f"v_and_b32 v{T+3}, 3, v0")
    I(f"v_lshrrev_b32 v{T+4}, 1, v{T}"); I(f"v_xor_b32 v{T+4}, v{T+4}, v{T+1}"); I(f"s_mul_i32 s{S_T0}, s{S_R}, {112*128}")
    I(f"v_lshlrev_b32 v{T+5}, 7, v{T}"); I(f"v_add_u32 v{T+5}, s{S_T0}, v{T+5}"); I(f"v_lshl_add_u32 v{V_XB}, v{T+4}, 4, v{T+5}"); I(f"v_xor_b32 v{V_XB+1}, 64, v{V_XB}")
    I(f"v_lshrrev_b32 v{T+4}, 1, v{T+3}"); I(f"v_and_b32 v{T+5}, 1, v{T+3}"); I(f"v_lshl_add_u32 v{T+4}, v{T+5}, 1, v{T+4}")
    I(f"s_lshl_b32 s{S_T0}, s{S_C}, 1"); I(f"v_xor_b32 v{T+5}, s{S_T0}, v{T+2}"); I(f"v_lshl_add_u32 v{T+4}, v{T+5}, 2, v{T+4}")
    I(f"v_lshl_add_u32 v{T+5}, v{T+1}, 3, v{T+2}"); I(f"v_lshlrev_b32 v{T+5}, 8, v{T+5}"); I(f"v_lshl_add_u32 v{V_WB}, v{T+4}, 4, v{T+5}"); I(f"v_xor_b32 v{V_WB+1}, 64, v{V_WB}")
    I(f"v_lshrrev_b32 v{T+4}, 1, v{T+1}"); I(f"v_and_b32 v{T+5}, 1, v{T+1}"); I(f"v_lshl_add_u32 v{T+4}, v{T+5}, 1, v{T+4}")
    I(f"v_and_b32 v{T+5}, 7, v{T}"); I(f"v_lshrrev_b32 v{T+6}, 3, v{T}"); I(f"v_lshl_add_u32 v{T+5}, v{T+5}, 1, v{T+6}")
    I(f"v_xor_b32 v{T+4}, v{T+4}, v{T+5}"); I(f"s_lshl_b32 s{S_T0}, s{S_C}, 3"); I(f"v_xor_b32 v{T+4}, s{S_T0}, v{T+4}")
    I(f"s_lshl_b32 s{S_T1}, s{S_C}, 13"); I(f"s_add_u32 s{S_T2}, s{S_T1}, {KOFF}")
    I(f"v_lshlrev_b32 v{T+5}, 8, v{T}"); I(f"v_add_u32 v{T+5}, s{S_T2}, v{T+5}"); I(f"v_lshl_add_u32 v{V_KB}, v{T+4}, 4, v{T+5}")
    I(f"v_lshl_add_u32 v{T+6}, v{T+1}, 2, v{T+2}")
    I(f"v_bfe_u32 v{T+4}, v{T+6}, 1, 2"); I(f"v_xor_b32 v{T+4}, s{S_WAVE}, v{T+4}"); I(f"v_lshlrev_b32 v{T+5}, 7, v{T+6}"); I(f"v_lshl_add_u32 v{T+5}, v{T+4}, 5, v{T+5}"); I(f"v_lshl_add_u32 v{V_RAB}, v{T+3}, 3, v{T+5}")
    I(f"v_and_b32 v{T+4}, 7, v{T+6}"); I(f"v_lshrrev_b32 v{T+5}, 3, v{T+6}"); I(f"v_lshl_add_u32 v{T+4}, v{T+4}, 1, v{T+5}")
    I(f"v_bfe_u32 v{T+5}, v0, 1, 1"); I(f"v_xor_b32 v{T+4}, v{T+4}, v{T+5}"); I(f"v_xor_b32 v{T+4}, s{S_T0}, v{T+4}")
    I(f"v_lshlrev_b32 v{T+6}, 8, v{T+6}"); I(f"v_add_u32 v{T+6}, s{S_T1}, v{T+6}"); I(f"v_lshl_add_u32 v{T+6}, v{T+4}, 4, v{T+6}")
    I(f"v_and_b32 v{T+5}, 1, v0"); I(f"v_lshl_add_u32 v{V_VB}, v{T+5}, 3, v{T+6}")
    for k in range(2):
        I(f"v_mov_b32 v{V_XA+k}, v{V_XB+k}"); I(f"v_mov_b32 v{V_WA+k}, v{V_WB+k}")
    if not O.e4:
        for k in range(32): I(f"v_mov_b32 v{OK_+80+k}, 0")
    for k in range(32): I(f"v_accvgpr_write_b32 a{OS_+80+k}, 0")
    for x in v_addr((RING - 1) * 32768): I(x)
    I(f"s_mul_i32 s{S_T2}, s{S_WAVE}, 14336"); I(f"v_add_u32 v{V_T0}, s{S_T2}, v{V_LANE16}")
    I(f"s_mul_i32 s{S_T3}, s{S_T3}, 14336"); I(f"v_add_u32 v{V_QP}, s{S_T3}, v{V_LANE16}")
    I(f"v_add_u32 v{V_KW1}, s{S_W4K}, v{V_LANE16}"); I(f"v_add_u32 v{V_KW0}, 0x10000, v{V_KW1}"); I(f"v_add_u32 v{V_KW2}, 0x20000, v{V_KW1}")
    if O.cpf:
        c1 = code_pf("L_trans", 6, 215)
        for x in c1[0] + [c1[1]]: I(x)
    for p in range(O.nl2):
        same = O.f1 == O.f2
        for rng, t, h in ((O.f1, S_T1, 0), (O.f2, S_T2, 1)):
            lo, hi = [int(z) for z in rng.split(",")]; n = hi - lo + 1
            I(f"s_add_u32 s{t}, s2, {128 if h else 0}"); I(f"s_and_b32 s{t}, s{t}, 255"); I(f"s_mul_i32 s{t}, s{t}, {n}"); I(f"s_lshr_b32 s{t}, s{t}, 8"); I(f"s_add_u32 s{t}, s{t}, {lo}")
            I(f"s_lshl_b32 s{t}, s{t}, 14"); I(f"s_add_u32 s{t}, s{t}, s{S_KV0}"); I(f"s_and_b32 s{t}, s{t}, 0x3ffff")
        I(f"v_mov_b32 v{T+4}, s{S_T1}"); I(f"v_mov_b32 v{T+5}, s{S_T2}"); I(f"v_cmp_gt_u32 vcc, 32, v0"); I(f"v_and_b32 v{T+6}, 31, v0"); I("s_nop 0")
        I(f"v_cndmask_b32 v{T+4}, v{T+5}, v{T+4}, vcc"); I(f"v_lshl_add_u32 v{V_PF+p}, v{T+6}, 7, v{T+4}")
    if O.gmode:
        I(f"s_cmp_eq_u32 s{S_R}, 0"); I(f"s_cselect_b32 s4, s{S_K}, s{S_V}"); I(f"s_cselect_b32 s5, s{S_K+1}, s{S_V+1}"); I(f"s_cselect_b32 s{S_T0}, 16384, 0")
        I("s_mov_b32 s6, 262144"); I("s_mov_b32 s7, 0x20000")
        I(f"s_sub_u32 s{S_T1}, s{S_KV0}, s{S_W4K}"); I(f"s_add_u32 s{S_T0}, s{S_T0}, s{S_T1}"); I(f"s_lshl_b32 s{S_T1}, s{S_C}, 13"); I(f"s_add_u32 s{S_T0}, s{S_T0}, s{S_T1}")
        for r in range(O.g_rounds):
            I(f"s_add_u32 s{60+r}, s{S_T0}, {r*16384}"); I(f"s_and_b32 s{60+r}, s{60+r}, 0x3ffff")
        I(f"s_lshr_b32 s100, s2, 3"); I(f"s_mul_i32 s100, s100, {O.g_per}"); I("s_lshr_b32 s100, s100, 5")
        I(f"v_lshlrev_b32 v{V_KW0}, 7, v0")
    emit_dma(take(-1, max(0, O.n_up - O.n_up0), 0), post=True)
    I("s_waitcnt vmcnt(@xa0)"); I("s_barrier")
    stamp()
    for r in r_w(0)[:2] + r_x([0])[:1] + r_w(0)[2:] + r_x(range(4))[1:]: I(r)
    for k in range(2): I(f"v_add_u32 v{V_WA+k}, {stg(1)}, v{V_WB+k}")
    I("s_waitcnt lgkmcnt(0) vmcnt(@w_1)"); I("s_barrier")
    el = early_loads(); ew = early_writes()
    l2 = [([], f"buffer_load_dword v{V_TMP+6}, v{V_PF+p}, {sr(sq,4)}, 0 offen") for p in range(O.nl2) for sq in (S_K, S_V)]
    qwork = []
    for rt in range(7):
        for kp in range(2):
            b = p1_acc(rt) + 8 * kp; t = SB + 4 * ((2 * rt + kp) % 8)
            rdy = 8 * rt + (4 * kp + 3 if O.accord else 5 + 2 * kp) + 9
            qwork += [(rdy, "v", f"v_mul_f32 v{b+k}, s{S_SCALE}, v{b+k}") for k in range(8)]
            if O.tr_early: qwork += [(rdy, "v", f"v_cvt_pk_bf16_f32 v{t+k}, v{b+2*k}, v{b+2*k+1}") for k in range(4)] + [(rdy, "w", f"ds_write_b128 v{V_T0}, {vr(t)} offset:{(2*rt+kp)*1024} ;@qw")]
    ne = 0
    NE = len(el) - O.tail_n
    nit = O.kv_last - O.kv_first
    def gat(hh):
        k = hh - O.g_start
        if not O.gmode or k < 0 or k >= O.g_per * O.g_rounds: return []
        return [([f"s_cmp_eq_u32 s100, {k % O.g_per}", f"s_cselect_b32 s101, s{60 + k // O.g_per}, 0x40000000"], f"buffer_load_dword v{V_TMP+6}, v{V_KW0}, s[4:7], s101 offen")]
    def tagd(g, t, adv=False):
        g = [(x[0], x[1] + f" ;@{t}") for x in g]
        if adv: g[3] = g[3] + ([KVG_UPD],)
        return g
    late = tagd(kv_dma("V", 4 * 32768), "v0", True) + tagd(kv_dma("K", 3 * 32768), "s1") + tagd(kv_dma("V", 3 * 32768), "s1", True) + tagd(kv_dma("K", 2 * 32768), "s2") + tagd(kv_dma("V", 2 * 32768), "s2", True)
    for i in range(16):
        if i <= 12: ma = take(2 * i, O.capA2 if i == 0 else O.capA, O.capA2)
        elif O.gmode: ma = gat(2 * i) + {13: [], 14: late[6:12], 15: late[18:20]}[i]
        elif i == 13: ma = take(26, 6, 6) + el[NE:NE + 4]
        elif i == 14: ma = ew[6:12]
        else: ma = ew[17:20]
        if 2 * i == O.l2_at: ma = ma + l2
        rd = r_x(range(4, 7)) + (r_w(i + 1) if i < 15 else [])
        addr = [(5, f"v_add_u32 v{V_XA+k}, {stg(i+1)}, v{V_XB+k}") for k in range(2)] if i < 15 else []
        va = (qwork, 0) if i == 15 else None
        p1_half(p1_mfmas(i, range(4)), ma, rd, addr, "s_waitcnt lgkmcnt(0)" + (f" vmcnt(@xa{i+1})" if i < 15 else ""), valu=va)
        k = 0
        if O.kv_first <= i < O.kv_last and not O.gmode: k = ((i - O.kv_first + 1) * NE) // nit - ne
        mb = el[ne:ne + k] + gat(2 * i + 1); ne += k
        tk = take(2 * i + 1, O.capB2 if i == 0 else O.capB, O.capB2)
        if i == O.k0_it:
            p = [n for n, x in enumerate(tk) if x[0]][0]
            tk = tk[:p] + kv_dma("K", 4 * 32768, S_KV0) + tk[p:]
        mb += tk
        if i == 13: assert not Q and not tk
        if i == 13: mb += late[0:6] if O.gmode else el[NE + 4:] + ew[0:6]
        if i == 14: mb += late[12:18] if O.gmode else ew[12:17]
        if 2 * i + 1 == O.l2_at: mb = mb + l2
        if O.cpf and i == 12: mb = mb + [([], c1[2])]
        rd = r_x(range(4)) if i < 15 else []
        addr = [(-1, f"v_add_u32 v{V_WA+k}, {stg(i+2)}, v{V_WB+k}") for k in range(2)] if i < 14 else []
        if i == 15: va = (qwork, 32)
        wait = None if i == 15 else "s_waitcnt lgkmcnt(0)" + (f" vmcnt(@w_{i+2})" if i < 14 else " vmcnt(@xb15)")
        p1_half(p1_mfmas(i, range(4, 7)), mb, rd, addr, wait, valu=va)
        if O.p1st and i < 15: stamp()
    stamp()
    A("L_trans:")
    for x in k_addr((RING - 1) * 32768): I(x)
    for f in range(8): I(k_read(f))
    assert O.tr_early
    for x in pendw: I(x)
    del pendw[:]
    for w in qwork: I(w[2])
    for rt in range(7):
        for kp in range(2): I(f"ds_read_b128 {ar(QA+16*rt+4*kp)}, v{V_T0} offset:{(2*rt+kp)*1024}")
    I(f"s_mov_b32 s{S_DS}, {4*32768}"); I(f"s_mov_b32 s{S_SL2}, {3*32768}"); I(f"s_mov_b32 s{S_I}, 0")
    I("s_waitcnt lgkmcnt(@qw)" + (" vmcnt(@v0)" if O.gmode else "")); I("s_barrier")
    for rt in range(7):
        for kp in range(2): I(f"ds_read_b128 {ar(QA+16*rt+8+4*kp)}, v{V_QP} offset:{(2*rt+kp)*1024}")
    I(f"v_add_u32 v{V_T0}, s{S_CA}, v{V_LANE16}")
    I(f"v_add_u32 v{V_T1}, s{S_LB1}, v{V_LANE16}")
    I(f"v_mov_b32 v{V_WOF}, v{V_WOB}")
    for j in range(1, 4): I(f"v_add_u32 v{V_WOF+j}, {j*16384-j*1024}, v{V_WOB}")
    I("s_waitcnt lgkmcnt(0)"); I("s_barrier")
    if not O.s4_in: emit_dma(kv_dma("K", 0) + kv_dma("V", 0)); I(KVG_UPD)
    stamp()
    att_iter("first").emit()
    g = sm0_ops(6)
    S = SB + 8 * COL[6]; pn = sm0_nm(5)
    for x in g[0] + g[1] + [pn[2]] + g[2] + [pn[3]] + g[3]: I(x)
    for k in range(1, 8): I(f"v_sub_f32 v{S+k}, v{S+k}, v{V_TMP}")
    for x in sm0_nm(6): I(x)
    I(f"v_mov_b32 v{LS+6}, 0")
    def clear_code():
        I(f"v_mov_b32 v{V_TMP+4}, s{S_SIG}"); I(f"v_mov_b32 v{V_TMP+5}, 0"); I(f"v_writelane_b32 v{V_TMP+4}, s101, 1"); I("s_mov_b64 exec, 3")
        I(f"global_store_dword v{V_TMP+4}, v{V_TMP+5}, {sr(P_WS)} sc1"); I("s_mov_b64 exec, -1")
    def count_code():
        I(f"s_or_b32 s{S_T0}, s{S_WAVE}, s{S_FB}"); I("s_cbranch_scc1 L_nosig0")
        I(f"v_mov_b32 v{V_TMP+5}, 0"); I(f"v_mov_b32 v{V_TMP+7}, 1"); I("s_mov_b64 exec, 1")
        I(f"global_atomic_add v{V_TMP+5}, v{V_TMP+7}, {sr(P_DBG)} sc1 ;@nocount")
        I("s_mov_b64 exec, -1")
        A("L_nosig0:")
    assert O.ta >= 4
    if O.clr == 0: clear_code()
    if O.epst: stamp()
    A(".p2align 6"); A("L_att:")
    for lp in ((0, 1) if O.ta else (1,)):
        if lp and O.clr == 0: count_code()
        if lp and O.clr == 1:
            I(f"s_cmp_lg_u32 s{S_FB}, 0"); I("s_cbranch_scc1 L_noclr"); clear_code(); A("L_noclr:")
        if lp and O.ta: A(".p2align 6"); A("L_att2:")
        G = att_iter("loop", lp)
        if O.loopst:
            G.s[92].append("s_memtime s[98:99]"); G.p[94].append("s_memtime s[100:101]"); G.p[95].append("s_memtime s[62:63]")
            G.v[7].append(f"v_cmp_eq_u32 vcc, s{S_I}, v0")
            for k, sg in enumerate((98, 100, 62)):
                G.v[11 + 4 * k].append(f"v_mov_b32 v251, s{sg}"); G.v[11 + 4 * k].append(f"v_cndmask_b32 v{252+k}, v{252+k}, v251, vcc")
        G.emit()
        I("s_cbranch_scc1 " + ("L_att2" if (lp and O.ta) else "L_att"))
    if O.epst: stamp()
    if O.loopst:
        I(f"s_lshl_b32 s{S_T0}, s2, 12"); I(f"s_lshl_b32 s{S_T1}, s{S_WAVE}, 10"); I(f"s_add_u32 s{S_T0}, s{S_T0}, s{S_T1}"); I(f"s_add_u32 s{S_T0}, s{S_T0}, {(1<<26)+(1<<20)}"); I(f"v_lshl_add_u32 v251, v0, 4, s{S_T0}")
        I(f"global_store_dwordx4 v251, v[252:255], {sr(P_WS)}")
    if O.clr == 1: count_code()
    for t in range(12 + O.nskip, 15): att_iter("pen", t).emit()
    A("L_last:")
    if O.epst: stamp()
    att_iter("last").emit()
    def sendfirst(m): return m[4:] + m[:4]
    def osend(rt, k): return f"ds_write_b128 v{V_T0}, {ar(OS_+16*rt+4*k)} offset:{(4*rt+k)*1024}"
    I("s_nop 0")
    G = Gaps(sendfirst(pv_mfmas(5)))
    e, a, c = sm_ops(6)
    for k in range(8):
        G.v[k].append(e[k])
        if k: G.v[k].append(a[k - 1])
        if k in (2, 4, 6): G.v[k].append(c[k // 2 - 1])
    for k in range(4): G.m[1 + 2 * k].append(osend(4, k))
    G.emit()
    I("s_nop 0"); I(c[3]); I(a[7]); I(f"s_mov_b32 s{S_T0}, {f2u(2.0**40):#x}")
    G = Gaps(sendfirst(pv_mfmas(6)))
    for k in range(7): G.v[[1, 1, 3, 3, 5, 5, 7][k]].append(f"v_mov_b32 v{V_TMP+k}, v{LS+k}")
    for k in range(4): G.m[2 * k].append(osend(5, k))
    G.emit()
    stamp()
    regs = [LS + rt for rt in range(7)]; temps = [V_TMP + rt for rt in range(7)]
    I(osend(6, 0)); I(osend(6, 1))
    for r, t in zip(regs, temps): I(f"v_permlane32_swap_b32 v{r}, v{t}")
    I(osend(6, 2))
    for r, t in zip(regs, temps): I(f"v_add_f32 v{r}, v{r}, v{t}")
    for r, t in zip(regs, temps): I(f"v_mov_b32 v{t}, v{r}")
    I(osend(6, 3)); I("s_nop 0")
    for r, t in zip(regs, temps): I(f"v_permlane16_swap_b32 v{r}, v{t}")
    I("s_nop 0")
    for rt, (r, t) in enumerate(zip(regs, temps)): I(f"v_add_f32 v{NM+4*rt+1}, v{r}, v{t}")
    I(f"v_add_f32 v{V_TMP}, v{NM+1}, v{NM+5}"); I(f"v_add_f32 v{V_TMP+1}, v{NM+9}, v{NM+13}"); I(f"v_add_f32 v{V_TMP+2}, v{NM+17}, v{NM+21}")
    I(f"v_add_f32 v{V_TMP}, v{V_TMP}, v{NM+25}"); I(f"v_add_f32 v{V_TMP+1}, v{V_TMP+1}, v{V_TMP+2}"); I(f"v_add_f32 v{V_TMP}, v{V_TMP}, v{V_TMP+1}")
    I(f"v_cmp_nlt_f32 vcc, v{V_TMP}, s{S_T0}")
    for rt in range(7): I(f"ds_write_b64 v{V_STW}, {vr(NM+4*rt,2)} offset:{rt*128}")
    I(f"s_cmp_lg_u64 vcc, 0"); I(f"s_cselect_b32 s{S_T1}, 1, 0"); I(f"s_andn2_b32 s{S_T1}, s{S_T1}, s{S_FB}"); I(f"v_mov_b32 v{V_TMP+1}, s{S_T1}")
    I(f"ds_write_b32 v{V_STW}, v{V_TMP+1} offset:896")
    I("s_waitcnt lgkmcnt(0)"); I("s_barrier")
    if O.epst: stamp()
    I(f"ds_read_b32 v{V_TMP+4}, v{V_FLR} ;@fl")
    for rt in range(7): I(f"ds_read_b64 {vr(NM+4*rt+2,2)}, v{V_STR} offset:{rt*128} ;@st")
    RB = 128
    def recv(rt):
        for dq in range(4): I(f"ds_read_b128 {vr(RB+16*(rt%4)+4*dq)}, v{V_T1} offset:{(4*rt+dq)*1024} ;@r{rt}")
    recv(0)
    I("s_waitcnt lgkmcnt(@fl)" if O.fast_ep else "s_waitcnt lgkmcnt(@fl) vmcnt(@w1)")
    I(f"v_cmp_ne_u32 vcc, 0, v{V_TMP+4}")
    recv(1)
    I("s_cbranch_vccnz L_fallback")
    st = {"dma": 2, "rd": 0}; free = []; pend = []
    def do_read(wait=True):
        m = st["rd"]; st["rd"] += 1
        if wait: I(f"s_waitcnt vmcnt(@w{m})")
        for r in a_reads(m): I(r)
        pend.append(m)
    def release(n=None):
        k = len(pend) if n is None else n
        if not k: return
        I(f"s_waitcnt lgkmcnt(@a{pend[k-1]})")
        for _ in range(k): free.append(slot_of[pend.pop(0)])
    def do_dma():
        m = st["dma"]; st["dma"] += 1
        slot_of[m] = free.pop(0); emit_dma(wo_dma(m))
    def factors(rts):
        bs = [NM + 4 * rt for rt in rts]
        for rt, b in zip(rts, bs): I(f"v_min_f32 v{LS+rt}, v{b}, v{b+2}")
        for rt, b in zip(rts, bs): I(f"v_sub_f32 v{b}, v{LS+rt}, v{b}"); I(f"v_sub_f32 v{b+2}, v{LS+rt}, v{b+2}")
        for b in bs: I(f"v_exp_f32 v{b}, v{b}"); I(f"v_exp_f32 v{b+2}, v{b+2}")
        for b in bs: I(f"v_mul_f32 v{b+1}, v{b+1}, v{b}")
        for b in bs: I(f"v_fma_f32 v{b+1}, v{b+3}, v{b+2}, v{b+1}")
        for b in bs: I(f"v_rcp_f32 v{b+1}, v{b+1}")
        for b in bs: I(f"v_mul_f32 v{b}, v{b}, v{b+1}"); I(f"v_mul_f32 v{b+2}, v{b+2}, v{b+1}")
    if O.fast_ep:
        recv(2)
        I("s_waitcnt lgkmcnt(@st)")
        factors([0, 1])
        I("s_waitcnt lgkmcnt(@r1)"); free.extend([2, 3])
    else:
        do_read(False); do_read(False)
        recv(2)
        I("s_waitcnt lgkmcnt(@st)")
        bs = [NM + 4 * rt for rt in range(7)]
        for rt, b in enumerate(bs): I(f"v_min_f32 v{LS+rt}, v{b}, v{b+2}")
        for rt, b in enumerate(bs): I(f"v_sub_f32 v{b}, v{LS+rt}, v{b}"); I(f"v_sub_f32 v{b+2}, v{LS+rt}, v{b+2}")
        release(); free.extend([2, 3])
        for _ in range(min(2, O.pre_dma)): do_dma()
        for b in bs: I(f"v_exp_f32 v{b}, v{b}"); I(f"v_exp_f32 v{b+2}, v{b+2}")
        if O.pre_dma > 2: do_dma()
        for b in bs: I(f"v_mul_f32 v{b+1}, v{b+1}, v{b}")
        for b in bs: I(f"v_fma_f32 v{b+1}, v{b+3}, v{b+2}, v{b+1}")
        for b in bs: I(f"v_rcp_f32 v{b+1}, v{b+1}")
        if O.pre_dma > 3: do_dma()
        for b in bs: I(f"v_mul_f32 v{b}, v{b}, v{b+1}"); I(f"v_mul_f32 v{b+2}, v{b+2}, v{b+1}")
    for rt in range(7):
        if O.epst: stamp()
        if O.fast_ep and rt == 2:
            for _ in range(O.pre_dma): do_dma()
            factors([2, 3, 4, 5, 6])
        if rt + 3 < 7: recv(rt + 3)
        if rt >= 2:
            I(f"s_waitcnt lgkmcnt(@r{rt})"); free.append(2 + rt)
        if free and str(rt) in O.ep_dma: do_dma()
        b = NM + 4 * rt; o = OK_ + 16 * rt; rb = RB + 16 * (rt % 4)
        for k in range(0, 16, 2): I(f"v_pk_mul_f32 {vr(o+k,2)}, {vr(o+k,2)}, {vr(b,2)} op_sel_hi:[1,0]")
        for k in range(0, 16, 2): I(f"v_pk_fma_f32 {vr(o+k,2)}, {vr(rb+k,2)}, {vr(b+2,2)}, {vr(o+k,2)} op_sel_hi:[1,0,1]")
        for k in range(8): I(f"v_cvt_pk_bf16_f32 v{o+k}, v{o+2*k}, v{o+2*k+1}")
        I(f"s_add_u32 s{S_T1}, s{S_OST}, {rt*1024}"); I(f"s_add_u32 s{S_T2}, s{S_OST}, {rt*1024+7168}")
        I(f"buffer_store_dwordx4 {vr(o)}, v{V_LANE16}, {sr(S_O,4)}, s{S_T1} offen {O.pol_ost} ;@os")
        I(f"buffer_store_dwordx4 {vr(o+4)}, v{V_LANE16}, {sr(S_O,4)}, s{S_T2} offen {O.pol_ost} ;@os")
    stamp()
    assert RA_N == 16 and NB == 2
    def poll_loop(name, reg, addr, base, test):
        t = [f"s_mov_b32 s{S_I}, 0", f"L_poll{name}:"] + test + [f"s_cbranch_scc1 L_ready{name}", f"s_add_u32 s{S_I}, s{S_I}, 1",
             f"s_cmp_ge_u32 s{S_I}, 0x40000", f"s_cbranch_scc1 L_ready{name}", "s_sleep 2", f"global_load_dword v{reg}, v{addr}, {sr(base)} sc1 ;@nocount", "s_waitcnt vmcnt(0)", f"s_branch L_poll{name}", f"L_ready{name}:"]
        return chr(10).join(t)
    allset = [f"v_cmp_ne_u32 vcc, 1, v{V_TMP+3}", "s_nop 1", "s_cmp_eq_u64 vcc, 0"]
    I(f"v_mov_b32 v{V_TMP}, s{S_SIG}"); I(f"v_mov_b32 v{V_TMP+1}, 1"); I(f"v_and_b32 v{V_TMP+2}, 3, v0"); I(f"v_lshl_add_u32 v{V_TMP+2}, v{V_TMP+2}, 2, s{S_POLL}")
    I(f"s_bfe_u32 s{S_T0}, s{S_H}, 0x10003"); I(f"s_mul_i32 s{S_WBO+2}, s{S_T0}, {128*7168}"); I(f"s_sub_u32 s{S_WBO}, {128*7168}, s{S_WBO+2}")
    I(f"s_add_u32 s{S_WBO+1}, s{S_WBO}, {8*7168}"); I(f"s_add_u32 s{S_WBO+3}, s{S_WBO+2}, {8*7168}")
    I(f"s_lshl_b32 s{S_T0}, s{S_B}, 5"); I(f"s_add_u32 s{S_T0}, s{S_T0}, s{S_H}"); I(f"s_lshl_b32 s{S_T0}, s{S_T0}, 2"); I(f"s_add_u32 s{S_T0}, s{S_T0}, s{S_WAVE}")
    I(f"s_xor_b32 s{S_T0}, s{S_T0}, 32"); I(f"s_mul_i32 s{S_PST}, s{S_T0}, 7168"); I(f"s_add_u32 s{S_PST}, s{S_PST}, {PART}")
    older = st["dma"]
    while st["rd"] < older: do_read()
    I("s_waitcnt vmcnt(0)"); I("s_barrier")
    I(f"s_cmp_lg_u32 s{S_WAVE}, 0"); I("s_cbranch_scc1 L_nosig")
    I("s_mov_b64 exec, 1")
    I(f"global_store_dword v{V_TMP}, v{V_TMP+1}, {sr(P_WS)} sc1 ;@nocount")
    I("s_mov_b64 exec, -1")
    A("L_nosig:")
    I(poll_loop("0", V_TMP + 10, V_TMP + 9, P_DBG, [f"v_readfirstlane_b32 s{S_T0}, v{V_TMP+10}", "s_nop 0", f"s_cmp_ge_u32 s{S_T0}, 256"]))
    stamp()
    release()
    pol_ = [False]
    def maybe_poll():
        if not pol_[0] and st["dma"] >= 16 - O.poll_lead:
            I(f"global_load_dword v{V_TMP+3}, v{V_TMP+2}, {sr(P_WS)} sc1 ;@poll"); pol_[0] = st["dma"]
    while free and st["dma"] < 16: maybe_poll(); do_dma()
    while st["dma"] < 16:
        do_read()
        if len(pend) > 1: release(1); maybe_poll(); do_dma()
    maybe_poll()
    RD = V_TMP + 4
    for cq in range(4):
        I(f"s_xor_b32 s{S_T0}, s{S_WAVE}, {cq}"); I(f"s_mul_i32 s{S_T0}, s{S_T0}, 28672"); I(f"v_add_u32 v{RD+cq}, s{S_T0}, v{V_LANE16}")
    V_OA = V_TMP + 8
    I(f"v_and_b32 v{V_OA}, 15, v0"); I(f"v_lshlrev_b32 v{V_OA}, 11, v{V_OA}"); I(f"v_lshrrev_b32 v{V_TMP+9}, 4, v0"); I(f"v_lshl_add_u32 v{V_OA}, v{V_TMP+9}, 3, v{V_OA}")
    I(f"v_mov_b32 v{V_TMP+9}, s101"); I(f"v_xor_b32 v{V_TMP}, {32*128}, v{V_TMP+9}")
    while st["rd"] < pol_[0]: do_read()
    I("s_waitcnt vmcnt(@poll)")
    stamp()
    I(poll_loop("1", V_TMP + 3, V_TMP + 2, P_WS, allset))
    stamp()
    def bl(n, rt):
        x = b_loads(n)[rt]
        return (x[0], x[1].replace(f";@b{n}", f";@b{n}_{rt}"))
    for rt in range(7): emit_dma([bl(0, rt), bl(1, rt)])
    while st["rd"] < 16: do_read()
    I("s_waitcnt vmcnt(@b1_0) lgkmcnt(0)")
    stamp()
    def wr_(rt, cq, tag): return f"ds_write_b128 v{RD+cq}, {vr(ACC+16*rt+4*cq)} offset:{(cq*7+rt)*1024} ;@{tag}"
    FR_ = [f"ds_read_b128 {vr(ACC+16*rt+4*cq)}, v{RD} offset:{(cq*7+rt)*1024} ;@f{rt}" for rt in range(7) for cq in range(1, 4)]
    wr = [wr_(rt, cq, f"fw{rt}") for rt in range(7) for cq in range(1, 4)]
    PR = 192; SC = 220
    GS = []
    for N in range(16):
        n = 2 * N
        m0, m1 = p3_mfmas(n), p3_mfmas(n + 1)
        order = [1, 2, 3, 0] if N == 15 else [0, 1, 2, 3]
        GS += [x for rt in range(7) for cq in order for x in (m0[4 * rt + cq], m1[4 * rt + cq])]
    G = Gaps(GS)
    for N in range(16):
        n = 2 * N; g0 = 56 * N
        if n + 2 < 32:
            for rt in range(7): place(G, [bl(n + 2, rt), bl(n + 3, rt)], [g0 + 8 * rt + 9, g0 + 8 * rt + 11])
        for rt in range(7):
            if g0 + 8 * rt - 1 >= 0: G.s[g0 + 8 * rt - 1].append(f"s_waitcnt vmcnt(@b{n+1}_{rt})")
    G.s[56 * 5].append("s_barrier")
    k = 0
    for rt in range(7):
        for j in range(4): G.v[56 * 7 + 8 * rt + 13 + 2 * (j // 2)].append(f"v_mov_b32 v{PR+4*rt+j}, v{ACC+16*rt+j}")
        for cq in range(1, 4):
            g = 56 * 7 + 16 + 4 * k; k += 1
            assert 56 * 7 + 8 * rt + 2 * cq + 10 <= g < 56 * 8 + 8 * rt + 2 * cq - 1, (rt, cq)
            G.m[g].append(wr_(rt, cq, "mw"))
    g = 56 * 8 + 45
    G.s[g].append("s_waitcnt lgkmcnt(0)"); G.s[g].append("s_barrier")
    for rt in range(7):
        g = 56 * 8 + 48 + 16 * rt
        for cq in range(1, 4): G.m[g + 2 * cq - 2].append(f"ds_read_b128 {vr(SC+4*(cq-1))}, v{RD} offset:{(cq*7+rt)*1024}")
        G.s[g + 8].append("s_waitcnt lgkmcnt(0)")
        ad = [f"v_add_f32 v{PR+4*rt+k}, v{PR+4*rt+k}, v{SC+k}" for k in range(4)] + [f"v_add_f32 v{SC+4+k}, v{SC+4+k}, v{SC+8+k}" for k in range(4)] + [f"v_add_f32 v{PR+4*rt+k}, v{PR+4*rt+k}, v{SC+4+k}" for k in range(4)]
        for k, x in enumerate(ad): G.v[g + [8, 8, 10, 10, 12, 12, 13, 13, 14, 14, 15, 15][k]].append(x)
    g = 56 * 10 + 52
    for rt in range(7):
        G.m[g + [0, 1, 2, 4, 6, 8, 9][rt]].append(f"buffer_store_dwordx4 {vr(PR+4*rt)}, v{V_LANE16 if rt<4 else V_L2}, {sr(S_O,4)}, s{S_PST} offen offset:{(rt%4)*1024} {O.pol_ost} ;@ps")
    g = 56 * 11 + O.s2_g
    G.s[g].append("s_waitcnt vmcnt(@ps)"); G.s[g].append("s_mov_b64 exec, 1")
    G.m[g].append(f"global_store_dword v{V_TMP}, v{V_TMP+1}, {sr(P_WS)} sc1"); G.p[g].append("s_mov_b64 exec, -1")
    G.s[56 * 13 + 4].append("s_barrier")
    G.m[56 * 14 + O.p2_g].append(f"global_load_dword v{V_TMP+3}, v{V_TMP+9}, {sr(P_WS)} sc1 ;@poll2")
    G.p[56 * 15 + 3].append("s_waitcnt vmcnt(@poll2)"); G.p[56 * 15 + 3].append(poll_loop("2", V_TMP + 3, V_TMP + 9, P_WS, allset))
    PL = [f"buffer_load_dwordx4 {vr(PR+4*rt)}, v{V_LANE16 if rt<4 else V_L2}, {sr(S_O,4)}, s{S_INB} offen offset:{(rt%4)*1024} {O.pol_old}" for rt in range(7)]
    for rt in range(7): G.m[56 * 15 + [4, 5, 6, 8, 9, 11, 13][rt]].append(PL[rt] + " ;@pl")
    nw = 0; g0 = 56 * 15
    for rt in range(6):
        for k in range(3): G.m[g0 + 8 * rt + 10 + 2 * k].append(wr[nw]); nw += 1
    if O.fin2:
        G.s[g0 + 43].append("s_waitcnt lgkmcnt(@fw3)"); G.s[g0 + 43].append("s_barrier")
        for g, x in zip([45, 47, 48, 49, 51, 53, 55, 55, 55], FR_[:9]): G.m[g0 + g].append(x)
    if O.p3st:
        for N in range(1, 16):
            k = nstamp[0]; nstamp[0] += 1
            G.p[56 * N - 2].append(f"s_memtime {sr(S_STP)}\ns_memrealtime {sr(S_STP+2)}\ns_waitcnt lgkmcnt(0)\nv_writelane_b32 v{V_STAMP}, s{S_STP}, {2*k}\nv_writelane_b32 v{V_STAMP}, s{S_STP+2}, {2*k+1}")
    G.emit()
    stamp()
    I("s_nop 4")
    def fin(rt):
        I(f"s_waitcnt lgkmcnt(@f{rt})")
        o = ACC + 16 * rt
        for k in (0, 2):
            I(f"v_pk_add_f32 {vr(o+k,2)}, {vr(o+k,2)}, {vr(o+4+k,2)}"); I(f"v_pk_add_f32 {vr(o+8+k,2)}, {vr(o+8+k,2)}, {vr(o+12+k,2)}")
        for k in (0, 2): I(f"v_pk_add_f32 {vr(o+k,2)}, {vr(o+k,2)}, {vr(PR+4*rt+k,2)}")
        for k in (0, 2): I(f"v_pk_add_f32 {vr(o+k,2)}, {vr(o+k,2)}, {vr(o+8+k,2)}")
        I(f"v_cvt_pk_bf16_f32 v{o}, v{o}, v{o+1}"); I(f"v_cvt_pk_bf16_f32 v{o+1}, v{o+2}, v{o+3}")
        I(f"buffer_store_dwordx2 {vr(o,2)}, v{V_OA}, {sr(S_OUT,4)}, s{S_OUTOFF} offen {O.pol_out}")
        I(f"s_add_u32 s{S_OUTOFF}, s{S_OUTOFF}, {16*2048}")
    for x in wr[nw:]: I(x)
    I("s_waitcnt vmcnt(@pl)")
    if O.fin2:
        for x in FR_[9:12]: I(x)
        fin(0); fin(1)
        I("s_waitcnt lgkmcnt(@fw6)"); I("s_barrier")
        for x in FR_[12:]: I(x)
        for rt in range(2, 7): fin(rt)
    else:
        I("s_waitcnt lgkmcnt(0)"); I("s_barrier")
        for x in FR_: I(x)
        for rt in range(7): fin(rt)
    stamp()
    store_stamps()
    A("L_done:")
    I("s_endpgm")
    A("L_fallback:")
    I(f"s_mov_b32 s{S_FB}, 1")
    I("s_waitcnt vmcnt(0) lgkmcnt(0)"); I("s_barrier")
    for rt in range(7): I(f"v_mov_b32 v{NM+4*rt}, 0xff800000")
    I(f"s_mov_b32 s{S_KVG}, s{S_KV0}")
    for x in k_addr(0): I(x)
    I(f"s_mov_b32 s{S_I}, 0")
    A("L_fb_loop:")
    emit_dma(kv_dma("K", 0)); I(KVG_UPD)
    I("s_waitcnt vmcnt(0)"); I("s_barrier")
    for f in range(8): I(k_read(f))
    I("s_waitcnt lgkmcnt(0)"); I("s_barrier")
    for rt in range(7):
        for m in qk_mfmas(rt, SB, usenm=False): I(m)
        I("s_nop 7")
        b = NM + 4 * rt
        for k in range(4): I(f"v_max3_f32 v{b}, v{b}, v{SB+2*k}, v{SB+2*k+1}")
    I(f"s_add_u32 s{S_I}, s{S_I}, 1"); I(f"s_cmp_lt_u32 s{S_I}, 16"); I("s_cbranch_scc1 L_fb_loop")
    multi_reduce([NM + 4 * rt for rt in range(7)], [NM + 4 * rt + 1 for rt in range(7)], "v_max_f32")
    for rt in range(7):
        b = NM + 4 * rt
        I(f"v_sub_f32 v{b}, 0, v{b}")
        for k in range(1, 4): I(f"v_mov_b32 v{b+k}, v{b}")
    I(f"s_mov_b32 s{S_KVG}, s{S_KV0}")
    for st in range(RING - 1):
        emit_dma(kv_dma("K", (4 - st) * 32768) + kv_dma("V", (4 - st) * 32768)); I(KVG_UPD)
    for k in range(112): I(f"v_mov_b32 v{OK_+k}, 0")
    for k in range(112): I(f"v_accvgpr_write_b32 a{OS_+k}, 0")
    for k in range(32): I(f"v_mov_b32 v{VF+k}, 0")
    for k in range(12): I(f"v_mov_b32 v{PB+k}, 0")
    for k in range(7): I(f"v_mov_b32 v{LS+k}, 0")
    for k in range(8): I(f"v_mov_b32 v{SB+16+k}, 0xf149f2ca")
    I(f"s_mov_b32 s{S_MASK}, 0xfff"); I(f"s_mov_b32 s{S_DS}, 0"); I(f"s_mov_b32 s{S_SL2}, {3*32768}"); I(f"s_mov_b32 s{S_I}, -1")
    for x in next_dma_state(): I(x)
    for x in k_addr(4 * 32768) + v_addr(4 * 32768): I(x)
    I("s_waitcnt vmcnt(0)"); I("s_barrier")
    for f in range(8): I(k_read(f))
    I("s_waitcnt lgkmcnt(0)")
    I("s_branch L_att")

def main(fn):
    global RA_N, NB
    RA_N = O.ra_n; NB = O.nb
    del L[:]
    nstamp[0] = 0
    A('.amdgcn_target "amdgcn-amd-amdhsa--gfx950"')
    A(".text")
    gen()
    A("  .fill 6144, 4, 0xBF800000")
    A('.section .rodata,"a"\n.p2align 6')
    A(f".amdhsa_kernel {NAME}_kernel\n  .amdhsa_next_free_vgpr 512\n  .amdhsa_next_free_sgpr 102\n  .amdhsa_accum_offset 256\n  .amdhsa_group_segment_fixed_size 0\n  .amdhsa_kernarg_size 64\n  .amdhsa_user_sgpr_count 2\n  .amdhsa_user_sgpr_kernarg_segment_ptr 1\n  .amdhsa_system_sgpr_workgroup_id_x 1\n.end_amdhsa_kernel")
    head = ["; fused MHA block: per (b,h) workgroup Q-proj + attention, flag hand-off, then a 112x64 tile of the output projection",
            "; @launch grid=(256,1,1) block=(256,1,1) lds=163840"]
    open(fn, "w").write("\n".join(head + resolve(L)) + "\n")

if __name__ == "__main__":
    fn = sys.argv[1]
    for kv in sys.argv[2:]:
        k, v = kv.split("=")
        cur = getattr(O, k)
        setattr(O, k, (v == "1") if isinstance(cur, bool) else (int(v) if isinstance(cur, int) else v.replace("+", " ")))
    main(fn)
```

```python
import sys, math, struct, re
NAME = "standalone__mha_block_cached__near_ridge"

class Opt:
    pol_kv = "nt"; pol_x = ""; pol_wq = ""; pol_ost = "sc1"; pol_old = "sc1"; pol_wo = ""; pol_out = ""
    stamps = False; dbgst = False
    rotmul_h = 0; rotmul_b = 0
    k2_rot_c = 1; k2_rot_r = 2
    wo_pref = 3
    kv_first = 6
    abl_nopoll = False
    wo_early = 3
    kv_rot_j = 1
    kv_rot_x = 2
    lin_map = False
    kv_last = 13
    k0_it = 1
    up_chunks = 2
    nl2 = 1
    l2_base = 5
    cpf = True
    wo_mall = False
    n_up = 22
    n_up0 = 8
    capA = 6
    capB = 5
    capA2 = 9
    capB2 = 8
    rotmul_x = 1
    sig_cnt = False
    gmode = False
    g_start = 12
    g_per = 4
    g_rounds = 3
    l2_at = 29
    pf_pen = 2
    s4_in = True
    p1st = False
    abl_noearly = False
    nskip = 2
    epst = False
    ta = 6
    f1 = '5,10'
    f2 = '5,10'
    pf_row = True
    cp0 = 1
    pol_kve = 'nt'
    dbg_wg = 37
    fast_ep = False
    xp = 2
    xd = 4
    xb = 1
    p2_at = 13
    clr = 0
    p3st = False
    s2_g = 52
    p2_g = 12
    fin2 = True
    tail_n = 8
    e4 = True
    wo_first = 0
    pre_dma = 2
    ra_n = 16
    r0 = 10
    nb = 2
    tr_early = True
    accord = True
    ep_dma = '9'
    post_dma = 0
    pf_q = 4
    pf_max = 8
    cpf_at = 14
    pref_last = True
    loopst = False
    tlbw = 0
    abl_nomfma = False
    kv_noswz = False
    att_vm = 24
    abl_nodma = False
    poll_lead = 2
O = Opt()

L = []
def A(s): L.append(s)
def I(s):
    for x in s.split("\n"):
        if x.strip(): L.append("  " + x.strip())
def vr(b, n=4): return f"v[{b}:{b+n-1}]"
def ar(b, n=4): return f"a[{b}:{b+n-1}]"
def sr(b, n=2): return f"s[{b}:{b+n-1}]"
def pol(p): return (p + " ") if p else ""
def f2u(x): return struct.unpack("<I", struct.pack("<f", x))[0]
MF = "v_mfma_f32_16x16x32_bf16"

class Gaps:
    def __init__(self, mf):
        self.mf = list(mf); n = len(self.mf)
        self.s = [[] for _ in range(n)]; self.m = [[] for _ in range(n)]; self.v = [[] for _ in range(n)]; self.p = [[] for _ in range(n)]
    def chain(self, instrs, gaps):
        assert len(gaps) >= len(instrs), (instrs, gaps)
        for x, g in zip(instrs, gaps): self.s[g].append(x)
    def emit(self):
        for i, m in enumerate(self.mf):
            I(m)
            for x in self.s[i] + self.m[i] + self.v[i] + self.p[i]: I(x)

def resolve(lines):
    vm = []; lg = []; out = []
    for ln in lines:
        t = re.search(r";@(\S+)", ln)
        tag = t.group(1) if t else None
        code = ln.split(";")[0].rstrip() if t else ln
        op = code.strip().split(" ")[0] if code.strip() else ""
        def sub(kind, q, cap):
            def f(m):
                k = m.group(1)
                idx = [i for i, x in enumerate(q) if x == k]
                assert idx, ("unknown tag", k, ln)
                return f"{kind}({min(cap, len(q) - 1 - idx[-1])})"
            return f
        code = re.sub(r"vmcnt\(@(\S+?)\)", sub("vmcnt", vm, 62), code)
        code = re.sub(r"lgkmcnt\(@(\S+?)\)", sub("lgkmcnt", lg, 14), code)
        if tag != "nocount":
            if op.startswith(("buffer_", "global_")): vm.append(tag)
            elif op.startswith("ds_"): lg.append(tag)
        out.append(code)
    return out

OK_ = 16; VF = 128; SB = 160; PB = 184; NM = 196; LS = 224
V_LANE16 = 1; V_QP = 2; V_WOB = 3
V_KVOFF = 4
V_XB = 8; V_WB = 10; V_KB = 12; V_VB = 13; V_T0 = 14; V_T1 = 15
V_XOFF = 200; V_WOFF = 207; V_KW0 = 211; V_KW1 = 253
V_RAB = 231; V_PF = 212
V_XA = 232; V_WA = 234
V_KA = 232; V_VA = 236; V_TMP = 244; V_STAMP = 255
OS_ = 0; QA = 112; KF = 224; FR = 112
COL = [0, 1, 0, 1, 0, 1, 2]
S_X = 8; S_K = 12; S_V = 16; S_WQ = 20; S_O = 24
S_WAVE = 28; S_B = 29; S_H = 30; S_R = 31; S_C = 32
S_OX = 33; S_OW = 34; S_MXA = 36; S_MXB = 3; S_WXT = 37; S_I = 38
S_T0 = 39; S_T1 = 40; S_T2 = 41; S_T3 = 42
S_KVG = 43; S_SL0 = 44; S_SL1 = 45; S_SL2 = 46
S_FB = 47; S_W4K = 48; S_W4KK = 49; S_SCALE = 50; S_OST = 51
P_X = 52; P_K = 54; P_V = 56; P_WQ = 58; P_WO = 60; P_OUT = 62; P_DBG = 64; P_WS = 66
S_WO = 68; S_OO = 72; S_OUT = 76; S_TW = 80; S_TO = 52; S_LB0 = 88; S_LB1 = 89; S_OUTOFF = 90; S_SIG = 91; S_POLL = 92; S_PFO = 93
S_STP = 96
XT = 28672; WT = 16384; STG = XT + WT
RING = 5; KOFF = 16384; PART = 1 << 24; FLG = 3 << 23
ST0 = 86016; S_CA = 7; S_STW = 61; V_STW = 241; V_STR = 242; V_FLR = 243
SCALE = math.log2(math.e) / math.sqrt(128.0)

nstamp = [0]
def stamp():
    if not O.stamps: return
    k = nstamp[0]
    I(f"s_memtime {sr(S_STP)}"); I("s_waitcnt lgkmcnt(0)"); I(f"v_writelane_b32 v{V_STAMP}, s{S_STP}, {2*k}")
    I(f"s_memrealtime {sr(S_STP)}"); I("s_waitcnt lgkmcnt(0)"); I(f"v_writelane_b32 v{V_STAMP}, s{S_STP}, {2*k+1}")
    nstamp[0] += 1
def store_stamps():
    if not O.stamps: return
    I(f"s_cmp_lg_u32 s{S_WAVE}, 0"); I("s_cbranch_scc1 L_done")
    I(f"s_lshl_b32 s{S_T0}, s2, 8"); I(f"s_add_u32 s{S_T0}, s{S_T0}, {1<<26}"); I(f"v_lshl_add_u32 v15, v0, 2, s{S_T0}")
    I(f"global_store_dword v15, v{V_STAMP}, {sr(P_WS)}")
    if O.dbgst:
        I(f"s_cmp_lg_u32 s2, {O.dbg_wg}"); I("s_cbranch_scc1 L_done")
        I(f"v_readlane_b32 s{S_T0}, v{V_STAMP}, 62"); I("v_lshlrev_b32 v15, 1, v0"); I("v_add_u32 v15, 6, v15"); I(f"v_subrev_u32 v14, s{S_T0}, v{V_STAMP}")
        I("s_mov_b32 exec_lo, 0x2aaaaaa"); I("s_mov_b32 exec_hi, 0")
        I(f"global_store_dword v15, v14, {sr(P_DBG)}")
def srd(d, ptr, nbytes, shift=None, sub=True):
    if shift is None:
        I(f"s_mov_b32 s{d}, s{ptr}"); I(f"s_mov_b32 s{d+1}, s{ptr+1}"); I(f"s_mov_b32 s{d+2}, {nbytes}")
    else:
        I(f"s_add_u32 s{d}, s{ptr}, s{shift}"); I(f"s_addc_u32 s{d+1}, s{ptr+1}, 0")
        I(f"s_sub_u32 s{d+2}, {nbytes}, s{shift}" if sub else f"s_mov_b32 s{d+2}, {nbytes}")
    I(f"s_mov_b32 s{d+3}, 0x20000")

def stg(i): return ((-i) % 3) * STG
def d_w(i): return [([f"s_add_u32 m0, {stg(i)}, s{S_WXT}"] if j == 0 else [], f"buffer_load_dwordx4 v{V_WOFF+j}, {sr(S_WQ,4)}, s{S_OW} offen offset:{j*1024} {pol(O.pol_wq)}lds ;@w_{i}") for j in range(4)]
def d_xa(i): return [([f"s_add_u32 m0, {stg(i)}, s{S_MXA}"] if j == 0 else [], f"buffer_load_dwordx4 v{V_XOFF+j}, {sr(S_X,4)}, s{S_OX} offen offset:{j*1024} {pol(O.pol_x)}lds ;@xa{i}") for j in range(4)]
def d_xb(i): return [([f"s_add_u32 m0, {stg(i)}, s{S_MXB}"] if j == 0 else [], f"buffer_load_dwordx4 v{V_XOFF+4+j}, {sr(S_X,4)}, s{S_OX} offen offset:{j*1024} {pol(O.pol_x)}lds ;@xb{i}", P1_UPD if j == 2 else []) for j in range(3)]
S_OC = 38; S_XM = 95
S_XR = 99
P1_UPD = [f"s_add_u32 s{S_OC}, s{S_OC}, 128", f"s_xor_b32 s{S_OX}, s{S_OC}, s{S_XM}", f"s_add_u32 s{S_OX}, s{S_OX}, s{S_XR}", f"s_and_b32 s{S_OX}, s{S_OX}, 2047", f"s_lshl_b32 s{S_OW}, s{S_OX}, 12"]
def emit_dma(g, post=False):
    for x in g:
        for p in x[0]: I(p)
        if x[0]: I("s_nop 0")
        I(x[1])
        if post and len(x) > 2:
            for p in x[2]: I(p)
def kv_dma(which, slot, so=None):
    so = S_KVG if so is None else so
    s, off = (S_K, S_W4KK) if which == "K" else (S_V, S_W4K)
    return [([f"s_add_u32 m0, {slot}, s{off}"] if j == 0 else [],
             f"buffer_load_dwordx4 v{V_KVOFF+j}, {sr(s,4)}, s{so} offen offset:{j*1024} {pol(O.pol_kv)}lds") for j in range(4)]
KVG_UPD = f"s_add_u32 s{S_KVG}, s{S_KVG}, 16384\ns_and_b32 s{S_KVG}, s{S_KVG}, 0x3ffff"
S_KV0 = 94; S_KVE = 95; S_MASK = 35; S_DS = S_SL1
def er(reg): return ar(reg) if reg < 256 else vr(reg - 256)
EARLY = [("V", 0, 256 + 160), ("K", 1, 256 + 176), ("V", 1, 0), ("K", 2, 16), ("V", 2, 32), ("K", 3, 48), ("V", 3, 64)]
def early_list(): return EARLY + ([("K", 4, 256 + 96), ("V", 4, 256 + 112)] if O.e4 else [])
V_KW2 = 216; V_ZR = 217; S_INB = 100
def early_loads():
    g = []
    for p, (w, st, reg) in enumerate(early_list()):
        for j in range(4):
            post = [KVG_UPD] if (w == "V" and j == 3) else []
            g.append(([], f"buffer_load_dwordx4 {er(reg+4*j)}, v{V_KVOFF+j}, {sr(S_K if w=='K' else S_V,4)}, s{S_KVG} offen offset:{j*1024} {O.pol_kve} ;@e{p}", post))
    return g
def early_writes():
    g = []
    for p, (w, st, reg) in enumerate(early_list()):
        addr = (4 - st) * 32768 + (KOFF if w == "K" else 0)
        base, b0 = (V_KW2, 131072) if addr >= 131072 else ((V_KW0, 65536) if addr >= 65536 else (V_KW1, 0))
        for j in range(4):
            g.append(([f"s_waitcnt vmcnt(@e{p})"] if j == 0 else [], f"ds_write_b128 v{base}, {er(reg+4*j)} offset:{addr-b0+j*1024} ;@ew"))
    return g
def p1_acc(rt): return OK_ + 16 * rt if rt < 5 else VF + 16 * (rt - 5)
FW = 112; FXA = 176; FXB = 208
def r_w(i):
    return [f"ds_read_b64_tr_b16 {ar(FW+32*(i&1)+16*s+4*t+2*e,2)}, v{V_WA+t//2} offset:{XT + s*8192 + e*1024 + (t%2)*8}" for s in range(2) for t in range(4) for e in range(2)]
def xf(rt, s): return (FXA + 8 * rt + 4 * s) if rt < 4 else (FXB + 8 * (rt - 4) + 4 * s)
def r_x(rts): return [f"ds_read_b128 {ar(xf(rt,s))}, v{V_XA+s} offset:{rt*2048}" for rt in rts for s in range(2)]
def p1_mfmas(i, rts):
    return [f"{MF} {vr(p1_acc(rt)+4*t)}, {ar(FW+32*(i&1)+16*s+4*t)}, {ar(xf(rt,s))}, " + ("0" if (i == 0 and s == 0) else vr(p1_acc(rt)+4*t)) for rt in rts for (s, t) in ([(s, t) for t in range(4) for s in range(2)] if O.accord else [(s, t) for s in range(2) for t in range(4)])]
def place(G, ops, gaps):
    assert len(gaps) >= len(ops), (len(ops), gaps)
    for d, g in zip(ops, gaps):
        for p in d[0]:
            if G.m[g - 1] and "buffer_" in G.m[g - 1][-1] and "lds" in G.m[g - 1][-1] and "m0" in p: G.p[g - 1].append(p)
            else: G.s[g - 1].append(p)
        G.m[g].append(d[1])
        if len(d) > 2:
            pp = [q for p in d[2] for q in p.split(chr(10))]
            nxt = [h for h in gaps[:len(ops)] if h > g]
            for k, p in enumerate(pp): G.s[min(g + 1 + k // 2, nxt[0] if nxt else 10**9)].append(p)
def layout(n, nmem, nrd):
    mg = sorted(set(1 + (k * (n - 3)) // max(nmem, 1) for k in range(nmem)))
    assert len(mg) == nmem
    rg = [g for g in range(n - 2) if g not in mg][:nrd]
    if len(rg) < nrd: rg = sorted(rg + mg[:nrd - len(rg)])
    return mg, rg
pendw = []
def p1_half(mf, mem, reads, addr, wait, valu=None, vstart=0):
    G = Gaps(mf); n = len(mf)
    mg, rg = layout(n, len(mem), len(reads))
    for k, r in zip(rg, reads): G.m[k].append(r)
    place(G, mem, mg)
    for after, x in addr:
        g0 = rg[after] + 1 if after >= 0 else 0
        c = [g for g in range(g0, n - 1) if g not in mg and len(G.v[g]) < (1 if G.m[g] else 2) and not (G.m[g] and G.s[g])]
        G.v[c[0]].append(x)
    if valu is not None:
        work, base = valu
        lastw = -9
        for g in range(n):
            if base and pendw and g - lastw >= 3 and g not in mg and not G.m[g]:
                G.m[g].append(pendw.pop(0)); lastw = g; continue
            room = 0 if g in mg else (1 if G.m[g] else 2)
            while work and work[0][0] <= g + base and (work[0][1] == "w" or len(G.v[g]) < room) and len(pendw) < 7:
                w = work.pop(0)
                if w[1] == "w": pendw.append(w[2])
                else: G.v[g].append(w[2])
    if wait is not None:
        G.s[n - 1].append(wait); G.s[n - 1].append("s_barrier")
    G.emit()

def kq(f): return (f % 4, f // 4) if O.accord else (f // 2, f % 2)
def k_read(f): return f"ds_read_b128 {ar(KF+4*f)}, v{V_KA+kq(f)[0]} offset:{kq(f)[1]*4096}"
def v_read(dq, e): return f"ds_read_b64_tr_b16 {vr(VF+4*dq+2*e,2)}, v{V_VA+dq}" + (" offset:4096" if e else "")
def k_addr(slot): return [f"v_add_u32 v{V_KA}, {slot}, v{V_KB}"] + [f"v_xor_b32 v{V_KA+q}, {q*64}, v{V_KA}" for q in range(1, 4)]
def v_addr(slot): return [f"v_add_u32 v{V_VA}, {slot}, v{V_VB}"] + [f"v_xor_b32 v{V_VA+d}, {d*32}, v{V_VA}" for d in range(1, 8)]
def oacc(rt, dq): return vr(OK_ + 16 * rt + 4 * dq) if dq < 4 else ar(OS_ + 16 * rt + 4 * (dq - 4))
def qk_mfmas(rt, S, usenm=True):
    m = []
    for f in range(8):
        q, kt = kq(f)
        d = S + 4 * kt
        c = (vr(NM + 4 * rt) if usenm else "0") if q == 0 else vr(d)
        m.append(f"{MF} {vr(d)}, {ar(KF+4*f)}, {ar(QA+16*rt+4*q)}, {c}")
    return m
def pv_mfmas(rt, first=False):
    P = PB + 4 * COL[rt]
    return [f"{MF} {oacc(rt,dq)}, {vr(VF+4*dq)}, {vr(P)}, " + ("0" if first else oacc(rt, dq)) for dq in range(8)]
def sm_ops(rt, scol=None):
    S = SB + 8 * (COL[rt] if scol is None else scol); P = PB + 4 * COL[rt]
    e = [f"v_exp_f32 v{S+k}, v{S+k}" for k in range(8)]
    a = [f"v_add_f32 v{LS+rt}, v{LS+rt}, v{S+k}" for k in range(8)]
    c = [f"v_cvt_pk_bf16_f32 v{P+k}, v{S+2*k}, v{S+2*k+1}" for k in range(4)]
    return e, a, c
def put_softmax(G, base, rt):
    e, a, c = sm_ops(rt)
    for k in range(8):
        G.v[base + 2 * k].append(e[k])
        if k % 2 == 1: G.v[base + 2 * k + 1].append(c[k // 2])
        G.v[base + 2 * k + 1].append(a[k])
def sm0_nm(rt):
    t = V_TMP + 2 * (rt & 1)
    return [f"v_sub_f32 v{NM+4*rt+k}, 0, v{t}" for k in range(4)]
def sm0_ops(rt):
    scol = 2 if rt == 0 else COL[rt]
    S = SB + 8 * scol; t = V_TMP + 2 * (rt & 1)
    e, a, c = sm_ops(rt, scol)
    a[1] = f"v_add_f32 v{LS+rt}, v{S}, v{S+1}"
    pn = sm0_nm(rt - 1) if rt else ["s_nop 0", "s_nop 0", None, None]
    sub = [f"v_sub_f32 v{S+k}, v{S+k}, v{t}" for k in range(8)]
    g = [[f"v_max3_f32 v{t}, v{S}, v{S+1}, v{S+2}", f"v_max3_f32 v{t+1}, v{S+3}, v{S+4}, v{S+5}", f"v_max3_f32 v{t}, v{t}, v{S+6}, v{S+7}"],
         [f"v_max_f32 v{t}, v{t}, v{t+1}", f"v_max_f32 v{t+1}, v{t}, v{t+1}", pn[0]],
         [f"v_permlane32_swap_b32 v{t}, v{t+1}", f"v_max_f32 v{t}, v{t}, v{t+1}", f"v_mov_b32 v{t+1}, v{t}", pn[1]],
         [f"v_permlane16_swap_b32 v{t}, v{t+1}", f"v_max_f32 v{t}, v{t}, v{t+1}", sub[0]],
         [e[0], sub[1]], [e[1], sub[2]], [e[2], sub[3]], [e[3], sub[4], a[1]], [e[4], sub[5], c[0]], [e[5], sub[6], a[2]], [e[6], sub[7], a[3]],
         [e[7], c[1], a[4]], [c[2], a[5], pn[2]], [c[3], a[6]], [a[7], pn[3]]]
    return [[x for x in grp if x] for grp in g]

def next_dma_state():
    return [f"s_add_u32 s{S_I}, s{S_I}, 1", f"s_bitcmp1_b32 s{S_MASK}, s{S_I}", f"s_cselect_b32 s{S_SL0}, s{S_DS}, 0x30000", f"s_cselect_b32 s{S_KVE}, s{S_KVG}, 0x40000000",
            f"s_cselect_b32 s{S_T3}, 32768, 0", f"s_sub_u32 s{S_DS}, s{S_DS}, s{S_T3}", f"s_cselect_b32 s{S_DS}, {(RING-1)*32768}, s{S_DS}",
            f"s_lshr_b32 s{S_T3}, s{S_T3}, 1", f"s_add_u32 s{S_KVG}, s{S_KVG}, s{S_T3}", f"s_and_b32 s{S_KVG}, s{S_KVG}, 0x3ffff"]
V_WOF = 8; V_RA0 = 232; V_RA1 = 236; V_L2 = 240
pf_cnt = [0, 0]
def put_pf(G, t):
    if t == 12 + O.nskip:
        if O.pf_row:
            G.v[1].append(f"v_and_b32 v{V_TMP+8}, 7, v0"); G.v[3].append(f"v_and_b32 v{V_TMP+7}, 8, v0"); G.v[5].append(f"v_lshl_add_u32 v{V_TMP+8}, v{V_TMP+7}, 1, v{V_TMP+8}"); G.v[7].append(f"v_lshlrev_b32 v{V_TMP+8}, 7, v{V_TMP+8}")
        else:
            G.v[1].append(f"v_and_b32 v{V_TMP+8}, 15, v0"); G.v[5].append(f"v_lshlrev_b32 v{V_TMP+8}, 11, v{V_TMP+8}")
        pf_cnt[0] = 0; pf_cnt[1] = 4 * O.wo_first
    if O.cpf and t == O.cpf_at:
        c2 = code_pf("L_last+2048", 6, V_TMP + 5)
        G.chain(c2[0], [6, 8]); G.v[10].append(c2[1]); G.m[11].append(c2[2].replace(f"v{V_TMP+6},", f"v{V_QP},")); pf_cnt[0] += 1
    gl = {1: [13], 2: [13, 57], 3: [13, 47, 81], 4: [13, 41, 63, 87], 5: [13, 41, 55, 71, 87], 6: [13, 23, 41, 55, 71, 87]}[O.pf_q] if O.pf_q else []
    for g in gl:
        if pf_cnt[1] >= O.pf_max: break
        k = pf_cnt[1]
        G.s[g - 1].append(f"s_add_u32 s{S_T0}, s{S_PFO}, {(k // 4) * 8 * 65536 + (k % 4) * (4096 if O.pf_row else 32768)}")
        G.m[g].append(f"buffer_load_dword v{V_QP}, v{V_TMP+8}, {sr(S_WO,4)}, s{S_T0} offen")
        pf_cnt[0] += 1; pf_cnt[1] += 1
def att_iter(kind, t=None):
    mf = []; base = []
    for n in range(7):
        base.append(len(mf))
        mf += qk_mfmas(n, SB + 8 * (2 if (kind == "first" and n == 0) else COL[n]), usenm=(kind != "first"))
        if not (kind == "first" and n < 2): mf += pv_mfmas((n - 2) % 7, first=(kind == "first"))
    G = Gaps(mf)
    if kind == "first":
        for k in range(16): G.m[k].append(v_read(k // 2, k % 2) + " ;@vf")
        for n in range(1, 7):
            g = sm0_ops(n - 1)
            if n == 1: pos = [11, 12, 13, 14, 15, 15, 16, 16, 17, 17, 18, 18, 19, 19, 20]
            elif n == 2: pos = [base[2] + x for x in [4, 5, 6, 7, 8, 8, 9, 10, 11, 12, 13, 14, 15, 15, 15]]
            else: pos = [base[n] + x for x in range(15)]
            for grp, p in zip(g, pos):
                for x in grp: G.v[p].append(x)
        G.s[base[2] + 6].append("s_waitcnt lgkmcnt(@vf)")
        off = lambda g: g - 16
        G.v[2].append(f"v_lshlrev_b32 v{V_TMP+8}, 11, v0")
        if O.e4:
            place(G, early_writes()[20:], [off(g) for g in [37, 41, 44, 47, 52, 54, 58, 61, 63, 68, 70, 74, 77, 79, 84, 86]])
            G.s[off(91)].append("s_waitcnt lgkmcnt(@ew)")
            for k in range(32): G.v[off([93, 94, 95, 95, 100, 102, 109, 110, 111, 110][k % 10])].append(f"v_mov_b32 v{OK_+80+k}, 0")
        else:
            place(G, early_writes()[20:], [off(g) for g in [50, 54, 58, 62, 63, 66, 70, 74]])
            d4 = kv_dma("K", 0) + kv_dma("V", 0); d4[7] = d4[7] + ([KVG_UPD],)
            place(G, d4, [off(g) for g in [36, 42, 47, 52, 60, 68, 72, 78]])
        for j in range(O.wo_first):
            g = off([61, 79][j])
            G.s[g - 1].append(f"s_add_u32 s{S_T0}, s{S_PFO}, {j*8*65536}")
            G.m[g].append(f"buffer_load_dword v{V_QP}, v{V_TMP+8}, {sr(S_WO,4)}, s{S_T0} offen")
        for j in range(0 if O.pref_last else O.wo_pref):
            G.m[off(36 + 3 * j)].append(f"buffer_load_dword v{V_QP}, v{V_TMP+8}, {sr(S_WO,4)}, s{S_PFO} offen")
            G.s[off(37 + 3 * j)].append(f"s_add_u32 s{S_PFO}, s{S_PFO}, {8*65536}")
    else:
        for n in range(7): put_softmax(G, 16 * n, (n - 1) % 7)
        off = lambda g: g
        G.s[0].append("s_waitcnt lgkmcnt(4)"); G.s[2].append("s_waitcnt lgkmcnt(2)"); G.s[4].append("s_waitcnt lgkmcnt(0)")
        for k in range(16): G.m[24 + k].append(v_read(k // 2, k % 2))
        G.s[38].append("s_waitcnt lgkmcnt(10)")
        G.s[40].append("s_waitcnt lgkmcnt(8)"); G.s[42].append("s_waitcnt lgkmcnt(4)"); G.s[44].append("s_waitcnt lgkmcnt(0)")
        va = v_addr(f"s{S_SL1}")
        for x, g in zip(va[4:], [5, 9, 17, 21]): G.v[g].append(x)
    if kind != "last":
        va = v_addr(f"s{S_SL2}"); ka = k_addr(f"s{S_SL2}")
        if kind == "first":
            for x, g in zip(va[:4] + ka, [off(z) for z in [53, 62, 62, 69, 78, 78, 85, 94]]): G.v[g].append(x)
        elif kind == "pen":
            put_pf(G, t)
            if t == 14:
                place(G, wo_dma(0) + wo_dma(1), [1, 19, 41, 49, 57, 65, 73, 91]); pf_cnt[0] += 8
            for x, g in zip(va[:4], [45, 53, 61, 69]): G.v[g].append(x)
            for x, g in zip(ka, [77, 85, 89, 93]): G.v[g].append(x)
            G.s[94].append(f"s_waitcnt vmcnt({8 * (14 - t) + pf_cnt[0]})")
        else:
            place(G, kv_dma("K", f"s{S_SL0}", S_KVE) + kv_dma("V", f"s{S_SL0}", S_KVE), [1, 13, 41, 49, 57, 65, 73, 81])
            for x, g in zip(va[:4], [45, 53, 61, 69]): G.v[g].append(x)
            for x, g in zip(ka, [77, 85, 89, 93]): G.v[g].append(x)
            G.s[94].append(f"s_waitcnt vmcnt({24 if t == 0 else 24 - 8 * O.nskip})")
        G.s[off(95)].append("s_barrier")
        for f in range(8): G.m[off(97 + 2 * f)].append(k_read(f))
        if kind != "pen": G.chain(next_dma_state(), [off(g) for g in [82, 84, 86, 88, 90, 92, 96, 98, 100, 102]])
        G.chain([f"s_sub_u32 s{S_SL2}, s{S_SL2}, 32768", f"s_cselect_b32 s{S_SL2}, {(RING-1)*32768}, s{S_SL2}", f"s_cmp_lt_u32 s{S_I}, {O.ta + 1 if (kind == chr(108)+chr(111)+chr(111)+chr(112) and t == 0) else 12 + O.nskip}", "s_waitcnt lgkmcnt(5)"],
                [off(g) for g in [104, 106, 108, 110]])
    else:
        for rt in range(4):
            for k in range(4): G.m[16 * (rt + 3) + 1 + 4 * k].append(f"ds_write_b128 v{V_T0}, {ar(OS_+16*rt+4*k)} offset:{(4*rt+k)*1024}")
        put_pf(G, 15)
        G.s[46].append("s_barrier")
        G.v[9].append(f"v_mov_b32 v{V_TMP+9}, 0"); G.m[17].append(f"global_load_dword v{V_TMP+10}, v{V_TMP+9}, {sr(P_DBG)} sc1 ;@st0")
        ex = [f"v_add_u32 v{V_RA0}, s{S_LB0}, v{V_RAB}"] + [f"v_xor_b32 v{V_RA0+q}, {q*32}, v{V_RA0}" for q in range(1, 4)]
        for x, g in zip(ex, [1, 3, 7, 13]): G.v[g].append(x)
        ex = ([f"v_add_u32 v{V_RA1}, s{S_LB1}, v{V_RAB}", f"v_add_u32 v{V_L2}, 4096, v{V_LANE16}"] + [f"v_xor_b32 v{V_RA1+q}, {q*32}, v{V_RA1}" for q in range(1, 4)]
              + [f"v_and_b32 v{V_STW}, 15, v0", f"v_lshl_add_u32 v{V_STW}, v{V_STW}, 3, s{S_STW}", f"v_xor_b32 v{V_STR}, 1024, v{V_STW}",
                 f"v_and_b32 v{V_FLR}, 3, v0", f"v_lshlrev_b32 v{V_FLR}, 10, v{V_FLR}", f"v_add_u32 v{V_FLR}, {ST0+896}, v{V_FLR}"])
        for x, g in zip(ex, [41, 45, 51, 55, 59, 63, 67, 71, 75, 79, 83]): G.v[g].append(x)
    return G

def code_pf(label, sh, vt):
    return ([f"s_lshl_b32 s6, s{S_WAVE}, {6+sh}", f"s_add_u32 s6, s6, {label}-L_pc"], f"v_lshl_add_u32 v{vt}, v0, {sh}, s6", f"global_load_dword v{V_TMP+6}, v{vt}, s[4:5]")
def multi_reduce(regs, temps, op):
    for sw in ("v_permlane32_swap_b32", "v_permlane16_swap_b32"):
        for r, t in zip(regs, temps): I(f"v_mov_b32 v{t}, v{r}")
        I("s_nop 1")
        for r, t in zip(regs, temps): I(f"{sw} v{r}, v{t}")
        I("s_nop 1")
        for r, t in zip(regs, temps): I(f"{op} v{r}, v{r}, v{t}")

RA_N = 13; RL_N = 9; NB = 5; ACC = 16
slot_of = {0: 0, 1: 1}
def areg(m, k, n):
    e = m % RA_N
    na = (256 - 28 * NB) // 16
    assert RA_N <= na + 6
    return ar(28 * NB + 16 * e + k, n) if e < na else vr(128 + 16 * (e - na) + k, n)
def bump(s, d): return [f"s_add_u32 s{s}, s{s}, {d}", f"s_addc_u32 s{s+1}, s{s+1}, 0", f"s_sub_u32 s{s+2}, s{s+2}, {d}"]
def wo_dma(m):
    s = slot_of[m]
    m0 = f"s_add_u32 m0, s{S_LB0}, {s*4096}" if s < 2 else f"s_add_u32 m0, s{S_LB1}, {(s-2)*4096}"
    pre = (bump(S_WO, 8 * 65536) if (m % 8 == 0 and m) else []) + [m0]
    return [(pre if j == 0 else [], f"buffer_load_dwordx4 v{V_WOF+j}, {sr(S_WO,4)}, s{S_TW+m%8} offen offset:{j*1024} {pol(O.pol_wo)}lds ;@w{m}") for j in range(4)]
def a_reads(m):
    s = slot_of[m]
    ra, o = (V_RA0, s * 4096) if s < 2 else (V_RA1, (s - 2) * 4096)
    return [f"ds_read_b64_tr_b16 {areg(m,4*cq+2*e,2)}, v{ra+cq} offset:{o+e*2048} ;@a{m}" for cq in range(4) for e in range(2)]
S_WBO = 8; S_SO = 33; S_PST = 20; S_PLD = 21; S_BIT = 22
def b_loads(n):
    pre = [f"s_add_u32 s{S_SO+n%2}, s{S_WBO+n//8}, s{S_TO+n%8}"]
    return [(pre if rt == 0 else [], f"buffer_load_dwordx4 {ar(28*(n%NB)+4*rt)}, v{V_LANE16 if rt<4 else V_L2}, {sr(S_OO,4)}, s{S_SO+n%2} offen offset:{(rt%4)*1024} {O.pol_old} ;@b{n}") for rt in range(7)]
def p3_mfmas(n):
    return [f"{MF} {vr(ACC+16*rt+4*cq)}, {areg(n,4*cq,4)}, {ar(28*(n%NB)+4*rt)}, " + ("0" if n % 16 == 0 else vr(ACC+16*rt+4*cq)) for rt in range(7) for cq in range(4)]

def gen():
    K = NAME + "_kernel"
    A(f".globl {K}\n.p2align 8\n.type {K},@function\n{K}:")
    I("s_cmp_ge_u32 s2, 256"); I("s_cbranch_scc1 L_done")
    if O.dbgst: I("s_memrealtime s[68:69]")
    I("s_load_dwordx16 s[52:67], s[0:1], 0")
    I("s_getpc_b64 s[4:5]")
    A("L_pc:")
    if O.cp0 == 0:
        I("v_lshlrev_b32 v14, 7, v0"); I("global_load_dword v15, v14, s[4:5]"); I("v_lshrrev_b32 v14, 1, v14"); I("v_add_u32 v14, 0x8000, v14"); I("global_load_dword v15, v14, s[4:5]")
    elif O.cp0 == 1:
        I("s_lshl_b32 s6, s2, 9"); I("s_and_b32 s6, s6, 0x3000"); I("v_lshl_add_u32 v14, v0, 4, s6"); I("global_load_dword v15, v14, s[4:5] offset:512")
    I("v_lshrrev_b32 v14, 6, v0")
    I("v_and_b32 v0, 63, v0")
    I(f"v_readfirstlane_b32 s{S_WAVE}, v14")
    I(f"s_and_b32 s{S_T0}, s2, 7"); I(f"s_lshr_b32 s{S_T1}, s2, 3")
    I(f"s_and_b32 s{S_B}, s{S_T0}, 1"); I(f"s_lshl_b32 s{S_B}, s{S_B}, 2"); I(f"s_and_b32 s{S_T2}, s{S_T1}, 3"); I(f"s_add_u32 s{S_B}, s{S_B}, s{S_T2}")
    I(f"s_lshr_b32 s{S_H}, s{S_T0}, 1"); I(f"s_lshl_b32 s{S_H}, s{S_H}, 3"); I(f"s_lshr_b32 s{S_T3}, s{S_T1}, 2"); I(f"s_add_u32 s{S_H}, s{S_H}, s{S_T3}")
    if O.lin_map: I(f"s_lshr_b32 s{S_B}, s2, 5"); I(f"s_and_b32 s{S_H}, s2, 31")
    I(f"s_mul_i32 s{S_XM}, s{S_T2}, {O.xb}"); I(f"s_add_u32 s{S_XM}, s{S_XM}, s{S_T3}"); I(f"s_and_b32 s{S_XM}, s{S_XM}, {O.xp-1}"); I(f"s_mul_i32 s{S_XM}, s{S_XM}, {O.xd*128}")
    I(f"s_mul_i32 s{S_T3}, s{S_T3}, {O.rotmul_h*128}"); I(f"s_mul_i32 s{S_T2}, s{S_T2}, {O.rotmul_b*128}"); I(f"s_add_u32 s{S_OX}, s{S_T2}, s{S_T3}")
    if O.rotmul_x: I(f"s_mul_i32 s{S_T0}, s{S_T0}, {O.rotmul_x*128}"); I(f"s_add_u32 s{S_OX}, s{S_OX}, s{S_T0}")
    I(f"s_and_b32 s{S_XR}, s{S_OX}, 2047"); I(f"s_mov_b32 s{S_OC}, 0")
    I(f"s_add_u32 s{S_OX}, s{S_XM}, s{S_XR}"); I(f"s_and_b32 s{S_OX}, s{S_OX}, 2047"); I(f"s_lshl_b32 s{S_OW}, s{S_OX}, 12")
    I(f"s_lshr_b32 s{S_R}, s{S_WAVE}, 1"); I(f"s_and_b32 s{S_C}, s{S_WAVE}, 1")
    I(f"s_lshl_b32 s{S_W4K}, s{S_WAVE}, 12"); I(f"s_add_u32 s{S_W4KK}, s{S_W4K}, {KOFF}"); I(f"s_add_u32 s{S_WXT}, s{S_W4K}, {XT}"); I(f"s_mul_i32 s{S_T0}, s{S_R}, {14*1024}"); I(f"s_lshl_b32 s{S_MXA}, s{S_C}, 12"); I(f"s_add_u32 s{S_MXA}, s{S_MXA}, s{S_T0}")
    I(f"s_mul_i32 s{S_MXB}, s{S_C}, 3072"); I(f"s_add_u32 s{S_MXB}, s{S_MXB}, s{S_T0}"); I(f"s_add_u32 s{S_MXB}, s{S_MXB}, 8192")
    T = V_TMP
    I(f"v_and_b32 v{T}, 15, v0"); I(f"v_lshrrev_b32 v{T+1}, 4, v0")
    I(f"v_and_b32 v{T+4}, 7, v0"); I(f"v_xor_b32 v{T+4}, v{T+4}, v{T+1}")
    I(f"v_lshrrev_b32 v{T+5}, 3, v0"); I(f"v_lshlrev_b32 v{T+7}, 11, v{T+5}"); I(f"v_lshl_add_u32 v{T+4}, v{T+4}, 4, v{T+7}")
    I(f"s_lshl_b32 s{S_T0}, s{S_C}, 16"); I(f"v_add_u32 v{V_XOFF}, s{S_T0}, v{T+4}"); I(f"v_xor_b32 v{T+5}, 64, v{V_XOFF}")
    for j in range(1, 4): I(f"v_add_u32 v{V_XOFF+j}, {j*16384-j*1024}, v{V_XOFF if j%2==0 else T+5}")
    I(f"s_lshl_b32 s{S_T0}, s{S_C}, 6"); I(f"v_xor_b32 v{T+4}, s{S_T0}, v{T+4}"); I(f"s_mul_i32 s{S_T0}, s{S_C}, {24*2048}"); I(f"s_add_u32 s{S_T0}, s{S_T0}, {64*2048}")
    I(f"v_add_u32 v{V_XOFF+4}, s{S_T0}, v{T+4}"); I(f"v_xor_b32 v{T+5}, 64, v{V_XOFF+4}")
    for j in range(1, 3): I(f"v_add_u32 v{V_XOFF+4+j}, {j*16384-j*1024}, v{V_XOFF+4 if j%2==0 else T+5}")
    I(f"v_lshlrev_b32 v{T+4}, 2, v{T+1}"); I(f"v_xor_b32 v{T+4}, v{T+4}, v{T}"); I(f"v_lshlrev_b32 v{T+5}, 13, v{T+1}"); I(f"v_lshl_add_u32 v{V_WOFF}, v{T+4}, 4, v{T+5}")
    for j in range(1, 4): I(f"v_add_u32 v{V_WOFF+j}, {j*32768-j*1024}, v{V_WOFF}")
    I(f"s_mul_i32 s{S_T0}, s{S_B}, 458752"); I(f"s_mul_i32 s{S_T1}, s{S_R}, {112*2048}"); I(f"s_add_u32 s{S_T0}, s{S_T0}, s{S_T1}")
    I(f"s_lshl_b32 s{S_T1}, s{S_H}, 8"); I(f"s_lshl_b32 s{S_T2}, s{S_WAVE}, 17"); I(f"s_add_u32 s{S_T1}, s{S_T1}, s{S_T2}")
    I("s_waitcnt lgkmcnt(0)")
    if O.dbgst: I(f"v_writelane_b32 v{V_STAMP}, s68, 62")
    stamp()
    srd(S_X, P_X, 3670016, S_T0); srd(S_WQ, P_WQ, 8388608, S_T1)
    Q = []
    for k in range(16):
        Q += [(-1 if k <= 2 else (0 if k == 3 else 2 * (k - 4) + 1), x) for x in d_w(k)]
        Q += [(-1 if k <= 2 else 2 * (k - 3), x) for x in d_xa(k)]
        Q += [(-1 if k <= 2 else 2 * (k - 3) + 1, x) for x in d_xb(k)]
    def take(hh, cap, cap2):
        out = []
        pend = 0
        while pend < len(Q) and Q[pend][0] <= hh: pend += 1
        n = min(pend, cap if (hh < 0 or pend <= cap + (2 if hh % 2 else 0)) else cap2)
        for _ in range(n): out.append(Q.pop(0)[1])
        return out
    emit_dma(take(-1, min(O.n_up, O.n_up0), 0), post=True)
    I(f"s_lshl_b32 s{S_T0}, s{S_B}, 5"); I(f"s_add_u32 s{S_T0}, s{S_T0}, s{S_H}"); I(f"s_lshl_b32 s{S_T0}, s{S_T0}, 18")
    srd(S_K, P_K, 262144, S_T0, sub=False); srd(S_V, P_V, 262144, S_T0, sub=False)
    if O.tlbw:
        I("v_mov_b32 v14, 0")
        I(f"buffer_load_dword v15, v14, {sr(S_K,4)}, 0 offen {O.pol_kv}"); I(f"buffer_load_dword v15, v14, {sr(S_V,4)}, 0 offen {O.pol_kv}")
    if O.tlbw > 1:
        I("v_and_b32 v14, 3, v0"); I("v_lshlrev_b32 v14, 21, v14"); I(f"global_load_dword v15, v14, {sr(P_WQ)}")
    if O.tlbw > 2:
        I(f"global_load_dword v15, v14, {sr(P_WO)}")
        I("v_and_b32 v14, 7, v0"); I("v_lshlrev_b32 v14, 21, v14"); I("v_add_u32 v14, 0x1000000, v14"); I("v_subrev_u32 v14, 0x1000000, v14")
    srd(S_O, P_WS, PART + 256 * 28672); srd(S_OUT, P_OUT, 3670016)
    I(f"s_lshr_b32 s{S_T0}, s2, 3"); I(f"s_mul_i32 s{S_T0}, s{S_T0}, {O.kv_rot_j}"); I(f"s_and_b32 s{S_T1}, s2, 7"); I(f"s_mul_i32 s{S_T1}, s{S_T1}, {O.kv_rot_x}")
    I(f"s_add_u32 s{S_T0}, s{S_T0}, s{S_T1}"); I(f"s_and_b32 s{S_T0}, s{S_T0}, 15"); I(f"s_lshl_b32 s{S_T0}, s{S_T0}, 14"); I(f"s_add_u32 s{S_KV0}, s{S_T0}, s{S_W4K}")
    n_it = 11 + O.nskip
    I(f"s_mov_b32 s{S_MASK}, {((1 << n_it) - 1) << 1:#x}")
    if O.nskip:
        span = n_it - O.ta
        I(f"s_mul_i32 s{S_T0}, s2, 37"); I(f"s_and_b32 s{S_T0}, s{S_T0}, 255"); I(f"s_mul_i32 s{S_T0}, s{S_T0}, {span}"); I(f"s_lshr_b32 s{S_T0}, s{S_T0}, 8")
        for k in range(O.nskip):
            I(f"s_add_u32 s{S_T1}, s{S_T0}, {(k * span) // O.nskip}"); I(f"s_cmp_ge_u32 s{S_T1}, {span}"); I(f"s_cselect_b32 s{S_T2}, {span}, 0"); I(f"s_sub_u32 s{S_T1}, s{S_T1}, s{S_T2}")
            I(f"s_add_u32 s{S_T1}, s{S_T1}, {O.ta + 1}"); I(f"s_bitset0_b32 s{S_MASK}, s{S_T1}")
    I(f"s_mov_b32 s{S_FB}, 0"); I(f"s_mov_b32 s{S_KVG}, s{S_KV0}"); I(f"s_mov_b32 s{S_SCALE}, {f2u(SCALE):#x}")
    I(f"s_lshl_b32 s{S_T0}, s{S_B}, 1"); I(f"s_add_u32 s{S_T0}, s{S_T0}, s{S_R}"); I(f"s_lshl_b32 s{S_T0}, s{S_T0}, 5"); I(f"s_add_u32 s{S_T0}, s{S_T0}, s{S_H}")
    I(f"s_lshl_b32 s{S_T0}, s{S_T0}, 1"); I(f"s_add_u32 s{S_T0}, s{S_T0}, s{S_C}"); I(f"s_mul_i32 s{S_OST}, s{S_T0}, 14336")
    I(f"s_lshl_b32 s{S_T0}, s{S_B}, 5"); I(f"s_add_u32 s{S_T0}, s{S_T0}, s{S_H}")
    I(f"s_lshr_b32 s{S_SIG}, s{S_T0}, 2"); I(f"s_lshl_b32 s{S_SIG}, s{S_SIG}, 7"); I(f"s_and_b32 s{S_T1}, s{S_H}, 3"); I(f"s_lshl_b32 s{S_T1}, s{S_T1}, 2"); I(f"s_add_u32 s{S_SIG}, s{S_SIG}, s{S_T1}"); I(f"s_add_u32 s{S_SIG}, s{S_SIG}, {FLG}")
    I(f"s_lshl_b32 s{S_T0}, s{S_T0}, 2"); I(f"s_add_u32 s{S_T0}, s{S_T0}, s{S_WAVE}"); I(f"s_mul_i32 s{S_INB}, s{S_T0}, 7168"); I(f"s_add_u32 s{S_INB}, s{S_INB}, {PART}")
    I(f"s_lshl_b32 s101, s{S_T0}, 7"); I(f"s_add_u32 s101, s101, {FLG + 65536}")
    KH = S_SL0; CG = S_SL1; U = S_SL2
    I(f"s_bfe_u32 s{KH}, s{S_H}, 0x10003"); I(f"s_and_b32 s{S_T3}, s{S_H}, 7"); I(f"s_lshr_b32 s{CG}, s{S_H}, 4"); I(f"s_lshl_b32 s{CG}, s{CG}, 3"); I(f"s_add_u32 s{CG}, s{CG}, s{S_T3}")
    I(f"s_lshr_b32 s{S_T1}, s2, 3"); I(f"s_and_b32 s{S_T2}, s{S_B}, 3")
    I(f"s_lshl_b32 s{S_PFO}, s{S_T1}, 14"); I(f"s_lshl_b32 s6, s{S_T3}, 7"); I(f"s_sub_u32 s{S_PFO}, s{S_PFO}, s6")
    I(f"s_mul_i32 s{S_T2}, s{S_T2}, {O.k2_rot_r}"); I(f"s_mul_i32 s{S_T3}, s{S_T3}, {O.k2_rot_c}"); I(f"s_add_u32 s{U}, s{S_T2}, s{S_T3}")
    I(f"s_xor_b32 s{S_T1}, s{KH}, 1"); I(f"s_lshl_b32 s{S_T1}, s{S_T1}, 1"); I(f"s_add_u32 s{S_T1}, s{S_T1}, s{S_C}"); I(f"s_lshl_b32 s{S_T2}, s{S_R}, 2"); I(f"s_add_u32 s{S_T1}, s{S_T1}, s{S_T2}")
    I(f"s_lshl_b32 s{S_T0}, s{S_B}, 4"); I(f"s_add_u32 s{S_T0}, s{S_T0}, s{S_T1}"); I(f"s_mul_i32 s{S_T0}, s{S_T0}, {16*7168}")
    srd(S_OO, P_WS, 144 * 7168, S_T0, sub=False)
    I(f"s_lshl_b32 s{S_POLL}, s{S_B}, 3"); I(f"s_add_u32 s{S_POLL}, s{S_POLL}, s{S_T1}"); I(f"s_lshl_b32 s{S_POLL}, s{S_POLL}, 7"); I(f"s_add_u32 s{S_POLL}, s{S_POLL}, {FLG}")
    I(f"s_lshl_b32 s{S_T1}, s{S_T1}, 20"); I(f"s_lshl_b32 s{S_T2}, s{CG}, 7"); I(f"s_add_u32 s{S_T1}, s{S_T1}, s{S_T2}")
    srd(S_WO, P_WO, 8388608, S_T1)
    I(f"s_lshl_b32 s{S_T0}, s{S_B}, 1"); I(f"s_add_u32 s{S_T0}, s{S_T0}, s{KH}")
    I(f"s_mul_i32 s{S_OUTOFF}, s{S_T0}, {112*2048}"); I(f"s_add_u32 s{S_OUTOFF}, s{S_OUTOFF}, s{S_T2}"); I(f"s_lshl_b32 s{S_T1}, s{S_WAVE}, 5"); I(f"s_add_u32 s{S_OUTOFF}, s{S_OUTOFF}, s{S_T1}")
    for u in range(8):
        I(f"s_add_u32 s{S_T0}, s{U}, {u}"); I(f"s_and_b32 s{S_T0}, s{S_T0}, 7"); I(f"s_lshl_b32 s{S_TW+u}, s{S_T0}, 16"); I(f"s_mul_i32 s{S_TO+u}, s{S_T0}, 7168")
    I(f"s_lshl_b32 s{S_LB0}, s{S_WAVE}, 13"); I(f"s_add_u32 s{S_LB0}, s{S_LB0}, 98304"); I(f"s_xor_b32 s{S_T3}, s{S_WAVE}, 1")
    I(f"s_mul_i32 s{S_LB1}, s{S_T3}, 28672"); I(f"s_cmp_eq_u32 s{S_T3}, 3"); I(f"s_cselect_b32 s{S_LB1}, 131072, s{S_LB1}")
    I(f"s_mul_i32 s{S_CA}, s{S_WAVE}, 28672"); I(f"s_cmp_eq_u32 s{S_WAVE}, 3"); I(f"s_cselect_b32 s{S_CA}, 131072, s{S_CA}")
    I(f"s_lshl_b32 s{S_STW}, s{S_WAVE}, 10"); I(f"s_add_u32 s{S_STW}, s{S_STW}, {ST0}")
    I(f"v_lshlrev_b32 v{T+4}, 1, v{T+1}"); I(f"v_and_b32 v{T+6}, 7, v0"); I(f"v_xor_b32 v{T+6}, v{T+4}, v{T+6}"); I(f"v_lshl_add_u32 v{V_WOB}, v{T+6}, 4, v{T+7}")
    I(f"v_xor_b32 v{T+4}, v{T+4}, v{T}"); I(f"v_lshlrev_b32 v{T+5}, 8, v{T+1}")
    for j in range(4):
        I(f"v_xor_b32 v{T+6}, {8*(j&1) + (j>>1)}, v{T+4}"); I(f"v_lshl_add_u32 v{V_KVOFF+j}, v{T+6}, 4, v{T+5}")
    if O.kv_noswz:
        for j in range(4): I(f"v_lshlrev_b32 v{V_KVOFF+j}, 4, v0")
    I(f"v_lshlrev_b32 v{V_LANE16}, 4, v0"); I(f"v_bfe_u32 v{T+2}, v0, 2, 2"); I(f"v_and_b32 v{T+3}, 3, v0")
    I(f"v_lshrrev_b32 v{T+4}, 1, v{T}"); I(f"v_xor_b32 v{T+4}, v{T+4}, v{T+1}"); I(f"s_mul_i32 s{S_T0}, s{S_R}, {112*128}")
    I(f"v_lshlrev_b32 v{T+5}, 7, v{T}"); I(f"v_add_u32 v{T+5}, s{S_T0}, v{T+5}"); I(f"v_lshl_add_u32 v{V_XB}, v{T+4}, 4, v{T+5}"); I(f"v_xor_b32 v{V_XB+1}, 64, v{V_XB}")
    I(f"v_lshrrev_b32 v{T+4}, 1, v{T+3}"); I(f"v_and_b32 v{T+5}, 1, v{T+3}"); I(f"v_lshl_add_u32 v{T+4}, v{T+5}, 1, v{T+4}")
    I(f"s_lshl_b32 s{S_T0}, s{S_C}, 1"); I(f"v_xor_b32 v{T+5}, s{S_T0}, v{T+2}"); I(f"v_lshl_add_u32 v{T+4}, v{T+5}, 2, v{T+4}")
    I(f"v_lshl_add_u32 v{T+5}, v{T+1}, 3, v{T+2}"); I(f"v_lshlrev_b32 v{T+5}, 8, v{T+5}"); I(f"v_lshl_add_u32 v{V_WB}, v{T+4}, 4, v{T+5}"); I(f"v_xor_b32 v{V_WB+1}, 64, v{V_WB}")
    I(f"v_lshrrev_b32 v{T+4}, 1, v{T+1}"); I(f"v_and_b32 v{T+5}, 1, v{T+1}"); I(f"v_lshl_add_u32 v{T+4}, v{T+5}, 1, v{T+4}")
    I(f"v_and_b32 v{T+5}, 7, v{T}"); I(f"v_lshrrev_b32 v{T+6}, 3, v{T}"); I(f"v_lshl_add_u32 v{T+5}, v{T+5}, 1, v{T+6}")
    I(f"v_xor_b32 v{T+4}, v{T+4}, v{T+5}"); I(f"s_lshl_b32 s{S_T0}, s{S_C}, 3"); I(f"v_xor_b32 v{T+4}, s{S_T0}, v{T+4}")
    I(f"s_lshl_b32 s{S_T1}, s{S_C}, 13"); I(f"s_add_u32 s{S_T2}, s{S_T1}, {KOFF}")
    I(f"v_lshlrev_b32 v{T+5}, 8, v{T}"); I(f"v_add_u32 v{T+5}, s{S_T2}, v{T+5}"); I(f"v_lshl_add_u32 v{V_KB}, v{T+4}, 4, v{T+5}")
    I(f"v_lshl_add_u32 v{T+6}, v{T+1}, 2, v{T+2}")
    I(f"v_bfe_u32 v{T+4}, v{T+6}, 1, 2"); I(f"v_xor_b32 v{T+4}, s{S_WAVE}, v{T+4}"); I(f"v_lshlrev_b32 v{T+5}, 7, v{T+6}"); I(f"v_lshl_add_u32 v{T+5}, v{T+4}, 5, v{T+5}"); I(f"v_lshl_add_u32 v{V_RAB}, v{T+3}, 3, v{T+5}")
    I(f"v_and_b32 v{T+4}, 7, v{T+6}"); I(f"v_lshrrev_b32 v{T+5}, 3, v{T+6}"); I(f"v_lshl_add_u32 v{T+4}, v{T+4}, 1, v{T+5}")
    I(f"v_bfe_u32 v{T+5}, v0, 1, 1"); I(f"v_xor_b32 v{T+4}, v{T+4}, v{T+5}"); I(f"v_xor_b32 v{T+4}, s{S_T0}, v{T+4}")
    I(f"v_lshlrev_b32 v{T+6}, 8, v{T+6}"); I(f"v_add_u32 v{T+6}, s{S_T1}, v{T+6}"); I(f"v_lshl_add_u32 v{T+6}, v{T+4}, 4, v{T+6}")
    I(f"v_and_b32 v{T+5}, 1, v0"); I(f"v_lshl_add_u32 v{V_VB}, v{T+5}, 3, v{T+6}")
    for k in range(2):
        I(f"v_mov_b32 v{V_XA+k}, v{V_XB+k}"); I(f"v_mov_b32 v{V_WA+k}, v{V_WB+k}")
    if not O.e4:
        for k in range(32): I(f"v_mov_b32 v{OK_+80+k}, 0")
    for k in range(32): I(f"v_accvgpr_write_b32 a{OS_+80+k}, 0")
    for x in v_addr((RING - 1) * 32768): I(x)
    I(f"s_mul_i32 s{S_T2}, s{S_WAVE}, 14336"); I(f"v_add_u32 v{V_T0}, s{S_T2}, v{V_LANE16}")
    I(f"s_mul_i32 s{S_T3}, s{S_T3}, 14336"); I(f"v_add_u32 v{V_QP}, s{S_T3}, v{V_LANE16}")
    I(f"v_add_u32 v{V_KW1}, s{S_W4K}, v{V_LANE16}"); I(f"v_add_u32 v{V_KW0}, 0x10000, v{V_KW1}"); I(f"v_add_u32 v{V_KW2}, 0x20000, v{V_KW1}")
    if O.cpf:
        c1 = code_pf("L_trans", 6, 215)
        for x in c1[0] + [c1[1]]: I(x)
    for p in range(O.nl2):
        same = O.f1 == O.f2
        for rng, t, h in ((O.f1, S_T1, 0), (O.f2, S_T2, 1)):
            lo, hi = [int(z) for z in rng.split(",")]; n = hi - lo + 1
            I(f"s_add_u32 s{t}, s2, {128 if h else 0}"); I(f"s_and_b32 s{t}, s{t}, 255"); I(f"s_mul_i32 s{t}, s{t}, {n}"); I(f"s_lshr_b32 s{t}, s{t}, 8"); I(f"s_add_u32 s{t}, s{t}, {lo}")
            I(f"s_lshl_b32 s{t}, s{t}, 14"); I(f"s_add_u32 s{t}, s{t}, s{S_KV0}"); I(f"s_and_b32 s{t}, s{t}, 0x3ffff")
        I(f"v_mov_b32 v{T+4}, s{S_T1}"); I(f"v_mov_b32 v{T+5}, s{S_T2}"); I(f"v_cmp_gt_u32 vcc, 32, v0"); I(f"v_and_b32 v{T+6}, 31, v0"); I("s_nop 0")
        I(f"v_cndmask_b32 v{T+4}, v{T+5}, v{T+4}, vcc"); I(f"v_lshl_add_u32 v{V_PF+p}, v{T+6}, 7, v{T+4}")
    if O.gmode:
        I(f"s_cmp_eq_u32 s{S_R}, 0"); I(f"s_cselect_b32 s4, s{S_K}, s{S_V}"); I(f"s_cselect_b32 s5, s{S_K+1}, s{S_V+1}"); I(f"s_cselect_b32 s{S_T0}, 16384, 0")
        I("s_mov_b32 s6, 262144"); I("s_mov_b32 s7, 0x20000")
        I(f"s_sub_u32 s{S_T1}, s{S_KV0}, s{S_W4K}"); I(f"s_add_u32 s{S_T0}, s{S_T0}, s{S_T1}"); I(f"s_lshl_b32 s{S_T1}, s{S_C}, 13"); I(f"s_add_u32 s{S_T0}, s{S_T0}, s{S_T1}")
        for r in range(O.g_rounds):
            I(f"s_add_u32 s{60+r}, s{S_T0}, {r*16384}"); I(f"s_and_b32 s{60+r}, s{60+r}, 0x3ffff")
        I(f"s_lshr_b32 s100, s2, 3"); I(f"s_mul_i32 s100, s100, {O.g_per}"); I("s_lshr_b32 s100, s100, 5")
        I(f"v_lshlrev_b32 v{V_KW0}, 7, v0")
    emit_dma(take(-1, max(0, O.n_up - O.n_up0), 0), post=True)
    I("s_waitcnt vmcnt(@xa0)"); I("s_barrier")
    stamp()
    for r in r_w(0)[:2] + r_x([0])[:1] + r_w(0)[2:] + r_x(range(4))[1:]: I(r)
    for k in range(2): I(f"v_add_u32 v{V_WA+k}, {stg(1)}, v{V_WB+k}")
    I("s_waitcnt lgkmcnt(0) vmcnt(@w_1)"); I("s_barrier")
    el = early_loads(); ew = early_writes()
    l2 = [([], f"buffer_load_dword v{V_TMP+6}, v{V_PF+p}, {sr(sq,4)}, 0 offen") for p in range(O.nl2) for sq in (S_K, S_V)]
    qwork = []
    for rt in range(7):
        for kp in range(2):
            b = p1_acc(rt) + 8 * kp; t = SB + 4 * ((2 * rt + kp) % 8)
            rdy = 8 * rt + (4 * kp + 3 if O.accord else 5 + 2 * kp) + 9
            qwork += [(rdy, "v", f"v_mul_f32 v{b+k}, s{S_SCALE}, v{b+k}") for k in range(8)]
            if O.tr_early: qwork += [(rdy, "v", f"v_cvt_pk_bf16_f32 v{t+k}, v{b+2*k}, v{b+2*k+1}") for k in range(4)] + [(rdy, "w", f"ds_write_b128 v{V_T0}, {vr(t)} offset:{(2*rt+kp)*1024} ;@qw")]
    ne = 0
    NE = len(el) - O.tail_n
    nit = O.kv_last - O.kv_first
    def gat(hh):
        k = hh - O.g_start
        if not O.gmode or k < 0 or k >= O.g_per * O.g_rounds: return []
        return [([f"s_cmp_eq_u32 s100, {k % O.g_per}", f"s_cselect_b32 s101, s{60 + k // O.g_per}, 0x40000000"], f"buffer_load_dword v{V_TMP+6}, v{V_KW0}, s[4:7], s101 offen")]
    def tagd(g, t, adv=False):
        g = [(x[0], x[1] + f" ;@{t}") for x in g]
        if adv: g[3] = g[3] + ([KVG_UPD],)
        return g
    late = tagd(kv_dma("V", 4 * 32768), "v0", True) + tagd(kv_dma("K", 3 * 32768), "s1") + tagd(kv_dma("V", 3 * 32768), "s1", True) + tagd(kv_dma("K", 2 * 32768), "s2") + tagd(kv_dma("V", 2 * 32768), "s2", True)
    for i in range(16):
        if i <= 12: ma = take(2 * i, O.capA2 if i == 0 else O.capA, O.capA2)
        elif O.gmode: ma = gat(2 * i) + {13: [], 14: late[6:12], 15: late[18:20]}[i]
        elif i == 13: ma = take(26, 6, 6) + el[NE:NE + 4]
        elif i == 14: ma = ew[6:12]
        else: ma = ew[17:20]
        if 2 * i == O.l2_at: ma = ma + l2
        rd = r_x(range(4, 7)) + (r_w(i + 1) if i < 15 else [])
        addr = [(5, f"v_add_u32 v{V_XA+k}, {stg(i+1)}, v{V_XB+k}") for k in range(2)] if i < 15 else []
        va = (qwork, 0) if i == 15 else None
        p1_half(p1_mfmas(i, range(4)), ma, rd, addr, "s_waitcnt lgkmcnt(0)" + (f" vmcnt(@xa{i+1})" if i < 15 else ""), valu=va)
        k = 0
        if O.kv_first <= i < O.kv_last and not O.gmode: k = ((i - O.kv_first + 1) * NE) // nit - ne
        mb = el[ne:ne + k] + gat(2 * i + 1); ne += k
        tk = take(2 * i + 1, O.capB2 if i == 0 else O.capB, O.capB2)
        if i == O.k0_it:
            p = [n for n, x in enumerate(tk) if x[0]][0]
            tk = tk[:p] + kv_dma("K", 4 * 32768, S_KV0) + tk[p:]
        mb += tk
        if i == 13: assert not Q and not tk
        if i == 13: mb += late[0:6] if O.gmode else el[NE + 4:] + ew[0:6]
        if i == 14: mb += late[12:18] if O.gmode else ew[12:17]
        if 2 * i + 1 == O.l2_at: mb = mb + l2
        if O.cpf and i == 12: mb = mb + [([], c1[2])]
        rd = r_x(range(4)) if i < 15 else []
        addr = [(-1, f"v_add_u32 v{V_WA+k}, {stg(i+2)}, v{V_WB+k}") for k in range(2)] if i < 14 else []
        if i == 15: va = (qwork, 32)
        wait = None if i == 15 else "s_waitcnt lgkmcnt(0)" + (f" vmcnt(@w_{i+2})" if i < 14 else " vmcnt(@xb15)")
        p1_half(p1_mfmas(i, range(4, 7)), mb, rd, addr, wait, valu=va)
        if O.p1st and i < 15: stamp()
    stamp()
    A("L_trans:")
    for x in k_addr((RING - 1) * 32768): I(x)
    for f in range(8): I(k_read(f))
    assert O.tr_early
    for x in pendw: I(x)
    del pendw[:]
    for w in qwork: I(w[2])
    for rt in range(7):
        for kp in range(2): I(f"ds_read_b128 {ar(QA+16*rt+4*kp)}, v{V_T0} offset:{(2*rt+kp)*1024}")
    I(f"s_mov_b32 s{S_DS}, {4*32768}"); I(f"s_mov_b32 s{S_SL2}, {3*32768}"); I(f"s_mov_b32 s{S_I}, 0")
    I("s_waitcnt lgkmcnt(@qw)" + (" vmcnt(@v0)" if O.gmode else "")); I("s_barrier")
    for rt in range(7):
        for kp in range(2): I(f"ds_read_b128 {ar(QA+16*rt+8+4*kp)}, v{V_QP} offset:{(2*rt+kp)*1024}")
    I(f"v_add_u32 v{V_T0}, s{S_CA}, v{V_LANE16}")
    I(f"v_add_u32 v{V_T1}, s{S_LB1}, v{V_LANE16}")
    I(f"v_mov_b32 v{V_WOF}, v{V_WOB}")
    for j in range(1, 4): I(f"v_add_u32 v{V_WOF+j}, {j*16384-j*1024}, v{V_WOB}")
    I("s_waitcnt lgkmcnt(0)"); I("s_barrier")
    if not O.s4_in: emit_dma(kv_dma("K", 0) + kv_dma("V", 0)); I(KVG_UPD)
    stamp()
    att_iter("first").emit()
    g = sm0_ops(6)
    S = SB + 8 * COL[6]; pn = sm0_nm(5)
    for x in g[0] + g[1] + [pn[2]] + g[2] + [pn[3]] + g[3]: I(x)
    for k in range(1, 8): I(f"v_sub_f32 v{S+k}, v{S+k}, v{V_TMP}")
    for x in sm0_nm(6): I(x)
    I(f"v_mov_b32 v{LS+6}, 0")
    def clear_code():
        I(f"v_mov_b32 v{V_TMP+4}, s{S_SIG}"); I(f"v_mov_b32 v{V_TMP+5}, 0"); I(f"v_writelane_b32 v{V_TMP+4}, s101, 1"); I("s_mov_b64 exec, 3")
        I(f"global_store_dword v{V_TMP+4}, v{V_TMP+5}, {sr(P_WS)} sc1"); I("s_mov_b64 exec, -1")
    def count_code():
        I(f"s_or_b32 s{S_T0}, s{S_WAVE}, s{S_FB}"); I("s_cbranch_scc1 L_nosig0")
        I(f"v_mov_b32 v{V_TMP+5}, 0"); I(f"v_mov_b32 v{V_TMP+7}, 1"); I("s_mov_b64 exec, 1")
        I(f"global_atomic_add v{V_TMP+5}, v{V_TMP+7}, {sr(P_DBG)} sc1 ;@nocount")
        I("s_mov_b64 exec, -1")
        A("L_nosig0:")
    assert O.ta >= 4
    if O.clr == 0: clear_code()
    if O.epst: stamp()
    A(".p2align 6"); A("L_att:")
    for lp in ((0, 1) if O.ta else (1,)):
        if lp and O.clr == 0: count_code()
        if lp and O.clr == 1:
            I(f"s_cmp_lg_u32 s{S_FB}, 0"); I("s_cbranch_scc1 L_noclr"); clear_code(); A("L_noclr:")
        if lp and O.ta: A(".p2align 6"); A("L_att2:")
        G = att_iter("loop", lp)
        if O.loopst:
            G.s[92].append("s_memtime s[98:99]"); G.p[94].append("s_memtime s[100:101]"); G.p[95].append("s_memtime s[62:63]")
            G.v[7].append(f"v_cmp_eq_u32 vcc, s{S_I}, v0")
            for k, sg in enumerate((98, 100, 62)):
                G.v[11 + 4 * k].append(f"v_mov_b32 v251, s{sg}"); G.v[11 + 4 * k].append(f"v_cndmask_b32 v{252+k}, v{252+k}, v251, vcc")
        G.emit()
        I("s_cbranch_scc1 " + ("L_att2" if (lp and O.ta) else "L_att"))
    if O.epst: stamp()
    if O.loopst:
        I(f"s_lshl_b32 s{S_T0}, s2, 12"); I(f"s_lshl_b32 s{S_T1}, s{S_WAVE}, 10"); I(f"s_add_u32 s{S_T0}, s{S_T0}, s{S_T1}"); I(f"s_add_u32 s{S_T0}, s{S_T0}, {(1<<26)+(1<<20)}"); I(f"v_lshl_add_u32 v251, v0, 4, s{S_T0}")
        I(f"global_store_dwordx4 v251, v[252:255], {sr(P_WS)}")
    if O.clr == 1: count_code()
    for t in range(12 + O.nskip, 15): att_iter("pen", t).emit()
    A("L_last:")
    if O.epst: stamp()
    att_iter("last").emit()
    def sendfirst(m): return m[4:] + m[:4]
    def osend(rt, k): return f"ds_write_b128 v{V_T0}, {ar(OS_+16*rt+4*k)} offset:{(4*rt+k)*1024}"
    I("s_nop 0")
    G = Gaps(sendfirst(pv_mfmas(5)))
    e, a, c = sm_ops(6)
    for k in range(8):
        G.v[k].append(e[k])
        if k: G.v[k].append(a[k - 1])
        if k in (2, 4, 6): G.v[k].append(c[k // 2 - 1])
    for k in range(4): G.m[1 + 2 * k].append(osend(4, k))
    G.emit()
    I("s_nop 0"); I(c[3]); I(a[7]); I(f"s_mov_b32 s{S_T0}, {f2u(2.0**40):#x}")
    G = Gaps(sendfirst(pv_mfmas(6)))
    for k in range(7): G.v[[1, 1, 3, 3, 5, 5, 7][k]].append(f"v_mov_b32 v{V_TMP+k}, v{LS+k}")
    for k in range(4): G.m[2 * k].append(osend(5, k))
    G.emit()
    stamp()
    regs = [LS + rt for rt in range(7)]; temps = [V_TMP + rt for rt in range(7)]
    I(osend(6, 0)); I(osend(6, 1))
    for r, t in zip(regs, temps): I(f"v_permlane32_swap_b32 v{r}, v{t}")
    I(osend(6, 2))
    for r, t in zip(regs, temps): I(f"v_add_f32 v{r}, v{r}, v{t}")
    for r, t in zip(regs, temps): I(f"v_mov_b32 v{t}, v{r}")
    I(osend(6, 3)); I("s_nop 0")
    for r, t in zip(regs, temps): I(f"v_permlane16_swap_b32 v{r}, v{t}")
    I("s_nop 0")
    for rt, (r, t) in enumerate(zip(regs, temps)): I(f"v_add_f32 v{NM+4*rt+1}, v{r}, v{t}")
    I(f"v_add_f32 v{V_TMP}, v{NM+1}, v{NM+5}"); I(f"v_add_f32 v{V_TMP+1}, v{NM+9}, v{NM+13}"); I(f"v_add_f32 v{V_TMP+2}, v{NM+17}, v{NM+21}")
    I(f"v_add_f32 v{V_TMP}, v{V_TMP}, v{NM+25}"); I(f"v_add_f32 v{V_TMP+1}, v{V_TMP+1}, v{V_TMP+2}"); I(f"v_add_f32 v{V_TMP}, v{V_TMP}, v{V_TMP+1}")
    I(f"v_cmp_nlt_f32 vcc, v{V_TMP}, s{S_T0}")
    for rt in range(7): I(f"ds_write_b64 v{V_STW}, {vr(NM+4*rt,2)} offset:{rt*128}")
    I(f"s_cmp_lg_u64 vcc, 0"); I(f"s_cselect_b32 s{S_T1}, 1, 0"); I(f"s_andn2_b32 s{S_T1}, s{S_T1}, s{S_FB}"); I(f"v_mov_b32 v{V_TMP+1}, s{S_T1}")
    I(f"ds_write_b32 v{V_STW}, v{V_TMP+1} offset:896")
    I("s_waitcnt lgkmcnt(0)"); I("s_barrier")
    if O.epst: stamp()
    I(f"ds_read_b32 v{V_TMP+4}, v{V_FLR} ;@fl")
    for rt in range(7): I(f"ds_read_b64 {vr(NM+4*rt+2,2)}, v{V_STR} offset:{rt*128} ;@st")
    RB = 128
    def recv(rt):
        for dq in range(4): I(f"ds_read_b128 {vr(RB+16*(rt%4)+4*dq)}, v{V_T1} offset:{(4*rt+dq)*1024} ;@r{rt}")
    recv(0)
    I("s_waitcnt lgkmcnt(@fl)" if O.fast_ep else "s_waitcnt lgkmcnt(@fl) vmcnt(@w1)")
    I(f"v_cmp_ne_u32 vcc, 0, v{V_TMP+4}")
    recv(1)
    I("s_cbranch_vccnz L_fallback")
    st = {"dma": 2, "rd": 0}; free = []; pend = []
    def do_read(wait=True):
        m = st["rd"]; st["rd"] += 1
        if wait: I(f"s_waitcnt vmcnt(@w{m})")
        for r in a_reads(m): I(r)
        pend.append(m)
    def release(n=None):
        k = len(pend) if n is None else n
        if not k: return
        I(f"s_waitcnt lgkmcnt(@a{pend[k-1]})")
        for _ in range(k): free.append(slot_of[pend.pop(0)])
    def do_dma():
        m = st["dma"]; st["dma"] += 1
        slot_of[m] = free.pop(0); emit_dma(wo_dma(m))
    def factors(rts):
        bs = [NM + 4 * rt for rt in rts]
        for rt, b in zip(rts, bs): I(f"v_min_f32 v{LS+rt}, v{b}, v{b+2}")
        for rt, b in zip(rts, bs): I(f"v_sub_f32 v{b}, v{LS+rt}, v{b}"); I(f"v_sub_f32 v{b+2}, v{LS+rt}, v{b+2}")
        for b in bs: I(f"v_exp_f32 v{b}, v{b}"); I(f"v_exp_f32 v{b+2}, v{b+2}")
        for b in bs: I(f"v_mul_f32 v{b+1}, v{b+1}, v{b}")
        for b in bs: I(f"v_fma_f32 v{b+1}, v{b+3}, v{b+2}, v{b+1}")
        for b in bs: I(f"v_rcp_f32 v{b+1}, v{b+1}")
        for b in bs: I(f"v_mul_f32 v{b}, v{b}, v{b+1}"); I(f"v_mul_f32 v{b+2}, v{b+2}, v{b+1}")
    if O.fast_ep:
        recv(2)
        I("s_waitcnt lgkmcnt(@st)")
        factors([0, 1])
        I("s_waitcnt lgkmcnt(@r1)"); free.extend([2, 3])
    else:
        do_read(False); do_read(False)
        recv(2)
        I("s_waitcnt lgkmcnt(@st)")
        bs = [NM + 4 * rt for rt in range(7)]
        for rt, b in enumerate(bs): I(f"v_min_f32 v{LS+rt}, v{b}, v{b+2}")
        for rt, b in enumerate(bs): I(f"v_sub_f32 v{b}, v{LS+rt}, v{b}"); I(f"v_sub_f32 v{b+2}, v{LS+rt}, v{b+2}")
        release(); free.extend([2, 3])
        for _ in range(min(2, O.pre_dma)): do_dma()
        for b in bs: I(f"v_exp_f32 v{b}, v{b}"); I(f"v_exp_f32 v{b+2}, v{b+2}")
        if O.pre_dma > 2: do_dma()
        for b in bs: I(f"v_mul_f32 v{b+1}, v{b+1}, v{b}")
        for b in bs: I(f"v_fma_f32 v{b+1}, v{b+3}, v{b+2}, v{b+1}")
        for b in bs: I(f"v_rcp_f32 v{b+1}, v{b+1}")
        if O.pre_dma > 3: do_dma()
        for b in bs: I(f"v_mul_f32 v{b}, v{b}, v{b+1}"); I(f"v_mul_f32 v{b+2}, v{b+2}, v{b+1}")
    for rt in range(7):
        if O.epst: stamp()
        if O.fast_ep and rt == 2:
            for _ in range(O.pre_dma): do_dma()
            factors([2, 3, 4, 5, 6])
        if rt + 3 < 7: recv(rt + 3)
        if rt >= 2:
            I(f"s_waitcnt lgkmcnt(@r{rt})"); free.append(2 + rt)
        if free and str(rt) in O.ep_dma: do_dma()
        b = NM + 4 * rt; o = OK_ + 16 * rt; rb = RB + 16 * (rt % 4)
        for k in range(0, 16, 2): I(f"v_pk_mul_f32 {vr(o+k,2)}, {vr(o+k,2)}, {vr(b,2)} op_sel_hi:[1,0]")
        for k in range(0, 16, 2): I(f"v_pk_fma_f32 {vr(o+k,2)}, {vr(rb+k,2)}, {vr(b+2,2)}, {vr(o+k,2)} op_sel_hi:[1,0,1]")
        for k in range(8): I(f"v_cvt_pk_bf16_f32 v{o+k}, v{o+2*k}, v{o+2*k+1}")
        I(f"s_add_u32 s{S_T1}, s{S_OST}, {rt*1024}"); I(f"s_add_u32 s{S_T2}, s{S_OST}, {rt*1024+7168}")
        I(f"buffer_store_dwordx4 {vr(o)}, v{V_LANE16}, {sr(S_O,4)}, s{S_T1} offen {O.pol_ost} ;@os")
        I(f"buffer_store_dwordx4 {vr(o+4)}, v{V_LANE16}, {sr(S_O,4)}, s{S_T2} offen {O.pol_ost} ;@os")
    stamp()
    assert RA_N == 16 and NB == 2
    def poll_loop(name, reg, addr, base, test):
        t = [f"s_mov_b32 s{S_I}, 0", f"L_poll{name}:"] + test + [f"s_cbranch_scc1 L_ready{name}", f"s_add_u32 s{S_I}, s{S_I}, 1",
             f"s_cmp_ge_u32 s{S_I}, 0x40000", f"s_cbranch_scc1 L_ready{name}", "s_sleep 2", f"global_load_dword v{reg}, v{addr}, {sr(base)} sc1 ;@nocount", "s_waitcnt vmcnt(0)", f"s_branch L_poll{name}", f"L_ready{name}:"]
        return chr(10).join(t)
    allset = [f"v_cmp_ne_u32 vcc, 1, v{V_TMP+3}", "s_nop 1", "s_cmp_eq_u64 vcc, 0"]
    I(f"v_mov_b32 v{V_TMP}, s{S_SIG}"); I(f"v_mov_b32 v{V_TMP+1}, 1"); I(f"v_and_b32 v{V_TMP+2}, 3, v0"); I(f"v_lshl_add_u32 v{V_TMP+2}, v{V_TMP+2}, 2, s{S_POLL}")
    I(f"s_bfe_u32 s{S_T0}, s{S_H}, 0x10003"); I(f"s_mul_i32 s{S_WBO+2}, s{S_T0}, {128*7168}"); I(f"s_sub_u32 s{S_WBO}, {128*7168}, s{S_WBO+2}")
    I(f"s_add_u32 s{S_WBO+1}, s{S_WBO}, {8*7168}"); I(f"s_add_u32 s{S_WBO+3}, s{S_WBO+2}, {8*7168}")
    I(f"s_lshl_b32 s{S_T0}, s{S_B}, 5"); I(f"s_add_u32 s{S_T0}, s{S_T0}, s{S_H}"); I(f"s_lshl_b32 s{S_T0}, s{S_T0}, 2"); I(f"s_add_u32 s{S_T0}, s{S_T0}, s{S_WAVE}")
    I(f"s_xor_b32 s{S_T0}, s{S_T0}, 32"); I(f"s_mul_i32 s{S_PST}, s{S_T0}, 7168"); I(f"s_add_u32 s{S_PST}, s{S_PST}, {PART}")
    older = st["dma"]
    while st["rd"] < older: do_read()
    I("s_waitcnt vmcnt(0)"); I("s_barrier")
    I(f"s_cmp_lg_u32 s{S_WAVE}, 0"); I("s_cbranch_scc1 L_nosig")
    I("s_mov_b64 exec, 1")
    I(f"global_store_dword v{V_TMP}, v{V_TMP+1}, {sr(P_WS)} sc1 ;@nocount")
    I("s_mov_b64 exec, -1")
    A("L_nosig:")
    I(poll_loop("0", V_TMP + 10, V_TMP + 9, P_DBG, [f"v_readfirstlane_b32 s{S_T0}, v{V_TMP+10}", "s_nop 0", f"s_cmp_ge_u32 s{S_T0}, 256"]))
    stamp()
    release()
    pol_ = [False]
    def maybe_poll():
        if not pol_[0] and st["dma"] >= 16 - O.poll_lead:
            I(f"global_load_dword v{V_TMP+3}, v{V_TMP+2}, {sr(P_WS)} sc1 ;@poll"); pol_[0] = st["dma"]
    while free and st["dma"] < 16: maybe_poll(); do_dma()
    while st["dma"] < 16:
        do_read()
        if len(pend) > 1: release(1); maybe_poll(); do_dma()
    maybe_poll()
    RD = V_TMP + 4
    for cq in range(4):
        I(f"s_xor_b32 s{S_T0}, s{S_WAVE}, {cq}"); I(f"s_mul_i32 s{S_T0}, s{S_T0}, 28672"); I(f"v_add_u32 v{RD+cq}, s{S_T0}, v{V_LANE16}")
    V_OA = V_TMP + 8
    I(f"v_and_b32 v{V_OA}, 15, v0"); I(f"v_lshlrev_b32 v{V_OA}, 11, v{V_OA}"); I(f"v_lshrrev_b32 v{V_TMP+9}, 4, v0"); I(f"v_lshl_add_u32 v{V_OA}, v{V_TMP+9}, 3, v{V_OA}")
    I(f"v_mov_b32 v{V_TMP+9}, s101"); I(f"v_xor_b32 v{V_TMP}, {32*128}, v{V_TMP+9}")
    while st["rd"] < pol_[0]: do_read()
    I("s_waitcnt vmcnt(@poll)")
    stamp()
    I(poll_loop("1", V_TMP + 3, V_TMP + 2, P_WS, allset))
    stamp()
    def bl(n, rt):
        x = b_loads(n)[rt]
        return (x[0], x[1].replace(f";@b{n}", f";@b{n}_{rt}"))
    for rt in range(7): emit_dma([bl(0, rt), bl(1, rt)])
    while st["rd"] < 16: do_read()
    I("s_waitcnt vmcnt(@b1_0) lgkmcnt(0)")
    stamp()
    def wr_(rt, cq, tag): return f"ds_write_b128 v{RD+cq}, {vr(ACC+16*rt+4*cq)} offset:{(cq*7+rt)*1024} ;@{tag}"
    FR_ = [f"ds_read_b128 {vr(ACC+16*rt+4*cq)}, v{RD} offset:{(cq*7+rt)*1024} ;@f{rt}" for rt in range(7) for cq in range(1, 4)]
    wr = [wr_(rt, cq, f"fw{rt}") for rt in range(7) for cq in range(1, 4)]
    PR = 192; SC = 220
    GS = []
    for N in range(16):
        n = 2 * N
        m0, m1 = p3_mfmas(n), p3_mfmas(n + 1)
        order = [1, 2, 3, 0] if N == 15 else [0, 1, 2, 3]
        GS += [x for rt in range(7) for cq in order for x in (m0[4 * rt + cq], m1[4 * rt + cq])]
    G = Gaps(GS)
    for N in range(16):
        n = 2 * N; g0 = 56 * N
        if n + 2 < 32:
            for rt in range(7): place(G, [bl(n + 2, rt), bl(n + 3, rt)], [g0 + 8 * rt + 9, g0 + 8 * rt + 11])
        for rt in range(7):
            if g0 + 8 * rt - 1 >= 0: G.s[g0 + 8 * rt - 1].append(f"s_waitcnt vmcnt(@b{n+1}_{rt})")
    G.s[56 * 5].append("s_barrier")
    k = 0
    for rt in range(7):
        for j in range(4): G.v[56 * 7 + 8 * rt + 13 + 2 * (j // 2)].append(f"v_mov_b32 v{PR+4*rt+j}, v{ACC+16*rt+j}")
        for cq in range(1, 4):
            g = 56 * 7 + 16 + 4 * k; k += 1
            assert 56 * 7 + 8 * rt + 2 * cq + 10 <= g < 56 * 8 + 8 * rt + 2 * cq - 1, (rt, cq)
            G.m[g].append(wr_(rt, cq, "mw"))
    g = 56 * 8 + 45
    G.s[g].append("s_waitcnt lgkmcnt(0)"); G.s[g].append("s_barrier")
    for rt in range(7):
        g = 56 * 8 + 48 + 16 * rt
        for cq in range(1, 4): G.m[g + 2 * cq - 2].append(f"ds_read_b128 {vr(SC+4*(cq-1))}, v{RD} offset:{(cq*7+rt)*1024}")
        G.s[g + 8].append("s_waitcnt lgkmcnt(0)")
        ad = [f"v_add_f32 v{PR+4*rt+k}, v{PR+4*rt+k}, v{SC+k}" for k in range(4)] + [f"v_add_f32 v{SC+4+k}, v{SC+4+k}, v{SC+8+k}" for k in range(4)] + [f"v_add_f32 v{PR+4*rt+k}, v{PR+4*rt+k}, v{SC+4+k}" for k in range(4)]
        for k, x in enumerate(ad): G.v[g + [8, 8, 10, 10, 12, 12, 13, 13, 14, 14, 15, 15][k]].append(x)
    g = 56 * 10 + 52
    for rt in range(7):
        G.m[g + [0, 1, 2, 4, 6, 8, 9][rt]].append(f"buffer_store_dwordx4 {vr(PR+4*rt)}, v{V_LANE16 if rt<4 else V_L2}, {sr(S_O,4)}, s{S_PST} offen offset:{(rt%4)*1024} {O.pol_ost} ;@ps")
    g = 56 * 11 + O.s2_g
    G.s[g].append("s_waitcnt vmcnt(@ps)"); G.s[g].append("s_mov_b64 exec, 1")
    G.m[g].append(f"global_store_dword v{V_TMP}, v{V_TMP+1}, {sr(P_WS)} sc1"); G.p[g].append("s_mov_b64 exec, -1")
    G.s[56 * 13 + 4].append("s_barrier")
    G.m[56 * 14 + O.p2_g].append(f"global_load_dword v{V_TMP+3}, v{V_TMP+9}, {sr(P_WS)} sc1 ;@poll2")
    G.p[56 * 15 + 3].append("s_waitcnt vmcnt(@poll2)"); G.p[56 * 15 + 3].append(poll_loop("2", V_TMP + 3, V_TMP + 9, P_WS, allset))
    PL = [f"buffer_load_dwordx4 {vr(PR+4*rt)}, v{V_LANE16 if rt<4 else V_L2}, {sr(S_O,4)}, s{S_INB} offen offset:{(rt%4)*1024} {O.pol_old}" for rt in range(7)]
    for rt in range(7): G.m[56 * 15 + [4, 5, 6, 8, 9, 11, 13][rt]].append(PL[rt] + " ;@pl")
    nw = 0; g0 = 56 * 15
    for rt in range(6):
        for k in range(3): G.m[g0 + 8 * rt + 10 + 2 * k].append(wr[nw]); nw += 1
    if O.fin2:
        G.s[g0 + 43].append("s_waitcnt lgkmcnt(@fw3)"); G.s[g0 + 43].append("s_barrier")
        for g, x in zip([45, 47, 48, 49, 51, 53, 55, 55, 55], FR_[:9]): G.m[g0 + g].append(x)
    if O.p3st:
        for N in range(1, 16):
            k = nstamp[0]; nstamp[0] += 1
            G.p[56 * N - 2].append(f"s_memtime {sr(S_STP)}\ns_memrealtime {sr(S_STP+2)}\ns_waitcnt lgkmcnt(0)\nv_writelane_b32 v{V_STAMP}, s{S_STP}, {2*k}\nv_writelane_b32 v{V_STAMP}, s{S_STP+2}, {2*k+1}")
    G.emit()
    stamp()
    I("s_nop 4")
    def fin(rt):
        I(f"s_waitcnt lgkmcnt(@f{rt})")
        o = ACC + 16 * rt
        for k in (0, 2):
            I(f"v_pk_add_f32 {vr(o+k,2)}, {vr(o+k,2)}, {vr(o+4+k,2)}"); I(f"v_pk_add_f32 {vr(o+8+k,2)}, {vr(o+8+k,2)}, {vr(o+12+k,2)}")
        for k in (0, 2): I(f"v_pk_add_f32 {vr(o+k,2)}, {vr(o+k,2)}, {vr(PR+4*rt+k,2)}")
        for k in (0, 2): I(f"v_pk_add_f32 {vr(o+k,2)}, {vr(o+k,2)}, {vr(o+8+k,2)}")
        I(f"v_cvt_pk_bf16_f32 v{o}, v{o}, v{o+1}"); I(f"v_cvt_pk_bf16_f32 v{o+1}, v{o+2}, v{o+3}")
        I(f"buffer_store_dwordx2 {vr(o,2)}, v{V_OA}, {sr(S_OUT,4)}, s{S_OUTOFF} offen {O.pol_out}")
        I(f"s_add_u32 s{S_OUTOFF}, s{S_OUTOFF}, {16*2048}")
    for x in wr[nw:]: I(x)
    I("s_waitcnt vmcnt(@pl)")
    if O.fin2:
        for x in FR_[9:12]: I(x)
        fin(0); fin(1)
        I("s_waitcnt lgkmcnt(@fw6)"); I("s_barrier")
        for x in FR_[12:]: I(x)
        for rt in range(2, 7): fin(rt)
    else:
        I("s_waitcnt lgkmcnt(0)"); I("s_barrier")
        for x in FR_: I(x)
        for rt in range(7): fin(rt)
    stamp()
    store_stamps()
    A("L_done:")
    I("s_endpgm")
    A("L_fallback:")
    I(f"s_mov_b32 s{S_FB}, 1")
    I("s_waitcnt vmcnt(0) lgkmcnt(0)"); I("s_barrier")
    for rt in range(7): I(f"v_mov_b32 v{NM+4*rt}, 0xff800000")
    I(f"s_mov_b32 s{S_KVG}, s{S_KV0}")
    for x in k_addr(0): I(x)
    I(f"s_mov_b32 s{S_I}, 0")
    A("L_fb_loop:")
    emit_dma(kv_dma("K", 0)); I(KVG_UPD)
    I("s_waitcnt vmcnt(0)"); I("s_barrier")
    for f in range(8): I(k_read(f))
    I("s_waitcnt lgkmcnt(0)"); I("s_barrier")
    for rt in range(7):
        for m in qk_mfmas(rt, SB, usenm=False): I(m)
        I("s_nop 7")
        b = NM + 4 * rt
        for k in range(4): I(f"v_max3_f32 v{b}, v{b}, v{SB+2*k}, v{SB+2*k+1}")
    I(f"s_add_u32 s{S_I}, s{S_I}, 1"); I(f"s_cmp_lt_u32 s{S_I}, 16"); I("s_cbranch_scc1 L_fb_loop")
    multi_reduce([NM + 4 * rt for rt in range(7)], [NM + 4 * rt + 1 for rt in range(7)], "v_max_f32")
    for rt in range(7):
        b = NM + 4 * rt
        I(f"v_sub_f32 v{b}, 0, v{b}")
        for k in range(1, 4): I(f"v_mov_b32 v{b+k}, v{b}")
    I(f"s_mov_b32 s{S_KVG}, s{S_KV0}")
    for st in range(RING - 1):
        emit_dma(kv_dma("K", (4 - st) * 32768) + kv_dma("V", (4 - st) * 32768)); I(KVG_UPD)
    for k in range(112): I(f"v_mov_b32 v{OK_+k}, 0")
    for k in range(112): I(f"v_accvgpr_write_b32 a{OS_+k}, 0")
    for k in range(32): I(f"v_mov_b32 v{VF+k}, 0")
    for k in range(12): I(f"v_mov_b32 v{PB+k}, 0")
    for k in range(7): I(f"v_mov_b32 v{LS+k}, 0")
    for k in range(8): I(f"v_mov_b32 v{SB+16+k}, 0xf149f2ca")
    I(f"s_mov_b32 s{S_MASK}, 0xfff"); I(f"s_mov_b32 s{S_DS}, 0"); I(f"s_mov_b32 s{S_SL2}, {3*32768}"); I(f"s_mov_b32 s{S_I}, -1")
    for x in next_dma_state(): I(x)
    for x in k_addr(4 * 32768) + v_addr(4 * 32768): I(x)
    I("s_waitcnt vmcnt(0)"); I("s_barrier")
    for f in range(8): I(k_read(f))
    I("s_waitcnt lgkmcnt(0)")
    I("s_branch L_att")

def main(fn):
    global RA_N, NB
    RA_N = O.ra_n; NB = O.nb
    del L[:]
    nstamp[0] = 0
    A('.amdgcn_target "amdgcn-amd-amdhsa--gfx950"')
    A(".text")
    gen()
    A("  .fill 6144, 4, 0xBF800000")
    A('.section .rodata,"a"\n.p2align 6')
    A(f".amdhsa_kernel {NAME}_kernel\n  .amdhsa_next_free_vgpr 512\n  .amdhsa_next_free_sgpr 102\n  .amdhsa_accum_offset 256\n  .amdhsa_group_segment_fixed_size 0\n  .amdhsa_kernarg_size 64\n  .amdhsa_user_sgpr_count 2\n  .amdhsa_user_sgpr_kernarg_segment_ptr 1\n  .amdhsa_system_sgpr_workgroup_id_x 1\n.end_amdhsa_kernel")
    head = ["; fused MHA block: per (b,h) workgroup Q-proj + attention, flag hand-off, then a 112x64 tile of the output projection",
            "; @launch grid=(256,1,1) block=(256,1,1) lds=163840"]
    open(fn, "w").write("\n".join(head + resolve(L)) + "\n")

if __name__ == "__main__":
    fn = sys.argv[1]
    for kv in sys.argv[2:]:
        k, v = kv.split("=")
        cur = getattr(O, k)
        setattr(O, k, (v == "1") if isinstance(cur, bool) else (int(v) if isinstance(cur, int) else v.replace("+", " ")))
    main(fn)
```

```python
import sys, math, struct, re
NAME = "standalone__mha_block_cached__near_ridge"

class Opt:
    pol_kv = "nt"; pol_x = ""; pol_wq = ""; pol_ost = "sc1"; pol_old = "sc1"; pol_wo = ""; pol_out = ""
    stamps = False; dbgst = False
    rotmul_h = 0; rotmul_b = 0
    k2_rot_c = 1; k2_rot_r = 2
    wo_pref = 3
    kv_first = 6
    abl_nopoll = False
    wo_early = 3
    kv_rot_j = 1
    kv_rot_x = 2
    lin_map = False
    kv_last = 13
    k0_it = 1
    up_chunks = 2
    nl2 = 1
    l2_base = 5
    cpf = True
    wo_mall = False
    n_up = 22
    n_up0 = 8
    capA = 6
    capB = 5
    capA2 = 9
    capB2 = 8
    rotmul_x = 1
    sig_cnt = False
    gmode = False
    g_start = 12
    g_per = 4
    g_rounds = 3
    l2_at = 29
    pf_pen = 2
    s4_in = True
    p1st = False
    abl_noearly = False
    nskip = 2
    epst = False
    ta = 6
    f1 = '5,10'
    f2 = '5,10'
    pf_row = True
    cp0 = 1
    pol_kve = 'nt'
    dbg_wg = 37
    fast_ep = False
    xp = 2
    xd = 4
    xb = 1
    p2_at = 13
    clr = 0
    p3st = False
    s2_g = 52
    p2_g = 12
    fin2 = True
    tail_n = 8
    e4 = True
    wo_first = 0
    pre_dma = 2
    ra_n = 16
    r0 = 10
    nb = 2
    tr_early = True
    accord = True
    ep_dma = '9'
    post_dma = 0
    pf_q = 4
    pf_max = 8
    cpf_at = 14
    pref_last = True
    loopst = False
    tlbw = 0
    abl_nomfma = False
    kv_noswz = False
    att_vm = 24
    abl_nodma = False
    poll_lead = 2
O = Opt()

L = []
def A(s): L.append(s)
def I(s):
    for x in s.split("\n"):
        if x.strip(): L.append("  " + x.strip())
def vr(b, n=4): return f"v[{b}:{b+n-1}]"
def ar(b, n=4): return f"a[{b}:{b+n-1}]"
def sr(b, n=2): return f"s[{b}:{b+n-1}]"
def pol(p): return (p + " ") if p else ""
def f2u(x): return struct.unpack("<I", struct.pack("<f", x))[0]
MF = "v_mfma_f32_16x16x32_bf16"

class Gaps:
    def __init__(self, mf):
        self.mf = list(mf); n = len(self.mf)
        self.s = [[] for _ in range(n)]; self.m = [[] for _ in range(n)]; self.v = [[] for _ in range(n)]; self.p = [[] for _ in range(n)]
    def chain(self, instrs, gaps):
        assert len(gaps) >= len(instrs), (instrs, gaps)
        for x, g in zip(instrs, gaps): self.s[g].append(x)
    def emit(self):
        for i, m in enumerate(self.mf):
            I(m)
            for x in self.s[i] + self.m[i] + self.v[i] + self.p[i]: I(x)

def resolve(lines):
    vm = []; lg = []; out = []
    for ln in lines:
        t = re.search(r";@(\S+)", ln)
        tag = t.group(1) if t else None
        code = ln.split(";")[0].rstrip() if t else ln
        op = code.strip().split(" ")[0] if code.strip() else ""
        def sub(kind, q, cap):
            def f(m):
                k = m.group(1)
                idx = [i for i, x in enumerate(q) if x == k]
                assert idx, ("unknown tag", k, ln)
                return f"{kind}({min(cap, len(q) - 1 - idx[-1])})"
            return f
        code = re.sub(r"vmcnt\(@(\S+?)\)", sub("vmcnt", vm, 62), code)
        code = re.sub(r"lgkmcnt\(@(\S+?)\)", sub("lgkmcnt", lg, 14), code)
        if tag != "nocount":
            if op.startswith(("buffer_", "global_")): vm.append(tag)
            elif op.startswith("ds_"): lg.append(tag)
        out.append(code)
    return out

OK_ = 16; VF = 128; SB = 160; PB = 184; NM = 196; LS = 224
V_LANE16 = 1; V_QP = 2; V_WOB = 3
V_KVOFF = 4
V_XB = 8; V_WB = 10; V_KB = 12; V_VB = 13; V_T0 = 14; V_T1 = 15
V_XOFF = 200; V_WOFF = 207; V_KW0 = 211; V_KW1 = 253
V_RAB = 231; V_PF = 212
V_XA = 232; V_WA = 234
V_KA = 232; V_VA = 236; V_TMP = 244; V_STAMP = 255
OS_ = 0; QA = 112; KF = 224; FR = 112
COL = [0, 1, 0, 1, 0, 1, 2]
S_X = 8; S_K = 12; S_V = 16; S_WQ = 20; S_O = 24
S_WAVE = 28; S_B = 29; S_H = 30; S_R = 31; S_C = 32
S_OX = 33; S_OW = 34; S_MXA = 36; S_MXB = 3; S_WXT = 37; S_I = 38
S_T0 = 39; S_T1 = 40; S_T2 = 41; S_T3 = 42
S_KVG = 43; S_SL0 = 44; S_SL1 = 45; S_SL2 = 46
S_FB = 47; S_W4K = 48; S_W4KK = 49; S_SCALE = 50; S_OST = 51
P_X = 52; P_K = 54; P_V = 56; P_WQ = 58; P_WO = 60; P_OUT = 62; P_DBG = 64; P_WS = 66
S_WO = 68; S_OO = 72; S_OUT = 76; S_TW = 80; S_TO = 52; S_LB0 = 88; S_LB1 = 89; S_OUTOFF = 90; S_SIG = 91; S_POLL = 92; S_PFO = 93
S_STP = 96
XT = 28672; WT = 16384; STG = XT + WT
RING = 5; KOFF = 16384; PART = 1 << 24; FLG = 3 << 23
ST0 = 86016; S_CA = 7; S_STW = 61; V_STW = 241; V_STR = 242; V_FLR = 243
SCALE = math.log2(math.e) / math.sqrt(128.0)

nstamp = [0]
def stamp():
    if not O.stamps: return
    k = nstamp[0]
    I(f"s_memtime {sr(S_STP)}"); I("s_waitcnt lgkmcnt(0)"); I(f"v_writelane_b32 v{V_STAMP}, s{S_STP}, {2*k}")
    I(f"s_memrealtime {sr(S_STP)}"); I("s_waitcnt lgkmcnt(0)"); I(f"v_writelane_b32 v{V_STAMP}, s{S_STP}, {2*k+1}")
    nstamp[0] += 1
def store_stamps():
    if not O.stamps: return
    I(f"s_cmp_lg_u32 s{S_WAVE}, 0"); I("s_cbranch_scc1 L_done")
    I(f"s_lshl_b32 s{S_T0}, s2, 8"); I(f"s_add_u32 s{S_T0}, s{S_T0}, {1<<26}"); I(f"v_lshl_add_u32 v15, v0, 2, s{S_T0}")
    I(f"global_store_dword v15, v{V_STAMP}, {sr(P_WS)}")
    if O.dbgst:
        I(f"s_cmp_lg_u32 s2, {O.dbg_wg}"); I("s_cbranch_scc1 L_done")
        I(f"v_readlane_b32 s{S_T0}, v{V_STAMP}, 62"); I("v_lshlrev_b32 v15, 1, v0"); I("v_add_u32 v15, 6, v15"); I(f"v_subrev_u32 v14, s{S_T0}, v{V_STAMP}")
        I("s_mov_b32 exec_lo, 0x2aaaaaa"); I("s_mov_b32 exec_hi, 0")
        I(f"global_store_dword v15, v14, {sr(P_DBG)}")
def srd(d, ptr, nbytes, shift=None, sub=True):
    if shift is None:
        I(f"s_mov_b32 s{d}, s{ptr}"); I(f"s_mov_b32 s{d+1}, s{ptr+1}"); I(f"s_mov_b32 s{d+2}, {nbytes}")
    else:
        I(f"s_add_u32 s{d}, s{ptr}, s{shift}"); I(f"s_addc_u32 s{d+1}, s{ptr+1}, 0")
        I(f"s_sub_u32 s{d+2}, {nbytes}, s{shift}" if sub else f"s_mov_b32 s{d+2}, {nbytes}")
    I(f"s_mov_b32 s{d+3}, 0x20000")

def stg(i): return ((-i) % 3) * STG
def d_w(i): return [([f"s_add_u32 m0, {stg(i)}, s{S_WXT}"] if j == 0 else [], f"buffer_load_dwordx4 v{V_WOFF+j}, {sr(S_WQ,4)}, s{S_OW} offen offset:{j*1024} {pol(O.pol_wq)}lds ;@w_{i}") for j in range(4)]
def d_xa(i): return [([f"s_add_u32 m0, {stg(i)}, s{S_MXA}"] if j == 0 else [], f"buffer_load_dwordx4 v{V_XOFF+j}, {sr(S_X,4)}, s{S_OX} offen offset:{j*1024} {pol(O.pol_x)}lds ;@xa{i}") for j in range(4)]
def d_xb(i): return [([f"s_add_u32 m0, {stg(i)}, s{S_MXB}"] if j == 0 else [], f"buffer_load_dwordx4 v{V_XOFF+4+j}, {sr(S_X,4)}, s{S_OX} offen offset:{j*1024} {pol(O.pol_x)}lds ;@xb{i}", P1_UPD if j == 2 else []) for j in range(3)]
S_OC = 38; S_XM = 95
S_XR = 99
P1_UPD = [f"s_add_u32 s{S_OC}, s{S_OC}, 128", f"s_xor_b32 s{S_OX}, s{S_OC}, s{S_XM}", f"s_add_u32 s{S_OX}, s{S_OX}, s{S_XR}", f"s_and_b32 s{S_OX}, s{S_OX}, 2047", f"s_lshl_b32 s{S_OW}, s{S_OX}, 12"]
def emit_dma(g, post=False):
    for x in g:
        for p in x[0]: I(p)
        if x[0]: I("s_nop 0")
        I(x[1])
        if post and len(x) > 2:
            for p in x[2]: I(p)
def kv_dma(which, slot, so=None):
    so = S_KVG if so is None else so
    s, off = (S_K, S_W4KK) if which == "K" else (S_V, S_W4K)
    return [([f"s_add_u32 m0, {slot}, s{off}"] if j == 0 else [],
             f"buffer_load_dwordx4 v{V_KVOFF+j}, {sr(s,4)}, s{so} offen offset:{j*1024} {pol(O.pol_kv)}lds") for j in range(4)]
KVG_UPD = f"s_add_u32 s{S_KVG}, s{S_KVG}, 16384\ns_and_b32 s{S_KVG}, s{S_KVG}, 0x3ffff"
S_KV0 = 94; S_KVE = 95; S_MASK = 35; S_DS = S_SL1
def er(reg): return ar(reg) if reg < 256 else vr(reg - 256)
EARLY = [("V", 0, 256 + 160), ("K", 1, 256 + 176), ("V", 1, 0), ("K", 2, 16), ("V", 2, 32), ("K", 3, 48), ("V", 3, 64)]
def early_list(): return EARLY + ([("K", 4, 256 + 96), ("V", 4, 256 + 112)] if O.e4 else [])
V_KW2 = 216; V_ZR = 217; S_INB = 100
def early_loads():
    g = []
    for p, (w, st, reg) in enumerate(early_list()):
        for j in range(4):
            post = [KVG_UPD] if (w == "V" and j == 3) else []
            g.append(([], f"buffer_load_dwordx4 {er(reg+4*j)}, v{V_KVOFF+j}, {sr(S_K if w=='K' else S_V,4)}, s{S_KVG} offen offset:{j*1024} {O.pol_kve} ;@e{p}", post))
    return g
def early_writes():
    g = []
    for p, (w, st, reg) in enumerate(early_list()):
        addr = (4 - st) * 32768 + (KOFF if w == "K" else 0)
        base, b0 = (V_KW2, 131072) if addr >= 131072 else ((V_KW0, 65536) if addr >= 65536 else (V_KW1, 0))
        for j in range(4):
            g.append(([f"s_waitcnt vmcnt(@e{p})"] if j == 0 else [], f"ds_write_b128 v{base}, {er(reg+4*j)} offset:{addr-b0+j*1024} ;@ew"))
    return g
def p1_acc(rt): return OK_ + 16 * rt if rt < 5 else VF + 16 * (rt - 5)
FW = 112; FXA = 176; FXB = 208
def r_w(i):
    return [f"ds_read_b64_tr_b16 {ar(FW+32*(i&1)+16*s+4*t+2*e,2)}, v{V_WA+t//2} offset:{XT + s*8192 + e*1024 + (t%2)*8}" for s in range(2) for t in range(4) for e in range(2)]
def xf(rt, s): return (FXA + 8 * rt + 4 * s) if rt < 4 else (FXB + 8 * (rt - 4) + 4 * s)
def r_x(rts): return [f"ds_read_b128 {ar(xf(rt,s))}, v{V_XA+s} offset:{rt*2048}" for rt in rts for s in range(2)]
def p1_mfmas(i, rts):
    return [f"{MF} {vr(p1_acc(rt)+4*t)}, {ar(FW+32*(i&1)+16*s+4*t)}, {ar(xf(rt,s))}, " + ("0" if (i == 0 and s == 0) else vr(p1_acc(rt)+4*t)) for rt in rts for (s, t) in ([(s, t) for t in range(4) for s in range(2)] if O.accord else [(s, t) for s in range(2) for t in range(4)])]
def place(G, ops, gaps):
    assert len(gaps) >= len(ops), (len(ops), gaps)
    for d, g in zip(ops, gaps):
        for p in d[0]:
            if G.m[g - 1] and "buffer_" in G.m[g - 1][-1] and "lds" in G.m[g - 1][-1] and "m0" in p: G.p[g - 1].append(p)
            else: G.s[g - 1].append(p)
        G.m[g].append(d[1])
        if len(d) > 2:
            pp = [q for p in d[2] for q in p.split(chr(10))]
            nxt = [h for h in gaps[:len(ops)] if h > g]
            for k, p in enumerate(pp): G.s[min(g + 1 + k // 2, nxt[0] if nxt else 10**9)].append(p)
def layout(n, nmem, nrd):
    mg = sorted(set(1 + (k * (n - 3)) // max(nmem, 1) for k in range(nmem)))
    assert len(mg) == nmem
    rg = [g for g in range(n - 2) if g not in mg][:nrd]
    if len(rg) < nrd: rg = sorted(rg + mg[:nrd - len(rg)])
    return mg, rg
pendw = []
def p1_half(mf, mem, reads, addr, wait, valu=None, vstart=0):
    G = Gaps(mf); n = len(mf)
    mg, rg = layout(n, len(mem), len(reads))
    for k, r in zip(rg, reads): G.m[k].append(r)
    place(G, mem, mg)
    for after, x in addr:
        g0 = rg[after] + 1 if after >= 0 else 0
        c = [g for g in range(g0, n - 1) if g not in mg and len(G.v[g]) < (1 if G.m[g] else 2) and not (G.m[g] and G.s[g])]
        G.v[c[0]].append(x)
    if valu is not None:
        work, base = valu
        lastw = -9
        for g in range(n):
            if base and pendw and g - lastw >= 3 and g not in mg and not G.m[g]:
                G.m[g].append(pendw.pop(0)); lastw = g; continue
            room = 0 if g in mg else (1 if G.m[g] else 2)
            while work and work[0][0] <= g + base and (work[0][1] == "w" or len(G.v[g]) < room) and len(pendw) < 7:
                w = work.pop(0)
                if w[1] == "w": pendw.append(w[2])
                else: G.v[g].append(w[2])
    if wait is not None:
        G.s[n - 1].append(wait); G.s[n - 1].append("s_barrier")
    G.emit()

def kq(f): return (f % 4, f // 4) if O.accord else (f // 2, f % 2)
def k_read(f): return f"ds_read_b128 {ar(KF+4*f)}, v{V_KA+kq(f)[0]} offset:{kq(f)[1]*4096}"
def v_read(dq, e): return f"ds_read_b64_tr_b16 {vr(VF+4*dq+2*e,2)}, v{V_VA+dq}" + (" offset:4096" if e else "")
def k_addr(slot): return [f"v_add_u32 v{V_KA}, {slot}, v{V_KB}"] + [f"v_xor_b32 v{V_KA+q}, {q*64}, v{V_KA}" for q in range(1, 4)]
def v_addr(slot): return [f"v_add_u32 v{V_VA}, {slot}, v{V_VB}"] + [f"v_xor_b32 v{V_VA+d}, {d*32}, v{V_VA}" for d in range(1, 8)]
def oacc(rt, dq): return vr(OK_ + 16 * rt + 4 * dq) if dq < 4 else ar(OS_ + 16 * rt + 4 * (dq - 4))
def qk_mfmas(rt, S, usenm=True):
    m = []
    for f in range(8):
        q, kt = kq(f)
        d = S + 4 * kt
        c = (vr(NM + 4 * rt) if usenm else "0") if q == 0 else vr(d)
        m.append(f"{MF} {vr(d)}, {ar(KF+4*f)}, {ar(QA+16*rt+4*q)}, {c}")
    return m
def pv_mfmas(rt, first=False):
    P = PB + 4 * COL[rt]
    return [f"{MF} {oacc(rt,dq)}, {vr(VF+4*dq)}, {vr(P)}, " + ("0" if first else oacc(rt, dq)) for dq in range(8)]
def sm_ops(rt, scol=None):
    S = SB + 8 * (COL[rt] if scol is None else scol); P = PB + 4 * COL[rt]
    e = [f"v_exp_f32 v{S+k}, v{S+k}" for k in range(8)]
    a = [f"v_add_f32 v{LS+rt}, v{LS+rt}, v{S+k}" for k in range(8)]
    c = [f"v_cvt_pk_bf16_f32 v{P+k}, v{S+2*k}, v{S+2*k+1}" for k in range(4)]
    return e, a, c
def put_softmax(G, base, rt):
    e, a, c = sm_ops(rt)
    for k in range(8):
        G.v[base + 2 * k].append(e[k])
        if k % 2 == 1: G.v[base + 2 * k + 1].append(c[k // 2])
        G.v[base + 2 * k + 1].append(a[k])
def sm0_nm(rt):
    t = V_TMP + 2 * (rt & 1)
    return [f"v_sub_f32 v{NM+4*rt+k}, 0, v{t}" for k in range(4)]
def sm0_ops(rt):
    scol = 2 if rt == 0 else COL[rt]
    S = SB + 8 * scol; t = V_TMP + 2 * (rt & 1)
    e, a, c = sm_ops(rt, scol)
    a[1] = f"v_add_f32 v{LS+rt}, v{S}, v{S+1}"
    pn = sm0_nm(rt - 1) if rt else ["s_nop 0", "s_nop 0", None, None]
    sub = [f"v_sub_f32 v{S+k}, v{S+k}, v{t}" for k in range(8)]
    g = [[f"v_max3_f32 v{t}, v{S}, v{S+1}, v{S+2}", f"v_max3_f32 v{t+1}, v{S+3}, v{S+4}, v{S+5}", f"v_max3_f32 v{t}, v{t}, v{S+6}, v{S+7}"],
         [f"v_max_f32 v{t}, v{t}, v{t+1}", f"v_max_f32 v{t+1}, v{t}, v{t+1}", pn[0]],
         [f"v_permlane32_swap_b32 v{t}, v{t+1}", f"v_max_f32 v{t}, v{t}, v{t+1}", f"v_mov_b32 v{t+1}, v{t}", pn[1]],
         [f"v_permlane16_swap_b32 v{t}, v{t+1}", f"v_max_f32 v{t}, v{t}, v{t+1}", sub[0]],
         [e[0], sub[1]], [e[1], sub[2]], [e[2], sub[3]], [e[3], sub[4], a[1]], [e[4], sub[5], c[0]], [e[5], sub[6], a[2]], [e[6], sub[7], a[3]],
         [e[7], c[1], a[4]], [c[2], a[5], pn[2]], [c[3], a[6]], [a[7], pn[3]]]
    return [[x for x in grp if x] for grp in g]

def next_dma_state():
    return [f"s_add_u32 s{S_I}, s{S_I}, 1", f"s_bitcmp1_b32 s{S_MASK}, s{S_I}", f"s_cselect_b32 s{S_SL0}, s{S_DS}, 0x30000", f"s_cselect_b32 s{S_KVE}, s{S_KVG}, 0x40000000",
            f"s_cselect_b32 s{S_T3}, 32768, 0", f"s_sub_u32 s{S_DS}, s{S_DS}, s{S_T3}", f"s_cselect_b32 s{S_DS}, {(RING-1)*32768}, s{S_DS}",
            f"s_lshr_b32 s{S_T3}, s{S_T3}, 1", f"s_add_u32 s{S_KVG}, s{S_KVG}, s{S_T3}", f"s_and_b32 s{S_KVG}, s{S_KVG}, 0x3ffff"]
V_WOF = 8; V_RA0 = 232; V_RA1 = 236; V_L2 = 240
pf_cnt = [0, 0]
def put_pf(G, t):
    if t == 12 + O.nskip:
        if O.pf_row:
            G.v[1].append(f"v_and_b32 v{V_TMP+8}, 7, v0"); G.v[3].append(f"v_and_b32 v{V_TMP+7}, 8, v0"); G.v[5].append(f"v_lshl_add_u32 v{V_TMP+8}, v{V_TMP+7}, 1, v{V_TMP+8}"); G.v[7].append(f"v_lshlrev_b32 v{V_TMP+8}, 7, v{V_TMP+8}")
        else:
            G.v[1].append(f"v_and_b32 v{V_TMP+8}, 15, v0"); G.v[5].append(f"v_lshlrev_b32 v{V_TMP+8}, 11, v{V_TMP+8}")
        pf_cnt[0] = 0; pf_cnt[1] = 4 * O.wo_first
    if O.cpf and t == O.cpf_at:
        c2 = code_pf("L_last+2048", 6, V_TMP + 5)
        G.chain(c2[0], [6, 8]); G.v[10].append(c2[1]); G.m[11].append(c2[2].replace(f"v{V_TMP+6},", f"v{V_QP},")); pf_cnt[0] += 1
    gl = {1: [13], 2: [13, 57], 3: [13, 47, 81], 4: [13, 41, 63, 87], 5: [13, 41, 55, 71, 87], 6: [13, 23, 41, 55, 71, 87]}[O.pf_q] if O.pf_q else []
    for g in gl:
        if pf_cnt[1] >= O.pf_max: break
        k = pf_cnt[1]
        G.s[g - 1].append(f"s_add_u32 s{S_T0}, s{S_PFO}, {(k // 4) * 8 * 65536 + (k % 4) * (4096 if O.pf_row else 32768)}")
        G.m[g].append(f"buffer_load_dword v{V_QP}, v{V_TMP+8}, {sr(S_WO,4)}, s{S_T0} offen")
        pf_cnt[0] += 1; pf_cnt[1] += 1
def att_iter(kind, t=None):
    mf = []; base = []
    for n in range(7):
        base.append(len(mf))
        mf += qk_mfmas(n, SB + 8 * (2 if (kind == "first" and n == 0) else COL[n]), usenm=(kind != "first"))
        if not (kind == "first" and n < 2): mf += pv_mfmas((n - 2) % 7, first=(kind == "first"))
    G = Gaps(mf)
    if kind == "first":
        for k in range(16): G.m[k].append(v_read(k // 2, k % 2) + " ;@vf")
        for n in range(1, 7):
            g = sm0_ops(n - 1)
            if n == 1: pos = [11, 12, 13, 14, 15, 15, 16, 16, 17, 17, 18, 18, 19, 19, 20]
            elif n == 2: pos = [base[2] + x for x in [4, 5, 6, 7, 8, 8, 9, 10, 11, 12, 13, 14, 15, 15, 15]]
            else: pos = [base[n] + x for x in range(15)]
            for grp, p in zip(g, pos):
                for x in grp: G.v[p].append(x)
        G.s[base[2] + 6].append("s_waitcnt lgkmcnt(@vf)")
        off = lambda g: g - 16
        G.v[2].append(f"v_lshlrev_b32 v{V_TMP+8}, 11, v0")
        if O.e4:
            place(G, early_writes()[20:], [off(g) for g in [37, 41, 44, 47, 52, 54, 58, 61, 63, 68, 70, 74, 77, 79, 84, 86]])
            G.s[off(91)].append("s_waitcnt lgkmcnt(@ew)")
            for k in range(32): G.v[off([93, 94, 95, 95, 100, 102, 109, 110, 111, 110][k % 10])].append(f"v_mov_b32 v{OK_+80+k}, 0")
        else:
            place(G, early_writes()[20:], [off(g) for g in [50, 54, 58, 62, 63, 66, 70, 74]])
            d4 = kv_dma("K", 0) + kv_dma("V", 0); d4[7] = d4[7] + ([KVG_UPD],)
            place(G, d4, [off(g) for g in [36, 42, 47, 52, 60, 68, 72, 78]])
        for j in range(O.wo_first):
            g = off([61, 79][j])
            G.s[g - 1].append(f"s_add_u32 s{S_T0}, s{S_PFO}, {j*8*65536}")
            G.m[g].append(f"buffer_load_dword v{V_QP}, v{V_TMP+8}, {sr(S_WO,4)}, s{S_T0} offen")
        for j in range(0 if O.pref_last else O.wo_pref):
            G.m[off(36 + 3 * j)].append(f"buffer_load_dword v{V_QP}, v{V_TMP+8}, {sr(S_WO,4)}, s{S_PFO} offen")
            G.s[off(37 + 3 * j)].append(f"s_add_u32 s{S_PFO}, s{S_PFO}, {8*65536}")
    else:
        for n in range(7): put_softmax(G, 16 * n, (n - 1) % 7)
        off = lambda g: g
        G.s[0].append("s_waitcnt lgkmcnt(4)"); G.s[2].append("s_waitcnt lgkmcnt(2)"); G.s[4].append("s_waitcnt lgkmcnt(0)")
        for k in range(16): G.m[24 + k].append(v_read(k // 2, k % 2))
        G.s[38].append("s_waitcnt lgkmcnt(10)")
        G.s[40].append("s_waitcnt lgkmcnt(8)"); G.s[42].append("s_waitcnt lgkmcnt(4)"); G.s[44].append("s_waitcnt lgkmcnt(0)")
        va = v_addr(f"s{S_SL1}")
        for x, g in zip(va[4:], [5, 9, 17, 21]): G.v[g].append(x)
    if kind != "last":
        va = v_addr(f"s{S_SL2}"); ka = k_addr(f"s{S_SL2}")
        if kind == "first":
            for x, g in zip(va[:4] + ka, [off(z) for z in [53, 62, 62, 69, 78, 78, 85, 94]]): G.v[g].append(x)
        elif kind == "pen":
            put_pf(G, t)
            if t == 14:
                place(G, wo_dma(0) + wo_dma(1), [1, 19, 41, 49, 57, 65, 73, 91]); pf_cnt[0] += 8
            for x, g in zip(va[:4], [45, 53, 61, 69]): G.v[g].append(x)
            for x, g in zip(ka, [77, 85, 89, 93]): G.v[g].append(x)
            G.s[94].append(f"s_waitcnt vmcnt({8 * (14 - t) + pf_cnt[0]})")
        else:
            place(G, kv_dma("K", f"s{S_SL0}", S_KVE) + kv_dma("V", f"s{S_SL0}", S_KVE), [1, 13, 41, 49, 57, 65, 73, 81])
            for x, g in zip(va[:4], [45, 53, 61, 69]): G.v[g].append(x)
            for x, g in zip(ka, [77, 85, 89, 93]): G.v[g].append(x)
            G.s[94].append(f"s_waitcnt vmcnt({24 if t == 0 else 24 - 8 * O.nskip})")
        G.s[off(95)].append("s_barrier")
        for f in range(8): G.m[off(97 + 2 * f)].append(k_read(f))
        if kind != "pen": G.chain(next_dma_state(), [off(g) for g in [82, 84, 86, 88, 90, 92, 96, 98, 100, 102]])
        G.chain([f"s_sub_u32 s{S_SL2}, s{S_SL2}, 32768", f"s_cselect_b32 s{S_SL2}, {(RING-1)*32768}, s{S_SL2}", f"s_cmp_lt_u32 s{S_I}, {O.ta + 1 if (kind == chr(108)+chr(111)+chr(111)+chr(112) and t == 0) else 12 + O.nskip}", "s_waitcnt lgkmcnt(5)"],
                [off(g) for g in [104, 106, 108, 110]])
    else:
        for rt in range(4):
            for k in range(4): G.m[16 * (rt + 3) + 1 + 4 * k].append(f"ds_write_b128 v{V_T0}, {ar(OS_+16*rt+4*k)} offset:{(4*rt+k)*1024}")
        put_pf(G, 15)
        G.s[46].append("s_barrier")
        G.v[9].append(f"v_mov_b32 v{V_TMP+9}, 0"); G.m[17].append(f"global_load_dword v{V_TMP+10}, v{V_TMP+9}, {sr(P_DBG)} sc1 ;@st0")
        ex = [f"v_add_u32 v{V_RA0}, s{S_LB0}, v{V_RAB}"] + [f"v_xor_b32 v{V_RA0+q}, {q*32}, v{V_RA0}" for q in range(1, 4)]
        for x, g in zip(ex, [1, 3, 7, 13]): G.v[g].append(x)
        ex = ([f"v_add_u32 v{V_RA1}, s{S_LB1}, v{V_RAB}", f"v_add_u32 v{V_L2}, 4096, v{V_LANE16}"] + [f"v_xor_b32 v{V_RA1+q}, {q*32}, v{V_RA1}" for q in range(1, 4)]
              + [f"v_and_b32 v{V_STW}, 15, v0", f"v_lshl_add_u32 v{V_STW}, v{V_STW}, 3, s{S_STW}", f"v_xor_b32 v{V_STR}, 1024, v{V_STW}",
                 f"v_and_b32 v{V_FLR}, 3, v0", f"v_lshlrev_b32 v{V_FLR}, 10, v{V_FLR}", f"v_add_u32 v{V_FLR}, {ST0+896}, v{V_FLR}"])
        for x, g in zip(ex, [41, 45, 51, 55, 59, 63, 67, 71, 75, 79, 83]): G.v[g].append(x)
    return G

def code_pf(label, sh, vt):
    return ([f"s_lshl_b32 s6, s{S_WAVE}, {6+sh}", f"s_add_u32 s6, s6, {label}-L_pc"], f"v_lshl_add_u32 v{vt}, v0, {sh}, s6", f"global_load_dword v{V_TMP+6}, v{vt}, s[4:5]")
def multi_reduce(regs, temps, op):
    for sw in ("v_permlane32_swap_b32", "v_permlane16_swap_b32"):
        for r, t in zip(regs, temps): I(f"v_mov_b32 v{t}, v{r}")
        I("s_nop 1")
        for r, t in zip(regs, temps): I(f"{sw} v{r}, v{t}")
        I("s_nop 1")
        for r, t in zip(regs, temps): I(f"{op} v{r}, v{r}, v{t}")

RA_N = 13; RL_N = 9; NB = 5; ACC = 16
slot_of = {0: 0, 1: 1}
def areg(m, k, n):
    e = m % RA_N
    na = (256 - 28 * NB) // 16
    assert RA_N <= na + 6
    return ar(28 * NB + 16 * e + k, n) if e < na else vr(128 + 16 * (e - na) + k, n)
def bump(s, d): return [f"s_add_u32 s{s}, s{s}, {d}", f"s_addc_u32 s{s+1}, s{s+1}, 0", f"s_sub_u32 s{s+2}, s{s+2}, {d}"]
def wo_dma(m):
    s = slot_of[m]
    m0 = f"s_add_u32 m0, s{S_LB0}, {s*4096}" if s < 2 else f"s_add_u32 m0, s{S_LB1}, {(s-2)*4096}"
    pre = (bump(S_WO, 8 * 65536) if (m % 8 == 0 and m) else []) + [m0]
    return [(pre if j == 0 else [], f"buffer_load_dwordx4 v{V_WOF+j}, {sr(S_WO,4)}, s{S_TW+m%8} offen offset:{j*1024} {pol(O.pol_wo)}lds ;@w{m}") for j in range(4)]
def a_reads(m):
    s = slot_of[m]
    ra, o = (V_RA0, s * 4096) if s < 2 else (V_RA1, (s - 2) * 4096)
    return [f"ds_read_b64_tr_b16 {areg(m,4*cq+2*e,2)}, v{ra+cq} offset:{o+e*2048} ;@a{m}" for cq in range(4) for e in range(2)]
S_WBO = 8; S_SO = 33; S_PST = 20; S_PLD = 21; S_BIT = 22
def b_loads(n):
    pre = [f"s_add_u32 s{S_SO+n%2}, s{S_WBO+n//8}, s{S_TO+n%8}"]
    return [(pre if rt == 0 else [], f"buffer_load_dwordx4 {ar(28*(n%NB)+4*rt)}, v{V_LANE16 if rt<4 else V_L2}, {sr(S_OO,4)}, s{S_SO+n%2} offen offset:{(rt%4)*1024} {O.pol_old} ;@b{n}") for rt in range(7)]
def p3_mfmas(n):
    return [f"{MF} {vr(ACC+16*rt+4*cq)}, {areg(n,4*cq,4)}, {ar(28*(n%NB)+4*rt)}, " + ("0" if n % 16 == 0 else vr(ACC+16*rt+4*cq)) for rt in range(7) for cq in range(4)]

def gen():
    K = NAME + "_kernel"
    A(f".globl {K}\n.p2align 8\n.type {K},@function\n{K}:")
    I("s_cmp_ge_u32 s2, 256"); I("s_cbranch_scc1 L_done")
    if O.dbgst: I("s_memrealtime s[68:69]")
    I("s_load_dwordx16 s[52:67], s[0:1], 0")
    I("s_getpc_b64 s[4:5]")
    A("L_pc:")
    if O.cp0 == 0:
        I("v_lshlrev_b32 v14, 7, v0"); I("global_load_dword v15, v14, s[4:5]"); I("v_lshrrev_b32 v14, 1, v14"); I("v_add_u32 v14, 0x8000, v14"); I("global_load_dword v15, v14, s[4:5]")
    elif O.cp0 == 1:
        I("s_lshl_b32 s6, s2, 9"); I("s_and_b32 s6, s6, 0x3000"); I("v_lshl_add_u32 v14, v0, 4, s6"); I("global_load_dword v15, v14, s[4:5] offset:512")
    I("v_lshrrev_b32 v14, 6, v0")
    I("v_and_b32 v0, 63, v0")
    I(f"v_readfirstlane_b32 s{S_WAVE}, v14")
    I(f"s_and_b32 s{S_T0}, s2, 7"); I(f"s_lshr_b32 s{S_T1}, s2, 3")
    I(f"s_and_b32 s{S_B}, s{S_T0}, 1"); I(f"s_lshl_b32 s{S_B}, s{S_B}, 2"); I(f"s_and_b32 s{S_T2}, s{S_T1}, 3"); I(f"s_add_u32 s{S_B}, s{S_B}, s{S_T2}")
    I(f"s_lshr_b32 s{S_H}, s{S_T0}, 1"); I(f"s_lshl_b32 s{S_H}, s{S_H}, 3"); I(f"s_lshr_b32 s{S_T3}, s{S_T1}, 2"); I(f"s_add_u32 s{S_H}, s{S_H}, s{S_T3}")
    if O.lin_map: I(f"s_lshr_b32 s{S_B}, s2, 5"); I(f"s_and_b32 s{S_H}, s2, 31")
    I(f"s_mul_i32 s{S_XM}, s{S_T2}, {O.xb}"); I(f"s_add_u32 s{S_XM}, s{S_XM}, s{S_T3}"); I(f"s_and_b32 s{S_XM}, s{S_XM}, {O.xp-1}"); I(f"s_mul_i32 s{S_XM}, s{S_XM}, {O.xd*128}")
    I(f"s_mul_i32 s{S_T3}, s{S_T3}, {O.rotmul_h*128}"); I(f"s_mul_i32 s{S_T2}, s{S_T2}, {O.rotmul_b*128}"); I(f"s_add_u32 s{S_OX}, s{S_T2}, s{S_T3}")
    if O.rotmul_x: I(f"s_mul_i32 s{S_T0}, s{S_T0}, {O.rotmul_x*128}"); I(f"s_add_u32 s{S_OX}, s{S_OX}, s{S_T0}")
    I(f"s_and_b32 s{S_XR}, s{S_OX}, 2047"); I(f"s_mov_b32 s{S_OC}, 0")
    I(f"s_add_u32 s{S_OX}, s{S_XM}, s{S_XR}"); I(f"s_and_b32 s{S_OX}, s{S_OX}, 2047"); I(f"s_lshl_b32 s{S_OW}, s{S_OX}, 12")
    I(f"s_lshr_b32 s{S_R}, s{S_WAVE}, 1"); I(f"s_and_b32 s{S_C}, s{S_WAVE}, 1")
    I(f"s_lshl_b32 s{S_W4K}, s{S_WAVE}, 12"); I(f"s_add_u32 s{S_W4KK}, s{S_W4K}, {KOFF}"); I(f"s_add_u32 s{S_WXT}, s{S_W4K}, {XT}"); I(f"s_mul_i32 s{S_T0}, s{S_R}, {14*1024}"); I(f"s_lshl_b32 s{S_MXA}, s{S_C}, 12"); I(f"s_add_u32 s{S_MXA}, s{S_MXA}, s{S_T0}")
    I(f"s_mul_i32 s{S_MXB}, s{S_C}, 3072"); I(f"s_add_u32 s{S_MXB}, s{S_MXB}, s{S_T0}"); I(f"s_add_u32 s{S_MXB}, s{S_MXB}, 8192")
    T = V_TMP
    I(f"v_and_b32 v{T}, 15, v0"); I(f"v_lshrrev_b32 v{T+1}, 4, v0")
    I(f"v_and_b32 v{T+4}, 7, v0"); I(f"v_xor_b32 v{T+4}, v{T+4}, v{T+1}")
    I(f"v_lshrrev_b32 v{T+5}, 3, v0"); I(f"v_lshlrev_b32 v{T+7}, 11, v{T+5}"); I(f"v_lshl_add_u32 v{T+4}, v{T+4}, 4, v{T+7}")
    I(f"s_lshl_b32 s{S_T0}, s{S_C}, 16"); I(f"v_add_u32 v{V_XOFF}, s{S_T0}, v{T+4}"); I(f"v_xor_b32 v{T+5}, 64, v{V_XOFF}")
    for j in range(1, 4): I(f"v_add_u32 v{V_XOFF+j}, {j*16384-j*1024}, v{V_XOFF if j%2==0 else T+5}")
    I(f"s_lshl_b32 s{S_T0}, s{S_C}, 6"); I(f"v_xor_b32 v{T+4}, s{S_T0}, v{T+4}"); I(f"s_mul_i32 s{S_T0}, s{S_C}, {24*2048}"); I(f"s_add_u32 s{S_T0}, s{S_T0}, {64*2048}")
    I(f"v_add_u32 v{V_XOFF+4}, s{S_T0}, v{T+4}"); I(f"v_xor_b32 v{T+5}, 64, v{V_XOFF+4}")
    for j in range(1, 3): I(f"v_add_u32 v{V_XOFF+4+j}, {j*16384-j*1024}, v{V_XOFF+4 if j%2==0 else T+5}")
    I(f"v_lshlrev_b32 v{T+4}, 2, v{T+1}"); I(f"v_xor_b32 v{T+4}, v{T+4}, v{T}"); I(f"v_lshlrev_b32 v{T+5}, 13, v{T+1}"); I(f"v_lshl_add_u32 v{V_WOFF}, v{T+4}, 4, v{T+5}")
    for j in range(1, 4): I(f"v_add_u32 v{V_WOFF+j}, {j*32768-j*1024}, v{V_WOFF}")
    I(f"s_mul_i32 s{S_T0}, s{S_B}, 458752"); I(f"s_mul_i32 s{S_T1}, s{S_R}, {112*2048}"); I(f"s_add_u32 s{S_T0}, s{S_T0}, s{S_T1}")
    I(f"s_lshl_b32 s{S_T1}, s{S_H}, 8"); I(f"s_lshl_b32 s{S_T2}, s{S_WAVE}, 17"); I(f"s_add_u32 s{S_T1}, s{S_T1}, s{S_T2}")
    I("s_waitcnt lgkmcnt(0)")
    if O.dbgst: I(f"v_writelane_b32 v{V_STAMP}, s68, 62")
    stamp()
    srd(S_X, P_X, 3670016, S_T0); srd(S_WQ, P_WQ, 8388608, S_T1)
    Q = []
    for k in range(16):
        Q += [(-1 if k <= 2 else (0 if k == 3 else 2 * (k - 4) + 1), x) for x in d_w(k)]
        Q += [(-1 if k <= 2 else 2 * (k - 3), x) for x in d_xa(k)]
        Q += [(-1 if k <= 2 else 2 * (k - 3) + 1, x) for x in d_xb(k)]
    def take(hh, cap, cap2):
        out = []
        pend = 0
        while pend < len(Q) and Q[pend][0] <= hh: pend += 1
        n = min(pend, cap if (hh < 0 or pend <= cap + (2 if hh % 2 else 0)) else cap2)
        for _ in range(n): out.append(Q.pop(0)[1])
        return out
    emit_dma(take(-1, min(O.n_up, O.n_up0), 0), post=True)
    I(f"s_lshl_b32 s{S_T0}, s{S_B}, 5"); I(f"s_add_u32 s{S_T0}, s{S_T0}, s{S_H}"); I(f"s_lshl_b32 s{S_T0}, s{S_T0}, 18")
    srd(S_K, P_K, 262144, S_T0, sub=False); srd(S_V, P_V, 262144, S_T0, sub=False)
    if O.tlbw:
        I("v_mov_b32 v14, 0")
        I(f"buffer_load_dword v15, v14, {sr(S_K,4)}, 0 offen {O.pol_kv}"); I(f"buffer_load_dword v15, v14, {sr(S_V,4)}, 0 offen {O.pol_kv}")
    if O.tlbw > 1:
        I("v_and_b32 v14, 3, v0"); I("v_lshlrev_b32 v14, 21, v14"); I(f"global_load_dword v15, v14, {sr(P_WQ)}")
    if O.tlbw > 2:
        I(f"global_load_dword v15, v14, {sr(P_WO)}")
        I("v_and_b32 v14, 7, v0"); I("v_lshlrev_b32 v14, 21, v14"); I("v_add_u32 v14, 0x1000000, v14"); I("v_subrev_u32 v14, 0x1000000, v14")
    srd(S_O, P_WS, PART + 256 * 28672); srd(S_OUT, P_OUT, 3670016)
    I(f"s_lshr_b32 s{S_T0}, s2, 3"); I(f"s_mul_i32 s{S_T0}, s{S_T0}, {O.kv_rot_j}"); I(f"s_and_b32 s{S_T1}, s2, 7"); I(f"s_mul_i32 s{S_T1}, s{S_T1}, {O.kv_rot_x}")
    I(f"s_add_u32 s{S_T0}, s{S_T0}, s{S_T1}"); I(f"s_and_b32 s{S_T0}, s{S_T0}, 15"); I(f"s_lshl_b32 s{S_T0}, s{S_T0}, 14"); I(f"s_add_u32 s{S_KV0}, s{S_T0}, s{S_W4K}")
    n_it = 11 + O.nskip
    I(f"s_mov_b32 s{S_MASK}, {((1 << n_it) - 1) << 1:#x}")
    if O.nskip:
        span = n_it - O.ta
        I(f"s_mul_i32 s{S_T0}, s2, 37"); I(f"s_and_b32 s{S_T0}, s{S_T0}, 255"); I(f"s_mul_i32 s{S_T0}, s{S_T0}, {span}"); I(f"s_lshr_b32 s{S_T0}, s{S_T0}, 8")
        for k in range(O.nskip):
            I(f"s_add_u32 s{S_T1}, s{S_T0}, {(k * span) // O.nskip}"); I(f"s_cmp_ge_u32 s{S_T1}, {span}"); I(f"s_cselect_b32 s{S_T2}, {span}, 0"); I(f"s_sub_u32 s{S_T1}, s{S_T1}, s{S_T2}")
            I(f"s_add_u32 s{S_T1}, s{S_T1}, {O.ta + 1}"); I(f"s_bitset0_b32 s{S_MASK}, s{S_T1}")
    I(f"s_mov_b32 s{S_FB}, 0"); I(f"s_mov_b32 s{S_KVG}, s{S_KV0}"); I(f"s_mov_b32 s{S_SCALE}, {f2u(SCALE):#x}")
    I(f"s_lshl_b32 s{S_T0}, s{S_B}, 1"); I(f"s_add_u32 s{S_T0}, s{S_T0}, s{S_R}"); I(f"s_lshl_b32 s{S_T0}, s{S_T0}, 5"); I(f"s_add_u32 s{S_T0}, s{S_T0}, s{S_H}")
    I(f"s_lshl_b32 s{S_T0}, s{S_T0}, 1"); I(f"s_add_u32 s{S_T0}, s{S_T0}, s{S_C}"); I(f"s_mul_i32 s{S_OST}, s{S_T0}, 14336")
    I(f"s_lshl_b32 s{S_T0}, s{S_B}, 5"); I(f"s_add_u32 s{S_T0}, s{S_T0}, s{S_H}")
    I(f"s_lshr_b32 s{S_SIG}, s{S_T0}, 2"); I(f"s_lshl_b32 s{S_SIG}, s{S_SIG}, 7"); I(f"s_and_b32 s{S_T1}, s{S_H}, 3"); I(f"s_lshl_b32 s{S_T1}, s{S_T1}, 2"); I(f"s_add_u32 s{S_SIG}, s{S_SIG}, s{S_T1}"); I(f"s_add_u32 s{S_SIG}, s{S_SIG}, {FLG}")
    I(f"s_lshl_b32 s{S_T0}, s{S_T0}, 2"); I(f"s_add_u32 s{S_T0}, s{S_T0}, s{S_WAVE}"); I(f"s_mul_i32 s{S_INB}, s{S_T0}, 7168"); I(f"s_add_u32 s{S_INB}, s{S_INB}, {PART}")
    I(f"s_lshl_b32 s101, s{S_T0}, 7"); I(f"s_add_u32 s101, s101, {FLG + 65536}")
    KH = S_SL0; CG = S_SL1; U = S_SL2
    I(f"s_bfe_u32 s{KH}, s{S_H}, 0x10003"); I(f"s_and_b32 s{S_T3}, s{S_H}, 7"); I(f"s_lshr_b32 s{CG}, s{S_H}, 4"); I(f"s_lshl_b32 s{CG}, s{CG}, 3"); I(f"s_add_u32 s{CG}, s{CG}, s{S_T3}")
    I(f"s_lshr_b32 s{S_T1}, s2, 3"); I(f"s_and_b32 s{S_T2}, s{S_B}, 3")
    I(f"s_lshl_b32 s{S_PFO}, s{S_T1}, 14"); I(f"s_lshl_b32 s6, s{S_T3}, 7"); I(f"s_sub_u32 s{S_PFO}, s{S_PFO}, s6")
    I(f"s_mul_i32 s{S_T2}, s{S_T2}, {O.k2_rot_r}"); I(f"s_mul_i32 s{S_T3}, s{S_T3}, {O.k2_rot_c}"); I(f"s_add_u32 s{U}, s{S_T2}, s{S_T3}")
    I(f"s_xor_b32 s{S_T1}, s{KH}, 1"); I(f"s_lshl_b32 s{S_T1}, s{S_T1}, 1"); I(f"s_add_u32 s{S_T1}, s{S_T1}, s{S_C}"); I(f"s_lshl_b32 s{S_T2}, s{S_R}, 2"); I(f"s_add_u32 s{S_T1}, s{S_T1}, s{S_T2}")
    I(f"s_lshl_b32 s{S_T0}, s{S_B}, 4"); I(f"s_add_u32 s{S_T0}, s{S_T0}, s{S_T1}"); I(f"s_mul_i32 s{S_T0}, s{S_T0}, {16*7168}")
    srd(S_OO, P_WS, 144 * 7168, S_T0, sub=False)
    I(f"s_lshl_b32 s{S_POLL}, s{S_B}, 3"); I(f"s_add_u32 s{S_POLL}, s{S_POLL}, s{S_T1}"); I(f"s_lshl_b32 s{S_POLL}, s{S_POLL}, 7"); I(f"s_add_u32 s{S_POLL}, s{S_POLL}, {FLG}")
    I(f"s_lshl_b32 s{S_T1}, s{S_T1}, 20"); I(f"s_lshl_b32 s{S_T2}, s{CG}, 7"); I(f"s_add_u32 s{S_T1}, s{S_T1}, s{S_T2}")
    srd(S_WO, P_WO, 8388608, S_T1)
    I(f"s_lshl_b32 s{S_T0}, s{S_B}, 1"); I(f"s_add_u32 s{S_T0}, s{S_T0}, s{KH}")
    I(f"s_mul_i32 s{S_OUTOFF}, s{S_T0}, {112*2048}"); I(f"s_add_u32 s{S_OUTOFF}, s{S_OUTOFF}, s{S_T2}"); I(f"s_lshl_b32 s{S_T1}, s{S_WAVE}, 5"); I(f"s_add_u32 s{S_OUTOFF}, s{S_OUTOFF}, s{S_T1}")
    for u in range(8):
        I(f"s_add_u32 s{S_T0}, s{U}, {u}"); I(f"s_and_b32 s{S_T0}, s{S_T0}, 7"); I(f"s_lshl_b32 s{S_TW+u}, s{S_T0}, 16"); I(f"s_mul_i32 s{S_TO+u}, s{S_T0}, 7168")
    I(f"s_lshl_b32 s{S_LB0}, s{S_WAVE}, 13"); I(f"s_add_u32 s{S_LB0}, s{S_LB0}, 98304"); I(f"s_xor_b32 s{S_T3}, s{S_WAVE}, 1")
    I(f"s_mul_i32 s{S_LB1}, s{S_T3}, 28672"); I(f"s_cmp_eq_u32 s{S_T3}, 3"); I(f"s_cselect_b32 s{S_LB1}, 131072, s{S_LB1}")
    I(f"s_mul_i32 s{S_CA}, s{S_WAVE}, 28672"); I(f"s_cmp_eq_u32 s{S_WAVE}, 3"); I(f"s_cselect_b32 s{S_CA}, 131072, s{S_CA}")
    I(f"s_lshl_b32 s{S_STW}, s{S_WAVE}, 10"); I(f"s_add_u32 s{S_STW}, s{S_STW}, {ST0}")
    I(f"v_lshlrev_b32 v{T+4}, 1, v{T+1}"); I(f"v_and_b32 v{T+6}, 7, v0"); I(f"v_xor_b32 v{T+6}, v{T+4}, v{T+6}"); I(f"v_lshl_add_u32 v{V_WOB}, v{T+6}, 4, v{T+7}")
    I(f"v_xor_b32 v{T+4}, v{T+4}, v{T}"); I(f"v_lshlrev_b32 v{T+5}, 8, v{T+1}")
    for j in range(4):
        I(f"v_xor_b32 v{T+6}, {8*(j&1) + (j>>1)}, v{T+4}"); I(f"v_lshl_add_u32 v{V_KVOFF+j}, v{T+6}, 4, v{T+5}")
    if O.kv_noswz:
        for j in range(4): I(f"v_lshlrev_b32 v{V_KVOFF+j}, 4, v0")
    I(f"v_lshlrev_b32 v{V_LANE16}, 4, v0"); I(f"v_bfe_u32 v{T+2}, v0, 2, 2"); I(f"v_and_b32 v{T+3}, 3, v0")
    I(f"v_lshrrev_b32 v{T+4}, 1, v{T}"); I(f"v_xor_b32 v{T+4}, v{T+4}, v{T+1}"); I(f"s_mul_i32 s{S_T0}, s{S_R}, {112*128}")
    I(f"v_lshlrev_b32 v{T+5}, 7, v{T}"); I(f"v_add_u32 v{T+5}, s{S_T0}, v{T+5}"); I(f"v_lshl_add_u32 v{V_XB}, v{T+4}, 4, v{T+5}"); I(f"v_xor_b32 v{V_XB+1}, 64, v{V_XB}")
    I(f"v_lshrrev_b32 v{T+4}, 1, v{T+3}"); I(f"v_and_b32 v{T+5}, 1, v{T+3}"); I(f"v_lshl_add_u32 v{T+4}, v{T+5}, 1, v{T+4}")
    I(f"s_lshl_b32 s{S_T0}, s{S_C}, 1"); I(f"v_xor_b32 v{T+5}, s{S_T0}, v{T+2}"); I(f"v_lshl_add_u32 v{T+4}, v{T+5}, 2, v{T+4}")
    I(f"v_lshl_add_u32 v{T+5}, v{T+1}, 3, v{T+2}"); I(f"v_lshlrev_b32 v{T+5}, 8, v{T+5}"); I(f"v_lshl_add_u32 v{V_WB}, v{T+4}, 4, v{T+5}"); I(f"v_xor_b32 v{V_WB+1}, 64, v{V_WB}")
    I(f"v_lshrrev_b32 v{T+4}, 1, v{T+1}"); I(f"v_and_b32 v{T+5}, 1, v{T+1}"); I(f"v_lshl_add_u32 v{T+4}, v{T+5}, 1, v{T+4}")
    I(f"v_and_b32 v{T+5}, 7, v{T}"); I(f"v_lshrrev_b32 v{T+6}, 3, v{T}"); I(f"v_lshl_add_u32 v{T+5}, v{T+5}, 1, v{T+6}")
    I(f"v_xor_b32 v{T+4}, v{T+4}, v{T+5}"); I(f"s_lshl_b32 s{S_T0}, s{S_C}, 3"); I(f"v_xor_b32 v{T+4}, s{S_T0}, v{T+4}")
    I(f"s_lshl_b32 s{S_T1}, s{S_C}, 13"); I(f"s_add_u32 s{S_T2}, s{S_T1}, {KOFF}")
    I(f"v_lshlrev_b32 v{T+5}, 8, v{T}"); I(f"v_add_u32 v{T+5}, s{S_T2}, v{T+5}"); I(f"v_lshl_add_u32 v{V_KB}, v{T+4}, 4, v{T+5}")
    I(f"v_lshl_add_u32 v{T+6}, v{T+1}, 2, v{T+2}")
    I(f"v_bfe_u32 v{T+4}, v{T+6}, 1, 2"); I(f"v_xor_b32 v{T+4}, s{S_WAVE}, v{T+4}"); I(f"v_lshlrev_b32 v{T+5}, 7, v{T+6}"); I(f"v_lshl_add_u32 v{T+5}, v{T+4}, 5, v{T+5}"); I(f"v_lshl_add_u32 v{V_RAB}, v{T+3}, 3, v{T+5}")
    I(f"v_and_b32 v{T+4}, 7, v{T+6}"); I(f"v_lshrrev_b32 v{T+5}, 3, v{T+6}"); I(f"v_lshl_add_u32 v{T+4}, v{T+4}, 1, v{T+5}")
    I(f"v_bfe_u32 v{T+5}, v0, 1, 1"); I(f"v_xor_b32 v{T+4}, v{T+4}, v{T+5}"); I(f"v_xor_b32 v{T+4}, s{S_T0}, v{T+4}")
    I(f"v_lshlrev_b32 v{T+6}, 8, v{T+6}"); I(f"v_add_u32 v{T+6}, s{S_T1}, v{T+6}"); I(f"v_lshl_add_u32 v{T+6}, v{T+4}, 4, v{T+6}")
    I(f"v_and_b32 v{T+5}, 1, v0"); I(f"v_lshl_add_u32 v{V_VB}, v{T+5}, 3, v{T+6}")
    for k in range(2):
        I(f"v_mov_b32 v{V_XA+k}, v{V_XB+k}"); I(f"v_mov_b32 v{V_WA+k}, v{V_WB+k}")
    if not O.e4:
        for k in range(32): I(f"v_mov_b32 v{OK_+80+k}, 0")
    for k in range(32): I(f"v_accvgpr_write_b32 a{OS_+80+k}, 0")
    for x in v_addr((RING - 1) * 32768): I(x)
    I(f"s_mul_i32 s{S_T2}, s{S_WAVE}, 14336"); I(f"v_add_u32 v{V_T0}, s{S_T2}, v{V_LANE16}")
    I(f"s_mul_i32 s{S_T3}, s{S_T3}, 14336"); I(f"v_add_u32 v{V_QP}, s{S_T3}, v{V_LANE16}")
    I(f"v_add_u32 v{V_KW1}, s{S_W4K}, v{V_LANE16}"); I(f"v_add_u32 v{V_KW0}, 0x10000, v{V_KW1}"); I(f"v_add_u32 v{V_KW2}, 0x20000, v{V_KW1}")
    if O.cpf:
        c1 = code_pf("L_trans", 6, 215)
        for x in c1[0] + [c1[1]]: I(x)
    for p in range(O.nl2):
        same = O.f1 == O.f2
        for rng, t, h in ((O.f1, S_T1, 0), (O.f2, S_T2, 1)):
            lo, hi = [int(z) for z in rng.split(",")]; n = hi - lo + 1
            I(f"s_add_u32 s{t}, s2, {128 if h else 0}"); I(f"s_and_b32 s{t}, s{t}, 255"); I(f"s_mul_i32 s{t}, s{t}, {n}"); I(f"s_lshr_b32 s{t}, s{t}, 8"); I(f"s_add_u32 s{t}, s{t}, {lo}")
            I(f"s_lshl_b32 s{t}, s{t}, 14"); I(f"s_add_u32 s{t}, s{t}, s{S_KV0}"); I(f"s_and_b32 s{t}, s{t}, 0x3ffff")
        I(f"v_mov_b32 v{T+4}, s{S_T1}"); I(f"v_mov_b32 v{T+5}, s{S_T2}"); I(f"v_cmp_gt_u32 vcc, 32, v0"); I(f"v_and_b32 v{T+6}, 31, v0"); I("s_nop 0")
        I(f"v_cndmask_b32 v{T+4}, v{T+5}, v{T+4}, vcc"); I(f"v_lshl_add_u32 v{V_PF+p}, v{T+6}, 7, v{T+4}")
    if O.gmode:
        I(f"s_cmp_eq_u32 s{S_R}, 0"); I(f"s_cselect_b32 s4, s{S_K}, s{S_V}"); I(f"s_cselect_b32 s5, s{S_K+1}, s{S_V+1}"); I(f"s_cselect_b32 s{S_T0}, 16384, 0")
        I("s_mov_b32 s6, 262144"); I("s_mov_b32 s7, 0x20000")
        I(f"s_sub_u32 s{S_T1}, s{S_KV0}, s{S_W4K}"); I(f"s_add_u32 s{S_T0}, s{S_T0}, s{S_T1}"); I(f"s_lshl_b32 s{S_T1}, s{S_C}, 13"); I(f"s_add_u32 s{S_T0}, s{S_T0}, s{S_T1}")
        for r in range(O.g_rounds):
            I(f"s_add_u32 s{60+r}, s{S_T0}, {r*16384}"); I(f"s_and_b32 s{60+r}, s{60+r}, 0x3ffff")
        I(f"s_lshr_b32 s100, s2, 3"); I(f"s_mul_i32 s100, s100, {O.g_per}"); I("s_lshr_b32 s100, s100, 5")
        I(f"v_lshlrev_b32 v{V_KW0}, 7, v0")
    emit_dma(take(-1, max(0, O.n_up - O.n_up0), 0), post=True)
    I("s_waitcnt vmcnt(@xa0)"); I("s_barrier")
    stamp()
    for r in r_w(0)[:2] + r_x([0])[:1] + r_w(0)[2:] + r_x(range(4))[1:]: I(r)
    for k in range(2): I(f"v_add_u32 v{V_WA+k}, {stg(1)}, v{V_WB+k}")
    I("s_waitcnt lgkmcnt(0) vmcnt(@w_1)"); I("s_barrier")
    el = early_loads(); ew = early_writes()
    l2 = [([], f"buffer_load_dword v{V_TMP+6}, v{V_PF+p}, {sr(sq,4)}, 0 offen") for p in range(O.nl2) for sq in (S_K, S_V)]
    qwork = []
    for rt in range(7):
        for kp in range(2):
            b = p1_acc(rt) + 8 * kp; t = SB + 4 * ((2 * rt + kp) % 8)
            rdy = 8 * rt + (4 * kp + 3 if O.accord else 5 + 2 * kp) + 9
            qwork += [(rdy, "v", f"v_mul_f32 v{b+k}, s{S_SCALE}, v{b+k}") for k in range(8)]
            if O.tr_early: qwork += [(rdy, "v", f"v_cvt_pk_bf16_f32 v{t+k}, v{b+2*k}, v{b+2*k+1}") for k in range(4)] + [(rdy, "w", f"ds_write_b128 v{V_T0}, {vr(t)} offset:{(2*rt+kp)*1024} ;@qw")]
    ne = 0
    NE = len(el) - O.tail_n
    nit = O.kv_last - O.kv_first
    def gat(hh):
        k = hh - O.g_start
        if not O.gmode or k < 0 or k >= O.g_per * O.g_rounds: return []
        return [([f"s_cmp_eq_u32 s100, {k % O.g_per}", f"s_cselect_b32 s101, s{60 + k // O.g_per}, 0x40000000"], f"buffer_load_dword v{V_TMP+6}, v{V_KW0}, s[4:7], s101 offen")]
    def tagd(g, t, adv=False):
        g = [(x[0], x[1] + f" ;@{t}") for x in g]
        if adv: g[3] = g[3] + ([KVG_UPD],)
        return g
    late = tagd(kv_dma("V", 4 * 32768), "v0", True) + tagd(kv_dma("K", 3 * 32768), "s1") + tagd(kv_dma("V", 3 * 32768), "s1", True) + tagd(kv_dma("K", 2 * 32768), "s2") + tagd(kv_dma("V", 2 * 32768), "s2", True)
    for i in range(16):
        if i <= 12: ma = take(2 * i, O.capA2 if i == 0 else O.capA, O.capA2)
        elif O.gmode: ma = gat(2 * i) + {13: [], 14: late[6:12], 15: late[18:20]}[i]
        elif i == 13: ma = take(26, 6, 6) + el[NE:NE + 4]
        elif i == 14: ma = ew[6:12]
        else: ma = ew[17:20]
        if 2 * i == O.l2_at: ma = ma + l2
        rd = r_x(range(4, 7)) + (r_w(i + 1) if i < 15 else [])
        addr = [(5, f"v_add_u32 v{V_XA+k}, {stg(i+1)}, v{V_XB+k}") for k in range(2)] if i < 15 else []
        va = (qwork, 0) if i == 15 else None
        p1_half(p1_mfmas(i, range(4)), ma, rd, addr, "s_waitcnt lgkmcnt(0)" + (f" vmcnt(@xa{i+1})" if i < 15 else ""), valu=va)
        k = 0
        if O.kv_first <= i < O.kv_last and not O.gmode: k = ((i - O.kv_first + 1) * NE) // nit - ne
        mb = el[ne:ne + k] + gat(2 * i + 1); ne += k
        tk = take(2 * i + 1, O.capB2 if i == 0 else O.capB, O.capB2)
        if i == O.k0_it:
            p = [n for n, x in enumerate(tk) if x[0]][0]
            tk = tk[:p] + kv_dma("K", 4 * 32768, S_KV0) + tk[p:]
        mb += tk
        if i == 13: assert not Q and not tk
        if i == 13: mb += late[0:6] if O.gmode else el[NE + 4:] + ew[0:6]
        if i == 14: mb += late[12:18] if O.gmode else ew[12:17]
        if 2 * i + 1 == O.l2_at: mb = mb + l2
        if O.cpf and i == 12: mb = mb + [([], c1[2])]
        rd = r_x(range(4)) if i < 15 else []
        addr = [(-1, f"v_add_u32 v{V_WA+k}, {stg(i+2)}, v{V_WB+k}") for k in range(2)] if i < 14 else []
        if i == 15: va = (qwork, 32)
        wait = None if i == 15 else "s_waitcnt lgkmcnt(0)" + (f" vmcnt(@w_{i+2})" if i < 14 else " vmcnt(@xb15)")
        p1_half(p1_mfmas(i, range(4, 7)), mb, rd, addr, wait, valu=va)
        if O.p1st and i < 15: stamp()
    stamp()
    A("L_trans:")
    for x in k_addr((RING - 1) * 32768): I(x)
    for f in range(8): I(k_read(f))
    assert O.tr_early
    for x in pendw: I(x)
    del pendw[:]
    for w in qwork: I(w[2])
    for rt in range(7):
        for kp in range(2): I(f"ds_read_b128 {ar(QA+16*rt+4*kp)}, v{V_T0} offset:{(2*rt+kp)*1024}")
    I(f"s_mov_b32 s{S_DS}, {4*32768}"); I(f"s_mov_b32 s{S_SL2}, {3*32768}"); I(f"s_mov_b32 s{S_I}, 0")
    I("s_waitcnt lgkmcnt(@qw)" + (" vmcnt(@v0)" if O.gmode else "")); I("s_barrier")
    for rt in range(7):
        for kp in range(2): I(f"ds_read_b128 {ar(QA+16*rt+8+4*kp)}, v{V_QP} offset:{(2*rt+kp)*1024}")
    I(f"v_add_u32 v{V_T0}, s{S_CA}, v{V_LANE16}")
    I(f"v_add_u32 v{V_T1}, s{S_LB1}, v{V_LANE16}")
    I(f"v_mov_b32 v{V_WOF}, v{V_WOB}")
    for j in range(1, 4): I(f"v_add_u32 v{V_WOF+j}, {j*16384-j*1024}, v{V_WOB}")
    I("s_waitcnt lgkmcnt(0)"); I("s_barrier")
    if not O.s4_in: emit_dma(kv_dma("K", 0) + kv_dma("V", 0)); I(KVG_UPD)
    stamp()
    att_iter("first").emit()
    g = sm0_ops(6)
    S = SB + 8 * COL[6]; pn = sm0_nm(5)
    for x in g[0] + g[1] + [pn[2]] + g[2] + [pn[3]] + g[3]: I(x)
    for k in range(1, 8): I(f"v_sub_f32 v{S+k}, v{S+k}, v{V_TMP}")
    for x in sm0_nm(6): I(x)
    I(f"v_mov_b32 v{LS+6}, 0")
    def clear_code():
        I(f"v_mov_b32 v{V_TMP+4}, s{S_SIG}"); I(f"v_mov_b32 v{V_TMP+5}, 0"); I(f"v_writelane_b32 v{V_TMP+4}, s101, 1"); I("s_mov_b64 exec, 3")
        I(f"global_store_dword v{V_TMP+4}, v{V_TMP+5}, {sr(P_WS)} sc1"); I("s_mov_b64 exec, -1")
    def count_code():
        I(f"s_or_b32 s{S_T0}, s{S_WAVE}, s{S_FB}"); I("s_cbranch_scc1 L_nosig0")
        I(f"v_mov_b32 v{V_TMP+5}, 0"); I(f"v_mov_b32 v{V_TMP+7}, 1"); I("s_mov_b64 exec, 1")
        I(f"global_atomic_add v{V_TMP+5}, v{V_TMP+7}, {sr(P_DBG)} sc1 ;@nocount")
        I("s_mov_b64 exec, -1")
        A("L_nosig0:")
    assert O.ta >= 4
    if O.clr == 0: clear_code()
    if O.epst: stamp()
    A(".p2align 6"); A("L_att:")
    for lp in ((0, 1) if O.ta else (1,)):
        if lp and O.clr == 0: count_code()
        if lp and O.clr == 1:
            I(f"s_cmp_lg_u32 s{S_FB}, 0"); I("s_cbranch_scc1 L_noclr"); clear_code(); A("L_noclr:")
        if lp and O.ta: A(".p2align 6"); A("L_att2:")
        G = att_iter("loop", lp)
        if O.loopst:
            G.s[92].append("s_memtime s[98:99]"); G.p[94].append("s_memtime s[100:101]"); G.p[95].append("s_memtime s[62:63]")
            G.v[7].append(f"v_cmp_eq_u32 vcc, s{S_I}, v0")
            for k, sg in enumerate((98, 100, 62)):
                G.v[11 + 4 * k].append(f"v_mov_b32 v251, s{sg}"); G.v[11 + 4 * k].append(f"v_cndmask_b32 v{252+k}, v{252+k}, v251, vcc")
        G.emit()
        I("s_cbranch_scc1 " + ("L_att2" if (lp and O.ta) else "L_att"))
    if O.epst: stamp()
    if O.loopst:
        I(f"s_lshl_b32 s{S_T0}, s2, 12"); I(f"s_lshl_b32 s{S_T1}, s{S_WAVE}, 10"); I(f"s_add_u32 s{S_T0}, s{S_T0}, s{S_T1}"); I(f"s_add_u32 s{S_T0}, s{S_T0}, {(1<<26)+(1<<20)}"); I(f"v_lshl_add_u32 v251, v0, 4, s{S_T0}")
        I(f"global_store_dwordx4 v251, v[252:255], {sr(P_WS)}")
    if O.clr == 1: count_code()
    for t in range(12 + O.nskip, 15): att_iter("pen", t).emit()
    A("L_last:")
    if O.epst: stamp()
    att_iter("last").emit()
    def sendfirst(m): return m[4:] + m[:4]
    def osend(rt, k): return f"ds_write_b128 v{V_T0}, {ar(OS_+16*rt+4*k)} offset:{(4*rt+k)*1024}"
    I("s_nop 0")
    G = Gaps(sendfirst(pv_mfmas(5)))
    e, a, c = sm_ops(6)
    for k in range(8):
        G.v[k].append(e[k])
        if k: G.v[k].append(a[k - 1])
        if k in (2, 4, 6): G.v[k].append(c[k // 2 - 1])
    for k in range(4): G.m[1 + 2 * k].append(osend(4, k))
    G.emit()
    I("s_nop 0"); I(c[3]); I(a[7]); I(f"s_mov_b32 s{S_T0}, {f2u(2.0**40):#x}")
    G = Gaps(sendfirst(pv_mfmas(6)))
    for k in range(7): G.v[[1, 1, 3, 3, 5, 5, 7][k]].append(f"v_mov_b32 v{V_TMP+k}, v{LS+k}")
    for k in range(4): G.m[2 * k].append(osend(5, k))
    G.emit()
    stamp()
    regs = [LS + rt for rt in range(7)]; temps = [V_TMP + rt for rt in range(7)]
    I(osend(6, 0)); I(osend(6, 1))
    for r, t in zip(regs, temps): I(f"v_permlane32_swap_b32 v{r}, v{t}")
    I(osend(6, 2))
    for r, t in zip(regs, temps): I(f"v_add_f32 v{r}, v{r}, v{t}")
    for r, t in zip(regs, temps): I(f"v_mov_b32 v{t}, v{r}")
    I(osend(6, 3)); I("s_nop 0")
    for r, t in zip(regs, temps): I(f"v_permlane16_swap_b32 v{r}, v{t}")
    I("s_nop 0")
    for rt, (r, t) in enumerate(zip(regs, temps)): I(f"v_add_f32 v{NM+4*rt+1}, v{r}, v{t}")
    I(f"v_add_f32 v{V_TMP}, v{NM+1}, v{NM+5}"); I(f"v_add_f32 v{V_TMP+1}, v{NM+9}, v{NM+13}"); I(f"v_add_f32 v{V_TMP+2}, v{NM+17}, v{NM+21}")
    I(f"v_add_f32 v{V_TMP}, v{V_TMP}, v{NM+25}"); I(f"v_add_f32 v{V_TMP+1}, v{V_TMP+1}, v{V_TMP+2}"); I(f"v_add_f32 v{V_TMP}, v{V_TMP}, v{V_TMP+1}")
    I(f"v_cmp_nlt_f32 vcc, v{V_TMP}, s{S_T0}")
    for rt in range(7): I(f"ds_write_b64 v{V_STW}, {vr(NM+4*rt,2)} offset:{rt*128}")
    I(f"s_cmp_lg_u64 vcc, 0"); I(f"s_cselect_b32 s{S_T1}, 1, 0"); I(f"s_andn2_b32 s{S_T1}, s{S_T1}, s{S_FB}"); I(f"v_mov_b32 v{V_TMP+1}, s{S_T1}")
    I(f"ds_write_b32 v{V_STW}, v{V_TMP+1} offset:896")
    I("s_waitcnt lgkmcnt(0)"); I("s_barrier")
    if O.epst: stamp()
    I(f"ds_read_b32 v{V_TMP+4}, v{V_FLR} ;@fl")
    for rt in range(7): I(f"ds_read_b64 {vr(NM+4*rt+2,2)}, v{V_STR} offset:{rt*128} ;@st")
    RB = 128
    def recv(rt):
        for dq in range(4): I(f"ds_read_b128 {vr(RB+16*(rt%4)+4*dq)}, v{V_T1} offset:{(4*rt+dq)*1024} ;@r{rt}")
    recv(0)
    I("s_waitcnt lgkmcnt(@fl)" if O.fast_ep else "s_waitcnt lgkmcnt(@fl) vmcnt(@w1)")
    I(f"v_cmp_ne_u32 vcc, 0, v{V_TMP+4}")
    recv(1)
    I("s_cbranch_vccnz L_fallback")
    st = {"dma": 2, "rd": 0}; free = []; pend = []
    def do_read(wait=True):
        m = st["rd"]; st["rd"] += 1
        if wait: I(f"s_waitcnt vmcnt(@w{m})")
        for r in a_reads(m): I(r)
        pend.append(m)
    def release(n=None):
        k = len(pend) if n is None else n
        if not k: return
        I(f"s_waitcnt lgkmcnt(@a{pend[k-1]})")
        for _ in range(k): free.append(slot_of[pend.pop(0)])
    def do_dma():
        m = st["dma"]; st["dma"] += 1
        slot_of[m] = free.pop(0); emit_dma(wo_dma(m))
    def factors(rts):
        bs = [NM + 4 * rt for rt in rts]
        for rt, b in zip(rts, bs): I(f"v_min_f32 v{LS+rt}, v{b}, v{b+2}")
        for rt, b in zip(rts, bs): I(f"v_sub_f32 v{b}, v{LS+rt}, v{b}"); I(f"v_sub_f32 v{b+2}, v{LS+rt}, v{b+2}")
        for b in bs: I(f"v_exp_f32 v{b}, v{b}"); I(f"v_exp_f32 v{b+2}, v{b+2}")
        for b in bs: I(f"v_mul_f32 v{b+1}, v{b+1}, v{b}")
        for b in bs: I(f"v_fma_f32 v{b+1}, v{b+3}, v{b+2}, v{b+1}")
        for b in bs: I(f"v_rcp_f32 v{b+1}, v{b+1}")
        for b in bs: I(f"v_mul_f32 v{b}, v{b}, v{b+1}"); I(f"v_mul_f32 v{b+2}, v{b+2}, v{b+1}")
    if O.fast_ep:
        recv(2)
        I("s_waitcnt lgkmcnt(@st)")
        factors([0, 1])
        I("s_waitcnt lgkmcnt(@r1)"); free.extend([2, 3])
    else:
        do_read(False); do_read(False)
        recv(2)
        I("s_waitcnt lgkmcnt(@st)")
        bs = [NM + 4 * rt for rt in range(7)]
        for rt, b in enumerate(bs): I(f"v_min_f32 v{LS+rt}, v{b}, v{b+2}")
        for rt, b in enumerate(bs): I(f"v_sub_f32 v{b}, v{LS+rt}, v{b}"); I(f"v_sub_f32 v{b+2}, v{LS+rt}, v{b+2}")
        release(); free.extend([2, 3])
        for _ in range(min(2, O.pre_dma)): do_dma()
        for b in bs: I(f"v_exp_f32 v{b}, v{b}"); I(f"v_exp_f32 v{b+2}, v{b+2}")
        if O.pre_dma > 2: do_dma()
        for b in bs: I(f"v_mul_f32 v{b+1}, v{b+1}, v{b}")
        for b in bs: I(f"v_fma_f32 v{b+1}, v{b+3}, v{b+2}, v{b+1}")
        for b in bs: I(f"v_rcp_f32 v{b+1}, v{b+1}")
        if O.pre_dma > 3: do_dma()
        for b in bs: I(f"v_mul_f32 v{b}, v{b}, v{b+1}"); I(f"v_mul_f32 v{b+2}, v{b+2}, v{b+1}")
    for rt in range(7):
        if O.epst: stamp()
        if O.fast_ep and rt == 2:
            for _ in range(O.pre_dma): do_dma()
            factors([2, 3, 4, 5, 6])
        if rt + 3 < 7: recv(rt + 3)
        if rt >= 2:
            I(f"s_waitcnt lgkmcnt(@r{rt})"); free.append(2 + rt)
        if free and str(rt) in O.ep_dma: do_dma()
        b = NM + 4 * rt; o = OK_ + 16 * rt; rb = RB + 16 * (rt % 4)
        for k in range(0, 16, 2): I(f"v_pk_mul_f32 {vr(o+k,2)}, {vr(o+k,2)}, {vr(b,2)} op_sel_hi:[1,0]")
        for k in range(0, 16, 2): I(f"v_pk_fma_f32 {vr(o+k,2)}, {vr(rb+k,2)}, {vr(b+2,2)}, {vr(o+k,2)} op_sel_hi:[1,0,1]")
        for k in range(8): I(f"v_cvt_pk_bf16_f32 v{o+k}, v{o+2*k}, v{o+2*k+1}")
        I(f"s_add_u32 s{S_T1}, s{S_OST}, {rt*1024}"); I(f"s_add_u32 s{S_T2}, s{S_OST}, {rt*1024+7168}")
        I(f"buffer_store_dwordx4 {vr(o)}, v{V_LANE16}, {sr(S_O,4)}, s{S_T1} offen {O.pol_ost} ;@os")
        I(f"buffer_store_dwordx4 {vr(o+4)}, v{V_LANE16}, {sr(S_O,4)}, s{S_T2} offen {O.pol_ost} ;@os")
    stamp()
    assert RA_N == 16 and NB == 2
    def poll_loop(name, reg, addr, base, test):
        t = [f"s_mov_b32 s{S_I}, 0", f"L_poll{name}:"] + test + [f"s_cbranch_scc1 L_ready{name}", f"s_add_u32 s{S_I}, s{S_I}, 1",
             f"s_cmp_ge_u32 s{S_I}, 0x40000", f"s_cbranch_scc1 L_ready{name}", "s_sleep 2", f"global_load_dword v{reg}, v{addr}, {sr(base)} sc1 ;@nocount", "s_waitcnt vmcnt(0)", f"s_branch L_poll{name}", f"L_ready{name}:"]
        return chr(10).join(t)
    allset = [f"v_cmp_ne_u32 vcc, 1, v{V_TMP+3}", "s_nop 1", "s_cmp_eq_u64 vcc, 0"]
    I(f"v_mov_b32 v{V_TMP}, s{S_SIG}"); I(f"v_mov_b32 v{V_TMP+1}, 1"); I(f"v_and_b32 v{V_TMP+2}, 3, v0"); I(f"v_lshl_add_u32 v{V_TMP+2}, v{V_TMP+2}, 2, s{S_POLL}")
    I(f"s_bfe_u32 s{S_T0}, s{S_H}, 0x10003"); I(f"s_mul_i32 s{S_WBO+2}, s{S_T0}, {128*7168}"); I(f"s_sub_u32 s{S_WBO}, {128*7168}, s{S_WBO+2}")
    I(f"s_add_u32 s{S_WBO+1}, s{S_WBO}, {8*7168}"); I(f"s_add_u32 s{S_WBO+3}, s{S_WBO+2}, {8*7168}")
    I(f"s_lshl_b32 s{S_T0}, s{S_B}, 5"); I(f"s_add_u32 s{S_T0}, s{S_T0}, s{S_H}"); I(f"s_lshl_b32 s{S_T0}, s{S_T0}, 2"); I(f"s_add_u32 s{S_T0}, s{S_T0}, s{S_WAVE}")
    I(f"s_xor_b32 s{S_T0}, s{S_T0}, 32"); I(f"s_mul_i32 s{S_PST}, s{S_T0}, 7168"); I(f"s_add_u32 s{S_PST}, s{S_PST}, {PART}")
    older = st["dma"]
    while st["rd"] < older: do_read()
    I("s_waitcnt vmcnt(0)"); I("s_barrier")
    I(f"s_cmp_lg_u32 s{S_WAVE}, 0"); I("s_cbranch_scc1 L_nosig")
    I("s_mov_b64 exec, 1")
    I(f"global_store_dword v{V_TMP}, v{V_TMP+1}, {sr(P_WS)} sc1 ;@nocount")
    I("s_mov_b64 exec, -1")
    A("L_nosig:")
    I(poll_loop("0", V_TMP + 10, V_TMP + 9, P_DBG, [f"v_readfirstlane_b32 s{S_T0}, v{V_TMP+10}", "s_nop 0", f"s_cmp_ge_u32 s{S_T0}, 256"]))
    stamp()
    release()
    pol_ = [False]
    def maybe_poll():
        if not pol_[0] and st["dma"] >= 16 - O.poll_lead:
            I(f"global_load_dword v{V_TMP+3}, v{V_TMP+2}, {sr(P_WS)} sc1 ;@poll"); pol_[0] = st["dma"]
    while free and st["dma"] < 16: maybe_poll(); do_dma()
    while st["dma"] < 16:
        do_read()
        if len(pend) > 1: release(1); maybe_poll(); do_dma()
    maybe_poll()
    RD = V_TMP + 4
    for cq in range(4):
        I(f"s_xor_b32 s{S_T0}, s{S_WAVE}, {cq}"); I(f"s_mul_i32 s{S_T0}, s{S_T0}, 28672"); I(f"v_add_u32 v{RD+cq}, s{S_T0}, v{V_LANE16}")
    V_OA = V_TMP + 8
    I(f"v_and_b32 v{V_OA}, 15, v0"); I(f"v_lshlrev_b32 v{V_OA}, 11, v{V_OA}"); I(f"v_lshrrev_b32 v{V_TMP+9}, 4, v0"); I(f"v_lshl_add_u32 v{V_OA}, v{V_TMP+9}, 3, v{V_OA}")
    I(f"v_mov_b32 v{V_TMP+9}, s101"); I(f"v_xor_b32 v{V_TMP}, {32*128}, v{V_TMP+9}")
    while st["rd"] < pol_[0]: do_read()
    I("s_waitcnt vmcnt(@poll)")
    stamp()
    I(poll_loop("1", V_TMP + 3, V_TMP + 2, P_WS, allset))
    stamp()
    def bl(n, rt):
        x = b_loads(n)[rt]
        return (x[0], x[1].replace(f";@b{n}", f";@b{n}_{rt}"))
    for rt in range(7): emit_dma([bl(0, rt), bl(1, rt)])
    while st["rd"] < 16: do_read()
    I("s_waitcnt vmcnt(@b1_0) lgkmcnt(0)")
    stamp()
    def wr_(rt, cq, tag): return f"ds_write_b128 v{RD+cq}, {vr(ACC+16*rt+4*cq)} offset:{(cq*7+rt)*1024} ;@{tag}"
    FR_ = [f"ds_read_b128 {vr(ACC+16*rt+4*cq)}, v{RD} offset:{(cq*7+rt)*1024} ;@f{rt}" for rt in range(7) for cq in range(1, 4)]
    wr = [wr_(rt, cq, f"fw{rt}") for rt in range(7) for cq in range(1, 4)]
    PR = 192; SC = 220
    GS = []
    for N in range(16):
        n = 2 * N
        m0, m1 = p3_mfmas(n), p3_mfmas(n + 1)
        order = [1, 2, 3, 0] if N == 15 else [0, 1, 2, 3]
        GS += [x for rt in range(7) for cq in order for x in (m0[4 * rt + cq], m1[4 * rt + cq])]
    G = Gaps(GS)
    for N in range(16):
        n = 2 * N; g0 = 56 * N
        if n + 2 < 32:
            for rt in range(7): place(G, [bl(n + 2, rt), bl(n + 3, rt)], [g0 + 8 * rt + 9, g0 + 8 * rt + 11])
        for rt in range(7):
            if g0 + 8 * rt - 1 >= 0: G.s[g0 + 8 * rt - 1].append(f"s_waitcnt vmcnt(@b{n+1}_{rt})")
    G.s[56 * 5].append("s_barrier")
    k = 0
    for rt in range(7):
        for j in range(4): G.v[56 * 7 + 8 * rt + 13 + 2 * (j // 2)].append(f"v_mov_b32 v{PR+4*rt+j}, v{ACC+16*rt+j}")
        for cq in range(1, 4):
            g = 56 * 7 + 16 + 4 * k; k += 1
            assert 56 * 7 + 8 * rt + 2 * cq + 10 <= g < 56 * 8 + 8 * rt + 2 * cq - 1, (rt, cq)
            G.m[g].append(wr_(rt, cq, "mw"))
    g = 56 * 8 + 45
    G.s[g].append("s_waitcnt lgkmcnt(0)"); G.s[g].append("s_barrier")
    for rt in range(7):
        g = 56 * 8 + 48 + 16 * rt
        for cq in range(1, 4): G.m[g + 2 * cq - 2].append(f"ds_read_b128 {vr(SC+4*(cq-1))}, v{RD} offset:{(cq*7+rt)*1024}")
        G.s[g + 8].append("s_waitcnt lgkmcnt(0)")
        ad = [f"v_add_f32 v{PR+4*rt+k}, v{PR+4*rt+k}, v{SC+k}" for k in range(4)] + [f"v_add_f32 v{SC+4+k}, v{SC+4+k}, v{SC+8+k}" for k in range(4)] + [f"v_add_f32 v{PR+4*rt+k}, v{PR+4*rt+k}, v{SC+4+k}" for k in range(4)]
        for k, x in enumerate(ad): G.v[g + [8, 8, 10, 10, 12, 12, 13, 13, 14, 14, 15, 15][k]].append(x)
    g = 56 * 10 + 52
    for rt in range(7):
        G.m[g + [0, 1, 2, 4, 6, 8, 9][rt]].append(f"buffer_store_dwordx4 {vr(PR+4*rt)}, v{V_LANE16 if rt<4 else V_L2}, {sr(S_O,4)}, s{S_PST} offen offset:{(rt%4)*1024} {O.pol_ost} ;@ps")
    g = 56 * 11 + O.s2_g
    G.s[g].append("s_waitcnt vmcnt(@ps)"); G.s[g].append("s_mov_b64 exec, 1")
    G.m[g].append(f"global_store_dword v{V_TMP}, v{V_TMP+1}, {sr(P_WS)} sc1"); G.p[g].append("s_mov_b64 exec, -1")
    G.s[56 * 13 + 4].append("s_barrier")
    G.m[56 * 14 + O.p2_g].append(f"global_load_dword v{V_TMP+3}, v{V_TMP+9}, {sr(P_WS)} sc1 ;@poll2")
    G.p[56 * 15 + 3].append("s_waitcnt vmcnt(@poll2)"); G.p[56 * 15 + 3].append(poll_loop("2", V_TMP + 3, V_TMP + 9, P_WS, allset))
    PL = [f"buffer_load_dwordx4 {vr(PR+4*rt)}, v{V_LANE16 if rt<4 else V_L2}, {sr(S_O,4)}, s{S_INB} offen offset:{(rt%4)*1024} {O.pol_old}" for rt in range(7)]
    for rt in range(7): G.m[56 * 15 + [4, 5, 6, 8, 9, 11, 13][rt]].append(PL[rt] + " ;@pl")
    nw = 0; g0 = 56 * 15
    for rt in range(6):
        for k in range(3): G.m[g0 + 8 * rt + 10 + 2 * k].append(wr[nw]); nw += 1
    if O.fin2:
        G.s[g0 + 43].append("s_waitcnt lgkmcnt(@fw3)"); G.s[g0 + 43].append("s_barrier")
        for g, x in zip([45, 47, 48, 49, 51, 53, 55, 55, 55], FR_[:9]): G.m[g0 + g].append(x)
    if O.p3st:
        for N in range(1, 16):
            k = nstamp[0]; nstamp[0] += 1
            G.p[56 * N - 2].append(f"s_memtime {sr(S_STP)}\ns_memrealtime {sr(S_STP+2)}\ns_waitcnt lgkmcnt(0)\nv_writelane_b32 v{V_STAMP}, s{S_STP}, {2*k}\nv_writelane_b32 v{V_STAMP}, s{S_STP+2}, {2*k+1}")
    G.emit()
    stamp()
    I("s_nop 4")
    def fin(rt):
        I(f"s_waitcnt lgkmcnt(@f{rt})")
        o = ACC + 16 * rt
        for k in (0, 2):
            I(f"v_pk_add_f32 {vr(o+k,2)}, {vr(o+k,2)}, {vr(o+4+k,2)}"); I(f"v_pk_add_f32 {vr(o+8+k,2)}, {vr(o+8+k,2)}, {vr(o+12+k,2)}")
        for k in (0, 2): I(f"v_pk_add_f32 {vr(o+k,2)}, {vr(o+k,2)}, {vr(PR+4*rt+k,2)}")
        for k in (0, 2): I(f"v_pk_add_f32 {vr(o+k,2)}, {vr(o+k,2)}, {vr(o+8+k,2)}")
        I(f"v_cvt_pk_bf16_f32 v{o}, v{o}, v{o+1}"); I(f"v_cvt_pk_bf16_f32 v{o+1}, v{o+2}, v{o+3}")
        I(f"buffer_store_dwordx2 {vr(o,2)}, v{V_OA}, {sr(S_OUT,4)}, s{S_OUTOFF} offen {O.pol_out}")
        I(f"s_add_u32 s{S_OUTOFF}, s{S_OUTOFF}, {16*2048}")
    for x in wr[nw:]: I(x)
    I("s_waitcnt vmcnt(@pl)")
    if O.fin2:
        for x in FR_[9:12]: I(x)
        fin(0); fin(1)
        I("s_waitcnt lgkmcnt(@fw6)"); I("s_barrier")
        for x in FR_[12:]: I(x)
        for rt in range(2, 7): fin(rt)
    else:
        I("s_waitcnt lgkmcnt(0)"); I("s_barrier")
        for x in FR_: I(x)
        for rt in range(7): fin(rt)
    stamp()
    store_stamps()
    A("L_done:")
    I("s_endpgm")
    A("L_fallback:")
    I(f"s_mov_b32 s{S_FB}, 1")
    I("s_waitcnt vmcnt(0) lgkmcnt(0)"); I("s_barrier")
    for rt in range(7): I(f"v_mov_b32 v{NM+4*rt}, 0xff800000")
    I(f"s_mov_b32 s{S_KVG}, s{S_KV0}")
    for x in k_addr(0): I(x)
    I(f"s_mov_b32 s{S_I}, 0")
    A("L_fb_loop:")
    emit_dma(kv_dma("K", 0)); I(KVG_UPD)
    I("s_waitcnt vmcnt(0)"); I("s_barrier")
    for f in range(8): I(k_read(f))
    I("s_waitcnt lgkmcnt(0)"); I("s_barrier")
    for rt in range(7):
        for m in qk_mfmas(rt, SB, usenm=False): I(m)
        I("s_nop 7")
        b = NM + 4 * rt
        for k in range(4): I(f"v_max3_f32 v{b}, v{b}, v{SB+2*k}, v{SB+2*k+1}")
    I(f"s_add_u32 s{S_I}, s{S_I}, 1"); I(f"s_cmp_lt_u32 s{S_I}, 16"); I("s_cbranch_scc1 L_fb_loop")
    multi_reduce([NM + 4 * rt for rt in range(7)], [NM + 4 * rt + 1 for rt in range(7)], "v_max_f32")
    for rt in range(7):
        b = NM + 4 * rt
        I(f"v_sub_f32 v{b}, 0, v{b}")
        for k in range(1, 4): I(f"v_mov_b32 v{b+k}, v{b}")
    I(f"s_mov_b32 s{S_KVG}, s{S_KV0}")
    for st in range(RING - 1):
        emit_dma(kv_dma("K", (4 - st) * 32768) + kv_dma("V", (4 - st) * 32768)); I(KVG_UPD)
    for k in range(112): I(f"v_mov_b32 v{OK_+k}, 0")
    for k in range(112): I(f"v_accvgpr_write_b32 a{OS_+k}, 0")
    for k in range(32): I(f"v_mov_b32 v{VF+k}, 0")
    for k in range(12): I(f"v_mov_b32 v{PB+k}, 0")
    for k in range(7): I(f"v_mov_b32 v{LS+k}, 0")
    for k in range(8): I(f"v_mov_b32 v{SB+16+k}, 0xf149f2ca")
    I(f"s_mov_b32 s{S_MASK}, 0xfff"); I(f"s_mov_b32 s{S_DS}, 0"); I(f"s_mov_b32 s{S_SL2}, {3*32768}"); I(f"s_mov_b32 s{S_I}, -1")
    for x in next_dma_state(): I(x)
    for x in k_addr(4 * 32768) + v_addr(4 * 32768): I(x)
    I("s_waitcnt vmcnt(0)"); I("s_barrier")
    for f in range(8): I(k_read(f))
    I("s_waitcnt lgkmcnt(0)")
    I("s_branch L_att")

HEAD = """
;  phase 2  attention: wave = (112-row half, 32-key half of every 64-key stage); -m enters as the C operand of the first QK MFMA.
;           m is the true max of the wave's first 32 keys; after the loop every row sum is checked (l < 2^40, NaN fails) and the
;  hand-off O (bf16, MFMA fragment order) is written through (sc1), then a per-workgroup flag in ws; flags are cleared inside the launch
;  phase 3  out tile 224x64 over half of K; the half tile owned by the partner workgroup (b, h^8) is computed first and sent in fp32.
; @launch grid=(256,1,1) block=(256,1,1) lds=163840
"""
def main(fn):
    global RA_N, NB
    RA_N = O.ra_n; NB = O.nb
    del L[:]
    nstamp[0] = 0
    A('.amdgcn_target "amdgcn-amd-amdhsa--gfx950"')
    A(".text")
    gen()
    A("  .fill 6144, 4, 0xBF800000")
    A('.section .rodata,"a"\n.p2align 6')
    A(f".amdhsa_kernel {NAME}_kernel\n  .amdhsa_next_free_vgpr 512\n  .amdhsa_next_free_sgpr 102\n  .amdhsa_accum_offset 256\n  .amdhsa_group_segment_fixed_size 0\n  .amdhsa_kernarg_size 64\n  .amdhsa_user_sgpr_count 2\n  .amdhsa_user_sgpr_kernarg_segment_ptr 1\n  .amdhsa_system_sgpr_workgroup_id_x 1\n.end_amdhsa_kernel")
    head = HEAD.strip().split(chr(10))
    open(fn, "w").write("\n".join(head + resolve(L)) + "\n")

if __name__ == "__main__":
    fn = sys.argv[1]
    for kv in sys.argv[2:]:
        k, v = kv.split("=")
        cur = getattr(O, k)
        setattr(O, k, (v == "1") if isinstance(cur, bool) else (int(v) if isinstance(cur, int) else v.replace("+", " ")))
    main(fn)
```

```python
import sys, math, struct, re
NAME = "standalone__mha_block_cached__near_ridge"

class Opt:
    pol_kv = "nt"; pol_x = ""; pol_wq = ""; pol_ost = "sc1"; pol_old = "sc1"; pol_wo = ""; pol_out = ""
    stamps = False; dbgst = False
    rotmul_h = 0; rotmul_b = 0
    k2_rot_c = 1; k2_rot_r = 2
    wo_pref = 3
    kv_first = 6
    abl_nopoll = False
    wo_early = 3
    kv_rot_j = 1
    kv_rot_x = 2
    lin_map = False
    kv_last = 13
    k0_it = 1
    up_chunks = 2
    nl2 = 1
    l2_base = 5
    cpf = True
    wo_mall = False
    n_up = 22
    n_up0 = 8
    capA = 6
    capB = 5
    capA2 = 9
    capB2 = 8
    rotmul_x = 1
    sig_cnt = False
    gmode = False
    g_start = 12
    g_per = 4
    g_rounds = 3
    l2_at = 29
    pf_pen = 2
    s4_in = True
    p1st = False
    abl_noearly = False
    nskip = 2
    epst = False
    ta = 6
    f1 = '5,10'
    f2 = '5,10'
    pf_row = True
    cp0 = 1
    paced = True
    nfar = 2
    sk0 = 7
    pol_kve = 'nt'
    dbg_wg = 37
    fast_ep = False
    xp = 2
    xd = 4
    xb = 1
    p2_at = 13
    clr = 0
    p3st = False
    s2_g = 52
    p2_g = 12
    fin2 = True
    tail_n = 8
    e4 = True
    wo_first = 0
    pre_dma = 2
    ra_n = 16
    r0 = 10
    nb = 2
    tr_early = True
    accord = True
    ep_dma = '9'
    post_dma = 0
    pf_q = 4
    pf_max = 8
    cpf_at = 14
    pref_last = True
    loopst = False
    tlbw = 0
    abl_nomfma = False
    kv_noswz = False
    att_vm = 24
    abl_nodma = False
    poll_lead = 2
O = Opt()

L = []
def A(s): L.append(s)
def I(s):
    for x in s.split("\n"):
        if x.strip(): L.append("  " + x.strip())
def vr(b, n=4): return f"v[{b}:{b+n-1}]"
def ar(b, n=4): return f"a[{b}:{b+n-1}]"
def sr(b, n=2): return f"s[{b}:{b+n-1}]"
def pol(p): return (p + " ") if p else ""
def f2u(x): return struct.unpack("<I", struct.pack("<f", x))[0]
MF = "v_mfma_f32_16x16x32_bf16"

class Gaps:
    def __init__(self, mf):
        self.mf = list(mf); n = len(self.mf)
        self.s = [[] for _ in range(n)]; self.m = [[] for _ in range(n)]; self.v = [[] for _ in range(n)]; self.p = [[] for _ in range(n)]
    def chain(self, instrs, gaps):
        assert len(gaps) >= len(instrs), (instrs, gaps)
        for x, g in zip(instrs, gaps): self.s[g].append(x)
    def emit(self):
        for i, m in enumerate(self.mf):
            I(m)
            for x in self.s[i] + self.m[i] + self.v[i] + self.p[i]: I(x)

def resolve(lines):
    vm = []; lg = []; out = []
    for ln in lines:
        t = re.search(r";@(\S+)", ln)
        tag = t.group(1) if t else None
        code = ln.split(";")[0].rstrip() if t else ln
        op = code.strip().split(" ")[0] if code.strip() else ""
        def sub(kind, q, cap):
            def f(m):
                k = m.group(1)
                idx = [i for i, x in enumerate(q) if x == k]
                assert idx, ("unknown tag", k, ln)
                return f"{kind}({min(cap, len(q) - 1 - idx[-1])})"
            return f
        code = re.sub(r"vmcnt\(@(\S+?)\)", sub("vmcnt", vm, 62), code)
        code = re.sub(r"lgkmcnt\(@(\S+?)\)", sub("lgkmcnt", lg, 14), code)
        if tag != "nocount":
            if op.startswith(("buffer_", "global_")): vm.append(tag)
            elif op.startswith("ds_"): lg.append(tag)
        out.append(code)
    return out

OK_ = 16; VF = 128; SB = 160; PB = 184; NM = 196; LS = 224
V_LANE16 = 1; V_QP = 2; V_WOB = 3
V_KVOFF = 4
V_XB = 8; V_WB = 10; V_KB = 12; V_VB = 13; V_T0 = 14; V_T1 = 15
V_XOFF = 200; V_WOFF = 207; V_KW0 = 211; V_KW1 = 253
V_RAB = 231; V_PF = 212
V_XA = 232; V_WA = 234
V_KA = 232; V_VA = 236; V_TMP = 244; V_STAMP = 255
OS_ = 0; QA = 112; KF = 224; FR = 112
COL = [0, 1, 0, 1, 0, 1, 2]
S_X = 8; S_K = 12; S_V = 16; S_WQ = 20; S_O = 24
S_WAVE = 28; S_B = 29; S_H = 30; S_R = 31; S_C = 32
S_OX = 33; S_OW = 34; S_MXA = 36; S_MXB = 3; S_WXT = 37; S_I = 38
S_T0 = 39; S_T1 = 40; S_T2 = 41; S_T3 = 42
S_KVG = 43; S_SL0 = 44; S_SL1 = 45; S_SL2 = 46
S_FB = 47; S_W4K = 48; S_W4KK = 49; S_SCALE = 50; S_OST = 51
P_X = 52; P_K = 54; P_V = 56; P_WQ = 58; P_WO = 60; P_OUT = 62; P_DBG = 64; P_WS = 66
S_WO = 68; S_OO = 72; S_OUT = 76; S_TW = 80; S_TO = 52; S_LB0 = 88; S_LB1 = 89; S_OUTOFF = 90; S_SIG = 91; S_POLL = 92; S_PFO = 93
S_STP = 96
XT = 28672; WT = 16384; STG = XT + WT
RING = 5; KOFF = 16384; PART = 1 << 24; FLG = 3 << 23
ST0 = 86016; S_CA = 7; S_STW = 61; V_STW = 241; V_STR = 242; V_FLR = 243
SCALE = math.log2(math.e) / math.sqrt(128.0)

nstamp = [0]
def stamp():
    if not O.stamps: return
    k = nstamp[0]
    I(f"s_memtime {sr(S_STP)}"); I("s_waitcnt lgkmcnt(0)"); I(f"v_writelane_b32 v{V_STAMP}, s{S_STP}, {2*k}")
    I(f"s_memrealtime {sr(S_STP)}"); I("s_waitcnt lgkmcnt(0)"); I(f"v_writelane_b32 v{V_STAMP}, s{S_STP}, {2*k+1}")
    nstamp[0] += 1
def store_stamps():
    if not O.stamps: return
    I(f"s_cmp_lg_u32 s{S_WAVE}, 0"); I("s_cbranch_scc1 L_done")
    I(f"s_lshl_b32 s{S_T0}, s2, 8"); I(f"s_add_u32 s{S_T0}, s{S_T0}, {1<<26}"); I(f"v_lshl_add_u32 v15, v0, 2, s{S_T0}")
    I(f"global_store_dword v15, v{V_STAMP}, {sr(P_WS)}")
    if O.dbgst:
        I(f"s_cmp_lg_u32 s2, {O.dbg_wg}"); I("s_cbranch_scc1 L_done")
        I(f"v_readlane_b32 s{S_T0}, v{V_STAMP}, 62"); I("v_lshlrev_b32 v15, 1, v0"); I("v_add_u32 v15, 6, v15"); I(f"v_subrev_u32 v14, s{S_T0}, v{V_STAMP}")
        I("s_mov_b32 exec_lo, 0x2aaaaaa"); I("s_mov_b32 exec_hi, 0")
        I(f"global_store_dword v15, v14, {sr(P_DBG)}")
def srd(d, ptr, nbytes, shift=None, sub=True):
    if shift is None:
        I(f"s_mov_b32 s{d}, s{ptr}"); I(f"s_mov_b32 s{d+1}, s{ptr+1}"); I(f"s_mov_b32 s{d+2}, {nbytes}")
    else:
        I(f"s_add_u32 s{d}, s{ptr}, s{shift}"); I(f"s_addc_u32 s{d+1}, s{ptr+1}, 0")
        I(f"s_sub_u32 s{d+2}, {nbytes}, s{shift}" if sub else f"s_mov_b32 s{d+2}, {nbytes}")
    I(f"s_mov_b32 s{d+3}, 0x20000")

def stg(i): return ((-i) % 3) * STG
def d_w(i): return [([f"s_add_u32 m0, {stg(i)}, s{S_WXT}"] if j == 0 else [], f"buffer_load_dwordx4 v{V_WOFF+j}, {sr(S_WQ,4)}, s{S_OW} offen offset:{j*1024} {pol(O.pol_wq)}lds ;@w_{i}") for j in range(4)]
def d_xa(i): return [([f"s_add_u32 m0, {stg(i)}, s{S_MXA}"] if j == 0 else [], f"buffer_load_dwordx4 v{V_XOFF+j}, {sr(S_X,4)}, s{S_OX} offen offset:{j*1024} {pol(O.pol_x)}lds ;@xa{i}") for j in range(4)]
def d_xb(i): return [([f"s_add_u32 m0, {stg(i)}, s{S_MXB}"] if j == 0 else [], f"buffer_load_dwordx4 v{V_XOFF+4+j}, {sr(S_X,4)}, s{S_OX} offen offset:{j*1024} {pol(O.pol_x)}lds ;@xb{i}", P1_UPD if j == 2 else []) for j in range(3)]
S_OC = 38; S_XM = 95
S_XR = 99
P1_UPD = [f"s_add_u32 s{S_OC}, s{S_OC}, 128", f"s_xor_b32 s{S_OX}, s{S_OC}, s{S_XM}", f"s_add_u32 s{S_OX}, s{S_OX}, s{S_XR}", f"s_and_b32 s{S_OX}, s{S_OX}, 2047", f"s_lshl_b32 s{S_OW}, s{S_OX}, 12"]
def emit_dma(g, post=False):
    for x in g:
        for p in x[0]: I(p)
        if x[0]: I("s_nop 0")
        I(x[1])
        if post and len(x) > 2:
            for p in x[2]: I(p)
def kv_dma(which, slot, so=None):
    so = S_KVG if so is None else so
    s, off = (S_K, S_W4KK) if which == "K" else (S_V, S_W4K)
    return [([f"s_add_u32 m0, {slot}, s{off}"] if j == 0 else [],
             f"buffer_load_dwordx4 v{V_KVOFF+j}, {sr(s,4)}, s{so} offen offset:{j*1024} {pol(O.pol_kv)}lds") for j in range(4)]
KVG_UPD = f"s_add_u32 s{S_KVG}, s{S_KVG}, 16384\ns_and_b32 s{S_KVG}, s{S_KVG}, 0x3ffff"
S_KV0 = 94; S_KVE = 95; S_MASK = 35; S_DS = S_SL1
def er(reg): return ar(reg) if reg < 256 else vr(reg - 256)
EARLY = [("V", 0, 256 + 160), ("K", 1, 256 + 176), ("V", 1, 0), ("K", 2, 16), ("V", 2, 32), ("K", 3, 48), ("V", 3, 64)]
def early_list(): return EARLY + ([("K", 4, 256 + 96), ("V", 4, 256 + 112)] if O.e4 else [])
V_KW2 = 216; V_ZR = 217; S_INB = 100
def early_loads():
    g = []
    for p, (w, st, reg) in enumerate(early_list()):
        for j in range(4):
            post = [KVG_UPD] if (w == "V" and j == 3) else []
            g.append(([], f"buffer_load_dwordx4 {er(reg+4*j)}, v{V_KVOFF+j}, {sr(S_K if w=='K' else S_V,4)}, s{S_KVG} offen offset:{j*1024} {O.pol_kve} ;@e{p}", post))
    return g
def early_writes():
    g = []
    for p, (w, st, reg) in enumerate(early_list()):
        addr = (4 - st) * 32768 + (KOFF if w == "K" else 0)
        base, b0 = (V_KW2, 131072) if addr >= 131072 else ((V_KW0, 65536) if addr >= 65536 else (V_KW1, 0))
        for j in range(4):
            g.append(([f"s_waitcnt vmcnt(@e{p})"] if j == 0 else [], f"ds_write_b128 v{base}, {er(reg+4*j)} offset:{addr-b0+j*1024} ;@ew"))
    return g
def p1_acc(rt): return OK_ + 16 * rt if rt < 5 else VF + 16 * (rt - 5)
FW = 112; FXA = 176; FXB = 208
def r_w(i):
    return [f"ds_read_b64_tr_b16 {ar(FW+32*(i&1)+16*s+4*t+2*e,2)}, v{V_WA+t//2} offset:{XT + s*8192 + e*1024 + (t%2)*8}" for s in range(2) for t in range(4) for e in range(2)]
def xf(rt, s): return (FXA + 8 * rt + 4 * s) if rt < 4 else (FXB + 8 * (rt - 4) + 4 * s)
def r_x(rts): return [f"ds_read_b128 {ar(xf(rt,s))}, v{V_XA+s} offset:{rt*2048}" for rt in rts for s in range(2)]
def p1_mfmas(i, rts):
    return [f"{MF} {vr(p1_acc(rt)+4*t)}, {ar(FW+32*(i&1)+16*s+4*t)}, {ar(xf(rt,s))}, " + ("0" if (i == 0 and s == 0) else vr(p1_acc(rt)+4*t)) for rt in rts for (s, t) in ([(s, t) for t in range(4) for s in range(2)] if O.accord else [(s, t) for s in range(2) for t in range(4)])]
def place(G, ops, gaps):
    assert len(gaps) >= len(ops), (len(ops), gaps)
    for d, g in zip(ops, gaps):
        for p in d[0]:
            if G.m[g - 1] and "buffer_" in G.m[g - 1][-1] and "lds" in G.m[g - 1][-1] and "m0" in p: G.p[g - 1].append(p)
            else: G.s[g - 1].append(p)
        G.m[g].append(d[1])
        if len(d) > 2:
            pp = [q for p in d[2] for q in p.split(chr(10))]
            nxt = [h for h in gaps[:len(ops)] if h > g]
            for k, p in enumerate(pp): G.s[min(g + 1 + k // 2, nxt[0] if nxt else 10**9)].append(p)
def layout(n, nmem, nrd):
    mg = sorted(set(1 + (k * (n - 3)) // max(nmem, 1) for k in range(nmem)))
    assert len(mg) == nmem
    rg = [g for g in range(n - 2) if g not in mg][:nrd]
    if len(rg) < nrd: rg = sorted(rg + mg[:nrd - len(rg)])
    return mg, rg
pendw = []
THIN = []
def p1_half(mf, mem, reads, addr, wait, valu=None, vstart=0):
    G = Gaps(mf); n = len(mf)
    mg, rg = layout(n, len(mem), len(reads))
    for k, r in zip(rg, reads): G.m[k].append(r)
    place(G, mem, mg)
    for after, x in addr:
        g0 = rg[after] + 1 if after >= 0 else 0
        c = [g for g in range(g0, n - 1) if g not in mg and len(G.v[g]) < (1 if G.m[g] else 2) and not (G.m[g] and G.s[g])]
        G.v[c[0]].append(x)
    if valu is not None:
        work, base = valu
        lastw = -9
        for g in range(n):
            if base and pendw and g - lastw >= 3 and g not in mg and not G.m[g]:
                G.m[g].append(pendw.pop(0)); lastw = g; continue
            room = 0 if g in mg else (1 if G.m[g] else 2)
            while work and work[0][0] <= g + base and (work[0][1] == "w" or len(G.v[g]) < room) and len(pendw) < 7:
                w = work.pop(0)
                if w[1] == "w": pendw.append(w[2])
                else: G.v[g].append(w[2])
    if wait is not None:
        G.s[n - 1].append(wait); G.s[n - 1].append("s_barrier")
    G.emit()

def kq(f): return (f % 4, f // 4) if O.accord else (f // 2, f % 2)
def k_read(f): return f"ds_read_b128 {ar(KF+4*f)}, v{V_KA+kq(f)[0]} offset:{kq(f)[1]*4096}"
def v_read(dq, e): return f"ds_read_b64_tr_b16 {vr(VF+4*dq+2*e,2)}, v{V_VA+dq}" + (" offset:4096" if e else "")
def k_addr(slot): return [f"v_add_u32 v{V_KA}, {slot}, v{V_KB}"] + [f"v_xor_b32 v{V_KA+q}, {q*64}, v{V_KA}" for q in range(1, 4)]
def v_addr(slot): return [f"v_add_u32 v{V_VA}, {slot}, v{V_VB}"] + [f"v_xor_b32 v{V_VA+d}, {d*32}, v{V_VA}" for d in range(1, 8)]
def oacc(rt, dq): return vr(OK_ + 16 * rt + 4 * dq) if dq < 4 else ar(OS_ + 16 * rt + 4 * (dq - 4))
def qk_mfmas(rt, S, usenm=True):
    m = []
    for f in range(8):
        q, kt = kq(f)
        d = S + 4 * kt
        c = (vr(NM + 4 * rt) if usenm else "0") if q == 0 else vr(d)
        m.append(f"{MF} {vr(d)}, {ar(KF+4*f)}, {ar(QA+16*rt+4*q)}, {c}")
    return m
def pv_mfmas(rt, first=False):
    P = PB + 4 * COL[rt]
    return [f"{MF} {oacc(rt,dq)}, {vr(VF+4*dq)}, {vr(P)}, " + ("0" if first else oacc(rt, dq)) for dq in range(8)]
def sm_ops(rt, scol=None):
    S = SB + 8 * (COL[rt] if scol is None else scol); P = PB + 4 * COL[rt]
    e = [f"v_exp_f32 v{S+k}, v{S+k}" for k in range(8)]
    a = [f"v_add_f32 v{LS+rt}, v{LS+rt}, v{S+k}" for k in range(8)]
    c = [f"v_cvt_pk_bf16_f32 v{P+k}, v{S+2*k}, v{S+2*k+1}" for k in range(4)]
    return e, a, c
def put_softmax(G, base, rt):
    e, a, c = sm_ops(rt)
    for k in range(8):
        G.v[base + 2 * k].append(e[k])
        if k % 2 == 1: G.v[base + 2 * k + 1].append(c[k // 2])
        G.v[base + 2 * k + 1].append(a[k])
def sm0_nm(rt):
    t = V_TMP + 2 * (rt & 1)
    return [f"v_sub_f32 v{NM+4*rt+k}, 0, v{t}" for k in range(4)]
def sm0_ops(rt):
    scol = 2 if rt == 0 else COL[rt]
    S = SB + 8 * scol; t = V_TMP + 2 * (rt & 1)
    e, a, c = sm_ops(rt, scol)
    a[1] = f"v_add_f32 v{LS+rt}, v{S}, v{S+1}"
    pn = sm0_nm(rt - 1) if rt else ["s_nop 0", "s_nop 0", None, None]
    sub = [f"v_sub_f32 v{S+k}, v{S+k}, v{t}" for k in range(8)]
    g = [[f"v_max3_f32 v{t}, v{S}, v{S+1}, v{S+2}", f"v_max3_f32 v{t+1}, v{S+3}, v{S+4}, v{S+5}", f"v_max3_f32 v{t}, v{t}, v{S+6}, v{S+7}"],
         [f"v_max_f32 v{t}, v{t}, v{t+1}", f"v_max_f32 v{t+1}, v{t}, v{t+1}", pn[0]],
         [f"v_permlane32_swap_b32 v{t}, v{t+1}", f"v_max_f32 v{t}, v{t}, v{t+1}", f"v_mov_b32 v{t+1}, v{t}", pn[1]],
         [f"v_permlane16_swap_b32 v{t}, v{t+1}", f"v_max_f32 v{t}, v{t}, v{t+1}", sub[0]],
         [e[0], sub[1]], [e[1], sub[2]], [e[2], sub[3]], [e[3], sub[4], a[1]], [e[4], sub[5], c[0]], [e[5], sub[6], a[2]], [e[6], sub[7], a[3]],
         [e[7], c[1], a[4]], [c[2], a[5], pn[2]], [c[3], a[6]], [a[7], pn[3]]]
    return [[x for x in grp if x] for grp in g]

def next_dma_state():
    return [f"s_add_u32 s{S_I}, s{S_I}, 1", f"s_bitcmp1_b32 s{S_MASK}, s{S_I}", f"s_cselect_b32 s{S_SL0}, s{S_DS}, 0x30000", f"s_cselect_b32 s{S_KVE}, s{S_KVG}, 0x40000000",
            f"s_cselect_b32 s{S_T3}, 32768, 0", f"s_sub_u32 s{S_DS}, s{S_DS}, s{S_T3}", f"s_cselect_b32 s{S_DS}, {(RING-1)*32768}, s{S_DS}",
            f"s_lshr_b32 s{S_T3}, s{S_T3}, 1", f"s_add_u32 s{S_KVG}, s{S_KVG}, s{S_T3}", f"s_and_b32 s{S_KVG}, s{S_KVG}, 0x3ffff"]
V_WOF = 8; V_RA0 = 232; V_RA1 = 236; V_L2 = 240
pf_cnt = [0, 0]
def put_pf(G, t):
    if t == 12 + O.nskip:
        if O.pf_row:
            G.v[1].append(f"v_and_b32 v{V_TMP+8}, 7, v0"); G.v[3].append(f"v_and_b32 v{V_TMP+7}, 8, v0"); G.v[5].append(f"v_lshl_add_u32 v{V_TMP+8}, v{V_TMP+7}, 1, v{V_TMP+8}"); G.v[7].append(f"v_lshlrev_b32 v{V_TMP+8}, 7, v{V_TMP+8}")
        else:
            G.v[1].append(f"v_and_b32 v{V_TMP+8}, 15, v0"); G.v[5].append(f"v_lshlrev_b32 v{V_TMP+8}, 11, v{V_TMP+8}")
        pf_cnt[0] = 0; pf_cnt[1] = 4 * O.wo_first
    if O.cpf and t == O.cpf_at:
        c2 = code_pf("L_last+2048", 6, V_TMP + 5)
        G.chain(c2[0], [6, 8]); G.v[10].append(c2[1]); G.m[11].append(c2[2].replace(f"v{V_TMP+6},", f"v{V_QP},")); pf_cnt[0] += 1
    gl = {1: [13], 2: [13, 57], 3: [13, 47, 81], 4: [13, 41, 63, 87], 5: [13, 41, 55, 71, 87], 6: [13, 23, 41, 55, 71, 87]}[O.pf_q] if O.pf_q else []
    for g in gl:
        if pf_cnt[1] >= O.pf_max: break
        k = pf_cnt[1]
        G.s[g - 1].append(f"s_add_u32 s{S_T0}, s{S_PFO}, {(k // 4) * 8 * 65536 + (k % 4) * (4096 if O.pf_row else 32768)}")
        G.m[g].append(f"buffer_load_dword v{V_QP}, v{V_TMP+8}, {sr(S_WO,4)}, s{S_T0} offen")
        pf_cnt[0] += 1; pf_cnt[1] += 1
def att_iter(kind, t=None):
    mf = []; base = []
    for n in range(7):
        base.append(len(mf))
        mf += qk_mfmas(n, SB + 8 * (2 if (kind == "first" and n == 0) else COL[n]), usenm=(kind != "first"))
        if not (kind == "first" and n < 2): mf += pv_mfmas((n - 2) % 7, first=(kind == "first"))
    G = Gaps(mf)
    if kind == "first":
        for k in range(16): G.m[k].append(v_read(k // 2, k % 2) + " ;@vf")
        for n in range(1, 7):
            g = sm0_ops(n - 1)
            if n == 1: pos = [11, 12, 13, 14, 15, 15, 16, 16, 17, 17, 18, 18, 19, 19, 20]
            elif n == 2: pos = [base[2] + x for x in [4, 5, 6, 7, 8, 8, 9, 10, 11, 12, 13, 14, 15, 15, 15]]
            else: pos = [base[n] + x for x in range(15)]
            for grp, p in zip(g, pos):
                for x in grp: G.v[p].append(x)
        G.s[base[2] + 6].append("s_waitcnt lgkmcnt(@vf)")
        off = lambda g: g - 16
        G.v[2].append(f"v_lshlrev_b32 v{V_TMP+8}, 11, v0")
        for x, g in zip(THIN[4:], [off(z) for z in [33, 50, 72, 92]]): G.m[g].append(x[1])
        if O.e4:
            place(G, early_writes()[20:], [off(g) for g in [37, 41, 44, 47, 52, 54, 58, 61, 63, 68, 70, 74, 77, 79, 84, 86]])
            G.s[off(91)].append("s_waitcnt lgkmcnt(@ew)")
            for k in range(32): G.v[off([93, 94, 95, 95, 100, 102, 109, 110, 111, 110][k % 10])].append(f"v_mov_b32 v{OK_+80+k}, 0")
        else:
            place(G, early_writes()[20:], [off(g) for g in [50, 54, 58, 62, 63, 66, 70, 74]])
            d4 = kv_dma("K", 0) + kv_dma("V", 0); d4[7] = d4[7] + ([KVG_UPD],)
            place(G, d4, [off(g) for g in ([23, 33, 42, 48, 56, 64, 72, 78] if O.paced else [36, 42, 47, 52, 60, 68, 72, 78])])
        for j in range(O.wo_first):
            g = off([61, 79][j])
            G.s[g - 1].append(f"s_add_u32 s{S_T0}, s{S_PFO}, {j*8*65536}")
            G.m[g].append(f"buffer_load_dword v{V_QP}, v{V_TMP+8}, {sr(S_WO,4)}, s{S_T0} offen")
        for j in range(0 if O.pref_last else O.wo_pref):
            G.m[off(36 + 3 * j)].append(f"buffer_load_dword v{V_QP}, v{V_TMP+8}, {sr(S_WO,4)}, s{S_PFO} offen")
            G.s[off(37 + 3 * j)].append(f"s_add_u32 s{S_PFO}, s{S_PFO}, {8*65536}")
    else:
        for n in range(7): put_softmax(G, 16 * n, (n - 1) % 7)
        off = lambda g: g
        G.s[0].append("s_waitcnt lgkmcnt(4)"); G.s[2].append("s_waitcnt lgkmcnt(2)"); G.s[4].append("s_waitcnt lgkmcnt(0)")
        for k in range(16): G.m[24 + k].append(v_read(k // 2, k % 2))
        G.s[38].append("s_waitcnt lgkmcnt(10)")
        G.s[40].append("s_waitcnt lgkmcnt(8)"); G.s[42].append("s_waitcnt lgkmcnt(4)"); G.s[44].append("s_waitcnt lgkmcnt(0)")
        va = v_addr(f"s{S_SL1}")
        for x, g in zip(va[4:], [5, 9, 17, 21]): G.v[g].append(x)
    if kind != "last":
        va = v_addr(f"s{S_SL2}"); ka = k_addr(f"s{S_SL2}")
        if kind == "first":
            for x, g in zip(va[:4] + ka, [off(z) for z in [53, 62, 62, 69, 78, 78, 85, 94]]): G.v[g].append(x)
        elif kind == "pen":
            put_pf(G, t)
            if t == 14:
                place(G, wo_dma(0) + wo_dma(1), [1, 19, 41, 49, 57, 65, 73, 91]); pf_cnt[0] += 8
            for x, g in zip(va[:4], [45, 53, 61, 69]): G.v[g].append(x)
            for x, g in zip(ka, [77, 85, 89, 93]): G.v[g].append(x)
            G.s[94].append(f"s_waitcnt vmcnt({8 * (14 - t) + pf_cnt[0]})")
        else:
            place(G, kv_dma("K", f"s{S_SL0}", S_KVE) + kv_dma("V", f"s{S_SL0}", S_KVE), [1, 13, 41, 49, 57, 65, 73, 81])
            for x, g in zip(va[:4], [45, 53, 61, 69]): G.v[g].append(x)
            for x, g in zip(ka, [77, 85, 89, 93]): G.v[g].append(x)
            G.s[94].append(f"s_waitcnt vmcnt({24 if (t == 0 and O.sk0 > O.ta) else 24 - 8 * O.nskip})")
        G.s[off(95)].append("s_barrier")
        for f in range(8): G.m[off(97 + 2 * f)].append(k_read(f))
        if kind != "pen": G.chain(next_dma_state(), [off(g) for g in [82, 84, 86, 88, 90, 92, 96, 98, 100, 102]])
        G.chain([f"s_sub_u32 s{S_SL2}, s{S_SL2}, 32768", f"s_cselect_b32 s{S_SL2}, {(RING-1)*32768}, s{S_SL2}", f"s_cmp_lt_u32 s{S_I}, {O.ta + 1 if (kind == chr(108)+chr(111)+chr(111)+chr(112) and t == 0) else 12 + O.nskip}", "s_waitcnt lgkmcnt(5)"],
                [off(g) for g in [104, 106, 108, 110]])
    else:
        for rt in range(4):
            for k in range(4): G.m[16 * (rt + 3) + 1 + 4 * k].append(f"ds_write_b128 v{V_T0}, {ar(OS_+16*rt+4*k)} offset:{(4*rt+k)*1024}")
        put_pf(G, 15)
        G.s[46].append("s_barrier")
        G.v[9].append(f"v_mov_b32 v{V_TMP+9}, 0"); G.m[17].append(f"global_load_dword v{V_TMP+10}, v{V_TMP+9}, {sr(P_DBG)} sc1 ;@st0")
        ex = [f"v_add_u32 v{V_RA0}, s{S_LB0}, v{V_RAB}"] + [f"v_xor_b32 v{V_RA0+q}, {q*32}, v{V_RA0}" for q in range(1, 4)]
        for x, g in zip(ex, [1, 3, 7, 13]): G.v[g].append(x)
        ex = ([f"v_add_u32 v{V_RA1}, s{S_LB1}, v{V_RAB}", f"v_add_u32 v{V_L2}, 4096, v{V_LANE16}"] + [f"v_xor_b32 v{V_RA1+q}, {q*32}, v{V_RA1}" for q in range(1, 4)]
              + [f"v_and_b32 v{V_STW}, 15, v0", f"v_lshl_add_u32 v{V_STW}, v{V_STW}, 3, s{S_STW}", f"v_xor_b32 v{V_STR}, 1024, v{V_STW}",
                 f"v_and_b32 v{V_FLR}, 3, v0", f"v_lshlrev_b32 v{V_FLR}, 10, v{V_FLR}", f"v_add_u32 v{V_FLR}, {ST0+896}, v{V_FLR}"])
        for x, g in zip(ex, [41, 45, 51, 55, 59, 63, 67, 71, 75, 79, 83]): G.v[g].append(x)
    return G

def code_pf(label, sh, vt):
    return ([f"s_lshl_b32 s6, s{S_WAVE}, {6+sh}", f"s_add_u32 s6, s6, {label}-L_pc"], f"v_lshl_add_u32 v{vt}, v0, {sh}, s6", f"global_load_dword v{V_TMP+6}, v{vt}, s[4:5]")
def multi_reduce(regs, temps, op):
    for sw in ("v_permlane32_swap_b32", "v_permlane16_swap_b32"):
        for r, t in zip(regs, temps): I(f"v_mov_b32 v{t}, v{r}")
        I("s_nop 1")
        for r, t in zip(regs, temps): I(f"{sw} v{r}, v{t}")
        I("s_nop 1")
        for r, t in zip(regs, temps): I(f"{op} v{r}, v{r}, v{t}")

RA_N = 13; RL_N = 9; NB = 5; ACC = 16
slot_of = {0: 0, 1: 1}
def areg(m, k, n):
    e = m % RA_N
    na = (256 - 28 * NB) // 16
    assert RA_N <= na + 6
    return ar(28 * NB + 16 * e + k, n) if e < na else vr(128 + 16 * (e - na) + k, n)
def bump(s, d): return [f"s_add_u32 s{s}, s{s}, {d}", f"s_addc_u32 s{s+1}, s{s+1}, 0", f"s_sub_u32 s{s+2}, s{s+2}, {d}"]
def wo_dma(m):
    s = slot_of[m]
    m0 = f"s_add_u32 m0, s{S_LB0}, {s*4096}" if s < 2 else f"s_add_u32 m0, s{S_LB1}, {(s-2)*4096}"
    pre = (bump(S_WO, 8 * 65536) if (m % 8 == 0 and m) else []) + [m0]
    return [(pre if j == 0 else [], f"buffer_load_dwordx4 v{V_WOF+j}, {sr(S_WO,4)}, s{S_TW+m%8} offen offset:{j*1024} {pol(O.pol_wo)}lds ;@w{m}") for j in range(4)]
def a_reads(m):
    s = slot_of[m]
    ra, o = (V_RA0, s * 4096) if s < 2 else (V_RA1, (s - 2) * 4096)
    return [f"ds_read_b64_tr_b16 {areg(m,4*cq+2*e,2)}, v{ra+cq} offset:{o+e*2048} ;@a{m}" for cq in range(4) for e in range(2)]
S_WBO = 8; S_SO = 33; S_PST = 20; S_PLD = 21; S_BIT = 22
def b_loads(n):
    pre = [f"s_add_u32 s{S_SO+n%2}, s{S_WBO+n//8}, s{S_TO+n%8}"]
    return [(pre if rt == 0 else [], f"buffer_load_dwordx4 {ar(28*(n%NB)+4*rt)}, v{V_LANE16 if rt<4 else V_L2}, {sr(S_OO,4)}, s{S_SO+n%2} offen offset:{(rt%4)*1024} {O.pol_old} ;@b{n}") for rt in range(7)]
def p3_mfmas(n):
    return [f"{MF} {vr(ACC+16*rt+4*cq)}, {areg(n,4*cq,4)}, {ar(28*(n%NB)+4*rt)}, " + ("0" if n % 16 == 0 else vr(ACC+16*rt+4*cq)) for rt in range(7) for cq in range(4)]

def gen():
    K = NAME + "_kernel"
    A(f".globl {K}\n.p2align 8\n.type {K},@function\n{K}:")
    I("s_cmp_ge_u32 s2, 256"); I("s_cbranch_scc1 L_done")
    if O.dbgst: I("s_memrealtime s[68:69]")
    I("s_load_dwordx16 s[52:67], s[0:1], 0")
    I("s_getpc_b64 s[4:5]")
    A("L_pc:")
    if O.cp0 == 0:
        I("v_lshlrev_b32 v14, 7, v0"); I("global_load_dword v15, v14, s[4:5]"); I("v_lshrrev_b32 v14, 1, v14"); I("v_add_u32 v14, 0x8000, v14"); I("global_load_dword v15, v14, s[4:5]")
    elif O.cp0 == 1:
        I("s_lshl_b32 s6, s2, 9"); I("s_and_b32 s6, s6, 0x3000"); I("v_lshl_add_u32 v14, v0, 4, s6"); I("global_load_dword v15, v14, s[4:5] offset:512")
    I("v_lshrrev_b32 v14, 6, v0")
    I("v_and_b32 v0, 63, v0")
    I(f"v_readfirstlane_b32 s{S_WAVE}, v14")
    I(f"s_and_b32 s{S_T0}, s2, 7"); I(f"s_lshr_b32 s{S_T1}, s2, 3")
    I(f"s_and_b32 s{S_B}, s{S_T0}, 1"); I(f"s_lshl_b32 s{S_B}, s{S_B}, 2"); I(f"s_and_b32 s{S_T2}, s{S_T1}, 3"); I(f"s_add_u32 s{S_B}, s{S_B}, s{S_T2}")
    I(f"s_lshr_b32 s{S_H}, s{S_T0}, 1"); I(f"s_lshl_b32 s{S_H}, s{S_H}, 3"); I(f"s_lshr_b32 s{S_T3}, s{S_T1}, 2"); I(f"s_add_u32 s{S_H}, s{S_H}, s{S_T3}")
    if O.lin_map: I(f"s_lshr_b32 s{S_B}, s2, 5"); I(f"s_and_b32 s{S_H}, s2, 31")
    I(f"s_mul_i32 s{S_XM}, s{S_T2}, {O.xb}"); I(f"s_add_u32 s{S_XM}, s{S_XM}, s{S_T3}"); I(f"s_and_b32 s{S_XM}, s{S_XM}, {O.xp-1}"); I(f"s_mul_i32 s{S_XM}, s{S_XM}, {O.xd*128}")
    I(f"s_mul_i32 s{S_T3}, s{S_T3}, {O.rotmul_h*128}"); I(f"s_mul_i32 s{S_T2}, s{S_T2}, {O.rotmul_b*128}"); I(f"s_add_u32 s{S_OX}, s{S_T2}, s{S_T3}")
    if O.rotmul_x: I(f"s_mul_i32 s{S_T0}, s{S_T0}, {O.rotmul_x*128}"); I(f"s_add_u32 s{S_OX}, s{S_OX}, s{S_T0}")
    I(f"s_and_b32 s{S_XR}, s{S_OX}, 2047"); I(f"s_mov_b32 s{S_OC}, 0")
    I(f"s_add_u32 s{S_OX}, s{S_XM}, s{S_XR}"); I(f"s_and_b32 s{S_OX}, s{S_OX}, 2047"); I(f"s_lshl_b32 s{S_OW}, s{S_OX}, 12")
    I(f"s_lshr_b32 s{S_R}, s{S_WAVE}, 1"); I(f"s_and_b32 s{S_C}, s{S_WAVE}, 1")
    I(f"s_lshl_b32 s{S_W4K}, s{S_WAVE}, 12"); I(f"s_add_u32 s{S_W4KK}, s{S_W4K}, {KOFF}"); I(f"s_add_u32 s{S_WXT}, s{S_W4K}, {XT}"); I(f"s_mul_i32 s{S_T0}, s{S_R}, {14*1024}"); I(f"s_lshl_b32 s{S_MXA}, s{S_C}, 12"); I(f"s_add_u32 s{S_MXA}, s{S_MXA}, s{S_T0}")
    I(f"s_mul_i32 s{S_MXB}, s{S_C}, 3072"); I(f"s_add_u32 s{S_MXB}, s{S_MXB}, s{S_T0}"); I(f"s_add_u32 s{S_MXB}, s{S_MXB}, 8192")
    T = V_TMP
    I(f"v_and_b32 v{T}, 15, v0"); I(f"v_lshrrev_b32 v{T+1}, 4, v0")
    I(f"v_and_b32 v{T+4}, 7, v0"); I(f"v_xor_b32 v{T+4}, v{T+4}, v{T+1}")
    I(f"v_lshrrev_b32 v{T+5}, 3, v0"); I(f"v_lshlrev_b32 v{T+7}, 11, v{T+5}"); I(f"v_lshl_add_u32 v{T+4}, v{T+4}, 4, v{T+7}")
    I(f"s_lshl_b32 s{S_T0}, s{S_C}, 16"); I(f"v_add_u32 v{V_XOFF}, s{S_T0}, v{T+4}"); I(f"v_xor_b32 v{T+5}, 64, v{V_XOFF}")
    for j in range(1, 4): I(f"v_add_u32 v{V_XOFF+j}, {j*16384-j*1024}, v{V_XOFF if j%2==0 else T+5}")
    I(f"s_lshl_b32 s{S_T0}, s{S_C}, 6"); I(f"v_xor_b32 v{T+4}, s{S_T0}, v{T+4}"); I(f"s_mul_i32 s{S_T0}, s{S_C}, {24*2048}"); I(f"s_add_u32 s{S_T0}, s{S_T0}, {64*2048}")
    I(f"v_add_u32 v{V_XOFF+4}, s{S_T0}, v{T+4}"); I(f"v_xor_b32 v{T+5}, 64, v{V_XOFF+4}")
    for j in range(1, 3): I(f"v_add_u32 v{V_XOFF+4+j}, {j*16384-j*1024}, v{V_XOFF+4 if j%2==0 else T+5}")
    I(f"v_lshlrev_b32 v{T+4}, 2, v{T+1}"); I(f"v_xor_b32 v{T+4}, v{T+4}, v{T}"); I(f"v_lshlrev_b32 v{T+5}, 13, v{T+1}"); I(f"v_lshl_add_u32 v{V_WOFF}, v{T+4}, 4, v{T+5}")
    for j in range(1, 4): I(f"v_add_u32 v{V_WOFF+j}, {j*32768-j*1024}, v{V_WOFF}")
    I(f"s_mul_i32 s{S_T0}, s{S_B}, 458752"); I(f"s_mul_i32 s{S_T1}, s{S_R}, {112*2048}"); I(f"s_add_u32 s{S_T0}, s{S_T0}, s{S_T1}")
    I(f"s_lshl_b32 s{S_T1}, s{S_H}, 8"); I(f"s_lshl_b32 s{S_T2}, s{S_WAVE}, 17"); I(f"s_add_u32 s{S_T1}, s{S_T1}, s{S_T2}")
    I("s_waitcnt lgkmcnt(0)")
    if O.dbgst: I(f"v_writelane_b32 v{V_STAMP}, s68, 62")
    stamp()
    srd(S_X, P_X, 3670016, S_T0); srd(S_WQ, P_WQ, 8388608, S_T1)
    Q = []
    for k in range(16):
        Q += [(-1 if k <= 2 else (0 if k == 3 else 2 * (k - 4) + 1), x) for x in d_w(k)]
        Q += [(-1 if k <= 2 else 2 * (k - 3), x) for x in d_xa(k)]
        Q += [(-1 if k <= 2 else 2 * (k - 3) + 1, x) for x in d_xb(k)]
    def take(hh, cap, cap2):
        out = []
        pend = 0
        while pend < len(Q) and Q[pend][0] <= hh: pend += 1
        n = min(pend, cap if (hh < 0 or pend <= cap + (2 if hh % 2 else 0)) else cap2)
        for _ in range(n): out.append(Q.pop(0)[1])
        return out
    emit_dma(take(-1, min(O.n_up, O.n_up0), 0), post=True)
    I(f"s_lshl_b32 s{S_T0}, s{S_B}, 5"); I(f"s_add_u32 s{S_T0}, s{S_T0}, s{S_H}"); I(f"s_lshl_b32 s{S_T0}, s{S_T0}, 18")
    srd(S_K, P_K, 262144, S_T0, sub=False); srd(S_V, P_V, 262144, S_T0, sub=False)
    if O.tlbw:
        I("v_mov_b32 v14, 0")
        I(f"buffer_load_dword v15, v14, {sr(S_K,4)}, 0 offen {O.pol_kv}"); I(f"buffer_load_dword v15, v14, {sr(S_V,4)}, 0 offen {O.pol_kv}")
    if O.tlbw > 1:
        I("v_and_b32 v14, 3, v0"); I("v_lshlrev_b32 v14, 21, v14"); I(f"global_load_dword v15, v14, {sr(P_WQ)}")
    if O.tlbw > 2:
        I(f"global_load_dword v15, v14, {sr(P_WO)}")
        I("v_and_b32 v14, 7, v0"); I("v_lshlrev_b32 v14, 21, v14"); I("v_add_u32 v14, 0x1000000, v14"); I("v_subrev_u32 v14, 0x1000000, v14")
    srd(S_O, P_WS, PART + 256 * 28672); srd(S_OUT, P_OUT, 3670016)
    I(f"s_lshr_b32 s{S_T0}, s2, 3"); I(f"s_mul_i32 s{S_T0}, s{S_T0}, {O.kv_rot_j}"); I(f"s_and_b32 s{S_T1}, s2, 7"); I(f"s_mul_i32 s{S_T1}, s{S_T1}, {O.kv_rot_x}")
    I(f"s_add_u32 s{S_T0}, s{S_T0}, s{S_T1}"); I(f"s_and_b32 s{S_T0}, s{S_T0}, 15"); I(f"s_lshl_b32 s{S_T0}, s{S_T0}, 14"); I(f"s_add_u32 s{S_KV0}, s{S_T0}, s{S_W4K}")
    n_it = 11 + O.nskip
    I(f"s_mov_b32 s{S_MASK}, {((1 << n_it) - 1) << 1:#x}")
    if O.nskip:
        span = n_it - O.sk0 + 1
        I(f"s_mul_i32 s{S_T0}, s2, 37"); I(f"s_and_b32 s{S_T0}, s{S_T0}, 255"); I(f"s_mul_i32 s{S_T0}, s{S_T0}, {span}"); I(f"s_lshr_b32 s{S_T0}, s{S_T0}, 8")
        for k in range(O.nskip):
            I(f"s_add_u32 s{S_T1}, s{S_T0}, {(k * span) // O.nskip}"); I(f"s_cmp_ge_u32 s{S_T1}, {span}"); I(f"s_cselect_b32 s{S_T2}, {span}, 0"); I(f"s_sub_u32 s{S_T1}, s{S_T1}, s{S_T2}")
            I(f"s_add_u32 s{S_T1}, s{S_T1}, {O.sk0}"); I(f"s_bitset0_b32 s{S_MASK}, s{S_T1}")
    I(f"s_mov_b32 s{S_FB}, 0"); I(f"s_mov_b32 s{S_KVG}, s{S_KV0}"); I(f"s_mov_b32 s{S_SCALE}, {f2u(SCALE):#x}")
    I(f"s_lshl_b32 s{S_T0}, s{S_B}, 1"); I(f"s_add_u32 s{S_T0}, s{S_T0}, s{S_R}"); I(f"s_lshl_b32 s{S_T0}, s{S_T0}, 5"); I(f"s_add_u32 s{S_T0}, s{S_T0}, s{S_H}")
    I(f"s_lshl_b32 s{S_T0}, s{S_T0}, 1"); I(f"s_add_u32 s{S_T0}, s{S_T0}, s{S_C}"); I(f"s_mul_i32 s{S_OST}, s{S_T0}, 14336")
    I(f"s_lshl_b32 s{S_T0}, s{S_B}, 5"); I(f"s_add_u32 s{S_T0}, s{S_T0}, s{S_H}")
    I(f"s_lshr_b32 s{S_SIG}, s{S_T0}, 2"); I(f"s_lshl_b32 s{S_SIG}, s{S_SIG}, 7"); I(f"s_and_b32 s{S_T1}, s{S_H}, 3"); I(f"s_lshl_b32 s{S_T1}, s{S_T1}, 2"); I(f"s_add_u32 s{S_SIG}, s{S_SIG}, s{S_T1}"); I(f"s_add_u32 s{S_SIG}, s{S_SIG}, {FLG}")
    I(f"s_lshl_b32 s{S_T0}, s{S_T0}, 2"); I(f"s_add_u32 s{S_T0}, s{S_T0}, s{S_WAVE}"); I(f"s_mul_i32 s{S_INB}, s{S_T0}, 7168"); I(f"s_add_u32 s{S_INB}, s{S_INB}, {PART}")
    I(f"s_lshl_b32 s101, s{S_T0}, 7"); I(f"s_add_u32 s101, s101, {FLG + 65536}")
    KH = S_SL0; CG = S_SL1; U = S_SL2
    I(f"s_bfe_u32 s{KH}, s{S_H}, 0x10003"); I(f"s_and_b32 s{S_T3}, s{S_H}, 7"); I(f"s_lshr_b32 s{CG}, s{S_H}, 4"); I(f"s_lshl_b32 s{CG}, s{CG}, 3"); I(f"s_add_u32 s{CG}, s{CG}, s{S_T3}")
    I(f"s_lshr_b32 s{S_T1}, s2, 3"); I(f"s_and_b32 s{S_T2}, s{S_B}, 3")
    I(f"s_lshl_b32 s{S_PFO}, s{S_T1}, 14"); I(f"s_lshl_b32 s6, s{S_T3}, 7"); I(f"s_sub_u32 s{S_PFO}, s{S_PFO}, s6")
    I(f"s_mul_i32 s{S_T2}, s{S_T2}, {O.k2_rot_r}"); I(f"s_mul_i32 s{S_T3}, s{S_T3}, {O.k2_rot_c}"); I(f"s_add_u32 s{U}, s{S_T2}, s{S_T3}")
    I(f"s_xor_b32 s{S_T1}, s{KH}, 1"); I(f"s_lshl_b32 s{S_T1}, s{S_T1}, 1"); I(f"s_add_u32 s{S_T1}, s{S_T1}, s{S_C}"); I(f"s_lshl_b32 s{S_T2}, s{S_R}, 2"); I(f"s_add_u32 s{S_T1}, s{S_T1}, s{S_T2}")
    I(f"s_lshl_b32 s{S_T0}, s{S_B}, 4"); I(f"s_add_u32 s{S_T0}, s{S_T0}, s{S_T1}"); I(f"s_mul_i32 s{S_T0}, s{S_T0}, {16*7168}")
    srd(S_OO, P_WS, 144 * 7168, S_T0, sub=False)
    I(f"s_lshl_b32 s{S_POLL}, s{S_B}, 3"); I(f"s_add_u32 s{S_POLL}, s{S_POLL}, s{S_T1}"); I(f"s_lshl_b32 s{S_POLL}, s{S_POLL}, 7"); I(f"s_add_u32 s{S_POLL}, s{S_POLL}, {FLG}")
    I(f"s_lshl_b32 s{S_T1}, s{S_T1}, 20"); I(f"s_lshl_b32 s{S_T2}, s{CG}, 7"); I(f"s_add_u32 s{S_T1}, s{S_T1}, s{S_T2}")
    srd(S_WO, P_WO, 8388608, S_T1)
    I(f"s_lshl_b32 s{S_T0}, s{S_B}, 1"); I(f"s_add_u32 s{S_T0}, s{S_T0}, s{KH}")
    I(f"s_mul_i32 s{S_OUTOFF}, s{S_T0}, {112*2048}"); I(f"s_add_u32 s{S_OUTOFF}, s{S_OUTOFF}, s{S_T2}"); I(f"s_lshl_b32 s{S_T1}, s{S_WAVE}, 5"); I(f"s_add_u32 s{S_OUTOFF}, s{S_OUTOFF}, s{S_T1}")
    for u in range(8):
        I(f"s_add_u32 s{S_T0}, s{U}, {u}"); I(f"s_and_b32 s{S_T0}, s{S_T0}, 7"); I(f"s_lshl_b32 s{S_TW+u}, s{S_T0}, 16"); I(f"s_mul_i32 s{S_TO+u}, s{S_T0}, 7168")
    I(f"s_lshl_b32 s{S_LB0}, s{S_WAVE}, 13"); I(f"s_add_u32 s{S_LB0}, s{S_LB0}, 98304"); I(f"s_xor_b32 s{S_T3}, s{S_WAVE}, 1")
    I(f"s_mul_i32 s{S_LB1}, s{S_T3}, 28672"); I(f"s_cmp_eq_u32 s{S_T3}, 3"); I(f"s_cselect_b32 s{S_LB1}, 131072, s{S_LB1}")
    I(f"s_mul_i32 s{S_CA}, s{S_WAVE}, 28672"); I(f"s_cmp_eq_u32 s{S_WAVE}, 3"); I(f"s_cselect_b32 s{S_CA}, 131072, s{S_CA}")
    I(f"s_lshl_b32 s{S_STW}, s{S_WAVE}, 10"); I(f"s_add_u32 s{S_STW}, s{S_STW}, {ST0}")
    I(f"v_lshlrev_b32 v{T+4}, 1, v{T+1}"); I(f"v_and_b32 v{T+6}, 7, v0"); I(f"v_xor_b32 v{T+6}, v{T+4}, v{T+6}"); I(f"v_lshl_add_u32 v{V_WOB}, v{T+6}, 4, v{T+7}")
    I(f"v_xor_b32 v{T+4}, v{T+4}, v{T}"); I(f"v_lshlrev_b32 v{T+5}, 8, v{T+1}")
    for j in range(4):
        I(f"v_xor_b32 v{T+6}, {8*(j&1) + (j>>1)}, v{T+4}"); I(f"v_lshl_add_u32 v{V_KVOFF+j}, v{T+6}, 4, v{T+5}")
    if O.kv_noswz:
        for j in range(4): I(f"v_lshlrev_b32 v{V_KVOFF+j}, 4, v0")
    I(f"v_lshlrev_b32 v{V_LANE16}, 4, v0"); I(f"v_bfe_u32 v{T+2}, v0, 2, 2"); I(f"v_and_b32 v{T+3}, 3, v0")
    I(f"v_lshrrev_b32 v{T+4}, 1, v{T}"); I(f"v_xor_b32 v{T+4}, v{T+4}, v{T+1}"); I(f"s_mul_i32 s{S_T0}, s{S_R}, {112*128}")
    I(f"v_lshlrev_b32 v{T+5}, 7, v{T}"); I(f"v_add_u32 v{T+5}, s{S_T0}, v{T+5}"); I(f"v_lshl_add_u32 v{V_XB}, v{T+4}, 4, v{T+5}"); I(f"v_xor_b32 v{V_XB+1}, 64, v{V_XB}")
    I(f"v_lshrrev_b32 v{T+4}, 1, v{T+3}"); I(f"v_and_b32 v{T+5}, 1, v{T+3}"); I(f"v_lshl_add_u32 v{T+4}, v{T+5}, 1, v{T+4}")
    I(f"s_lshl_b32 s{S_T0}, s{S_C}, 1"); I(f"v_xor_b32 v{T+5}, s{S_T0}, v{T+2}"); I(f"v_lshl_add_u32 v{T+4}, v{T+5}, 2, v{T+4}")
    I(f"v_lshl_add_u32 v{T+5}, v{T+1}, 3, v{T+2}"); I(f"v_lshlrev_b32 v{T+5}, 8, v{T+5}"); I(f"v_lshl_add_u32 v{V_WB}, v{T+4}, 4, v{T+5}"); I(f"v_xor_b32 v{V_WB+1}, 64, v{V_WB}")
    I(f"v_lshrrev_b32 v{T+4}, 1, v{T+1}"); I(f"v_and_b32 v{T+5}, 1, v{T+1}"); I(f"v_lshl_add_u32 v{T+4}, v{T+5}, 1, v{T+4}")
    I(f"v_and_b32 v{T+5}, 7, v{T}"); I(f"v_lshrrev_b32 v{T+6}, 3, v{T}"); I(f"v_lshl_add_u32 v{T+5}, v{T+5}, 1, v{T+6}")
    I(f"v_xor_b32 v{T+4}, v{T+4}, v{T+5}"); I(f"s_lshl_b32 s{S_T0}, s{S_C}, 3"); I(f"v_xor_b32 v{T+4}, s{S_T0}, v{T+4}")
    I(f"s_lshl_b32 s{S_T1}, s{S_C}, 13"); I(f"s_add_u32 s{S_T2}, s{S_T1}, {KOFF}")
    I(f"v_lshlrev_b32 v{T+5}, 8, v{T}"); I(f"v_add_u32 v{T+5}, s{S_T2}, v{T+5}"); I(f"v_lshl_add_u32 v{V_KB}, v{T+4}, 4, v{T+5}")
    I(f"v_lshl_add_u32 v{T+6}, v{T+1}, 2, v{T+2}")
    I(f"v_bfe_u32 v{T+4}, v{T+6}, 1, 2"); I(f"v_xor_b32 v{T+4}, s{S_WAVE}, v{T+4}"); I(f"v_lshlrev_b32 v{T+5}, 7, v{T+6}"); I(f"v_lshl_add_u32 v{T+5}, v{T+4}, 5, v{T+5}"); I(f"v_lshl_add_u32 v{V_RAB}, v{T+3}, 3, v{T+5}")
    I(f"v_and_b32 v{T+4}, 7, v{T+6}"); I(f"v_lshrrev_b32 v{T+5}, 3, v{T+6}"); I(f"v_lshl_add_u32 v{T+4}, v{T+4}, 1, v{T+5}")
    I(f"v_bfe_u32 v{T+5}, v0, 1, 1"); I(f"v_xor_b32 v{T+4}, v{T+4}, v{T+5}"); I(f"v_xor_b32 v{T+4}, s{S_T0}, v{T+4}")
    I(f"v_lshlrev_b32 v{T+6}, 8, v{T+6}"); I(f"v_add_u32 v{T+6}, s{S_T1}, v{T+6}"); I(f"v_lshl_add_u32 v{T+6}, v{T+4}, 4, v{T+6}")
    I(f"v_and_b32 v{T+5}, 1, v0"); I(f"v_lshl_add_u32 v{V_VB}, v{T+5}, 3, v{T+6}")
    for k in range(2):
        I(f"v_mov_b32 v{V_XA+k}, v{V_XB+k}"); I(f"v_mov_b32 v{V_WA+k}, v{V_WB+k}")
    if not O.e4:
        for k in range(32): I(f"v_mov_b32 v{OK_+80+k}, 0")
    for k in range(32): I(f"v_accvgpr_write_b32 a{OS_+80+k}, 0")
    for x in v_addr((RING - 1) * 32768): I(x)
    I(f"s_mul_i32 s{S_T2}, s{S_WAVE}, 14336"); I(f"v_add_u32 v{V_T0}, s{S_T2}, v{V_LANE16}")
    I(f"s_mul_i32 s{S_T3}, s{S_T3}, 14336"); I(f"v_add_u32 v{V_QP}, s{S_T3}, v{V_LANE16}")
    I(f"v_add_u32 v{V_KW1}, s{S_W4K}, v{V_LANE16}"); I(f"v_add_u32 v{V_KW0}, 0x10000, v{V_KW1}"); I(f"v_add_u32 v{V_KW2}, 0x20000, v{V_KW1}")
    if O.cpf:
        c1 = code_pf("L_trans", 6, 215)
        for x in c1[0] + [c1[1]]: I(x)
    for p in range(O.nl2):
        same = O.f1 == O.f2
        for rng, t, h in ((O.f1, S_T1, 0), (O.f2, S_T2, 1)):
            lo, hi = [int(z) for z in rng.split(",")]; n = hi - lo + 1
            I(f"s_add_u32 s{t}, s2, {128 if h else 0}"); I(f"s_and_b32 s{t}, s{t}, 255"); I(f"s_mul_i32 s{t}, s{t}, {n}"); I(f"s_lshr_b32 s{t}, s{t}, 8"); I(f"s_add_u32 s{t}, s{t}, {lo}")
            I(f"s_lshl_b32 s{t}, s{t}, 14"); I(f"s_add_u32 s{t}, s{t}, s{S_KV0}"); I(f"s_and_b32 s{t}, s{t}, 0x3ffff")
        I(f"s_mov_b32 s62, s{S_T1}"); I(f"s_mov_b32 s63, s{S_T2}"); I(f"v_and_b32 v{V_TMP+10}, 15, v0"); I(f"v_lshlrev_b32 v{V_TMP+10}, 7, v{V_TMP+10}")
        I(f"v_mov_b32 v{T+4}, s{S_T1}"); I(f"v_mov_b32 v{T+5}, s{S_T2}"); I(f"v_cmp_gt_u32 vcc, 32, v0"); I(f"v_and_b32 v{T+6}, 31, v0"); I("s_nop 0")
        I(f"v_cndmask_b32 v{T+4}, v{T+5}, v{T+4}, vcc"); I(f"v_lshl_add_u32 v{V_PF+p}, v{T+6}, 7, v{T+4}")
    if O.gmode:
        I(f"s_cmp_eq_u32 s{S_R}, 0"); I(f"s_cselect_b32 s4, s{S_K}, s{S_V}"); I(f"s_cselect_b32 s5, s{S_K+1}, s{S_V+1}"); I(f"s_cselect_b32 s{S_T0}, 16384, 0")
        I("s_mov_b32 s6, 262144"); I("s_mov_b32 s7, 0x20000")
        I(f"s_sub_u32 s{S_T1}, s{S_KV0}, s{S_W4K}"); I(f"s_add_u32 s{S_T0}, s{S_T0}, s{S_T1}"); I(f"s_lshl_b32 s{S_T1}, s{S_C}, 13"); I(f"s_add_u32 s{S_T0}, s{S_T0}, s{S_T1}")
        for r in range(O.g_rounds):
            I(f"s_add_u32 s{60+r}, s{S_T0}, {r*16384}"); I(f"s_and_b32 s{60+r}, s{60+r}, 0x3ffff")
        I(f"s_lshr_b32 s100, s2, 3"); I(f"s_mul_i32 s100, s100, {O.g_per}"); I("s_lshr_b32 s100, s100, 5")
        I(f"v_lshlrev_b32 v{V_KW0}, 7, v0")
    emit_dma(take(-1, max(0, O.n_up - O.n_up0), 0), post=True)
    I("s_waitcnt vmcnt(@xa0)"); I("s_barrier")
    stamp()
    for r in r_w(0)[:2] + r_x([0])[:1] + r_w(0)[2:] + r_x(range(4))[1:]: I(r)
    for k in range(2): I(f"v_add_u32 v{V_WA+k}, {stg(1)}, v{V_WB+k}")
    I("s_waitcnt lgkmcnt(0) vmcnt(@w_1)"); I("s_barrier")
    el = early_loads(); ew = early_writes()
    l2 = [([], f"buffer_load_dword v{V_TMP+6}, v{V_PF+p}, {sr(sq,4)}, 0 offen") for p in range(O.nl2) for sq in (S_K, S_V)]
    del THIN[:]
    if O.paced:
        l2 = []
        THIN.extend([([], f"buffer_load_dword v{V_TMP+6}, v{V_TMP+10}, {sr(sq,4)}, s{62+f} offen offset:{hf*2048}") for f in range(O.nfar) for sq in (S_K, S_V) for hf in range(2)])
    qwork = []
    for rt in range(7):
        for kp in range(2):
            b = p1_acc(rt) + 8 * kp; t = SB + 4 * ((2 * rt + kp) % 8)
            rdy = 8 * rt + (4 * kp + 3 if O.accord else 5 + 2 * kp) + 9
            qwork += [(rdy, "v", f"v_mul_f32 v{b+k}, s{S_SCALE}, v{b+k}") for k in range(8)]
            if O.tr_early: qwork += [(rdy, "v", f"v_cvt_pk_bf16_f32 v{t+k}, v{b+2*k}, v{b+2*k+1}") for k in range(4)] + [(rdy, "w", f"ds_write_b128 v{V_T0}, {vr(t)} offset:{(2*rt+kp)*1024} ;@qw")]
    ne = 0
    NE = len(el) - O.tail_n
    nit = O.kv_last - O.kv_first
    def gat(hh):
        k = hh - O.g_start
        if not O.gmode or k < 0 or k >= O.g_per * O.g_rounds: return []
        return [([f"s_cmp_eq_u32 s100, {k % O.g_per}", f"s_cselect_b32 s101, s{60 + k // O.g_per}, 0x40000000"], f"buffer_load_dword v{V_TMP+6}, v{V_KW0}, s[4:7], s101 offen")]
    def tagd(g, t, adv=False):
        g = [(x[0], x[1] + f" ;@{t}") for x in g]
        if adv: g[3] = g[3] + ([KVG_UPD],)
        return g
    late = tagd(kv_dma("V", 4 * 32768), "v0", True) + tagd(kv_dma("K", 3 * 32768), "s1") + tagd(kv_dma("V", 3 * 32768), "s1", True) + tagd(kv_dma("K", 2 * 32768), "s2") + tagd(kv_dma("V", 2 * 32768), "s2", True)
    for i in range(16):
        if i <= 12: ma = take(2 * i, O.capA2 if i == 0 else O.capA, O.capA2)
        elif O.gmode: ma = gat(2 * i) + {13: [], 14: late[6:12], 15: late[18:20]}[i]
        elif i == 13: ma = take(26, 6, 6) + (el[NE:NE + 2] if O.paced else el[NE:NE + 4])
        elif i == 14: ma = (el[NE + 4:NE + 6] if O.paced else []) + ew[6:12]
        else: ma = (THIN[:1] if O.paced else []) + ew[17:20]
        if 2 * i == O.l2_at: ma = ma + l2
        rd = r_x(range(4, 7)) + (r_w(i + 1) if i < 15 else [])
        addr = [(5, f"v_add_u32 v{V_XA+k}, {stg(i+1)}, v{V_XB+k}") for k in range(2)] if i < 15 else []
        va = (qwork, 0) if i == 15 else None
        p1_half(p1_mfmas(i, range(4)), ma, rd, addr, "s_waitcnt lgkmcnt(0)" + (f" vmcnt(@xa{i+1})" if i < 15 else ""), valu=va)
        k = 0
        if O.kv_first <= i < O.kv_last and not O.gmode: k = ((i - O.kv_first + 1) * NE) // nit - ne
        mb = el[ne:ne + k] + gat(2 * i + 1); ne += k
        tk = take(2 * i + 1, O.capB2 if i == 0 else O.capB, O.capB2)
        if i == O.k0_it:
            p = [n for n, x in enumerate(tk) if x[0]][0]
            tk = tk[:p] + kv_dma("K", 4 * 32768, S_KV0) + tk[p:]
        mb += tk
        if i == 13: assert not Q and not tk
        if i == 13: mb += late[0:6] if O.gmode else (el[NE + 2:NE + 4] if O.paced else el[NE + 4:]) + ew[0:6]
        if i == 14: mb += (el[NE + 6:] if O.paced else []) + ew[12:17]
        if i == 15 and O.paced: mb += THIN[1:2]
        if 2 * i + 1 == O.l2_at: mb = mb + l2
        if O.cpf and i == 12: mb = mb + [([], c1[2])]
        rd = r_x(range(4)) if i < 15 else []
        addr = [(-1, f"v_add_u32 v{V_WA+k}, {stg(i+2)}, v{V_WB+k}") for k in range(2)] if i < 14 else []
        if i == 15: va = (qwork, 32)
        wait = None if i == 15 else "s_waitcnt lgkmcnt(0)" + (f" vmcnt(@w_{i+2})" if i < 14 else " vmcnt(@xb15)")
        p1_half(p1_mfmas(i, range(4, 7)), mb, rd, addr, wait, valu=va)
        if O.p1st and i < 15: stamp()
    stamp()
    A("L_trans:")
    for x in k_addr((RING - 1) * 32768): I(x)
    for f in range(8): I(k_read(f))
    assert O.tr_early
    if O.paced and len(THIN) > 2: I(THIN[2][1])
    for x in pendw: I(x)
    del pendw[:]
    for w in qwork: I(w[2])
    for rt in range(7):
        for kp in range(2): I(f"ds_read_b128 {ar(QA+16*rt+4*kp)}, v{V_T0} offset:{(2*rt+kp)*1024}")
    I(f"s_mov_b32 s{S_DS}, {4*32768}"); I(f"s_mov_b32 s{S_SL2}, {3*32768}"); I(f"s_mov_b32 s{S_I}, 0")
    I("s_waitcnt lgkmcnt(@qw)" + (" vmcnt(@v0)" if O.gmode else "")); I("s_barrier")
    for rt in range(7):
        for kp in range(2): I(f"ds_read_b128 {ar(QA+16*rt+8+4*kp)}, v{V_QP} offset:{(2*rt+kp)*1024}")
    if O.paced and len(THIN) > 3: I(THIN[3][1])
    I(f"v_add_u32 v{V_T0}, s{S_CA}, v{V_LANE16}")
    I(f"v_add_u32 v{V_T1}, s{S_LB1}, v{V_LANE16}")
    I(f"v_mov_b32 v{V_WOF}, v{V_WOB}")
    for j in range(1, 4): I(f"v_add_u32 v{V_WOF+j}, {j*16384-j*1024}, v{V_WOB}")
    I("s_waitcnt lgkmcnt(0)"); I("s_barrier")
    if not O.s4_in: emit_dma(kv_dma("K", 0) + kv_dma("V", 0)); I(KVG_UPD)
    stamp()
    att_iter("first").emit()
    g = sm0_ops(6)
    S = SB + 8 * COL[6]; pn = sm0_nm(5)
    for x in g[0] + g[1] + [pn[2]] + g[2] + [pn[3]] + g[3]: I(x)
    for k in range(1, 8): I(f"v_sub_f32 v{S+k}, v{S+k}, v{V_TMP}")
    for x in sm0_nm(6): I(x)
    I(f"v_mov_b32 v{LS+6}, 0")
    def clear_code():
        I(f"v_mov_b32 v{V_TMP+4}, s{S_SIG}"); I(f"v_mov_b32 v{V_TMP+5}, 0"); I(f"v_writelane_b32 v{V_TMP+4}, s101, 1"); I("s_mov_b64 exec, 3")
        I(f"global_store_dword v{V_TMP+4}, v{V_TMP+5}, {sr(P_WS)} sc1"); I("s_mov_b64 exec, -1")
    def count_code():
        I(f"s_or_b32 s{S_T0}, s{S_WAVE}, s{S_FB}"); I("s_cbranch_scc1 L_nosig0")
        I(f"v_mov_b32 v{V_TMP+5}, 0"); I(f"v_mov_b32 v{V_TMP+7}, 1"); I("s_mov_b64 exec, 1")
        I(f"global_atomic_add v{V_TMP+5}, v{V_TMP+7}, {sr(P_DBG)} sc1 ;@nocount")
        I("s_mov_b64 exec, -1")
        A("L_nosig0:")
    assert O.ta >= 4
    if O.clr == 0: clear_code()
    if O.epst: stamp()
    A(".p2align 6"); A("L_att:")
    for lp in ((0, 1) if O.ta else (1,)):
        if lp and O.clr == 0: count_code()
        if lp and O.clr == 1:
            I(f"s_cmp_lg_u32 s{S_FB}, 0"); I("s_cbranch_scc1 L_noclr"); clear_code(); A("L_noclr:")
        if lp and O.ta: A(".p2align 6"); A("L_att2:")
        G = att_iter("loop", lp)
        if O.loopst:
            G.s[92].append("s_memtime s[98:99]"); G.p[94].append("s_memtime s[100:101]"); G.p[95].append("s_memtime s[62:63]")
            G.v[7].append(f"v_cmp_eq_u32 vcc, s{S_I}, v0")
            for k, sg in enumerate((98, 100, 62)):
                G.v[11 + 4 * k].append(f"v_mov_b32 v251, s{sg}"); G.v[11 + 4 * k].append(f"v_cndmask_b32 v{252+k}, v{252+k}, v251, vcc")
        G.emit()
        I("s_cbranch_scc1 " + ("L_att2" if (lp and O.ta) else "L_att"))
    if O.epst: stamp()
    if O.loopst:
        I(f"s_lshl_b32 s{S_T0}, s2, 12"); I(f"s_lshl_b32 s{S_T1}, s{S_WAVE}, 10"); I(f"s_add_u32 s{S_T0}, s{S_T0}, s{S_T1}"); I(f"s_add_u32 s{S_T0}, s{S_T0}, {(1<<26)+(1<<20)}"); I(f"v_lshl_add_u32 v251, v0, 4, s{S_T0}")
        I(f"global_store_dwordx4 v251, v[252:255], {sr(P_WS)}")
    if O.clr == 1: count_code()
    for t in range(12 + O.nskip, 15): att_iter("pen", t).emit()
    A("L_last:")
    if O.epst: stamp()
    att_iter("last").emit()
    def sendfirst(m): return m[4:] + m[:4]
    def osend(rt, k): return f"ds_write_b128 v{V_T0}, {ar(OS_+16*rt+4*k)} offset:{(4*rt+k)*1024}"
    I("s_nop 0")
    G = Gaps(sendfirst(pv_mfmas(5)))
    e, a, c = sm_ops(6)
    for k in range(8):
        G.v[k].append(e[k])
        if k: G.v[k].append(a[k - 1])
        if k in (2, 4, 6): G.v[k].append(c[k // 2 - 1])
    for k in range(4): G.m[1 + 2 * k].append(osend(4, k))
    G.emit()
    I("s_nop 0"); I(c[3]); I(a[7]); I(f"s_mov_b32 s{S_T0}, {f2u(2.0**40):#x}")
    G = Gaps(sendfirst(pv_mfmas(6)))
    for k in range(7): G.v[[1, 1, 3, 3, 5, 5, 7][k]].append(f"v_mov_b32 v{V_TMP+k}, v{LS+k}")
    for k in range(4): G.m[2 * k].append(osend(5, k))
    G.emit()
    stamp()
    regs = [LS + rt for rt in range(7)]; temps = [V_TMP + rt for rt in range(7)]
    I(osend(6, 0)); I(osend(6, 1))
    for r, t in zip(regs, temps): I(f"v_permlane32_swap_b32 v{r}, v{t}")
    I(osend(6, 2))
    for r, t in zip(regs, temps): I(f"v_add_f32 v{r}, v{r}, v{t}")
    for r, t in zip(regs, temps): I(f"v_mov_b32 v{t}, v{r}")
    I(osend(6, 3)); I("s_nop 0")
    for r, t in zip(regs, temps): I(f"v_permlane16_swap_b32 v{r}, v{t}")
    I("s_nop 0")
    for rt, (r, t) in enumerate(zip(regs, temps)): I(f"v_add_f32 v{NM+4*rt+1}, v{r}, v{t}")
    I(f"v_add_f32 v{V_TMP}, v{NM+1}, v{NM+5}"); I(f"v_add_f32 v{V_TMP+1}, v{NM+9}, v{NM+13}"); I(f"v_add_f32 v{V_TMP+2}, v{NM+17}, v{NM+21}")
    I(f"v_add_f32 v{V_TMP}, v{V_TMP}, v{NM+25}"); I(f"v_add_f32 v{V_TMP+1}, v{V_TMP+1}, v{V_TMP+2}"); I(f"v_add_f32 v{V_TMP}, v{V_TMP}, v{V_TMP+1}")
    I(f"v_cmp_nlt_f32 vcc, v{V_TMP}, s{S_T0}")
    for rt in range(7): I(f"ds_write_b64 v{V_STW}, {vr(NM+4*rt,2)} offset:{rt*128}")
    I(f"s_cmp_lg_u64 vcc, 0"); I(f"s_cselect_b32 s{S_T1}, 1, 0"); I(f"s_andn2_b32 s{S_T1}, s{S_T1}, s{S_FB}"); I(f"v_mov_b32 v{V_TMP+1}, s{S_T1}")
    I(f"ds_write_b32 v{V_STW}, v{V_TMP+1} offset:896")
    I("s_waitcnt lgkmcnt(0)"); I("s_barrier")
    if O.epst: stamp()
    I(f"ds_read_b32 v{V_TMP+4}, v{V_FLR} ;@fl")
    for rt in range(7): I(f"ds_read_b64 {vr(NM+4*rt+2,2)}, v{V_STR} offset:{rt*128} ;@st")
    RB = 128
    def recv(rt):
        for dq in range(4): I(f"ds_read_b128 {vr(RB+16*(rt%4)+4*dq)}, v{V_T1} offset:{(4*rt+dq)*1024} ;@r{rt}")
    recv(0)
    I("s_waitcnt lgkmcnt(@fl)" if O.fast_ep else "s_waitcnt lgkmcnt(@fl) vmcnt(@w1)")
    I(f"v_cmp_ne_u32 vcc, 0, v{V_TMP+4}")
    recv(1)
    I("s_cbranch_vccnz L_fallback")
    st = {"dma": 2, "rd": 0}; free = []; pend = []
    def do_read(wait=True):
        m = st["rd"]; st["rd"] += 1
        if wait: I(f"s_waitcnt vmcnt(@w{m})")
        for r in a_reads(m): I(r)
        pend.append(m)
    def release(n=None):
        k = len(pend) if n is None else n
        if not k: return
        I(f"s_waitcnt lgkmcnt(@a{pend[k-1]})")
        for _ in range(k): free.append(slot_of[pend.pop(0)])
    def do_dma():
        m = st["dma"]; st["dma"] += 1
        slot_of[m] = free.pop(0); emit_dma(wo_dma(m))
    def factors(rts):
        bs = [NM + 4 * rt for rt in rts]
        for rt, b in zip(rts, bs): I(f"v_min_f32 v{LS+rt}, v{b}, v{b+2}")
        for rt, b in zip(rts, bs): I(f"v_sub_f32 v{b}, v{LS+rt}, v{b}"); I(f"v_sub_f32 v{b+2}, v{LS+rt}, v{b+2}")
        for b in bs: I(f"v_exp_f32 v{b}, v{b}"); I(f"v_exp_f32 v{b+2}, v{b+2}")
        for b in bs: I(f"v_mul_f32 v{b+1}, v{b+1}, v{b}")
        for b in bs: I(f"v_fma_f32 v{b+1}, v{b+3}, v{b+2}, v{b+1}")
        for b in bs: I(f"v_rcp_f32 v{b+1}, v{b+1}")
        for b in bs: I(f"v_mul_f32 v{b}, v{b}, v{b+1}"); I(f"v_mul_f32 v{b+2}, v{b+2}, v{b+1}")
    if O.fast_ep:
        recv(2)
        I("s_waitcnt lgkmcnt(@st)")
        factors([0, 1])
        I("s_waitcnt lgkmcnt(@r1)"); free.extend([2, 3])
    else:
        do_read(False); do_read(False)
        recv(2)
        I("s_waitcnt lgkmcnt(@st)")
        bs = [NM + 4 * rt for rt in range(7)]
        for rt, b in enumerate(bs): I(f"v_min_f32 v{LS+rt}, v{b}, v{b+2}")
        for rt, b in enumerate(bs): I(f"v_sub_f32 v{b}, v{LS+rt}, v{b}"); I(f"v_sub_f32 v{b+2}, v{LS+rt}, v{b+2}")
        release(); free.extend([2, 3])
        for _ in range(min(2, O.pre_dma)): do_dma()
        for b in bs: I(f"v_exp_f32 v{b}, v{b}"); I(f"v_exp_f32 v{b+2}, v{b+2}")
        if O.pre_dma > 2: do_dma()
        for b in bs: I(f"v_mul_f32 v{b+1}, v{b+1}, v{b}")
        for b in bs: I(f"v_fma_f32 v{b+1}, v{b+3}, v{b+2}, v{b+1}")
        for b in bs: I(f"v_rcp_f32 v{b+1}, v{b+1}")
        if O.pre_dma > 3: do_dma()
        for b in bs: I(f"v_mul_f32 v{b}, v{b}, v{b+1}"); I(f"v_mul_f32 v{b+2}, v{b+2}, v{b+1}")
    for rt in range(7):
        if O.epst: stamp()
        if O.fast_ep and rt == 2:
            for _ in range(O.pre_dma): do_dma()
            factors([2, 3, 4, 5, 6])
        if rt + 3 < 7: recv(rt + 3)
        if rt >= 2:
            I(f"s_waitcnt lgkmcnt(@r{rt})"); free.append(2 + rt)
        if free and str(rt) in O.ep_dma: do_dma()
        b = NM + 4 * rt; o = OK_ + 16 * rt; rb = RB + 16 * (rt % 4)
        for k in range(0, 16, 2): I(f"v_pk_mul_f32 {vr(o+k,2)}, {vr(o+k,2)}, {vr(b,2)} op_sel_hi:[1,0]")
        for k in range(0, 16, 2): I(f"v_pk_fma_f32 {vr(o+k,2)}, {vr(rb+k,2)}, {vr(b+2,2)}, {vr(o+k,2)} op_sel_hi:[1,0,1]")
        for k in range(8): I(f"v_cvt_pk_bf16_f32 v{o+k}, v{o+2*k}, v{o+2*k+1}")
        I(f"s_add_u32 s{S_T1}, s{S_OST}, {rt*1024}"); I(f"s_add_u32 s{S_T2}, s{S_OST}, {rt*1024+7168}")
        I(f"buffer_store_dwordx4 {vr(o)}, v{V_LANE16}, {sr(S_O,4)}, s{S_T1} offen {O.pol_ost} ;@os")
        I(f"buffer_store_dwordx4 {vr(o+4)}, v{V_LANE16}, {sr(S_O,4)}, s{S_T2} offen {O.pol_ost} ;@os")
    stamp()
    assert RA_N == 16 and NB == 2
    def poll_loop(name, reg, addr, base, test):
        t = [f"s_mov_b32 s{S_I}, 0", f"L_poll{name}:"] + test + [f"s_cbranch_scc1 L_ready{name}", f"s_add_u32 s{S_I}, s{S_I}, 1",
             f"s_cmp_ge_u32 s{S_I}, 0x40000", f"s_cbranch_scc1 L_ready{name}", "s_sleep 2", f"global_load_dword v{reg}, v{addr}, {sr(base)} sc1 ;@nocount", "s_waitcnt vmcnt(0)", f"s_branch L_poll{name}", f"L_ready{name}:"]
        return chr(10).join(t)
    allset = [f"v_cmp_ne_u32 vcc, 1, v{V_TMP+3}", "s_nop 1", "s_cmp_eq_u64 vcc, 0"]
    I(f"v_mov_b32 v{V_TMP}, s{S_SIG}"); I(f"v_mov_b32 v{V_TMP+1}, 1"); I(f"v_and_b32 v{V_TMP+2}, 3, v0"); I(f"v_lshl_add_u32 v{V_TMP+2}, v{V_TMP+2}, 2, s{S_POLL}")
    I(f"s_bfe_u32 s{S_T0}, s{S_H}, 0x10003"); I(f"s_mul_i32 s{S_WBO+2}, s{S_T0}, {128*7168}"); I(f"s_sub_u32 s{S_WBO}, {128*7168}, s{S_WBO+2}")
    I(f"s_add_u32 s{S_WBO+1}, s{S_WBO}, {8*7168}"); I(f"s_add_u32 s{S_WBO+3}, s{S_WBO+2}, {8*7168}")
    I(f"s_lshl_b32 s{S_T0}, s{S_B}, 5"); I(f"s_add_u32 s{S_T0}, s{S_T0}, s{S_H}"); I(f"s_lshl_b32 s{S_T0}, s{S_T0}, 2"); I(f"s_add_u32 s{S_T0}, s{S_T0}, s{S_WAVE}")
    I(f"s_xor_b32 s{S_T0}, s{S_T0}, 32"); I(f"s_mul_i32 s{S_PST}, s{S_T0}, 7168"); I(f"s_add_u32 s{S_PST}, s{S_PST}, {PART}")
    older = st["dma"]
    while st["rd"] < older: do_read()
    I("s_waitcnt vmcnt(0)"); I("s_barrier")
    I(f"s_cmp_lg_u32 s{S_WAVE}, 0"); I("s_cbranch_scc1 L_nosig")
    I("s_mov_b64 exec, 1")
    I(f"global_store_dword v{V_TMP}, v{V_TMP+1}, {sr(P_WS)} sc1 ;@nocount")
    I("s_mov_b64 exec, -1")
    A("L_nosig:")
    I(poll_loop("0", V_TMP + 10, V_TMP + 9, P_DBG, [f"v_readfirstlane_b32 s{S_T0}, v{V_TMP+10}", "s_nop 0", f"s_cmp_ge_u32 s{S_T0}, 256"]))
    stamp()
    release()
    pol_ = [False]
    def maybe_poll():
        if not pol_[0] and st["dma"] >= 16 - O.poll_lead:
            I(f"global_load_dword v{V_TMP+3}, v{V_TMP+2}, {sr(P_WS)} sc1 ;@poll"); pol_[0] = st["dma"]
    while free and st["dma"] < 16: maybe_poll(); do_dma()
    while st["dma"] < 16:
        do_read()
        if len(pend) > 1: release(1); maybe_poll(); do_dma()
    maybe_poll()
    RD = V_TMP + 4
    for cq in range(4):
        I(f"s_xor_b32 s{S_T0}, s{S_WAVE}, {cq}"); I(f"s_mul_i32 s{S_T0}, s{S_T0}, 28672"); I(f"v_add_u32 v{RD+cq}, s{S_T0}, v{V_LANE16}")
    V_OA = V_TMP + 8
    I(f"v_and_b32 v{V_OA}, 15, v0"); I(f"v_lshlrev_b32 v{V_OA}, 11, v{V_OA}"); I(f"v_lshrrev_b32 v{V_TMP+9}, 4, v0"); I(f"v_lshl_add_u32 v{V_OA}, v{V_TMP+9}, 3, v{V_OA}")
    I(f"v_mov_b32 v{V_TMP+9}, s101"); I(f"v_xor_b32 v{V_TMP}, {32*128}, v{V_TMP+9}")
    while st["rd"] < pol_[0]: do_read()
    I("s_waitcnt vmcnt(@poll)")
    stamp()
    I(poll_loop("1", V_TMP + 3, V_TMP + 2, P_WS, allset))
    stamp()
    def bl(n, rt):
        x = b_loads(n)[rt]
        return (x[0], x[1].replace(f";@b{n}", f";@b{n}_{rt}"))
    for rt in range(7): emit_dma([bl(0, rt), bl(1, rt)])
    while st["rd"] < 16: do_read()
    I("s_waitcnt vmcnt(@b1_0) lgkmcnt(0)")
    stamp()
    def wr_(rt, cq, tag): return f"ds_write_b128 v{RD+cq}, {vr(ACC+16*rt+4*cq)} offset:{(cq*7+rt)*1024} ;@{tag}"
    FR_ = [f"ds_read_b128 {vr(ACC+16*rt+4*cq)}, v{RD} offset:{(cq*7+rt)*1024} ;@f{rt}" for rt in range(7) for cq in range(1, 4)]
    wr = [wr_(rt, cq, f"fw{rt}") for rt in range(7) for cq in range(1, 4)]
    PR = 192; SC = 220
    GS = []
    for N in range(16):
        n = 2 * N
        m0, m1 = p3_mfmas(n), p3_mfmas(n + 1)
        order = [1, 2, 3, 0] if N == 15 else [0, 1, 2, 3]
        GS += [x for rt in range(7) for cq in order for x in (m0[4 * rt + cq], m1[4 * rt + cq])]
    G = Gaps(GS)
    for N in range(16):
        n = 2 * N; g0 = 56 * N
        if n + 2 < 32:
            for rt in range(7): place(G, [bl(n + 2, rt), bl(n + 3, rt)], [g0 + 8 * rt + 9, g0 + 8 * rt + 11])
        for rt in range(7):
            if g0 + 8 * rt - 1 >= 0: G.s[g0 + 8 * rt - 1].append(f"s_waitcnt vmcnt(@b{n+1}_{rt})")
    G.s[56 * 5].append("s_barrier")
    k = 0
    for rt in range(7):
        for j in range(4): G.v[56 * 7 + 8 * rt + 13 + 2 * (j // 2)].append(f"v_mov_b32 v{PR+4*rt+j}, v{ACC+16*rt+j}")
        for cq in range(1, 4):
            g = 56 * 7 + 16 + 4 * k; k += 1
            assert 56 * 7 + 8 * rt + 2 * cq + 10 <= g < 56 * 8 + 8 * rt + 2 * cq - 1, (rt, cq)
            G.m[g].append(wr_(rt, cq, "mw"))
    g = 56 * 8 + 45
    G.s[g].append("s_waitcnt lgkmcnt(0)"); G.s[g].append("s_barrier")
    for rt in range(7):
        g = 56 * 8 + 48 + 16 * rt
        for cq in range(1, 4): G.m[g + 2 * cq - 2].append(f"ds_read_b128 {vr(SC+4*(cq-1))}, v{RD} offset:{(cq*7+rt)*1024}")
        G.s[g + 8].append("s_waitcnt lgkmcnt(0)")
        ad = [f"v_add_f32 v{PR+4*rt+k}, v{PR+4*rt+k}, v{SC+k}" for k in range(4)] + [f"v_add_f32 v{SC+4+k}, v{SC+4+k}, v{SC+8+k}" for k in range(4)] + [f"v_add_f32 v{PR+4*rt+k}, v{PR+4*rt+k}, v{SC+4+k}" for k in range(4)]
        for k, x in enumerate(ad): G.v[g + [8, 8, 10, 10, 12, 12, 13, 13, 14, 14, 15, 15][k]].append(x)
    g = 56 * 10 + 52
    for rt in range(7):
        G.m[g + [0, 1, 2, 4, 6, 8, 9][rt]].append(f"buffer_store_dwordx4 {vr(PR+4*rt)}, v{V_LANE16 if rt<4 else V_L2}, {sr(S_O,4)}, s{S_PST} offen offset:{(rt%4)*1024} {O.pol_ost} ;@ps")
    g = 56 * 11 + O.s2_g
    G.s[g].append("s_waitcnt vmcnt(@ps)"); G.s[g].append("s_mov_b64 exec, 1")
    G.m[g].append(f"global_store_dword v{V_TMP}, v{V_TMP+1}, {sr(P_WS)} sc1"); G.p[g].append("s_mov_b64 exec, -1")
    G.s[56 * 13 + 4].append("s_barrier")
    G.m[56 * 14 + O.p2_g].append(f"global_load_dword v{V_TMP+3}, v{V_TMP+9}, {sr(P_WS)} sc1 ;@poll2")
    G.p[56 * 15 + 3].append("s_waitcnt vmcnt(@poll2)"); G.p[56 * 15 + 3].append(poll_loop("2", V_TMP + 3, V_TMP + 9, P_WS, allset))
    PL = [f"buffer_load_dwordx4 {vr(PR+4*rt)}, v{V_LANE16 if rt<4 else V_L2}, {sr(S_O,4)}, s{S_INB} offen offset:{(rt%4)*1024} {O.pol_old}" for rt in range(7)]
    for rt in range(7): G.m[56 * 15 + [4, 5, 6, 8, 9, 11, 13][rt]].append(PL[rt] + " ;@pl")
    nw = 0; g0 = 56 * 15
    for rt in range(6):
        for k in range(3): G.m[g0 + 8 * rt + 10 + 2 * k].append(wr[nw]); nw += 1
    if O.fin2:
        G.s[g0 + 43].append("s_waitcnt lgkmcnt(@fw3)"); G.s[g0 + 43].append("s_barrier")
        for g, x in zip([45, 47, 48, 49, 51, 53, 55, 55, 55], FR_[:9]): G.m[g0 + g].append(x)
    if O.p3st:
        for N in range(1, 16):
            k = nstamp[0]; nstamp[0] += 1
            G.p[56 * N - 2].append(f"s_memtime {sr(S_STP)}\ns_memrealtime {sr(S_STP+2)}\ns_waitcnt lgkmcnt(0)\nv_writelane_b32 v{V_STAMP}, s{S_STP}, {2*k}\nv_writelane_b32 v{V_STAMP}, s{S_STP+2}, {2*k+1}")
    G.emit()
    stamp()
    I("s_nop 4")
    def fin(rt):
        I(f"s_waitcnt lgkmcnt(@f{rt})")
        o = ACC + 16 * rt
        for k in (0, 2):
            I(f"v_pk_add_f32 {vr(o+k,2)}, {vr(o+k,2)}, {vr(o+4+k,2)}"); I(f"v_pk_add_f32 {vr(o+8+k,2)}, {vr(o+8+k,2)}, {vr(o+12+k,2)}")
        for k in (0, 2): I(f"v_pk_add_f32 {vr(o+k,2)}, {vr(o+k,2)}, {vr(PR+4*rt+k,2)}")
        for k in (0, 2): I(f"v_pk_add_f32 {vr(o+k,2)}, {vr(o+k,2)}, {vr(o+8+k,2)}")
        I(f"v_cvt_pk_bf16_f32 v{o}, v{o}, v{o+1}"); I(f"v_cvt_pk_bf16_f32 v{o+1}, v{o+2}, v{o+3}")
        I(f"buffer_store_dwordx2 {vr(o,2)}, v{V_OA}, {sr(S_OUT,4)}, s{S_OUTOFF} offen {O.pol_out}")
        I(f"s_add_u32 s{S_OUTOFF}, s{S_OUTOFF}, {16*2048}")
    for x in wr[nw:]: I(x)
    I("s_waitcnt vmcnt(@pl)")
    if O.fin2:
        for x in FR_[9:12]: I(x)
        fin(0); fin(1)
        I("s_waitcnt lgkmcnt(@fw6)"); I("s_barrier")
        for x in FR_[12:]: I(x)
        for rt in range(2, 7): fin(rt)
    else:
        I("s_waitcnt lgkmcnt(0)"); I("s_barrier")
        for x in FR_: I(x)
        for rt in range(7): fin(rt)
    stamp()
    store_stamps()
    A("L_done:")
    I("s_endpgm")
    A("L_fallback:")
    I(f"s_mov_b32 s{S_FB}, 1")
    I("s_waitcnt vmcnt(0) lgkmcnt(0)"); I("s_barrier")
    for rt in range(7): I(f"v_mov_b32 v{NM+4*rt}, 0xff800000")
    I(f"s_mov_b32 s{S_KVG}, s{S_KV0}")
    for x in k_addr(0): I(x)
    I(f"s_mov_b32 s{S_I}, 0")
    A("L_fb_loop:")
    emit_dma(kv_dma("K", 0)); I(KVG_UPD)
    I("s_waitcnt vmcnt(0)"); I("s_barrier")
    for f in range(8): I(k_read(f))
    I("s_waitcnt lgkmcnt(0)"); I("s_barrier")
    for rt in range(7):
        for m in qk_mfmas(rt, SB, usenm=False): I(m)
        I("s_nop 7")
        b = NM + 4 * rt
        for k in range(4): I(f"v_max3_f32 v{b}, v{b}, v{SB+2*k}, v{SB+2*k+1}")
    I(f"s_add_u32 s{S_I}, s{S_I}, 1"); I(f"s_cmp_lt_u32 s{S_I}, 16"); I("s_cbranch_scc1 L_fb_loop")
    multi_reduce([NM + 4 * rt for rt in range(7)], [NM + 4 * rt + 1 for rt in range(7)], "v_max_f32")
    for rt in range(7):
        b = NM + 4 * rt
        I(f"v_sub_f32 v{b}, 0, v{b}")
        for k in range(1, 4): I(f"v_mov_b32 v{b+k}, v{b}")
    I(f"s_mov_b32 s{S_KVG}, s{S_KV0}")
    for st in range(RING - 1):
        emit_dma(kv_dma("K", (4 - st) * 32768) + kv_dma("V", (4 - st) * 32768)); I(KVG_UPD)
    for k in range(112): I(f"v_mov_b32 v{OK_+k}, 0")
    for k in range(112): I(f"v_accvgpr_write_b32 a{OS_+k}, 0")
    for k in range(32): I(f"v_mov_b32 v{VF+k}, 0")
    for k in range(12): I(f"v_mov_b32 v{PB+k}, 0")
    for k in range(7): I(f"v_mov_b32 v{LS+k}, 0")
    for k in range(8): I(f"v_mov_b32 v{SB+16+k}, 0xf149f2ca")
    I(f"s_mov_b32 s{S_MASK}, 0xfff"); I(f"s_mov_b32 s{S_DS}, 0"); I(f"s_mov_b32 s{S_SL2}, {3*32768}"); I(f"s_mov_b32 s{S_I}, -1")
    for x in next_dma_state(): I(x)
    for x in k_addr(4 * 32768) + v_addr(4 * 32768): I(x)
    I("s_waitcnt vmcnt(0)"); I("s_barrier")
    for f in range(8): I(k_read(f))
    I("s_waitcnt lgkmcnt(0)")
    I("s_branch L_att")

HEAD = """
;  phase 2  attention: wave = (112-row half, 32-key half of every 64-key stage); -m enters as the C operand of the first QK MFMA.
;           m is the true max of the wave's first 32 keys; after the loop every row sum is checked (l < 2^40, NaN fails) and the
;  hand-off O (bf16, MFMA fragment order) is written through (sc1), then a per-workgroup flag in ws; flags are cleared inside the launch
;  phase 3  out tile 224x64 over half of K; the half tile owned by the partner workgroup (b, h^8) is computed first and sent in fp32.
; @launch grid=(256,1,1) block=(256,1,1) lds=163840
"""
def main(fn):
    global RA_N, NB
    RA_N = O.ra_n; NB = O.nb
    del L[:]
    nstamp[0] = 0
    A('.amdgcn_target "amdgcn-amd-amdhsa--gfx950"')
    A(".text")
    gen()
    A("  .fill 6144, 4, 0xBF800000")
    A('.section .rodata,"a"\n.p2align 6')
    A(f".amdhsa_kernel {NAME}_kernel\n  .amdhsa_next_free_vgpr 512\n  .amdhsa_next_free_sgpr 102\n  .amdhsa_accum_offset 256\n  .amdhsa_group_segment_fixed_size 0\n  .amdhsa_kernarg_size 64\n  .amdhsa_user_sgpr_count 2\n  .amdhsa_user_sgpr_kernarg_segment_ptr 1\n  .amdhsa_system_sgpr_workgroup_id_x 1\n.end_amdhsa_kernel")
    head = HEAD.strip().split(chr(10))
    open(fn, "w").write("\n".join(head + resolve(L)) + "\n")

if __name__ == "__main__":
    fn = sys.argv[1]
    for kv in sys.argv[2:]:
        k, v = kv.split("=")
        cur = getattr(O, k)
        setattr(O, k, (v == "1") if isinstance(cur, bool) else (int(v) if isinstance(cur, int) else v.replace("+", " ")))
    main(fn)
```

```python
import sys, math, struct, re
NAME = "standalone__mha_block_cached__near_ridge"

class Opt:
    pol_kv = "nt"; pol_x = ""; pol_wq = ""; pol_ost = "sc1"; pol_old = "sc1"; pol_wo = ""; pol_out = ""
    stamps = False; dbgst = False
    rotmul_h = 0; rotmul_b = 0
    k2_rot_c = 1; k2_rot_r = 2
    wo_pref = 3
    kv_first = 6
    abl_nopoll = False
    wo_early = 3
    kv_rot_j = 1
    kv_rot_x = 2
    lin_map = False
    kv_last = 13
    k0_it = 1
    up_chunks = 2
    nl2 = 1
    l2_base = 5
    cpf = True
    wo_mall = False
    n_up = 22
    n_up0 = 8
    capA = 6
    capB = 5
    capA2 = 9
    capB2 = 8
    rotmul_x = 1
    sig_cnt = False
    gmode = False
    g_start = 12
    g_per = 4
    g_rounds = 3
    l2_at = 29
    pf_pen = 2
    s4_in = True
    p1st = False
    abl_noearly = False
    nskip = 2
    epst = False
    ta = 6
    f1 = '5,10'
    f2 = '5,10'
    pf_row = True
    cp0 = 1
    slp = 0
    ps_mode = 0
    bar5 = 5
    f3 = '11,15'
    paced = True
    nfar = 2
    sk0 = 7
    pol_kve = 'nt'
    dbg_wg = 37
    fast_ep = False
    xp = 2
    xd = 4
    xb = 1
    p2_at = 13
    clr = 0
    p3st = False
    s2_g = 52
    p2_g = 12
    fin2 = True
    tail_n = 8
    e4 = True
    wo_first = 0
    pre_dma = 2
    ra_n = 16
    r0 = 10
    nb = 2
    tr_early = True
    accord = True
    ep_dma = '9'
    post_dma = 0
    pf_q = 4
    pf_max = 8
    cpf_at = 14
    pref_last = True
    loopst = False
    tlbw = 0
    abl_nomfma = False
    kv_noswz = False
    att_vm = 24
    abl_nodma = False
    poll_lead = 2
O = Opt()

L = []
def A(s): L.append(s)
def I(s):
    for x in s.split("\n"):
        if x.strip(): L.append("  " + x.strip())
def vr(b, n=4): return f"v[{b}:{b+n-1}]"
def ar(b, n=4): return f"a[{b}:{b+n-1}]"
def sr(b, n=2): return f"s[{b}:{b+n-1}]"
def pol(p): return (p + " ") if p else ""
def f2u(x): return struct.unpack("<I", struct.pack("<f", x))[0]
MF = "v_mfma_f32_16x16x32_bf16"

class Gaps:
    def __init__(self, mf):
        self.mf = list(mf); n = len(self.mf)
        self.s = [[] for _ in range(n)]; self.m = [[] for _ in range(n)]; self.v = [[] for _ in range(n)]; self.p = [[] for _ in range(n)]
    def chain(self, instrs, gaps):
        assert len(gaps) >= len(instrs), (instrs, gaps)
        for x, g in zip(instrs, gaps): self.s[g].append(x)
    def emit(self):
        for i, m in enumerate(self.mf):
            I(m)
            for x in self.s[i] + self.m[i] + self.v[i] + self.p[i]: I(x)

def resolve(lines):
    vm = []; lg = []; out = []
    for ln in lines:
        t = re.search(r";@(\S+)", ln)
        tag = t.group(1) if t else None
        code = ln.split(";")[0].rstrip() if t else ln
        op = code.strip().split(" ")[0] if code.strip() else ""
        def sub(kind, q, cap):
            def f(m):
                k = m.group(1)
                idx = [i for i, x in enumerate(q) if x == k]
                assert idx, ("unknown tag", k, ln)
                return f"{kind}({min(cap, len(q) - 1 - idx[-1])})"
            return f
        code = re.sub(r"vmcnt\(@(\S+?)\)", sub("vmcnt", vm, 62), code)
        code = re.sub(r"lgkmcnt\(@(\S+?)\)", sub("lgkmcnt", lg, 14), code)
        if tag != "nocount":
            if op.startswith(("buffer_", "global_")): vm.append(tag)
            elif op.startswith("ds_"): lg.append(tag)
        out.append(code)
    return out

OK_ = 16; VF = 128; SB = 160; PB = 184; NM = 196; LS = 224
V_LANE16 = 1; V_QP = 2; V_WOB = 3
V_KVOFF = 4
V_XB = 8; V_WB = 10; V_KB = 12; V_VB = 13; V_T0 = 14; V_T1 = 15
V_XOFF = 200; V_WOFF = 207; V_KW0 = 211; V_KW1 = 253
V_RAB = 231; V_PF = 212
V_XA = 232; V_WA = 234
V_KA = 232; V_VA = 236; V_TMP = 244; V_STAMP = 255
OS_ = 0; QA = 112; KF = 224; FR = 112
COL = [0, 1, 0, 1, 0, 1, 2]
S_X = 8; S_K = 12; S_V = 16; S_WQ = 20; S_O = 24
S_WAVE = 28; S_B = 29; S_H = 30; S_R = 31; S_C = 32
S_OX = 33; S_OW = 34; S_MXA = 36; S_MXB = 3; S_WXT = 37; S_I = 38
S_T0 = 39; S_T1 = 40; S_T2 = 41; S_T3 = 42
S_KVG = 43; S_SL0 = 44; S_SL1 = 45; S_SL2 = 46
S_FB = 47; S_W4K = 48; S_W4KK = 49; S_SCALE = 50; S_OST = 51
P_X = 52; P_K = 54; P_V = 56; P_WQ = 58; P_WO = 60; P_OUT = 62; P_DBG = 64; P_WS = 66
S_WO = 68; S_OO = 72; S_OUT = 76; S_TW = 80; S_TO = 52; S_LB0 = 88; S_LB1 = 89; S_OUTOFF = 90; S_SIG = 91; S_POLL = 92; S_PFO = 93
S_STP = 96
XT = 28672; WT = 16384; STG = XT + WT
RING = 5; KOFF = 16384; PART = 1 << 24; FLG = 3 << 23
ST0 = 86016; S_CA = 7; S_STW = 61; V_STW = 241; V_STR = 242; V_FLR = 243
SCALE = math.log2(math.e) / math.sqrt(128.0)

nstamp = [0]
def stamp():
    if not O.stamps: return
    k = nstamp[0]
    I(f"s_memtime {sr(S_STP)}"); I("s_waitcnt lgkmcnt(0)"); I(f"v_writelane_b32 v{V_STAMP}, s{S_STP}, {2*k}")
    I(f"s_memrealtime {sr(S_STP)}"); I("s_waitcnt lgkmcnt(0)"); I(f"v_writelane_b32 v{V_STAMP}, s{S_STP}, {2*k+1}")
    nstamp[0] += 1
def store_stamps():
    if not O.stamps: return
    I(f"s_cmp_lg_u32 s{S_WAVE}, 0"); I("s_cbranch_scc1 L_done")
    I(f"s_lshl_b32 s{S_T0}, s2, 8"); I(f"s_add_u32 s{S_T0}, s{S_T0}, {1<<26}"); I(f"v_lshl_add_u32 v15, v0, 2, s{S_T0}")
    I(f"global_store_dword v15, v{V_STAMP}, {sr(P_WS)}")
    if O.dbgst:
        I(f"s_cmp_lg_u32 s2, {O.dbg_wg}"); I("s_cbranch_scc1 L_done")
        I(f"v_readlane_b32 s{S_T0}, v{V_STAMP}, 62"); I("v_lshlrev_b32 v15, 1, v0"); I("v_add_u32 v15, 6, v15"); I(f"v_subrev_u32 v14, s{S_T0}, v{V_STAMP}")
        I("s_mov_b32 exec_lo, 0x2aaaaaa"); I("s_mov_b32 exec_hi, 0")
        I(f"global_store_dword v15, v14, {sr(P_DBG)}")
def srd(d, ptr, nbytes, shift=None, sub=True):
    if shift is None:
        I(f"s_mov_b32 s{d}, s{ptr}"); I(f"s_mov_b32 s{d+1}, s{ptr+1}"); I(f"s_mov_b32 s{d+2}, {nbytes}")
    else:
        I(f"s_add_u32 s{d}, s{ptr}, s{shift}"); I(f"s_addc_u32 s{d+1}, s{ptr+1}, 0")
        I(f"s_sub_u32 s{d+2}, {nbytes}, s{shift}" if sub else f"s_mov_b32 s{d+2}, {nbytes}")
    I(f"s_mov_b32 s{d+3}, 0x20000")

def stg(i): return ((-i) % 3) * STG
def d_w(i): return [([f"s_add_u32 m0, {stg(i)}, s{S_WXT}"] if j == 0 else [], f"buffer_load_dwordx4 v{V_WOFF+j}, {sr(S_WQ,4)}, s{S_OW} offen offset:{j*1024} {pol(O.pol_wq)}lds ;@w_{i}") for j in range(4)]
def d_xa(i): return [([f"s_add_u32 m0, {stg(i)}, s{S_MXA}"] if j == 0 else [], f"buffer_load_dwordx4 v{V_XOFF+j}, {sr(S_X,4)}, s{S_OX} offen offset:{j*1024} {pol(O.pol_x)}lds ;@xa{i}") for j in range(4)]
def d_xb(i): return [([f"s_add_u32 m0, {stg(i)}, s{S_MXB}"] if j == 0 else [], f"buffer_load_dwordx4 v{V_XOFF+4+j}, {sr(S_X,4)}, s{S_OX} offen offset:{j*1024} {pol(O.pol_x)}lds ;@xb{i}", P1_UPD if j == 2 else []) for j in range(3)]
S_OC = 38; S_XM = 95
S_XR = 99
P1_UPD = [f"s_add_u32 s{S_OC}, s{S_OC}, 128", f"s_xor_b32 s{S_OX}, s{S_OC}, s{S_XM}", f"s_add_u32 s{S_OX}, s{S_OX}, s{S_XR}", f"s_and_b32 s{S_OX}, s{S_OX}, 2047", f"s_lshl_b32 s{S_OW}, s{S_OX}, 12"]
def emit_dma(g, post=False):
    for x in g:
        for p in x[0]: I(p)
        if x[0]: I("s_nop 0")
        I(x[1])
        if post and len(x) > 2:
            for p in x[2]: I(p)
def kv_dma(which, slot, so=None):
    so = S_KVG if so is None else so
    s, off = (S_K, S_W4KK) if which == "K" else (S_V, S_W4K)
    return [([f"s_add_u32 m0, {slot}, s{off}"] if j == 0 else [],
             f"buffer_load_dwordx4 v{V_KVOFF+j}, {sr(s,4)}, s{so} offen offset:{j*1024} {pol(O.pol_kv)}lds") for j in range(4)]
KVG_UPD = f"s_add_u32 s{S_KVG}, s{S_KVG}, 16384\ns_and_b32 s{S_KVG}, s{S_KVG}, 0x3ffff"
S_KV0 = 94; S_KVE = 95; S_MASK = 35; S_DS = S_SL1
def er(reg): return ar(reg) if reg < 256 else vr(reg - 256)
EARLY = [("V", 0, 256 + 160), ("K", 1, 256 + 176), ("V", 1, 0), ("K", 2, 16), ("V", 2, 32), ("K", 3, 48), ("V", 3, 64)]
def early_list(): return EARLY + ([("K", 4, 256 + 96), ("V", 4, 256 + 112)] if O.e4 else [])
V_KW2 = 216; V_ZR = 217; S_INB = 100
def early_loads():
    g = []
    for p, (w, st, reg) in enumerate(early_list()):
        for j in range(4):
            post = [KVG_UPD] if (w == "V" and j == 3) else []
            g.append(([], f"buffer_load_dwordx4 {er(reg+4*j)}, v{V_KVOFF+j}, {sr(S_K if w=='K' else S_V,4)}, s{S_KVG} offen offset:{j*1024} {O.pol_kve} ;@e{p}", post))
    return g
def early_writes():
    g = []
    for p, (w, st, reg) in enumerate(early_list()):
        addr = (4 - st) * 32768 + (KOFF if w == "K" else 0)
        base, b0 = (V_KW2, 131072) if addr >= 131072 else ((V_KW0, 65536) if addr >= 65536 else (V_KW1, 0))
        for j in range(4):
            g.append(([f"s_waitcnt vmcnt(@e{p})"] if j == 0 else [], f"ds_write_b128 v{base}, {er(reg+4*j)} offset:{addr-b0+j*1024} ;@ew"))
    return g
def p1_acc(rt): return OK_ + 16 * rt if rt < 5 else VF + 16 * (rt - 5)
FW = 112; FXA = 176; FXB = 208
def r_w(i):
    return [f"ds_read_b64_tr_b16 {ar(FW+32*(i&1)+16*s+4*t+2*e,2)}, v{V_WA+t//2} offset:{XT + s*8192 + e*1024 + (t%2)*8}" for s in range(2) for t in range(4) for e in range(2)]
def xf(rt, s): return (FXA + 8 * rt + 4 * s) if rt < 4 else (FXB + 8 * (rt - 4) + 4 * s)
def r_x(rts): return [f"ds_read_b128 {ar(xf(rt,s))}, v{V_XA+s} offset:{rt*2048}" for rt in rts for s in range(2)]
def p1_mfmas(i, rts):
    return [f"{MF} {vr(p1_acc(rt)+4*t)}, {ar(FW+32*(i&1)+16*s+4*t)}, {ar(xf(rt,s))}, " + ("0" if (i == 0 and s == 0) else vr(p1_acc(rt)+4*t)) for rt in rts for (s, t) in ([(s, t) for t in range(4) for s in range(2)] if O.accord else [(s, t) for s in range(2) for t in range(4)])]
def place(G, ops, gaps):
    assert len(gaps) >= len(ops), (len(ops), gaps)
    for d, g in zip(ops, gaps):
        for p in d[0]:
            if G.m[g - 1] and "buffer_" in G.m[g - 1][-1] and "lds" in G.m[g - 1][-1] and "m0" in p: G.p[g - 1].append(p)
            else: G.s[g - 1].append(p)
        G.m[g].append(d[1])
        if len(d) > 2:
            pp = [q for p in d[2] for q in p.split(chr(10))]
            nxt = [h for h in gaps[:len(ops)] if h > g]
            for k, p in enumerate(pp): G.s[min(g + 1 + k // 2, nxt[0] if nxt else 10**9)].append(p)
def layout(n, nmem, nrd):
    mg = sorted(set(1 + (k * (n - 3)) // max(nmem, 1) for k in range(nmem)))
    assert len(mg) == nmem
    rg = [g for g in range(n - 2) if g not in mg][:nrd]
    if len(rg) < nrd: rg = sorted(rg + mg[:nrd - len(rg)])
    return mg, rg
pendw = []
THIN = []
def p1_half(mf, mem, reads, addr, wait, valu=None, vstart=0):
    G = Gaps(mf); n = len(mf)
    mg, rg = layout(n, len(mem), len(reads))
    for k, r in zip(rg, reads): G.m[k].append(r)
    place(G, mem, mg)
    for after, x in addr:
        g0 = rg[after] + 1 if after >= 0 else 0
        c = [g for g in range(g0, n - 1) if g not in mg and len(G.v[g]) < (1 if G.m[g] else 2) and not (G.m[g] and G.s[g])]
        G.v[c[0]].append(x)
    if valu is not None:
        work, base = valu
        lastw = -9
        for g in range(n):
            if base and pendw and g - lastw >= 3 and g not in mg and not G.m[g]:
                G.m[g].append(pendw.pop(0)); lastw = g; continue
            room = 0 if g in mg else (1 if G.m[g] else 2)
            while work and work[0][0] <= g + base and (work[0][1] == "w" or len(G.v[g]) < room) and len(pendw) < 7:
                w = work.pop(0)
                if w[1] == "w": pendw.append(w[2])
                else: G.v[g].append(w[2])
    if wait is not None:
        G.s[n - 1].append(wait); G.s[n - 1].append("s_barrier")
    G.emit()

def kq(f): return (f % 4, f // 4) if O.accord else (f // 2, f % 2)
def k_read(f): return f"ds_read_b128 {ar(KF+4*f)}, v{V_KA+kq(f)[0]} offset:{kq(f)[1]*4096}"
def v_read(dq, e): return f"ds_read_b64_tr_b16 {vr(VF+4*dq+2*e,2)}, v{V_VA+dq}" + (" offset:4096" if e else "")
def k_addr(slot): return [f"v_add_u32 v{V_KA}, {slot}, v{V_KB}"] + [f"v_xor_b32 v{V_KA+q}, {q*64}, v{V_KA}" for q in range(1, 4)]
def v_addr(slot): return [f"v_add_u32 v{V_VA}, {slot}, v{V_VB}"] + [f"v_xor_b32 v{V_VA+d}, {d*32}, v{V_VA}" for d in range(1, 8)]
def oacc(rt, dq): return vr(OK_ + 16 * rt + 4 * dq) if dq < 4 else ar(OS_ + 16 * rt + 4 * (dq - 4))
def qk_mfmas(rt, S, usenm=True):
    m = []
    for f in range(8):
        q, kt = kq(f)
        d = S + 4 * kt
        c = (vr(NM + 4 * rt) if usenm else "0") if q == 0 else vr(d)
        m.append(f"{MF} {vr(d)}, {ar(KF+4*f)}, {ar(QA+16*rt+4*q)}, {c}")
    return m
def pv_mfmas(rt, first=False):
    P = PB + 4 * COL[rt]
    return [f"{MF} {oacc(rt,dq)}, {vr(VF+4*dq)}, {vr(P)}, " + ("0" if first else oacc(rt, dq)) for dq in range(8)]
def sm_ops(rt, scol=None):
    S = SB + 8 * (COL[rt] if scol is None else scol); P = PB + 4 * COL[rt]
    e = [f"v_exp_f32 v{S+k}, v{S+k}" for k in range(8)]
    a = [f"v_add_f32 v{LS+rt}, v{LS+rt}, v{S+k}" for k in range(8)]
    c = [f"v_cvt_pk_bf16_f32 v{P+k}, v{S+2*k}, v{S+2*k+1}" for k in range(4)]
    return e, a, c
def put_softmax(G, base, rt):
    e, a, c = sm_ops(rt)
    for k in range(8):
        G.v[base + 2 * k].append(e[k])
        if k % 2 == 1: G.v[base + 2 * k + 1].append(c[k // 2])
        G.v[base + 2 * k + 1].append(a[k])
def sm0_nm(rt):
    t = V_TMP + 2 * (rt & 1)
    return [f"v_sub_f32 v{NM+4*rt+k}, 0, v{t}" for k in range(4)]
def sm0_ops(rt):
    scol = 2 if rt == 0 else COL[rt]
    S = SB + 8 * scol; t = V_TMP + 2 * (rt & 1)
    e, a, c = sm_ops(rt, scol)
    a[1] = f"v_add_f32 v{LS+rt}, v{S}, v{S+1}"
    pn = sm0_nm(rt - 1) if rt else ["s_nop 0", "s_nop 0", None, None]
    sub = [f"v_sub_f32 v{S+k}, v{S+k}, v{t}" for k in range(8)]
    g = [[f"v_max3_f32 v{t}, v{S}, v{S+1}, v{S+2}", f"v_max3_f32 v{t+1}, v{S+3}, v{S+4}, v{S+5}", f"v_max3_f32 v{t}, v{t}, v{S+6}, v{S+7}"],
         [f"v_max_f32 v{t}, v{t}, v{t+1}", f"v_max_f32 v{t+1}, v{t}, v{t+1}", pn[0]],
         [f"v_permlane32_swap_b32 v{t}, v{t+1}", f"v_max_f32 v{t}, v{t}, v{t+1}", f"v_mov_b32 v{t+1}, v{t}", pn[1]],
         [f"v_permlane16_swap_b32 v{t}, v{t+1}", f"v_max_f32 v{t}, v{t}, v{t+1}", sub[0]],
         [e[0], sub[1]], [e[1], sub[2]], [e[2], sub[3]], [e[3], sub[4], a[1]], [e[4], sub[5], c[0]], [e[5], sub[6], a[2]], [e[6], sub[7], a[3]],
         [e[7], c[1], a[4]], [c[2], a[5], pn[2]], [c[3], a[6]], [a[7], pn[3]]]
    return [[x for x in grp if x] for grp in g]

def next_dma_state():
    return [f"s_add_u32 s{S_I}, s{S_I}, 1", f"s_bitcmp1_b32 s{S_MASK}, s{S_I}", f"s_cselect_b32 s{S_SL0}, s{S_DS}, 0x30000", f"s_cselect_b32 s{S_KVE}, s{S_KVG}, 0x40000000",
            f"s_cselect_b32 s{S_T3}, 32768, 0", f"s_sub_u32 s{S_DS}, s{S_DS}, s{S_T3}", f"s_cselect_b32 s{S_DS}, {(RING-1)*32768}, s{S_DS}",
            f"s_lshr_b32 s{S_T3}, s{S_T3}, 1", f"s_add_u32 s{S_KVG}, s{S_KVG}, s{S_T3}", f"s_and_b32 s{S_KVG}, s{S_KVG}, 0x3ffff"]
V_WOF = 8; V_RA0 = 232; V_RA1 = 236; V_L2 = 240
pf_cnt = [0, 0]
def put_pf(G, t):
    if t == 12 + O.nskip:
        if O.pf_row:
            G.v[1].append(f"v_and_b32 v{V_TMP+8}, 7, v0"); G.v[3].append(f"v_and_b32 v{V_TMP+7}, 8, v0"); G.v[5].append(f"v_lshl_add_u32 v{V_TMP+8}, v{V_TMP+7}, 1, v{V_TMP+8}"); G.v[7].append(f"v_lshlrev_b32 v{V_TMP+8}, 7, v{V_TMP+8}")
        else:
            G.v[1].append(f"v_and_b32 v{V_TMP+8}, 15, v0"); G.v[5].append(f"v_lshlrev_b32 v{V_TMP+8}, 11, v{V_TMP+8}")
        pf_cnt[0] = 0; pf_cnt[1] = 4 * O.wo_first
    if O.cpf and t == O.cpf_at:
        c2 = code_pf("L_last+2048", 6, V_TMP + 5)
        G.chain(c2[0], [6, 8]); G.v[10].append(c2[1]); G.m[11].append(c2[2].replace(f"v{V_TMP+6},", f"v{V_QP},")); pf_cnt[0] += 1
    gl = {1: [13], 2: [13, 57], 3: [13, 47, 81], 4: [13, 41, 63, 87], 5: [13, 41, 55, 71, 87], 6: [13, 23, 41, 55, 71, 87]}[O.pf_q] if O.pf_q else []
    for g in gl:
        if pf_cnt[1] >= O.pf_max: break
        k = pf_cnt[1]
        G.s[g - 1].append(f"s_add_u32 s{S_T0}, s{S_PFO}, {(k // 4) * 8 * 65536 + (k % 4) * (4096 if O.pf_row else 32768)}")
        G.m[g].append(f"buffer_load_dword v{V_QP}, v{V_TMP+8}, {sr(S_WO,4)}, s{S_T0} offen")
        pf_cnt[0] += 1; pf_cnt[1] += 1
def att_iter(kind, t=None):
    mf = []; base = []
    for n in range(7):
        base.append(len(mf))
        mf += qk_mfmas(n, SB + 8 * (2 if (kind == "first" and n == 0) else COL[n]), usenm=(kind != "first"))
        if not (kind == "first" and n < 2): mf += pv_mfmas((n - 2) % 7, first=(kind == "first"))
    G = Gaps(mf)
    if kind == "first":
        for k in range(16): G.m[k].append(v_read(k // 2, k % 2) + " ;@vf")
        for n in range(1, 7):
            g = sm0_ops(n - 1)
            if n == 1: pos = [11, 12, 13, 14, 15, 15, 16, 16, 17, 17, 18, 18, 19, 19, 20]
            elif n == 2: pos = [base[2] + x for x in [4, 5, 6, 7, 8, 8, 9, 10, 11, 12, 13, 14, 15, 15, 15]]
            else: pos = [base[n] + x for x in range(15)]
            for grp, p in zip(g, pos):
                for x in grp: G.v[p].append(x)
        G.s[base[2] + 6].append("s_waitcnt lgkmcnt(@vf)")
        off = lambda g: g - 16
        G.v[2].append(f"v_lshlrev_b32 v{V_TMP+8}, 11, v0")
        for x, g in zip(THIN[8:], [off(z) for z in [33, 50, 72, 92]]):
            for y in x: G.m[g].append(y[1])
        if O.e4:
            place(G, early_writes()[20:], [off(g) for g in [37, 41, 44, 47, 52, 54, 58, 61, 63, 68, 70, 74, 77, 79, 84, 86]])
            G.s[off(91)].append("s_waitcnt lgkmcnt(@ew)")
            for k in range(32): G.v[off([93, 94, 95, 95, 100, 102, 109, 110, 111, 110][k % 10])].append(f"v_mov_b32 v{OK_+80+k}, 0")
        else:
            place(G, early_writes()[20:], [off(g) for g in [50, 54, 58, 62, 63, 66, 70, 74]])
            d4 = kv_dma("K", 0) + kv_dma("V", 0); d4[7] = d4[7] + ([KVG_UPD],)
            place(G, d4, [off(g) for g in ([23, 33, 42, 48, 56, 64, 72, 78] if O.paced else [36, 42, 47, 52, 60, 68, 72, 78])])
        for j in range(O.wo_first):
            g = off([61, 79][j])
            G.s[g - 1].append(f"s_add_u32 s{S_T0}, s{S_PFO}, {j*8*65536}")
            G.m[g].append(f"buffer_load_dword v{V_QP}, v{V_TMP+8}, {sr(S_WO,4)}, s{S_T0} offen")
        for j in range(0 if O.pref_last else O.wo_pref):
            G.m[off(36 + 3 * j)].append(f"buffer_load_dword v{V_QP}, v{V_TMP+8}, {sr(S_WO,4)}, s{S_PFO} offen")
            G.s[off(37 + 3 * j)].append(f"s_add_u32 s{S_PFO}, s{S_PFO}, {8*65536}")
    else:
        for n in range(7): put_softmax(G, 16 * n, (n - 1) % 7)
        off = lambda g: g
        G.s[0].append("s_waitcnt lgkmcnt(4)"); G.s[2].append("s_waitcnt lgkmcnt(2)"); G.s[4].append("s_waitcnt lgkmcnt(0)")
        for k in range(16): G.m[24 + k].append(v_read(k // 2, k % 2))
        G.s[38].append("s_waitcnt lgkmcnt(10)")
        G.s[40].append("s_waitcnt lgkmcnt(8)"); G.s[42].append("s_waitcnt lgkmcnt(4)"); G.s[44].append("s_waitcnt lgkmcnt(0)")
        va = v_addr(f"s{S_SL1}")
        for x, g in zip(va[4:], [5, 9, 17, 21]): G.v[g].append(x)
    if kind != "last":
        va = v_addr(f"s{S_SL2}"); ka = k_addr(f"s{S_SL2}")
        if kind == "first":
            for x, g in zip(va[:4] + ka, [off(z) for z in [53, 62, 62, 69, 78, 78, 85, 94]]): G.v[g].append(x)
        elif kind == "pen":
            put_pf(G, t)
            if t == 14:
                place(G, wo_dma(0) + wo_dma(1), [1, 19, 41, 49, 57, 65, 73, 91]); pf_cnt[0] += 8
            for x, g in zip(va[:4], [45, 53, 61, 69]): G.v[g].append(x)
            for x, g in zip(ka, [77, 85, 89, 93]): G.v[g].append(x)
            G.s[94].append(f"s_waitcnt vmcnt({8 * (14 - t) + pf_cnt[0]})")
        else:
            place(G, kv_dma("K", f"s{S_SL0}", S_KVE) + kv_dma("V", f"s{S_SL0}", S_KVE), [1, 13, 41, 49, 57, 65, 73, 81])
            for x, g in zip(va[:4], [45, 53, 61, 69]): G.v[g].append(x)
            for x, g in zip(ka, [77, 85, 89, 93]): G.v[g].append(x)
            G.s[94].append(f"s_waitcnt vmcnt({24 if (t == 0 and O.sk0 > O.ta) else 24 - 8 * O.nskip})")
        G.s[off(95)].append("s_barrier")
        for f in range(8): G.m[off(97 + 2 * f)].append(k_read(f))
        if kind != "pen": G.chain(next_dma_state(), [off(g) for g in [82, 84, 86, 88, 90, 92, 96, 98, 100, 102]])
        G.chain([f"s_sub_u32 s{S_SL2}, s{S_SL2}, 32768", f"s_cselect_b32 s{S_SL2}, {(RING-1)*32768}, s{S_SL2}", f"s_cmp_lt_u32 s{S_I}, {O.ta + 1 if (kind == chr(108)+chr(111)+chr(111)+chr(112) and t == 0) else 12 + O.nskip}", "s_waitcnt lgkmcnt(5)"],
                [off(g) for g in [104, 106, 108, 110]])
    else:
        for rt in range(4):
            for k in range(4): G.m[16 * (rt + 3) + 1 + 4 * k].append(f"ds_write_b128 v{V_T0}, {ar(OS_+16*rt+4*k)} offset:{(4*rt+k)*1024}")
        put_pf(G, 15)
        G.s[46].append("s_barrier")
        G.v[9].append(f"v_mov_b32 v{V_TMP+9}, 0"); G.m[17].append(f"global_load_dword v{V_TMP+10}, v{V_TMP+9}, {sr(P_DBG)} sc1 ;@st0")
        ex = [f"v_add_u32 v{V_RA0}, s{S_LB0}, v{V_RAB}"] + [f"v_xor_b32 v{V_RA0+q}, {q*32}, v{V_RA0}" for q in range(1, 4)]
        for x, g in zip(ex, [1, 3, 7, 13]): G.v[g].append(x)
        ex = ([f"v_add_u32 v{V_RA1}, s{S_LB1}, v{V_RAB}", f"v_add_u32 v{V_L2}, 4096, v{V_LANE16}"] + [f"v_xor_b32 v{V_RA1+q}, {q*32}, v{V_RA1}" for q in range(1, 4)]
              + [f"v_and_b32 v{V_STW}, 15, v0", f"v_lshl_add_u32 v{V_STW}, v{V_STW}, 3, s{S_STW}", f"v_xor_b32 v{V_STR}, 1024, v{V_STW}",
                 f"v_and_b32 v{V_FLR}, 3, v0", f"v_lshlrev_b32 v{V_FLR}, 10, v{V_FLR}", f"v_add_u32 v{V_FLR}, {ST0+896}, v{V_FLR}"])
        for x, g in zip(ex, [41, 45, 51, 55, 59, 63, 67, 71, 75, 79, 83]): G.v[g].append(x)
    return G

def code_pf(label, sh, vt):
    return ([f"s_lshl_b32 s6, s{S_WAVE}, {6+sh}", f"s_add_u32 s6, s6, {label}-L_pc"], f"v_lshl_add_u32 v{vt}, v0, {sh}, s6", f"global_load_dword v{V_TMP+6}, v{vt}, s[4:5]")
def multi_reduce(regs, temps, op):
    for sw in ("v_permlane32_swap_b32", "v_permlane16_swap_b32"):
        for r, t in zip(regs, temps): I(f"v_mov_b32 v{t}, v{r}")
        I("s_nop 1")
        for r, t in zip(regs, temps): I(f"{sw} v{r}, v{t}")
        I("s_nop 1")
        for r, t in zip(regs, temps): I(f"{op} v{r}, v{r}, v{t}")

RA_N = 13; RL_N = 9; NB = 5; ACC = 16
slot_of = {0: 0, 1: 1}
def areg(m, k, n):
    e = m % RA_N
    na = (256 - 28 * NB) // 16
    assert RA_N <= na + 6
    return ar(28 * NB + 16 * e + k, n) if e < na else vr(128 + 16 * (e - na) + k, n)
def bump(s, d): return [f"s_add_u32 s{s}, s{s}, {d}", f"s_addc_u32 s{s+1}, s{s+1}, 0", f"s_sub_u32 s{s+2}, s{s+2}, {d}"]
def wo_dma(m):
    s = slot_of[m]
    m0 = f"s_add_u32 m0, s{S_LB0}, {s*4096}" if s < 2 else f"s_add_u32 m0, s{S_LB1}, {(s-2)*4096}"
    pre = (bump(S_WO, 8 * 65536) if (m % 8 == 0 and m) else []) + [m0]
    return [(pre if j == 0 else [], f"buffer_load_dwordx4 v{V_WOF+j}, {sr(S_WO,4)}, s{S_TW+m%8} offen offset:{j*1024} {pol(O.pol_wo)}lds ;@w{m}") for j in range(4)]
def a_reads(m):
    s = slot_of[m]
    ra, o = (V_RA0, s * 4096) if s < 2 else (V_RA1, (s - 2) * 4096)
    return [f"ds_read_b64_tr_b16 {areg(m,4*cq+2*e,2)}, v{ra+cq} offset:{o+e*2048} ;@a{m}" for cq in range(4) for e in range(2)]
S_WBO = 8; S_SO = 33; S_PST = 20; S_PLD = 21; S_BIT = 22
def b_loads(n):
    pre = [f"s_add_u32 s{S_SO+n%2}, s{S_WBO+n//8}, s{S_TO+n%8}"]
    return [(pre if rt == 0 else [], f"buffer_load_dwordx4 {ar(28*(n%NB)+4*rt)}, v{V_LANE16 if rt<4 else V_L2}, {sr(S_OO,4)}, s{S_SO+n%2} offen offset:{(rt%4)*1024} {O.pol_old} ;@b{n}") for rt in range(7)]
def p3_mfmas(n):
    return [f"{MF} {vr(ACC+16*rt+4*cq)}, {areg(n,4*cq,4)}, {ar(28*(n%NB)+4*rt)}, " + ("0" if n % 16 == 0 else vr(ACC+16*rt+4*cq)) for rt in range(7) for cq in range(4)]

def gen():
    K = NAME + "_kernel"
    A(f".globl {K}\n.p2align 8\n.type {K},@function\n{K}:")
    I("s_cmp_ge_u32 s2, 256"); I("s_cbranch_scc1 L_done")
    if O.dbgst: I("s_memrealtime s[68:69]")
    I("s_load_dwordx16 s[52:67], s[0:1], 0")
    I("s_getpc_b64 s[4:5]")
    A("L_pc:")
    if O.cp0 == 0:
        I("v_lshlrev_b32 v14, 7, v0"); I("global_load_dword v15, v14, s[4:5]"); I("v_lshrrev_b32 v14, 1, v14"); I("v_add_u32 v14, 0x8000, v14"); I("global_load_dword v15, v14, s[4:5]")
    elif O.cp0 == 1:
        I("s_lshl_b32 s6, s2, 9"); I("s_and_b32 s6, s6, 0x3000"); I("v_lshl_add_u32 v14, v0, 4, s6"); I("global_load_dword v15, v14, s[4:5] offset:512")
    I("v_lshrrev_b32 v14, 6, v0")
    I("v_and_b32 v0, 63, v0")
    I(f"v_readfirstlane_b32 s{S_WAVE}, v14")
    I(f"s_and_b32 s{S_T0}, s2, 7"); I(f"s_lshr_b32 s{S_T1}, s2, 3")
    I(f"s_and_b32 s{S_B}, s{S_T0}, 1"); I(f"s_lshl_b32 s{S_B}, s{S_B}, 2"); I(f"s_and_b32 s{S_T2}, s{S_T1}, 3"); I(f"s_add_u32 s{S_B}, s{S_B}, s{S_T2}")
    I(f"s_lshr_b32 s{S_H}, s{S_T0}, 1"); I(f"s_lshl_b32 s{S_H}, s{S_H}, 3"); I(f"s_lshr_b32 s{S_T3}, s{S_T1}, 2"); I(f"s_add_u32 s{S_H}, s{S_H}, s{S_T3}")
    if O.lin_map: I(f"s_lshr_b32 s{S_B}, s2, 5"); I(f"s_and_b32 s{S_H}, s2, 31")
    I(f"s_mul_i32 s{S_XM}, s{S_T2}, {O.xb}"); I(f"s_add_u32 s{S_XM}, s{S_XM}, s{S_T3}"); I(f"s_and_b32 s{S_XM}, s{S_XM}, {O.xp-1}"); I(f"s_mul_i32 s{S_XM}, s{S_XM}, {O.xd*128}")
    I(f"s_mul_i32 s{S_T3}, s{S_T3}, {O.rotmul_h*128}"); I(f"s_mul_i32 s{S_T2}, s{S_T2}, {O.rotmul_b*128}"); I(f"s_add_u32 s{S_OX}, s{S_T2}, s{S_T3}")
    if O.rotmul_x: I(f"s_mul_i32 s{S_T0}, s{S_T0}, {O.rotmul_x*128}"); I(f"s_add_u32 s{S_OX}, s{S_OX}, s{S_T0}")
    I(f"s_and_b32 s{S_XR}, s{S_OX}, 2047"); I(f"s_mov_b32 s{S_OC}, 0")
    I(f"s_add_u32 s{S_OX}, s{S_XM}, s{S_XR}"); I(f"s_and_b32 s{S_OX}, s{S_OX}, 2047"); I(f"s_lshl_b32 s{S_OW}, s{S_OX}, 12")
    I(f"s_lshr_b32 s{S_R}, s{S_WAVE}, 1"); I(f"s_and_b32 s{S_C}, s{S_WAVE}, 1")
    I(f"s_lshl_b32 s{S_W4K}, s{S_WAVE}, 12"); I(f"s_add_u32 s{S_W4KK}, s{S_W4K}, {KOFF}"); I(f"s_add_u32 s{S_WXT}, s{S_W4K}, {XT}"); I(f"s_mul_i32 s{S_T0}, s{S_R}, {14*1024}"); I(f"s_lshl_b32 s{S_MXA}, s{S_C}, 12"); I(f"s_add_u32 s{S_MXA}, s{S_MXA}, s{S_T0}")
    I(f"s_mul_i32 s{S_MXB}, s{S_C}, 3072"); I(f"s_add_u32 s{S_MXB}, s{S_MXB}, s{S_T0}"); I(f"s_add_u32 s{S_MXB}, s{S_MXB}, 8192")
    T = V_TMP
    I(f"v_and_b32 v{T}, 15, v0"); I(f"v_lshrrev_b32 v{T+1}, 4, v0")
    I(f"v_and_b32 v{T+4}, 7, v0"); I(f"v_xor_b32 v{T+4}, v{T+4}, v{T+1}")
    I(f"v_lshrrev_b32 v{T+5}, 3, v0"); I(f"v_lshlrev_b32 v{T+7}, 11, v{T+5}"); I(f"v_lshl_add_u32 v{T+4}, v{T+4}, 4, v{T+7}")
    I(f"s_lshl_b32 s{S_T0}, s{S_C}, 16"); I(f"v_add_u32 v{V_XOFF}, s{S_T0}, v{T+4}"); I(f"v_xor_b32 v{T+5}, 64, v{V_XOFF}")
    for j in range(1, 4): I(f"v_add_u32 v{V_XOFF+j}, {j*16384-j*1024}, v{V_XOFF if j%2==0 else T+5}")
    I(f"s_lshl_b32 s{S_T0}, s{S_C}, 6"); I(f"v_xor_b32 v{T+4}, s{S_T0}, v{T+4}"); I(f"s_mul_i32 s{S_T0}, s{S_C}, {24*2048}"); I(f"s_add_u32 s{S_T0}, s{S_T0}, {64*2048}")
    I(f"v_add_u32 v{V_XOFF+4}, s{S_T0}, v{T+4}"); I(f"v_xor_b32 v{T+5}, 64, v{V_XOFF+4}")
    for j in range(1, 3): I(f"v_add_u32 v{V_XOFF+4+j}, {j*16384-j*1024}, v{V_XOFF+4 if j%2==0 else T+5}")
    I(f"v_lshlrev_b32 v{T+4}, 2, v{T+1}"); I(f"v_xor_b32 v{T+4}, v{T+4}, v{T}"); I(f"v_lshlrev_b32 v{T+5}, 13, v{T+1}"); I(f"v_lshl_add_u32 v{V_WOFF}, v{T+4}, 4, v{T+5}")
    for j in range(1, 4): I(f"v_add_u32 v{V_WOFF+j}, {j*32768-j*1024}, v{V_WOFF}")
    I(f"s_mul_i32 s{S_T0}, s{S_B}, 458752"); I(f"s_mul_i32 s{S_T1}, s{S_R}, {112*2048}"); I(f"s_add_u32 s{S_T0}, s{S_T0}, s{S_T1}")
    I(f"s_lshl_b32 s{S_T1}, s{S_H}, 8"); I(f"s_lshl_b32 s{S_T2}, s{S_WAVE}, 17"); I(f"s_add_u32 s{S_T1}, s{S_T1}, s{S_T2}")
    I("s_waitcnt lgkmcnt(0)")
    if O.dbgst: I(f"v_writelane_b32 v{V_STAMP}, s68, 62")
    stamp()
    srd(S_X, P_X, 3670016, S_T0); srd(S_WQ, P_WQ, 8388608, S_T1)
    Q = []
    for k in range(16):
        Q += [(-1 if k <= 2 else (0 if k == 3 else 2 * (k - 4) + 1), x) for x in d_w(k)]
        Q += [(-1 if k <= 2 else 2 * (k - 3), x) for x in d_xa(k)]
        Q += [(-1 if k <= 2 else 2 * (k - 3) + 1, x) for x in d_xb(k)]
    def take(hh, cap, cap2):
        out = []
        pend = 0
        while pend < len(Q) and Q[pend][0] <= hh: pend += 1
        n = min(pend, cap if (hh < 0 or pend <= cap + (2 if hh % 2 else 0)) else cap2)
        for _ in range(n): out.append(Q.pop(0)[1])
        return out
    emit_dma(take(-1, min(O.n_up, O.n_up0), 0), post=True)
    I(f"s_lshl_b32 s{S_T0}, s{S_B}, 5"); I(f"s_add_u32 s{S_T0}, s{S_T0}, s{S_H}"); I(f"s_lshl_b32 s{S_T0}, s{S_T0}, 18")
    srd(S_K, P_K, 262144, S_T0, sub=False); srd(S_V, P_V, 262144, S_T0, sub=False)
    if O.tlbw:
        I("v_mov_b32 v14, 0")
        I(f"buffer_load_dword v15, v14, {sr(S_K,4)}, 0 offen {O.pol_kv}"); I(f"buffer_load_dword v15, v14, {sr(S_V,4)}, 0 offen {O.pol_kv}")
    if O.tlbw > 1:
        I("v_and_b32 v14, 3, v0"); I("v_lshlrev_b32 v14, 21, v14"); I(f"global_load_dword v15, v14, {sr(P_WQ)}")
    if O.tlbw > 2:
        I(f"global_load_dword v15, v14, {sr(P_WO)}")
        I("v_and_b32 v14, 7, v0"); I("v_lshlrev_b32 v14, 21, v14"); I("v_add_u32 v14, 0x1000000, v14"); I("v_subrev_u32 v14, 0x1000000, v14")
    srd(S_O, P_WS, PART + 256 * 28672); srd(S_OUT, P_OUT, 3670016)
    I(f"s_lshr_b32 s{S_T0}, s2, 3"); I(f"s_mul_i32 s{S_T0}, s{S_T0}, {O.kv_rot_j}"); I(f"s_and_b32 s{S_T1}, s2, 7"); I(f"s_mul_i32 s{S_T1}, s{S_T1}, {O.kv_rot_x}")
    I(f"s_add_u32 s{S_T0}, s{S_T0}, s{S_T1}"); I(f"s_and_b32 s{S_T0}, s{S_T0}, 15"); I(f"s_lshl_b32 s{S_T0}, s{S_T0}, 14"); I(f"s_add_u32 s{S_KV0}, s{S_T0}, s{S_W4K}")
    n_it = 11 + O.nskip
    I(f"s_mov_b32 s{S_MASK}, {((1 << n_it) - 1) << 1:#x}")
    if O.nskip:
        span = n_it - O.sk0 + 1
        I(f"s_mul_i32 s{S_T0}, s2, 37"); I(f"s_and_b32 s{S_T0}, s{S_T0}, 255"); I(f"s_mul_i32 s{S_T0}, s{S_T0}, {span}"); I(f"s_lshr_b32 s{S_T0}, s{S_T0}, 8")
        for k in range(O.nskip):
            I(f"s_add_u32 s{S_T1}, s{S_T0}, {(k * span) // O.nskip}"); I(f"s_cmp_ge_u32 s{S_T1}, {span}"); I(f"s_cselect_b32 s{S_T2}, {span}, 0"); I(f"s_sub_u32 s{S_T1}, s{S_T1}, s{S_T2}")
            I(f"s_add_u32 s{S_T1}, s{S_T1}, {O.sk0}"); I(f"s_bitset0_b32 s{S_MASK}, s{S_T1}")
    I(f"s_mov_b32 s{S_FB}, 0"); I(f"s_mov_b32 s{S_KVG}, s{S_KV0}"); I(f"s_mov_b32 s{S_SCALE}, {f2u(SCALE):#x}")
    I(f"s_lshl_b32 s{S_T0}, s{S_B}, 1"); I(f"s_add_u32 s{S_T0}, s{S_T0}, s{S_R}"); I(f"s_lshl_b32 s{S_T0}, s{S_T0}, 5"); I(f"s_add_u32 s{S_T0}, s{S_T0}, s{S_H}")
    I(f"s_lshl_b32 s{S_T0}, s{S_T0}, 1"); I(f"s_add_u32 s{S_T0}, s{S_T0}, s{S_C}"); I(f"s_mul_i32 s{S_OST}, s{S_T0}, 14336")
    I(f"s_lshl_b32 s{S_T0}, s{S_B}, 5"); I(f"s_add_u32 s{S_T0}, s{S_T0}, s{S_H}")
    I(f"s_lshr_b32 s{S_SIG}, s{S_T0}, 2"); I(f"s_lshl_b32 s{S_SIG}, s{S_SIG}, 7"); I(f"s_and_b32 s{S_T1}, s{S_H}, 3"); I(f"s_lshl_b32 s{S_T1}, s{S_T1}, 2"); I(f"s_add_u32 s{S_SIG}, s{S_SIG}, s{S_T1}"); I(f"s_add_u32 s{S_SIG}, s{S_SIG}, {FLG}")
    I(f"s_lshl_b32 s{S_T0}, s{S_T0}, 2"); I(f"s_add_u32 s{S_T0}, s{S_T0}, s{S_WAVE}"); I(f"s_mul_i32 s{S_INB}, s{S_T0}, 7168"); I(f"s_add_u32 s{S_INB}, s{S_INB}, {PART}")
    I(f"s_lshl_b32 s101, s{S_T0}, 7"); I(f"s_add_u32 s101, s101, {FLG + 65536}")
    KH = S_SL0; CG = S_SL1; U = S_SL2
    I(f"s_bfe_u32 s{KH}, s{S_H}, 0x10003"); I(f"s_and_b32 s{S_T3}, s{S_H}, 7"); I(f"s_lshr_b32 s{CG}, s{S_H}, 4"); I(f"s_lshl_b32 s{CG}, s{CG}, 3"); I(f"s_add_u32 s{CG}, s{CG}, s{S_T3}")
    I(f"s_lshr_b32 s{S_T1}, s2, 3"); I(f"s_and_b32 s{S_T2}, s{S_B}, 3")
    I(f"s_lshl_b32 s{S_PFO}, s{S_T1}, 14"); I(f"s_lshl_b32 s6, s{S_T3}, 7"); I(f"s_sub_u32 s{S_PFO}, s{S_PFO}, s6")
    I(f"s_mul_i32 s{S_T2}, s{S_T2}, {O.k2_rot_r}"); I(f"s_mul_i32 s{S_T3}, s{S_T3}, {O.k2_rot_c}"); I(f"s_add_u32 s{U}, s{S_T2}, s{S_T3}")
    I(f"s_xor_b32 s{S_T1}, s{KH}, 1"); I(f"s_lshl_b32 s{S_T1}, s{S_T1}, 1"); I(f"s_add_u32 s{S_T1}, s{S_T1}, s{S_C}"); I(f"s_lshl_b32 s{S_T2}, s{S_R}, 2"); I(f"s_add_u32 s{S_T1}, s{S_T1}, s{S_T2}")
    I(f"s_lshl_b32 s{S_T0}, s{S_B}, 4"); I(f"s_add_u32 s{S_T0}, s{S_T0}, s{S_T1}"); I(f"s_mul_i32 s{S_T0}, s{S_T0}, {16*7168}")
    srd(S_OO, P_WS, 144 * 7168, S_T0, sub=False)
    I(f"s_lshl_b32 s{S_POLL}, s{S_B}, 3"); I(f"s_add_u32 s{S_POLL}, s{S_POLL}, s{S_T1}"); I(f"s_lshl_b32 s{S_POLL}, s{S_POLL}, 7"); I(f"s_add_u32 s{S_POLL}, s{S_POLL}, {FLG}")
    I(f"s_lshl_b32 s{S_T1}, s{S_T1}, 20"); I(f"s_lshl_b32 s{S_T2}, s{CG}, 7"); I(f"s_add_u32 s{S_T1}, s{S_T1}, s{S_T2}")
    srd(S_WO, P_WO, 8388608, S_T1)
    I(f"s_lshl_b32 s{S_T0}, s{S_B}, 1"); I(f"s_add_u32 s{S_T0}, s{S_T0}, s{KH}")
    I(f"s_mul_i32 s{S_OUTOFF}, s{S_T0}, {112*2048}"); I(f"s_add_u32 s{S_OUTOFF}, s{S_OUTOFF}, s{S_T2}"); I(f"s_lshl_b32 s{S_T1}, s{S_WAVE}, 5"); I(f"s_add_u32 s{S_OUTOFF}, s{S_OUTOFF}, s{S_T1}")
    for u in range(8):
        I(f"s_add_u32 s{S_T0}, s{U}, {u}"); I(f"s_and_b32 s{S_T0}, s{S_T0}, 7"); I(f"s_lshl_b32 s{S_TW+u}, s{S_T0}, 16"); I(f"s_mul_i32 s{S_TO+u}, s{S_T0}, 7168")
    I(f"s_lshl_b32 s{S_LB0}, s{S_WAVE}, 13"); I(f"s_add_u32 s{S_LB0}, s{S_LB0}, 98304"); I(f"s_xor_b32 s{S_T3}, s{S_WAVE}, 1")
    I(f"s_mul_i32 s{S_LB1}, s{S_T3}, 28672"); I(f"s_cmp_eq_u32 s{S_T3}, 3"); I(f"s_cselect_b32 s{S_LB1}, 131072, s{S_LB1}")
    I(f"s_mul_i32 s{S_CA}, s{S_WAVE}, 28672"); I(f"s_cmp_eq_u32 s{S_WAVE}, 3"); I(f"s_cselect_b32 s{S_CA}, 131072, s{S_CA}")
    I(f"s_lshl_b32 s{S_STW}, s{S_WAVE}, 10"); I(f"s_add_u32 s{S_STW}, s{S_STW}, {ST0}")
    I(f"v_lshlrev_b32 v{T+4}, 1, v{T+1}"); I(f"v_and_b32 v{T+6}, 7, v0"); I(f"v_xor_b32 v{T+6}, v{T+4}, v{T+6}"); I(f"v_lshl_add_u32 v{V_WOB}, v{T+6}, 4, v{T+7}")
    I(f"v_xor_b32 v{T+4}, v{T+4}, v{T}"); I(f"v_lshlrev_b32 v{T+5}, 8, v{T+1}")
    for j in range(4):
        I(f"v_xor_b32 v{T+6}, {8*(j&1) + (j>>1)}, v{T+4}"); I(f"v_lshl_add_u32 v{V_KVOFF+j}, v{T+6}, 4, v{T+5}")
    if O.kv_noswz:
        for j in range(4): I(f"v_lshlrev_b32 v{V_KVOFF+j}, 4, v0")
    I(f"v_lshlrev_b32 v{V_LANE16}, 4, v0"); I(f"v_bfe_u32 v{T+2}, v0, 2, 2"); I(f"v_and_b32 v{T+3}, 3, v0")
    I(f"v_lshrrev_b32 v{T+4}, 1, v{T}"); I(f"v_xor_b32 v{T+4}, v{T+4}, v{T+1}"); I(f"s_mul_i32 s{S_T0}, s{S_R}, {112*128}")
    I(f"v_lshlrev_b32 v{T+5}, 7, v{T}"); I(f"v_add_u32 v{T+5}, s{S_T0}, v{T+5}"); I(f"v_lshl_add_u32 v{V_XB}, v{T+4}, 4, v{T+5}"); I(f"v_xor_b32 v{V_XB+1}, 64, v{V_XB}")
    I(f"v_lshrrev_b32 v{T+4}, 1, v{T+3}"); I(f"v_and_b32 v{T+5}, 1, v{T+3}"); I(f"v_lshl_add_u32 v{T+4}, v{T+5}, 1, v{T+4}")
    I(f"s_lshl_b32 s{S_T0}, s{S_C}, 1"); I(f"v_xor_b32 v{T+5}, s{S_T0}, v{T+2}"); I(f"v_lshl_add_u32 v{T+4}, v{T+5}, 2, v{T+4}")
    I(f"v_lshl_add_u32 v{T+5}, v{T+1}, 3, v{T+2}"); I(f"v_lshlrev_b32 v{T+5}, 8, v{T+5}"); I(f"v_lshl_add_u32 v{V_WB}, v{T+4}, 4, v{T+5}"); I(f"v_xor_b32 v{V_WB+1}, 64, v{V_WB}")
    I(f"v_lshrrev_b32 v{T+4}, 1, v{T+1}"); I(f"v_and_b32 v{T+5}, 1, v{T+1}"); I(f"v_lshl_add_u32 v{T+4}, v{T+5}, 1, v{T+4}")
    I(f"v_and_b32 v{T+5}, 7, v{T}"); I(f"v_lshrrev_b32 v{T+6}, 3, v{T}"); I(f"v_lshl_add_u32 v{T+5}, v{T+5}, 1, v{T+6}")
    I(f"v_xor_b32 v{T+4}, v{T+4}, v{T+5}"); I(f"s_lshl_b32 s{S_T0}, s{S_C}, 3"); I(f"v_xor_b32 v{T+4}, s{S_T0}, v{T+4}")
    I(f"s_lshl_b32 s{S_T1}, s{S_C}, 13"); I(f"s_add_u32 s{S_T2}, s{S_T1}, {KOFF}")
    I(f"v_lshlrev_b32 v{T+5}, 8, v{T}"); I(f"v_add_u32 v{T+5}, s{S_T2}, v{T+5}"); I(f"v_lshl_add_u32 v{V_KB}, v{T+4}, 4, v{T+5}")
    I(f"v_lshl_add_u32 v{T+6}, v{T+1}, 2, v{T+2}")
    I(f"v_bfe_u32 v{T+4}, v{T+6}, 1, 2"); I(f"v_xor_b32 v{T+4}, s{S_WAVE}, v{T+4}"); I(f"v_lshlrev_b32 v{T+5}, 7, v{T+6}"); I(f"v_lshl_add_u32 v{T+5}, v{T+4}, 5, v{T+5}"); I(f"v_lshl_add_u32 v{V_RAB}, v{T+3}, 3, v{T+5}")
    I(f"v_and_b32 v{T+4}, 7, v{T+6}"); I(f"v_lshrrev_b32 v{T+5}, 3, v{T+6}"); I(f"v_lshl_add_u32 v{T+4}, v{T+4}, 1, v{T+5}")
    I(f"v_bfe_u32 v{T+5}, v0, 1, 1"); I(f"v_xor_b32 v{T+4}, v{T+4}, v{T+5}"); I(f"v_xor_b32 v{T+4}, s{S_T0}, v{T+4}")
    I(f"v_lshlrev_b32 v{T+6}, 8, v{T+6}"); I(f"v_add_u32 v{T+6}, s{S_T1}, v{T+6}"); I(f"v_lshl_add_u32 v{T+6}, v{T+4}, 4, v{T+6}")
    I(f"v_and_b32 v{T+5}, 1, v0"); I(f"v_lshl_add_u32 v{V_VB}, v{T+5}, 3, v{T+6}")
    for k in range(2):
        I(f"v_mov_b32 v{V_XA+k}, v{V_XB+k}"); I(f"v_mov_b32 v{V_WA+k}, v{V_WB+k}")
    if not O.e4:
        for k in range(32): I(f"v_mov_b32 v{OK_+80+k}, 0")
    for k in range(32): I(f"v_accvgpr_write_b32 a{OS_+80+k}, 0")
    for x in v_addr((RING - 1) * 32768): I(x)
    I(f"s_mul_i32 s{S_T2}, s{S_WAVE}, 14336"); I(f"v_add_u32 v{V_T0}, s{S_T2}, v{V_LANE16}")
    I(f"s_mul_i32 s{S_T3}, s{S_T3}, 14336"); I(f"v_add_u32 v{V_QP}, s{S_T3}, v{V_LANE16}")
    I(f"v_add_u32 v{V_KW1}, s{S_W4K}, v{V_LANE16}"); I(f"v_add_u32 v{V_KW0}, 0x10000, v{V_KW1}"); I(f"v_add_u32 v{V_KW2}, 0x20000, v{V_KW1}")
    if O.cpf:
        c1 = code_pf("L_trans", 6, 215)
        for x in c1[0] + [c1[1]]: I(x)
    FS = [62, 63, 98]
    for h, rng in enumerate([O.f1, O.f2, O.f3][:O.nfar]):
        t = FS[h]
        lo, hi = [int(z) for z in rng.split(",")]; n = hi - lo + 1
        ph = [0, 128, 64][h] if not (O.f1 == O.f2 == O.f3) else [0, 85, 171][h]
        I(f"s_add_u32 s{t}, s2, {ph}"); I(f"s_and_b32 s{t}, s{t}, 255"); I(f"s_mul_i32 s{t}, s{t}, {n}"); I(f"s_lshr_b32 s{t}, s{t}, 8"); I(f"s_add_u32 s{t}, s{t}, {lo}")
        I(f"s_lshl_b32 s{t}, s{t}, 14"); I(f"s_add_u32 s{t}, s{t}, s{S_KV0}"); I(f"s_and_b32 s{t}, s{t}, 0x3ffff")
    I(f"v_and_b32 v{V_TMP+10}, 15, v0"); I(f"v_lshlrev_b32 v{V_TMP+10}, 7, v{V_TMP+10}")
    if O.gmode:
        I(f"s_cmp_eq_u32 s{S_R}, 0"); I(f"s_cselect_b32 s4, s{S_K}, s{S_V}"); I(f"s_cselect_b32 s5, s{S_K+1}, s{S_V+1}"); I(f"s_cselect_b32 s{S_T0}, 16384, 0")
        I("s_mov_b32 s6, 262144"); I("s_mov_b32 s7, 0x20000")
        I(f"s_sub_u32 s{S_T1}, s{S_KV0}, s{S_W4K}"); I(f"s_add_u32 s{S_T0}, s{S_T0}, s{S_T1}"); I(f"s_lshl_b32 s{S_T1}, s{S_C}, 13"); I(f"s_add_u32 s{S_T0}, s{S_T0}, s{S_T1}")
        for r in range(O.g_rounds):
            I(f"s_add_u32 s{60+r}, s{S_T0}, {r*16384}"); I(f"s_and_b32 s{60+r}, s{60+r}, 0x3ffff")
        I(f"s_lshr_b32 s100, s2, 3"); I(f"s_mul_i32 s100, s100, {O.g_per}"); I("s_lshr_b32 s100, s100, 5")
        I(f"v_lshlrev_b32 v{V_KW0}, 7, v0")
    emit_dma(take(-1, max(0, O.n_up - O.n_up0), 0), post=True)
    I("s_waitcnt vmcnt(@xa0)"); I("s_barrier")
    stamp()
    for r in r_w(0)[:2] + r_x([0])[:1] + r_w(0)[2:] + r_x(range(4))[1:]: I(r)
    for k in range(2): I(f"v_add_u32 v{V_WA+k}, {stg(1)}, v{V_WB+k}")
    I("s_waitcnt lgkmcnt(0) vmcnt(@w_1)"); I("s_barrier")
    el = early_loads(); ew = early_writes()
    l2 = [([], f"buffer_load_dword v{V_TMP+6}, v{V_PF+p}, {sr(sq,4)}, 0 offen") for p in range(O.nl2) for sq in (S_K, S_V)]
    del THIN[:]
    l2 = []
    tl = el[len(el) - O.tail_n:] if O.tail_n else []
    THIN.extend([tl[k:k + 2] for k in range(0, len(tl), 2)])
    THIN.extend([[([], f"buffer_load_dword v{V_TMP+6}, v{V_TMP+10}, {sr(sq,4)}, s{FS[f]} offen offset:{hf*2048}")] for f in range(O.nfar) for sq in (S_K, S_V) for hf in range(2)])
    assert len(THIN) <= 12 and len(tl) <= 12
    THIN.extend([[]] * (12 - len(THIN)))
    qwork = []
    for rt in range(7):
        for kp in range(2):
            b = p1_acc(rt) + 8 * kp; t = SB + 4 * ((2 * rt + kp) % 8)
            rdy = 8 * rt + (4 * kp + 3 if O.accord else 5 + 2 * kp) + 9
            qwork += [(rdy, "v", f"v_mul_f32 v{b+k}, s{S_SCALE}, v{b+k}") for k in range(8)]
            if O.tr_early: qwork += [(rdy, "v", f"v_cvt_pk_bf16_f32 v{t+k}, v{b+2*k}, v{b+2*k+1}") for k in range(4)] + [(rdy, "w", f"ds_write_b128 v{V_T0}, {vr(t)} offset:{(2*rt+kp)*1024} ;@qw")]
    ne = 0
    NE = len(el) - O.tail_n
    nit = O.kv_last - O.kv_first
    def gat(hh):
        k = hh - O.g_start
        if not O.gmode or k < 0 or k >= O.g_per * O.g_rounds: return []
        return [([f"s_cmp_eq_u32 s100, {k % O.g_per}", f"s_cselect_b32 s101, s{60 + k // O.g_per}, 0x40000000"], f"buffer_load_dword v{V_TMP+6}, v{V_KW0}, s[4:7], s101 offen")]
    def tagd(g, t, adv=False):
        g = [(x[0], x[1] + f" ;@{t}") for x in g]
        if adv: g[3] = g[3] + ([KVG_UPD],)
        return g
    late = tagd(kv_dma("V", 4 * 32768), "v0", True) + tagd(kv_dma("K", 3 * 32768), "s1") + tagd(kv_dma("V", 3 * 32768), "s1", True) + tagd(kv_dma("K", 2 * 32768), "s2") + tagd(kv_dma("V", 2 * 32768), "s2", True)
    for i in range(16):
        if i <= 12: ma = take(2 * i, O.capA2 if i == 0 else O.capA, O.capA2)
        elif O.gmode: ma = gat(2 * i) + {13: [], 14: late[6:12], 15: late[18:20]}[i]
        elif i == 13: ma = take(26, 6, 6) + THIN[0]
        elif i == 14: ma = THIN[2] + ew[6:12]
        else: ma = THIN[4] + ew[17:20]
        if 2 * i == O.l2_at: ma = ma + l2
        rd = r_x(range(4, 7)) + (r_w(i + 1) if i < 15 else [])
        addr = [(5, f"v_add_u32 v{V_XA+k}, {stg(i+1)}, v{V_XB+k}") for k in range(2)] if i < 15 else []
        va = (qwork, 0) if i == 15 else None
        p1_half(p1_mfmas(i, range(4)), ma, rd, addr, "s_waitcnt lgkmcnt(0)" + (f" vmcnt(@xa{i+1})" if i < 15 else ""), valu=va)
        k = 0
        if O.kv_first <= i < O.kv_last and not O.gmode: k = ((i - O.kv_first + 1) * NE) // nit - ne
        mb = el[ne:ne + k] + gat(2 * i + 1); ne += k
        tk = take(2 * i + 1, O.capB2 if i == 0 else O.capB, O.capB2)
        if i == O.k0_it:
            p = [n for n, x in enumerate(tk) if x[0]][0]
            tk = tk[:p] + kv_dma("K", 4 * 32768, S_KV0) + tk[p:]
        mb += tk
        if i == 13: assert not Q and not tk
        if i == 13: mb += THIN[1] + ew[0:6]
        if i == 14: mb += THIN[3] + ew[12:17]
        if i == 15: mb += THIN[5]
        if 2 * i + 1 == O.l2_at: mb = mb + l2
        if O.cpf and i == 12: mb = mb + [([], c1[2])]
        rd = r_x(range(4)) if i < 15 else []
        addr = [(-1, f"v_add_u32 v{V_WA+k}, {stg(i+2)}, v{V_WB+k}") for k in range(2)] if i < 14 else []
        if i == 15: va = (qwork, 32)
        wait = None if i == 15 else "s_waitcnt lgkmcnt(0)" + (f" vmcnt(@w_{i+2})" if i < 14 else " vmcnt(@xb15)")
        p1_half(p1_mfmas(i, range(4, 7)), mb, rd, addr, wait, valu=va)
        if O.p1st and i < 15: stamp()
    stamp()
    A("L_trans:")
    for x in k_addr((RING - 1) * 32768): I(x)
    for f in range(8): I(k_read(f))
    assert O.tr_early
    for x in THIN[6]: I(x[1])
    for x in pendw: I(x)
    del pendw[:]
    for w in qwork: I(w[2])
    for rt in range(7):
        for kp in range(2): I(f"ds_read_b128 {ar(QA+16*rt+4*kp)}, v{V_T0} offset:{(2*rt+kp)*1024}")
    I(f"s_mov_b32 s{S_DS}, {4*32768}"); I(f"s_mov_b32 s{S_SL2}, {3*32768}"); I(f"s_mov_b32 s{S_I}, 0")
    I("s_waitcnt lgkmcnt(@qw)" + (" vmcnt(@v0)" if O.gmode else "")); I("s_barrier")
    for rt in range(7):
        for kp in range(2): I(f"ds_read_b128 {ar(QA+16*rt+8+4*kp)}, v{V_QP} offset:{(2*rt+kp)*1024}")
    for x in THIN[7]: I(x[1])
    I(f"v_add_u32 v{V_T0}, s{S_CA}, v{V_LANE16}")
    I(f"v_add_u32 v{V_T1}, s{S_LB1}, v{V_LANE16}")
    I(f"v_mov_b32 v{V_WOF}, v{V_WOB}")
    for j in range(1, 4): I(f"v_add_u32 v{V_WOF+j}, {j*16384-j*1024}, v{V_WOB}")
    I("s_waitcnt lgkmcnt(0)"); I("s_barrier")
    if not O.s4_in: emit_dma(kv_dma("K", 0) + kv_dma("V", 0)); I(KVG_UPD)
    stamp()
    att_iter("first").emit()
    g = sm0_ops(6)
    S = SB + 8 * COL[6]; pn = sm0_nm(5)
    for x in g[0] + g[1] + [pn[2]] + g[2] + [pn[3]] + g[3]: I(x)
    for k in range(1, 8): I(f"v_sub_f32 v{S+k}, v{S+k}, v{V_TMP}")
    for x in sm0_nm(6): I(x)
    I(f"v_mov_b32 v{LS+6}, 0")
    def clear_code():
        I(f"v_mov_b32 v{V_TMP+4}, s{S_SIG}"); I(f"v_mov_b32 v{V_TMP+5}, 0"); I(f"v_writelane_b32 v{V_TMP+4}, s101, 1"); I("s_mov_b64 exec, 3")
        I(f"global_store_dword v{V_TMP+4}, v{V_TMP+5}, {sr(P_WS)} sc1"); I("s_mov_b64 exec, -1")
    def count_code():
        I(f"s_or_b32 s{S_T0}, s{S_WAVE}, s{S_FB}"); I("s_cbranch_scc1 L_nosig0")
        I(f"v_mov_b32 v{V_TMP+5}, 0"); I(f"v_mov_b32 v{V_TMP+7}, 1"); I("s_mov_b64 exec, 1")
        I(f"global_atomic_add v{V_TMP+5}, v{V_TMP+7}, {sr(P_DBG)} sc1 ;@nocount")
        I("s_mov_b64 exec, -1")
        A("L_nosig0:")
    assert O.ta >= 4
    if O.clr == 0: clear_code()
    if O.epst: stamp()
    A(".p2align 6"); A("L_att:")
    for lp in ((0, 1) if O.ta else (1,)):
        if lp and O.clr == 0: count_code()
        if lp and O.clr == 1:
            I(f"s_cmp_lg_u32 s{S_FB}, 0"); I("s_cbranch_scc1 L_noclr"); clear_code(); A("L_noclr:")
        if lp and O.ta: A(".p2align 6"); A("L_att2:")
        G = att_iter("loop", lp)
        if O.loopst:
            G.s[92].append("s_memtime s[98:99]"); G.p[94].append("s_memtime s[100:101]"); G.p[95].append("s_memtime s[62:63]")
            G.v[7].append(f"v_cmp_eq_u32 vcc, s{S_I}, v0")
            for k, sg in enumerate((98, 100, 62)):
                G.v[11 + 4 * k].append(f"v_mov_b32 v251, s{sg}"); G.v[11 + 4 * k].append(f"v_cndmask_b32 v{252+k}, v{252+k}, v251, vcc")
        G.emit()
        I("s_cbranch_scc1 " + ("L_att2" if (lp and O.ta) else "L_att"))
    if O.epst: stamp()
    if O.loopst:
        I(f"s_lshl_b32 s{S_T0}, s2, 12"); I(f"s_lshl_b32 s{S_T1}, s{S_WAVE}, 10"); I(f"s_add_u32 s{S_T0}, s{S_T0}, s{S_T1}"); I(f"s_add_u32 s{S_T0}, s{S_T0}, {(1<<26)+(1<<20)}"); I(f"v_lshl_add_u32 v251, v0, 4, s{S_T0}")
        I(f"global_store_dwordx4 v251, v[252:255], {sr(P_WS)}")
    if O.clr == 1: count_code()
    for t in range(12 + O.nskip, 15): att_iter("pen", t).emit()
    A("L_last:")
    if O.epst: stamp()
    att_iter("last").emit()
    def sendfirst(m): return m[4:] + m[:4]
    def osend(rt, k): return f"ds_write_b128 v{V_T0}, {ar(OS_+16*rt+4*k)} offset:{(4*rt+k)*1024}"
    I("s_nop 0")
    G = Gaps(sendfirst(pv_mfmas(5)))
    e, a, c = sm_ops(6)
    for k in range(8):
        G.v[k].append(e[k])
        if k: G.v[k].append(a[k - 1])
        if k in (2, 4, 6): G.v[k].append(c[k // 2 - 1])
    for k in range(4): G.m[1 + 2 * k].append(osend(4, k))
    G.emit()
    I("s_nop 0"); I(c[3]); I(a[7]); I(f"s_mov_b32 s{S_T0}, {f2u(2.0**40):#x}")
    G = Gaps(sendfirst(pv_mfmas(6)))
    for k in range(7): G.v[[1, 1, 3, 3, 5, 5, 7][k]].append(f"v_mov_b32 v{V_TMP+k}, v{LS+k}")
    for k in range(4): G.m[2 * k].append(osend(5, k))
    G.emit()
    stamp()
    regs = [LS + rt for rt in range(7)]; temps = [V_TMP + rt for rt in range(7)]
    I(osend(6, 0)); I(osend(6, 1))
    for r, t in zip(regs, temps): I(f"v_permlane32_swap_b32 v{r}, v{t}")
    I(osend(6, 2))
    for r, t in zip(regs, temps): I(f"v_add_f32 v{r}, v{r}, v{t}")
    for r, t in zip(regs, temps): I(f"v_mov_b32 v{t}, v{r}")
    I(osend(6, 3)); I("s_nop 0")
    for r, t in zip(regs, temps): I(f"v_permlane16_swap_b32 v{r}, v{t}")
    I("s_nop 0")
    for rt, (r, t) in enumerate(zip(regs, temps)): I(f"v_add_f32 v{NM+4*rt+1}, v{r}, v{t}")
    I(f"v_add_f32 v{V_TMP}, v{NM+1}, v{NM+5}"); I(f"v_add_f32 v{V_TMP+1}, v{NM+9}, v{NM+13}"); I(f"v_add_f32 v{V_TMP+2}, v{NM+17}, v{NM+21}")
    I(f"v_add_f32 v{V_TMP}, v{V_TMP}, v{NM+25}"); I(f"v_add_f32 v{V_TMP+1}, v{V_TMP+1}, v{V_TMP+2}"); I(f"v_add_f32 v{V_TMP}, v{V_TMP}, v{V_TMP+1}")
    I(f"v_cmp_nlt_f32 vcc, v{V_TMP}, s{S_T0}")
    for rt in range(7): I(f"ds_write_b64 v{V_STW}, {vr(NM+4*rt,2)} offset:{rt*128}")
    I(f"s_cmp_lg_u64 vcc, 0"); I(f"s_cselect_b32 s{S_T1}, 1, 0"); I(f"s_andn2_b32 s{S_T1}, s{S_T1}, s{S_FB}"); I(f"v_mov_b32 v{V_TMP+1}, s{S_T1}")
    I(f"ds_write_b32 v{V_STW}, v{V_TMP+1} offset:896")
    I("s_waitcnt lgkmcnt(0)"); I("s_barrier")
    if O.epst: stamp()
    I(f"ds_read_b32 v{V_TMP+4}, v{V_FLR} ;@fl")
    for rt in range(7): I(f"ds_read_b64 {vr(NM+4*rt+2,2)}, v{V_STR} offset:{rt*128} ;@st")
    RB = 128
    def recv(rt):
        for dq in range(4): I(f"ds_read_b128 {vr(RB+16*(rt%4)+4*dq)}, v{V_T1} offset:{(4*rt+dq)*1024} ;@r{rt}")
    recv(0)
    I("s_waitcnt lgkmcnt(@fl)" if O.fast_ep else "s_waitcnt lgkmcnt(@fl) vmcnt(@w1)")
    I(f"v_cmp_ne_u32 vcc, 0, v{V_TMP+4}")
    recv(1)
    I("s_cbranch_vccnz L_fallback")
    st = {"dma": 2, "rd": 0}; free = []; pend = []
    def do_read(wait=True):
        m = st["rd"]; st["rd"] += 1
        if wait: I(f"s_waitcnt vmcnt(@w{m})")
        for r in a_reads(m): I(r)
        pend.append(m)
    def release(n=None):
        k = len(pend) if n is None else n
        if not k: return
        I(f"s_waitcnt lgkmcnt(@a{pend[k-1]})")
        for _ in range(k): free.append(slot_of[pend.pop(0)])
    def do_dma():
        m = st["dma"]; st["dma"] += 1
        slot_of[m] = free.pop(0); emit_dma(wo_dma(m))
    def factors(rts):
        bs = [NM + 4 * rt for rt in rts]
        for rt, b in zip(rts, bs): I(f"v_min_f32 v{LS+rt}, v{b}, v{b+2}")
        for rt, b in zip(rts, bs): I(f"v_sub_f32 v{b}, v{LS+rt}, v{b}"); I(f"v_sub_f32 v{b+2}, v{LS+rt}, v{b+2}")
        for b in bs: I(f"v_exp_f32 v{b}, v{b}"); I(f"v_exp_f32 v{b+2}, v{b+2}")
        for b in bs: I(f"v_mul_f32 v{b+1}, v{b+1}, v{b}")
        for b in bs: I(f"v_fma_f32 v{b+1}, v{b+3}, v{b+2}, v{b+1}")
        for b in bs: I(f"v_rcp_f32 v{b+1}, v{b+1}")
        for b in bs: I(f"v_mul_f32 v{b}, v{b}, v{b+1}"); I(f"v_mul_f32 v{b+2}, v{b+2}, v{b+1}")
    if O.fast_ep:
        recv(2)
        I("s_waitcnt lgkmcnt(@st)")
        factors([0, 1])
        I("s_waitcnt lgkmcnt(@r1)"); free.extend([2, 3])
    else:
        do_read(False); do_read(False)
        recv(2)
        I("s_waitcnt lgkmcnt(@st)")
        bs = [NM + 4 * rt for rt in range(7)]
        for rt, b in enumerate(bs): I(f"v_min_f32 v{LS+rt}, v{b}, v{b+2}")
        for rt, b in enumerate(bs): I(f"v_sub_f32 v{b}, v{LS+rt}, v{b}"); I(f"v_sub_f32 v{b+2}, v{LS+rt}, v{b+2}")
        release(); free.extend([2, 3])
        for _ in range(min(2, O.pre_dma)): do_dma()
        for b in bs: I(f"v_exp_f32 v{b}, v{b}"); I(f"v_exp_f32 v{b+2}, v{b+2}")
        if O.pre_dma > 2: do_dma()
        for b in bs: I(f"v_mul_f32 v{b+1}, v{b+1}, v{b}")
        for b in bs: I(f"v_fma_f32 v{b+1}, v{b+3}, v{b+2}, v{b+1}")
        for b in bs: I(f"v_rcp_f32 v{b+1}, v{b+1}")
        if O.pre_dma > 3: do_dma()
        for b in bs: I(f"v_mul_f32 v{b}, v{b}, v{b+1}"); I(f"v_mul_f32 v{b+2}, v{b+2}, v{b+1}")
    for rt in range(7):
        if O.epst: stamp()
        if O.fast_ep and rt == 2:
            for _ in range(O.pre_dma): do_dma()
            factors([2, 3, 4, 5, 6])
        if rt + 3 < 7: recv(rt + 3)
        if rt >= 2:
            I(f"s_waitcnt lgkmcnt(@r{rt})"); free.append(2 + rt)
        if free and str(rt) in O.ep_dma: do_dma()
        b = NM + 4 * rt; o = OK_ + 16 * rt; rb = RB + 16 * (rt % 4)
        for k in range(0, 16, 2): I(f"v_pk_mul_f32 {vr(o+k,2)}, {vr(o+k,2)}, {vr(b,2)} op_sel_hi:[1,0]")
        for k in range(0, 16, 2): I(f"v_pk_fma_f32 {vr(o+k,2)}, {vr(rb+k,2)}, {vr(b+2,2)}, {vr(o+k,2)} op_sel_hi:[1,0,1]")
        for k in range(8): I(f"v_cvt_pk_bf16_f32 v{o+k}, v{o+2*k}, v{o+2*k+1}")
        I(f"s_add_u32 s{S_T1}, s{S_OST}, {rt*1024}"); I(f"s_add_u32 s{S_T2}, s{S_OST}, {rt*1024+7168}")
        I(f"buffer_store_dwordx4 {vr(o)}, v{V_LANE16}, {sr(S_O,4)}, s{S_T1} offen {O.pol_ost} ;@os")
        I(f"buffer_store_dwordx4 {vr(o+4)}, v{V_LANE16}, {sr(S_O,4)}, s{S_T2} offen {O.pol_ost} ;@os")
    stamp()
    assert RA_N == 16 and NB == 2
    def poll_loop(name, reg, addr, base, test):
        t = [f"s_mov_b32 s{S_I}, 0", f"L_poll{name}:"] + test + [f"s_cbranch_scc1 L_ready{name}", f"s_add_u32 s{S_I}, s{S_I}, 1",
             f"s_cmp_ge_u32 s{S_I}, 0x40000", f"s_cbranch_scc1 L_ready{name}", (f"s_sleep {O.slp}" if O.slp else ""), f"global_load_dword v{reg}, v{addr}, {sr(base)} sc1 ;@nocount", "s_waitcnt vmcnt(0)", f"s_branch L_poll{name}", f"L_ready{name}:"]
        return chr(10).join(t)
    allset = [f"v_cmp_ne_u32 vcc, 1, v{V_TMP+3}", "s_nop 1", "s_cmp_eq_u64 vcc, 0"]
    I(f"v_mov_b32 v{V_TMP}, s{S_SIG}"); I(f"v_mov_b32 v{V_TMP+1}, 1"); I(f"v_and_b32 v{V_TMP+2}, 3, v0"); I(f"v_lshl_add_u32 v{V_TMP+2}, v{V_TMP+2}, 2, s{S_POLL}")
    I(f"s_bfe_u32 s{S_T0}, s{S_H}, 0x10003"); I(f"s_mul_i32 s{S_WBO+2}, s{S_T0}, {128*7168}"); I(f"s_sub_u32 s{S_WBO}, {128*7168}, s{S_WBO+2}")
    I(f"s_add_u32 s{S_WBO+1}, s{S_WBO}, {8*7168}"); I(f"s_add_u32 s{S_WBO+3}, s{S_WBO+2}, {8*7168}")
    I(f"s_lshl_b32 s{S_T0}, s{S_B}, 5"); I(f"s_add_u32 s{S_T0}, s{S_T0}, s{S_H}"); I(f"s_lshl_b32 s{S_T0}, s{S_T0}, 2"); I(f"s_add_u32 s{S_T0}, s{S_T0}, s{S_WAVE}")
    I(f"s_xor_b32 s{S_T0}, s{S_T0}, 32"); I(f"s_mul_i32 s{S_PST}, s{S_T0}, 7168"); I(f"s_add_u32 s{S_PST}, s{S_PST}, {PART}")
    older = st["dma"]
    while st["rd"] < older: do_read()
    I("s_waitcnt vmcnt(0)"); I("s_barrier")
    I(f"s_cmp_lg_u32 s{S_WAVE}, 0"); I("s_cbranch_scc1 L_nosig")
    I("s_mov_b64 exec, 1")
    I(f"global_store_dword v{V_TMP}, v{V_TMP+1}, {sr(P_WS)} sc1 ;@nocount")
    I("s_mov_b64 exec, -1")
    A("L_nosig:")
    I(poll_loop("0", V_TMP + 10, V_TMP + 9, P_DBG, [f"v_readfirstlane_b32 s{S_T0}, v{V_TMP+10}", "s_nop 0", f"s_cmp_ge_u32 s{S_T0}, 256"]))
    stamp()
    release()
    pol_ = [False]
    def maybe_poll():
        if not pol_[0] and st["dma"] >= 16 - O.poll_lead:
            I(f"global_load_dword v{V_TMP+3}, v{V_TMP+2}, {sr(P_WS)} sc1 ;@poll"); pol_[0] = st["dma"]
    while free and st["dma"] < 16: maybe_poll(); do_dma()
    while st["dma"] < 16:
        do_read()
        if len(pend) > 1: release(1); maybe_poll(); do_dma()
    maybe_poll()
    RD = V_TMP + 4
    for cq in range(4):
        I(f"s_xor_b32 s{S_T0}, s{S_WAVE}, {cq}"); I(f"s_mul_i32 s{S_T0}, s{S_T0}, 28672"); I(f"v_add_u32 v{RD+cq}, s{S_T0}, v{V_LANE16}")
    V_OA = V_TMP + 8
    I(f"v_and_b32 v{V_OA}, 15, v0"); I(f"v_lshlrev_b32 v{V_OA}, 11, v{V_OA}"); I(f"v_lshrrev_b32 v{V_TMP+9}, 4, v0"); I(f"v_lshl_add_u32 v{V_OA}, v{V_TMP+9}, 3, v{V_OA}")
    I(f"v_mov_b32 v{V_TMP+9}, s101"); I(f"v_xor_b32 v{V_TMP}, {32*128}, v{V_TMP+9}")
    while st["rd"] < pol_[0]: do_read()
    I("s_waitcnt vmcnt(@poll)")
    stamp()
    I(poll_loop("1", V_TMP + 3, V_TMP + 2, P_WS, allset))
    stamp()
    def bl(n, rt):
        x = b_loads(n)[rt]
        return (x[0], x[1].replace(f";@b{n}", f";@b{n}_{rt}"))
    for rt in range(7): emit_dma([bl(0, rt), bl(1, rt)])
    while st["rd"] < 16: do_read()
    I("s_waitcnt vmcnt(@b1_0) lgkmcnt(0)")
    stamp()
    def wr_(rt, cq, tag): return f"ds_write_b128 v{RD+cq}, {vr(ACC+16*rt+4*cq)} offset:{(cq*7+rt)*1024} ;@{tag}"
    FR_ = [f"ds_read_b128 {vr(ACC+16*rt+4*cq)}, v{RD} offset:{(cq*7+rt)*1024} ;@f{rt}" for rt in range(7) for cq in range(1, 4)]
    wr = [wr_(rt, cq, f"fw{rt}") for rt in range(7) for cq in range(1, 4)]
    PR = 192; SC = 220
    GS = []
    for N in range(16):
        n = 2 * N
        m0, m1 = p3_mfmas(n), p3_mfmas(n + 1)
        order = [1, 2, 3, 0] if N == 15 else [0, 1, 2, 3]
        GS += [x for rt in range(7) for cq in order for x in (m0[4 * rt + cq], m1[4 * rt + cq])]
    G = Gaps(GS)
    for N in range(16):
        n = 2 * N; g0 = 56 * N
        if n + 2 < 32:
            for rt in range(7): place(G, [bl(n + 2, rt), bl(n + 3, rt)], [g0 + 8 * rt + 9, g0 + 8 * rt + 11])
        for rt in range(7):
            if g0 + 8 * rt - 1 >= 0: G.s[g0 + 8 * rt - 1].append(f"s_waitcnt vmcnt(@b{n+1}_{rt})")
    G.s[56 * O.bar5 + (8 if O.bar5 == 7 else 0)].append("s_barrier")
    k = 0
    for rt in range(7):
        for j in range(4): G.v[56 * 7 + 8 * rt + 13 + 2 * (j // 2)].append(f"v_mov_b32 v{PR+4*rt+j}, v{ACC+16*rt+j}")
        for cq in range(1, 4):
            g = 56 * 7 + 16 + 4 * k; k += 1
            assert 56 * 7 + 8 * rt + 2 * cq + 10 <= g < 56 * 8 + 8 * rt + 2 * cq - 1, (rt, cq)
            G.m[g].append(wr_(rt, cq, "mw"))
    g = 56 * 8 + 45
    G.s[g].append("s_waitcnt lgkmcnt(0)"); G.s[g].append("s_barrier")
    for rt in range(7):
        g = 56 * 8 + 48 + 16 * rt
        for cq in range(1, 4): G.m[g + 2 * cq - 2].append(f"ds_read_b128 {vr(SC+4*(cq-1))}, v{RD} offset:{(cq*7+rt)*1024}")
        G.s[g + 8].append("s_waitcnt lgkmcnt(0)")
        ad = [f"v_add_f32 v{PR+4*rt+k}, v{PR+4*rt+k}, v{SC+k}" for k in range(4)] + [f"v_add_f32 v{SC+4+k}, v{SC+4+k}, v{SC+8+k}" for k in range(4)] + [f"v_add_f32 v{PR+4*rt+k}, v{PR+4*rt+k}, v{SC+4+k}" for k in range(4)]
        for k, x in enumerate(ad): G.v[g + [8, 8, 10, 10, 12, 12, 13, 13, 14, 14, 15, 15][k]].append(x)
    g = 56 * 10 + 52
    for rt in range(7):
        gg = g + [0, 1, 2, 4, 6, 8, 9][rt]
        if O.ps_mode == 1: gg = 56 * 8 + 48 + 16 * rt + 21
        if O.ps_mode == 2 and rt < 4: gg = 56 * 8 + 48 + 16 * 4 + [5, 6, 7, 13][rt]
        G.m[gg].append(f"buffer_store_dwordx4 {vr(PR+4*rt)}, v{V_LANE16 if rt<4 else V_L2}, {sr(S_O,4)}, s{S_PST} offen offset:{(rt%4)*1024} {O.pol_ost} ;@ps")
    g = 56 * 11 + O.s2_g
    G.s[g].append("s_waitcnt vmcnt(@ps)"); G.s[g].append("s_mov_b64 exec, 1")
    G.m[g].append(f"global_store_dword v{V_TMP}, v{V_TMP+1}, {sr(P_WS)} sc1"); G.p[g].append("s_mov_b64 exec, -1")
    G.s[56 * 13 + 4].append("s_barrier")
    G.m[56 * 14 + O.p2_g].append(f"global_load_dword v{V_TMP+3}, v{V_TMP+9}, {sr(P_WS)} sc1 ;@poll2")
    G.p[56 * 15 + 3].append("s_waitcnt vmcnt(@poll2)"); G.p[56 * 15 + 3].append(poll_loop("2", V_TMP + 3, V_TMP + 9, P_WS, allset))
    PL = [f"buffer_load_dwordx4 {vr(PR+4*rt)}, v{V_LANE16 if rt<4 else V_L2}, {sr(S_O,4)}, s{S_INB} offen offset:{(rt%4)*1024} {O.pol_old}" for rt in range(7)]
    for rt in range(7): G.m[56 * 15 + [4, 5, 6, 8, 9, 11, 13][rt]].append(PL[rt] + " ;@pl")
    nw = 0; g0 = 56 * 15
    for rt in range(6):
        for k in range(3): G.m[g0 + 8 * rt + 10 + 2 * k].append(wr[nw]); nw += 1
    if O.fin2:
        G.s[g0 + 43].append("s_waitcnt lgkmcnt(@fw3)"); G.s[g0 + 43].append("s_barrier")
        for g, x in zip([45, 47, 48, 49, 51, 53, 55, 55, 55], FR_[:9]): G.m[g0 + g].append(x)
    if O.p3st:
        for N in range(1, 16):
            k = nstamp[0]; nstamp[0] += 1
            G.p[56 * N - 2].append(f"s_memtime {sr(S_STP)}\ns_memrealtime {sr(S_STP+2)}\ns_waitcnt lgkmcnt(0)\nv_writelane_b32 v{V_STAMP}, s{S_STP}, {2*k}\nv_writelane_b32 v{V_STAMP}, s{S_STP+2}, {2*k+1}")
    G.emit()
    stamp()
    I("s_nop 4")
    def fin(rt):
        I(f"s_waitcnt lgkmcnt(@f{rt})")
        o = ACC + 16 * rt
        for k in (0, 2):
            I(f"v_pk_add_f32 {vr(o+k,2)}, {vr(o+k,2)}, {vr(o+4+k,2)}"); I(f"v_pk_add_f32 {vr(o+8+k,2)}, {vr(o+8+k,2)}, {vr(o+12+k,2)}")
        for k in (0, 2): I(f"v_pk_add_f32 {vr(o+k,2)}, {vr(o+k,2)}, {vr(PR+4*rt+k,2)}")
        for k in (0, 2): I(f"v_pk_add_f32 {vr(o+k,2)}, {vr(o+k,2)}, {vr(o+8+k,2)}")
        I(f"v_cvt_pk_bf16_f32 v{o}, v{o}, v{o+1}"); I(f"v_cvt_pk_bf16_f32 v{o+1}, v{o+2}, v{o+3}")
        I(f"buffer_store_dwordx2 {vr(o,2)}, v{V_OA}, {sr(S_OUT,4)}, s{S_OUTOFF} offen {O.pol_out}")
        I(f"s_add_u32 s{S_OUTOFF}, s{S_OUTOFF}, {16*2048}")
    for x in wr[nw:]: I(x)
    I("s_waitcnt vmcnt(@pl)")
    if O.fin2:
        for x in FR_[9:12]: I(x)
        fin(0); fin(1)
        I("s_waitcnt lgkmcnt(@fw6)"); I("s_barrier")
        for x in FR_[12:]: I(x)
        for rt in range(2, 7): fin(rt)
    else:
        I("s_waitcnt lgkmcnt(0)"); I("s_barrier")
        for x in FR_: I(x)
        for rt in range(7): fin(rt)
    stamp()
    store_stamps()
    A("L_done:")
    I("s_endpgm")
    A("L_fallback:")
    I(f"s_mov_b32 s{S_FB}, 1")
    I("s_waitcnt vmcnt(0) lgkmcnt(0)"); I("s_barrier")
    for rt in range(7): I(f"v_mov_b32 v{NM+4*rt}, 0xff800000")
    I(f"s_mov_b32 s{S_KVG}, s{S_KV0}")
    for x in k_addr(0): I(x)
    I(f"s_mov_b32 s{S_I}, 0")
    A("L_fb_loop:")
    emit_dma(kv_dma("K", 0)); I(KVG_UPD)
    I("s_waitcnt vmcnt(0)"); I("s_barrier")
    for f in range(8): I(k_read(f))
    I("s_waitcnt lgkmcnt(0)"); I("s_barrier")
    for rt in range(7):
        for m in qk_mfmas(rt, SB, usenm=False): I(m)
        I("s_nop 7")
        b = NM + 4 * rt
        for k in range(4): I(f"v_max3_f32 v{b}, v{b}, v{SB+2*k}, v{SB+2*k+1}")
    I(f"s_add_u32 s{S_I}, s{S_I}, 1"); I(f"s_cmp_lt_u32 s{S_I}, 16"); I("s_cbranch_scc1 L_fb_loop")
    multi_reduce([NM + 4 * rt for rt in range(7)], [NM + 4 * rt + 1 for rt in range(7)], "v_max_f32")
    for rt in range(7):
        b = NM + 4 * rt
        I(f"v_sub_f32 v{b}, 0, v{b}")
        for k in range(1, 4): I(f"v_mov_b32 v{b+k}, v{b}")
    I(f"s_mov_b32 s{S_KVG}, s{S_KV0}")
    for st in range(RING - 1):
        emit_dma(kv_dma("K", (4 - st) * 32768) + kv_dma("V", (4 - st) * 32768)); I(KVG_UPD)
    for k in range(112): I(f"v_mov_b32 v{OK_+k}, 0")
    for k in range(112): I(f"v_accvgpr_write_b32 a{OS_+k}, 0")
    for k in range(32): I(f"v_mov_b32 v{VF+k}, 0")
    for k in range(12): I(f"v_mov_b32 v{PB+k}, 0")
    for k in range(7): I(f"v_mov_b32 v{LS+k}, 0")
    for k in range(8): I(f"v_mov_b32 v{SB+16+k}, 0xf149f2ca")
    I(f"s_mov_b32 s{S_MASK}, 0xfff"); I(f"s_mov_b32 s{S_DS}, 0"); I(f"s_mov_b32 s{S_SL2}, {3*32768}"); I(f"s_mov_b32 s{S_I}, -1")
    for x in next_dma_state(): I(x)
    for x in k_addr(4 * 32768) + v_addr(4 * 32768): I(x)
    I("s_waitcnt vmcnt(0)"); I("s_barrier")
    for f in range(8): I(k_read(f))
    I("s_waitcnt lgkmcnt(0)")
    I("s_branch L_att")

HEAD = """
;  phase 2  attention: wave = (112-row half, 32-key half of every 64-key stage); -m enters as the C operand of the first QK MFMA.
;           m is the true max of the wave's first 32 keys; after the loop every row sum is checked (l < 2^40, NaN fails) and the
;  hand-off O (bf16, MFMA fragment order) is written through (sc1), then a per-workgroup flag in ws; flags are cleared inside the launch
;  phase 3  out tile 224x64 over half of K; the half tile owned by the partner workgroup (b, h^8) is computed first and sent in fp32.
; @launch grid=(256,1,1) block=(256,1,1) lds=163840
"""
def main(fn):
    global RA_N, NB
    RA_N = O.ra_n; NB = O.nb
    del L[:]
    nstamp[0] = 0
    A('.amdgcn_target "amdgcn-amd-amdhsa--gfx950"')
    A(".text")
    gen()
    A("  .fill 6144, 4, 0xBF800000")
    A('.section .rodata,"a"\n.p2align 6')
    A(f".amdhsa_kernel {NAME}_kernel\n  .amdhsa_next_free_vgpr 512\n  .amdhsa_next_free_sgpr 102\n  .amdhsa_accum_offset 256\n  .amdhsa_group_segment_fixed_size 0\n  .amdhsa_kernarg_size 64\n  .amdhsa_user_sgpr_count 2\n  .amdhsa_user_sgpr_kernarg_segment_ptr 1\n  .amdhsa_system_sgpr_workgroup_id_x 1\n.end_amdhsa_kernel")
    head = HEAD.strip().split(chr(10))
    open(fn, "w").write("\n".join(head + resolve(L)) + "\n")

if __name__ == "__main__":
    fn = sys.argv[1]
    for kv in sys.argv[2:]:
        k, v = kv.split("=")
        cur = getattr(O, k)
        setattr(O, k, (v == "1") if isinstance(cur, bool) else (int(v) if isinstance(cur, int) else v.replace("+", " ")))
    main(fn)
```

```python
import sys, math, struct, re
NAME = "standalone__mha_block_cached__near_ridge"

class Opt:
    pol_kv = "nt"; pol_x = ""; pol_wq = ""; pol_ost = "sc1"; pol_old = "sc1"; pol_wo = ""; pol_out = ""
    stamps = False; dbgst = False
    rotmul_h = 0; rotmul_b = 0
    k2_rot_c = 1; k2_rot_r = 2
    wo_pref = 3
    kv_first = 6
    abl_nopoll = False
    wo_early = 3
    kv_rot_j = 1
    kv_rot_x = 2
    lin_map = False
    kv_last = 13
    k0_it = 1
    up_chunks = 2
    nl2 = 1
    l2_base = 5
    cpf = True
    wo_mall = False
    n_up = 22
    n_up0 = 8
    capA = 6
    capB = 5
    capA2 = 9
    capB2 = 8
    rotmul_x = 1
    sig_cnt = False
    gmode = False
    g_start = 12
    g_per = 4
    g_rounds = 3
    l2_at = 29
    pf_pen = 2
    s4_in = True
    p1st = False
    abl_noearly = False
    nskip = 2
    epst = False
    ta = 6
    f1 = '5,10'
    f2 = '5,10'
    pf_row = True
    cp0 = 1
    tr2 = True
    ph2 = 128
    slp = 0
    ps_mode = 0
    bar5 = 5
    f3 = '11,15'
    paced = True
    nfar = 2
    sk0 = 7
    pol_kve = 'nt'
    dbg_wg = 37
    fast_ep = False
    xp = 2
    xd = 4
    xb = 1
    p2_at = 13
    clr = 0
    p3st = False
    s2_g = 52
    p2_g = 12
    fin2 = True
    tail_n = 8
    e4 = True
    wo_first = 0
    pre_dma = 2
    ra_n = 16
    r0 = 10
    nb = 2
    tr_early = True
    accord = True
    ep_dma = '9'
    post_dma = 0
    pf_q = 4
    pf_max = 8
    cpf_at = 14
    pref_last = True
    loopst = False
    tlbw = 0
    abl_nomfma = False
    kv_noswz = False
    att_vm = 24
    abl_nodma = False
    poll_lead = 2
O = Opt()

L = []
def A(s): L.append(s)
def I(s):
    for x in s.split("\n"):
        if x.strip(): L.append("  " + x.strip())
def vr(b, n=4): return f"v[{b}:{b+n-1}]"
def ar(b, n=4): return f"a[{b}:{b+n-1}]"
def sr(b, n=2): return f"s[{b}:{b+n-1}]"
def pol(p): return (p + " ") if p else ""
def f2u(x): return struct.unpack("<I", struct.pack("<f", x))[0]
MF = "v_mfma_f32_16x16x32_bf16"

class Gaps:
    def __init__(self, mf):
        self.mf = list(mf); n = len(self.mf)
        self.s = [[] for _ in range(n)]; self.m = [[] for _ in range(n)]; self.v = [[] for _ in range(n)]; self.p = [[] for _ in range(n)]
    def chain(self, instrs, gaps):
        assert len(gaps) >= len(instrs), (instrs, gaps)
        for x, g in zip(instrs, gaps): self.s[g].append(x)
    def emit(self):
        for i, m in enumerate(self.mf):
            I(m)
            for x in self.s[i] + self.m[i] + self.v[i] + self.p[i]: I(x)

def resolve(lines):
    vm = []; lg = []; out = []
    for ln in lines:
        t = re.search(r";@(\S+)", ln)
        tag = t.group(1) if t else None
        code = ln.split(";")[0].rstrip() if t else ln
        op = code.strip().split(" ")[0] if code.strip() else ""
        def sub(kind, q, cap):
            def f(m):
                k = m.group(1)
                idx = [i for i, x in enumerate(q) if x == k]
                assert idx, ("unknown tag", k, ln)
                return f"{kind}({min(cap, len(q) - 1 - idx[-1])})"
            return f
        code = re.sub(r"vmcnt\(@(\S+?)\)", sub("vmcnt", vm, 62), code)
        code = re.sub(r"lgkmcnt\(@(\S+?)\)", sub("lgkmcnt", lg, 14), code)
        if tag != "nocount":
            if op.startswith(("buffer_", "global_")): vm.append(tag)
            elif op.startswith("ds_"): lg.append(tag)
        out.append(code)
    return out

OK_ = 16; VF = 128; SB = 160; PB = 184; NM = 196; LS = 224
V_LANE16 = 1; V_QP = 2; V_WOB = 3
V_KVOFF = 4
V_XB = 8; V_WB = 10; V_KB = 12; V_VB = 13; V_T0 = 14; V_T1 = 15
V_XOFF = 200; V_WOFF = 207; V_KW0 = 211; V_KW1 = 253
V_RAB = 231; V_PF = 212
V_XA = 232; V_WA = 234
V_KA = 232; V_VA = 236; V_TMP = 244; V_STAMP = 255
OS_ = 0; QA = 112; KF = 224; FR = 112
COL = [0, 1, 0, 1, 0, 1, 2]
S_X = 8; S_K = 12; S_V = 16; S_WQ = 20; S_O = 24
S_WAVE = 28; S_B = 29; S_H = 30; S_R = 31; S_C = 32
S_OX = 33; S_OW = 34; S_MXA = 36; S_MXB = 3; S_WXT = 37; S_I = 38
S_T0 = 39; S_T1 = 40; S_T2 = 41; S_T3 = 42
S_KVG = 43; S_SL0 = 44; S_SL1 = 45; S_SL2 = 46
S_FB = 47; S_W4K = 48; S_W4KK = 49; S_SCALE = 50; S_OST = 51
P_X = 52; P_K = 54; P_V = 56; P_WQ = 58; P_WO = 60; P_OUT = 62; P_DBG = 64; P_WS = 66
S_WO = 68; S_OO = 72; S_OUT = 76; S_TW = 80; S_TO = 52; S_LB0 = 88; S_LB1 = 89; S_OUTOFF = 90; S_SIG = 91; S_POLL = 92; S_PFO = 93
S_STP = 96
XT = 28672; WT = 16384; STG = XT + WT
RING = 5; KOFF = 16384; PART = 1 << 24; FLG = 3 << 23
ST0 = 86016; S_CA = 7; S_STW = 61; V_STW = 241; V_STR = 242; V_FLR = 243
SCALE = math.log2(math.e) / math.sqrt(128.0)

nstamp = [0]
def stamp():
    if not O.stamps: return
    k = nstamp[0]
    I(f"s_memtime {sr(S_STP)}"); I("s_waitcnt lgkmcnt(0)"); I(f"v_writelane_b32 v{V_STAMP}, s{S_STP}, {2*k}")
    I(f"s_memrealtime {sr(S_STP)}"); I("s_waitcnt lgkmcnt(0)"); I(f"v_writelane_b32 v{V_STAMP}, s{S_STP}, {2*k+1}")
    nstamp[0] += 1
def store_stamps():
    if not O.stamps: return
    I(f"s_cmp_lg_u32 s{S_WAVE}, 0"); I("s_cbranch_scc1 L_done")
    I(f"s_lshl_b32 s{S_T0}, s2, 8"); I(f"s_add_u32 s{S_T0}, s{S_T0}, {1<<26}"); I(f"v_lshl_add_u32 v15, v0, 2, s{S_T0}")
    I(f"global_store_dword v15, v{V_STAMP}, {sr(P_WS)}")
    if O.dbgst:
        I(f"s_cmp_lg_u32 s2, {O.dbg_wg}"); I("s_cbranch_scc1 L_done")
        I(f"v_readlane_b32 s{S_T0}, v{V_STAMP}, 62"); I("v_lshlrev_b32 v15, 1, v0"); I("v_add_u32 v15, 6, v15"); I(f"v_subrev_u32 v14, s{S_T0}, v{V_STAMP}")
        I("s_mov_b32 exec_lo, 0x2aaaaaa"); I("s_mov_b32 exec_hi, 0")
        I(f"global_store_dword v15, v14, {sr(P_DBG)}")
def srd(d, ptr, nbytes, shift=None, sub=True):
    if shift is None:
        I(f"s_mov_b32 s{d}, s{ptr}"); I(f"s_mov_b32 s{d+1}, s{ptr+1}"); I(f"s_mov_b32 s{d+2}, {nbytes}")
    else:
        I(f"s_add_u32 s{d}, s{ptr}, s{shift}"); I(f"s_addc_u32 s{d+1}, s{ptr+1}, 0")
        I(f"s_sub_u32 s{d+2}, {nbytes}, s{shift}" if sub else f"s_mov_b32 s{d+2}, {nbytes}")
    I(f"s_mov_b32 s{d+3}, 0x20000")

def stg(i): return ((-i) % 3) * STG
def d_w(i): return [([f"s_add_u32 m0, {stg(i)}, s{S_WXT}"] if j == 0 else [], f"buffer_load_dwordx4 v{V_WOFF+j}, {sr(S_WQ,4)}, s{S_OW} offen offset:{j*1024} {pol(O.pol_wq)}lds ;@w_{i}") for j in range(4)]
def d_xa(i): return [([f"s_add_u32 m0, {stg(i)}, s{S_MXA}"] if j == 0 else [], f"buffer_load_dwordx4 v{V_XOFF+j}, {sr(S_X,4)}, s{S_OX} offen offset:{j*1024} {pol(O.pol_x)}lds ;@xa{i}") for j in range(4)]
def d_xb(i): return [([f"s_add_u32 m0, {stg(i)}, s{S_MXB}"] if j == 0 else [], f"buffer_load_dwordx4 v{V_XOFF+4+j}, {sr(S_X,4)}, s{S_OX} offen offset:{j*1024} {pol(O.pol_x)}lds ;@xb{i}", P1_UPD if j == 2 else []) for j in range(3)]
S_OC = 38; S_XM = 95
S_XR = 99
P1_UPD = [f"s_add_u32 s{S_OC}, s{S_OC}, 128", f"s_xor_b32 s{S_OX}, s{S_OC}, s{S_XM}", f"s_add_u32 s{S_OX}, s{S_OX}, s{S_XR}", f"s_and_b32 s{S_OX}, s{S_OX}, 2047", f"s_lshl_b32 s{S_OW}, s{S_OX}, 12"]
def emit_dma(g, post=False):
    for x in g:
        for p in x[0]: I(p)
        if x[0]: I("s_nop 0")
        I(x[1])
        if post and len(x) > 2:
            for p in x[2]: I(p)
def kv_dma(which, slot, so=None):
    so = S_KVG if so is None else so
    s, off = (S_K, S_W4KK) if which == "K" else (S_V, S_W4K)
    return [([f"s_add_u32 m0, {slot}, s{off}"] if j == 0 else [],
             f"buffer_load_dwordx4 v{V_KVOFF+j}, {sr(s,4)}, s{so} offen offset:{j*1024} {pol(O.pol_kv)}lds") for j in range(4)]
KVG_UPD = f"s_add_u32 s{S_KVG}, s{S_KVG}, 16384\ns_and_b32 s{S_KVG}, s{S_KVG}, 0x3ffff"
S_KV0 = 94; S_KVE = 95; S_MASK = 35; S_DS = S_SL1
def er(reg): return ar(reg) if reg < 256 else vr(reg - 256)
EARLY = [("V", 0, 256 + 160), ("K", 1, 256 + 176), ("V", 1, 0), ("K", 2, 16), ("V", 2, 32), ("K", 3, 48), ("V", 3, 64)]
def early_list(): return EARLY + ([("K", 4, 256 + 96), ("V", 4, 256 + 112)] if O.e4 else [])
V_KW2 = 216; V_ZR = 217; S_INB = 100
def early_loads():
    g = []
    for p, (w, st, reg) in enumerate(early_list()):
        for j in range(4):
            post = [KVG_UPD] if (w == "V" and j == 3) else []
            g.append(([], f"buffer_load_dwordx4 {er(reg+4*j)}, v{V_KVOFF+j}, {sr(S_K if w=='K' else S_V,4)}, s{S_KVG} offen offset:{j*1024} {O.pol_kve} ;@e{p}", post))
    return g
def early_writes():
    g = []
    for p, (w, st, reg) in enumerate(early_list()):
        addr = (4 - st) * 32768 + (KOFF if w == "K" else 0)
        base, b0 = (V_KW2, 131072) if addr >= 131072 else ((V_KW0, 65536) if addr >= 65536 else (V_KW1, 0))
        for j in range(4):
            g.append(([f"s_waitcnt vmcnt(@e{p})"] if j == 0 else [], f"ds_write_b128 v{base}, {er(reg+4*j)} offset:{addr-b0+j*1024} ;@ew"))
    return g
def p1_acc(rt): return OK_ + 16 * rt if rt < 5 else VF + 16 * (rt - 5)
FW = 112; FXA = 176; FXB = 208
def r_w(i):
    return [f"ds_read_b64_tr_b16 {ar(FW+32*(i&1)+16*s+4*t+2*e,2)}, v{V_WA+t//2} offset:{XT + s*8192 + e*1024 + (t%2)*8}" for s in range(2) for t in range(4) for e in range(2)]
def xf(rt, s): return (FXA + 8 * rt + 4 * s) if rt < 4 else (FXB + 8 * (rt - 4) + 4 * s)
def r_x(rts): return [f"ds_read_b128 {ar(xf(rt,s))}, v{V_XA+s} offset:{rt*2048}" for rt in rts for s in range(2)]
def p1_mfmas(i, rts):
    return [f"{MF} {vr(p1_acc(rt)+4*t)}, {ar(FW+32*(i&1)+16*s+4*t)}, {ar(xf(rt,s))}, " + ("0" if (i == 0 and s == 0) else vr(p1_acc(rt)+4*t)) for rt in rts for (s, t) in ([(s, t) for t in range(4) for s in range(2)] if O.accord else [(s, t) for s in range(2) for t in range(4)])]
def place(G, ops, gaps):
    assert len(gaps) >= len(ops), (len(ops), gaps)
    for d, g in zip(ops, gaps):
        for p in d[0]:
            if G.m[g - 1] and "buffer_" in G.m[g - 1][-1] and "lds" in G.m[g - 1][-1] and "m0" in p: G.p[g - 1].append(p)
            else: G.s[g - 1].append(p)
        G.m[g].append(d[1])
        if len(d) > 2:
            pp = [q for p in d[2] for q in p.split(chr(10))]
            nxt = [h for h in gaps[:len(ops)] if h > g]
            for k, p in enumerate(pp): G.s[min(g + 1 + k // 2, nxt[0] if nxt else 10**9)].append(p)
def layout(n, nmem, nrd):
    mg = sorted(set(1 + (k * (n - 3)) // max(nmem, 1) for k in range(nmem)))
    assert len(mg) == nmem
    rg = [g for g in range(n - 2) if g not in mg][:nrd]
    if len(rg) < nrd: rg = sorted(rg + mg[:nrd - len(rg)])
    return mg, rg
pendw = []
THIN = []
def p1_half(mf, mem, reads, addr, wait, valu=None, vstart=0):
    G = Gaps(mf); n = len(mf)
    mg, rg = layout(n, len(mem), len(reads))
    for k, r in zip(rg, reads): G.m[k].append(r)
    place(G, mem, mg)
    for after, x in addr:
        g0 = rg[after] + 1 if after >= 0 else 0
        c = [g for g in range(g0, n - 1) if g not in mg and len(G.v[g]) < (1 if G.m[g] else 2) and not (G.m[g] and G.s[g])]
        G.v[c[0]].append(x)
    if valu is not None:
        work, base = valu
        lastw = -9
        for g in range(n):
            if base and pendw and g - lastw >= 3 and g not in mg and not G.m[g]:
                G.m[g].append(pendw.pop(0)); lastw = g; continue
            room = 0 if g in mg else (1 if G.m[g] else 2)
            while work and work[0][0] <= g + base and (work[0][1] == "w" or len(G.v[g]) < room) and len(pendw) < 7:
                w = work.pop(0)
                if w[1] == "w": pendw.append(w[2])
                else: G.v[g].append(w[2])
    if wait is not None:
        G.s[n - 1].append(wait); G.s[n - 1].append("s_barrier")
    G.emit()

def kq(f): return (f % 4, f // 4) if O.accord else (f // 2, f % 2)
def k_read(f): return f"ds_read_b128 {ar(KF+4*f)}, v{V_KA+kq(f)[0]} offset:{kq(f)[1]*4096}"
def v_read(dq, e): return f"ds_read_b64_tr_b16 {vr(VF+4*dq+2*e,2)}, v{V_VA+dq}" + (" offset:4096" if e else "")
def k_addr(slot): return [f"v_add_u32 v{V_KA}, {slot}, v{V_KB}"] + [f"v_xor_b32 v{V_KA+q}, {q*64}, v{V_KA}" for q in range(1, 4)]
def v_addr(slot): return [f"v_add_u32 v{V_VA}, {slot}, v{V_VB}"] + [f"v_xor_b32 v{V_VA+d}, {d*32}, v{V_VA}" for d in range(1, 8)]
def oacc(rt, dq): return vr(OK_ + 16 * rt + 4 * dq) if dq < 4 else ar(OS_ + 16 * rt + 4 * (dq - 4))
def qk_mfmas(rt, S, usenm=True):
    m = []
    for f in range(8):
        q, kt = kq(f)
        d = S + 4 * kt
        c = (vr(NM + 4 * rt) if usenm else "0") if q == 0 else vr(d)
        m.append(f"{MF} {vr(d)}, {ar(KF+4*f)}, {ar(QA+16*rt+4*q)}, {c}")
    return m
def pv_mfmas(rt, first=False):
    P = PB + 4 * COL[rt]
    return [f"{MF} {oacc(rt,dq)}, {vr(VF+4*dq)}, {vr(P)}, " + ("0" if first else oacc(rt, dq)) for dq in range(8)]
def sm_ops(rt, scol=None):
    S = SB + 8 * (COL[rt] if scol is None else scol); P = PB + 4 * COL[rt]
    e = [f"v_exp_f32 v{S+k}, v{S+k}" for k in range(8)]
    a = [f"v_add_f32 v{LS+rt}, v{LS+rt}, v{S+k}" for k in range(8)]
    c = [f"v_cvt_pk_bf16_f32 v{P+k}, v{S+2*k}, v{S+2*k+1}" for k in range(4)]
    return e, a, c
def put_softmax(G, base, rt):
    e, a, c = sm_ops(rt)
    for k in range(8):
        G.v[base + 2 * k].append(e[k])
        if k % 2 == 1: G.v[base + 2 * k + 1].append(c[k // 2])
        G.v[base + 2 * k + 1].append(a[k])
def sm0_nm(rt):
    t = V_TMP + 2 * (rt & 1)
    return [f"v_sub_f32 v{NM+4*rt+k}, 0, v{t}" for k in range(4)]
def sm0_ops(rt):
    scol = 2 if rt == 0 else COL[rt]
    S = SB + 8 * scol; t = V_TMP + 2 * (rt & 1)
    e, a, c = sm_ops(rt, scol)
    a[1] = f"v_add_f32 v{LS+rt}, v{S}, v{S+1}"
    pn = sm0_nm(rt - 1) if rt else ["s_nop 0", "s_nop 0", None, None]
    sub = [f"v_sub_f32 v{S+k}, v{S+k}, v{t}" for k in range(8)]
    g = [[f"v_max3_f32 v{t}, v{S}, v{S+1}, v{S+2}", f"v_max3_f32 v{t+1}, v{S+3}, v{S+4}, v{S+5}", f"v_max3_f32 v{t}, v{t}, v{S+6}, v{S+7}"],
         [f"v_max_f32 v{t}, v{t}, v{t+1}", f"v_max_f32 v{t+1}, v{t}, v{t+1}", pn[0]],
         [f"v_permlane32_swap_b32 v{t}, v{t+1}", f"v_max_f32 v{t}, v{t}, v{t+1}", f"v_mov_b32 v{t+1}, v{t}", pn[1]],
         [f"v_permlane16_swap_b32 v{t}, v{t+1}", f"v_max_f32 v{t}, v{t}, v{t+1}", sub[0]],
         [e[0], sub[1]], [e[1], sub[2]], [e[2], sub[3]], [e[3], sub[4], a[1]], [e[4], sub[5], c[0]], [e[5], sub[6], a[2]], [e[6], sub[7], a[3]],
         [e[7], c[1], a[4]], [c[2], a[5], pn[2]], [c[3], a[6]], [a[7], pn[3]]]
    return [[x for x in grp if x] for grp in g]

def next_dma_state():
    return [f"s_add_u32 s{S_I}, s{S_I}, 1", f"s_bitcmp1_b32 s{S_MASK}, s{S_I}", f"s_cselect_b32 s{S_SL0}, s{S_DS}, 0x30000", f"s_cselect_b32 s{S_KVE}, s{S_KVG}, 0x40000000",
            f"s_cselect_b32 s{S_T3}, 32768, 0", f"s_sub_u32 s{S_DS}, s{S_DS}, s{S_T3}", f"s_cselect_b32 s{S_DS}, {(RING-1)*32768}, s{S_DS}",
            f"s_lshr_b32 s{S_T3}, s{S_T3}, 1", f"s_add_u32 s{S_KVG}, s{S_KVG}, s{S_T3}", f"s_and_b32 s{S_KVG}, s{S_KVG}, 0x3ffff"]
V_WOF = 8; V_RA0 = 232; V_RA1 = 236; V_L2 = 240
pf_cnt = [0, 0]
def put_pf(G, t):
    if t == 12 + O.nskip:
        if O.pf_row:
            G.v[1].append(f"v_and_b32 v{V_TMP+8}, 7, v0"); G.v[3].append(f"v_and_b32 v{V_TMP+7}, 8, v0"); G.v[5].append(f"v_lshl_add_u32 v{V_TMP+8}, v{V_TMP+7}, 1, v{V_TMP+8}"); G.v[7].append(f"v_lshlrev_b32 v{V_TMP+8}, 7, v{V_TMP+8}")
        else:
            G.v[1].append(f"v_and_b32 v{V_TMP+8}, 15, v0"); G.v[5].append(f"v_lshlrev_b32 v{V_TMP+8}, 11, v{V_TMP+8}")
        pf_cnt[0] = 0; pf_cnt[1] = 4 * O.wo_first
    if O.cpf and t == O.cpf_at:
        c2 = code_pf("L_last+2048", 6, V_TMP + 5)
        G.chain(c2[0], [6, 8]); G.v[10].append(c2[1]); G.m[11].append(c2[2].replace(f"v{V_TMP+6},", f"v{V_QP},")); pf_cnt[0] += 1
    gl = {1: [13], 2: [13, 57], 3: [13, 47, 81], 4: [13, 41, 63, 87], 5: [13, 41, 55, 71, 87], 6: [13, 23, 41, 55, 71, 87]}[O.pf_q] if O.pf_q else []
    for g in gl:
        if pf_cnt[1] >= O.pf_max: break
        k = pf_cnt[1]
        G.s[g - 1].append(f"s_add_u32 s{S_T0}, s{S_PFO}, {(k // 4) * 8 * 65536 + (k % 4) * (4096 if O.pf_row else 32768)}")
        G.m[g].append(f"buffer_load_dword v{V_QP}, v{V_TMP+8}, {sr(S_WO,4)}, s{S_T0} offen")
        pf_cnt[0] += 1; pf_cnt[1] += 1
def att_iter(kind, t=None):
    mf = []; base = []
    for n in range(7):
        base.append(len(mf))
        mf += qk_mfmas(n, SB + 8 * (2 if (kind == "first" and n == 0) else COL[n]), usenm=(kind != "first"))
        if not (kind == "first" and n < 2): mf += pv_mfmas((n - 2) % 7, first=(kind == "first"))
    G = Gaps(mf)
    if kind == "first":
        for k in range(16): G.m[k].append(v_read(k // 2, k % 2) + " ;@vf")
        for n in range(1, 7):
            g = sm0_ops(n - 1)
            if n == 1: pos = [11, 12, 13, 14, 15, 15, 16, 16, 17, 17, 18, 18, 19, 19, 20]
            elif n == 2: pos = [base[2] + x for x in [4, 5, 6, 7, 8, 8, 9, 10, 11, 12, 13, 14, 15, 15, 15]]
            else: pos = [base[n] + x for x in range(15)]
            for grp, p in zip(g, pos):
                for x in grp: G.v[p].append(x)
        G.s[base[2] + 6].append("s_waitcnt lgkmcnt(@vf)")
        if O.tr2:
            G.s[base[2] + 7].append("s_barrier")
            G.s[7].append("s_waitcnt lgkmcnt(@qp1)"); G.s[15].append("s_waitcnt lgkmcnt(@qp2)")
            ex = [f"v_add_u32 v{V_T0}, s{S_CA}, v{V_LANE16}", f"v_add_u32 v{V_T1}, s{S_LB1}, v{V_LANE16}", f"v_mov_b32 v{V_WOF}, v{V_WOB}"] + [f"v_add_u32 v{V_WOF+j}, {j*16384-j*1024}, v{V_WOB}" for j in range(1, 4)]
            for x, g in zip(ex, [0, 1, 3, 4, 5, 6]): G.v[g].append(x)
        off = lambda g: g - 16
        G.v[2].append(f"v_lshlrev_b32 v{V_TMP+8}, 11, v0")
        for x, g in zip(THIN[8:], [off(z) for z in [33, 50, 72, 92]]):
            for y in x: G.m[g].append(y[1])
        if O.e4:
            place(G, early_writes()[20:], [off(g) for g in ([41, 44, 47, 52, 54, 58, 61, 63, 66, 68, 70, 74, 77, 79, 84, 86] if O.tr2 else [37, 41, 44, 47, 52, 54, 58, 61, 63, 68, 70, 74, 77, 79, 84, 86])])
            G.s[off(91)].append("s_waitcnt lgkmcnt(@ew)")
            for k in range(32): G.v[off([93, 94, 95, 95, 100, 102, 109, 110, 111, 110][k % 10])].append(f"v_mov_b32 v{OK_+80+k}, 0")
        else:
            place(G, early_writes()[20:], [off(g) for g in [50, 54, 58, 62, 63, 66, 70, 74]])
            d4 = kv_dma("K", 0) + kv_dma("V", 0); d4[7] = d4[7] + ([KVG_UPD],)
            place(G, d4, [off(g) for g in ([23, 33, 42, 48, 56, 64, 72, 78] if O.paced else [36, 42, 47, 52, 60, 68, 72, 78])])
        for j in range(O.wo_first):
            g = off([61, 79][j])
            G.s[g - 1].append(f"s_add_u32 s{S_T0}, s{S_PFO}, {j*8*65536}")
            G.m[g].append(f"buffer_load_dword v{V_QP}, v{V_TMP+8}, {sr(S_WO,4)}, s{S_T0} offen")
        for j in range(0 if O.pref_last else O.wo_pref):
            G.m[off(36 + 3 * j)].append(f"buffer_load_dword v{V_QP}, v{V_TMP+8}, {sr(S_WO,4)}, s{S_PFO} offen")
            G.s[off(37 + 3 * j)].append(f"s_add_u32 s{S_PFO}, s{S_PFO}, {8*65536}")
    else:
        for n in range(7): put_softmax(G, 16 * n, (n - 1) % 7)
        off = lambda g: g
        G.s[0].append("s_waitcnt lgkmcnt(4)"); G.s[2].append("s_waitcnt lgkmcnt(2)"); G.s[4].append("s_waitcnt lgkmcnt(0)")
        for k in range(16): G.m[24 + k].append(v_read(k // 2, k % 2))
        G.s[38].append("s_waitcnt lgkmcnt(10)")
        G.s[40].append("s_waitcnt lgkmcnt(8)"); G.s[42].append("s_waitcnt lgkmcnt(4)"); G.s[44].append("s_waitcnt lgkmcnt(0)")
        va = v_addr(f"s{S_SL1}")
        for x, g in zip(va[4:], [5, 9, 17, 21]): G.v[g].append(x)
    if kind != "last":
        va = v_addr(f"s{S_SL2}"); ka = k_addr(f"s{S_SL2}")
        if kind == "first":
            for x, g in zip(va[:4] + ka, [off(z) for z in [53, 62, 62, 69, 78, 78, 85, 94]]): G.v[g].append(x)
        elif kind == "pen":
            put_pf(G, t)
            if t == 14:
                place(G, wo_dma(0) + wo_dma(1), [1, 19, 41, 49, 57, 65, 73, 91]); pf_cnt[0] += 8
            for x, g in zip(va[:4], [45, 53, 61, 69]): G.v[g].append(x)
            for x, g in zip(ka, [77, 85, 89, 93]): G.v[g].append(x)
            G.s[94].append(f"s_waitcnt vmcnt({8 * (14 - t) + pf_cnt[0]})")
        else:
            place(G, kv_dma("K", f"s{S_SL0}", S_KVE) + kv_dma("V", f"s{S_SL0}", S_KVE), [1, 13, 41, 49, 57, 65, 73, 81])
            for x, g in zip(va[:4], [45, 53, 61, 69]): G.v[g].append(x)
            for x, g in zip(ka, [77, 85, 89, 93]): G.v[g].append(x)
            G.s[94].append(f"s_waitcnt vmcnt({24 if (t == 0 and O.sk0 > O.ta) else 24 - 8 * O.nskip})")
        G.s[off(95)].append("s_barrier")
        for f in range(8): G.m[off(97 + 2 * f)].append(k_read(f))
        if kind != "pen": G.chain(next_dma_state(), [off(g) for g in [82, 84, 86, 88, 90, 92, 96, 98, 100, 102]])
        G.chain([f"s_sub_u32 s{S_SL2}, s{S_SL2}, 32768", f"s_cselect_b32 s{S_SL2}, {(RING-1)*32768}, s{S_SL2}", f"s_cmp_lt_u32 s{S_I}, {O.ta + 1 if (kind == chr(108)+chr(111)+chr(111)+chr(112) and t == 0) else 12 + O.nskip}", "s_waitcnt lgkmcnt(5)"],
                [off(g) for g in [104, 106, 108, 110]])
    else:
        for rt in range(4):
            for k in range(4): G.m[16 * (rt + 3) + 1 + 4 * k].append(f"ds_write_b128 v{V_T0}, {ar(OS_+16*rt+4*k)} offset:{(4*rt+k)*1024}")
        put_pf(G, 15)
        G.s[46].append("s_barrier")
        G.v[9].append(f"v_mov_b32 v{V_TMP+9}, 0"); G.m[17].append(f"global_load_dword v{V_TMP+10}, v{V_TMP+9}, {sr(P_DBG)} sc1 ;@st0")
        ex = [f"v_add_u32 v{V_RA0}, s{S_LB0}, v{V_RAB}"] + [f"v_xor_b32 v{V_RA0+q}, {q*32}, v{V_RA0}" for q in range(1, 4)]
        for x, g in zip(ex, [1, 3, 7, 13]): G.v[g].append(x)
        ex = ([f"v_add_u32 v{V_RA1}, s{S_LB1}, v{V_RAB}", f"v_add_u32 v{V_L2}, 4096, v{V_LANE16}"] + [f"v_xor_b32 v{V_RA1+q}, {q*32}, v{V_RA1}" for q in range(1, 4)]
              + [f"v_and_b32 v{V_STW}, 15, v0", f"v_lshl_add_u32 v{V_STW}, v{V_STW}, 3, s{S_STW}", f"v_xor_b32 v{V_STR}, 1024, v{V_STW}",
                 f"v_and_b32 v{V_FLR}, 3, v0", f"v_lshlrev_b32 v{V_FLR}, 10, v{V_FLR}", f"v_add_u32 v{V_FLR}, {ST0+896}, v{V_FLR}"])
        for x, g in zip(ex, [41, 45, 51, 55, 59, 63, 67, 71, 75, 79, 83]): G.v[g].append(x)
    return G

def code_pf(label, sh, vt):
    return ([f"s_lshl_b32 s6, s{S_WAVE}, {6+sh}", f"s_add_u32 s6, s6, {label}-L_pc"], f"v_lshl_add_u32 v{vt}, v0, {sh}, s6", f"global_load_dword v{V_TMP+6}, v{vt}, s[4:5]")
def multi_reduce(regs, temps, op):
    for sw in ("v_permlane32_swap_b32", "v_permlane16_swap_b32"):
        for r, t in zip(regs, temps): I(f"v_mov_b32 v{t}, v{r}")
        I("s_nop 1")
        for r, t in zip(regs, temps): I(f"{sw} v{r}, v{t}")
        I("s_nop 1")
        for r, t in zip(regs, temps): I(f"{op} v{r}, v{r}, v{t}")

RA_N = 13; RL_N = 9; NB = 5; ACC = 16
slot_of = {0: 0, 1: 1}
def areg(m, k, n):
    e = m % RA_N
    na = (256 - 28 * NB) // 16
    assert RA_N <= na + 6
    return ar(28 * NB + 16 * e + k, n) if e < na else vr(128 + 16 * (e - na) + k, n)
def bump(s, d): return [f"s_add_u32 s{s}, s{s}, {d}", f"s_addc_u32 s{s+1}, s{s+1}, 0", f"s_sub_u32 s{s+2}, s{s+2}, {d}"]
def wo_dma(m):
    s = slot_of[m]
    m0 = f"s_add_u32 m0, s{S_LB0}, {s*4096}" if s < 2 else f"s_add_u32 m0, s{S_LB1}, {(s-2)*4096}"
    pre = (bump(S_WO, 8 * 65536) if (m % 8 == 0 and m) else []) + [m0]
    return [(pre if j == 0 else [], f"buffer_load_dwordx4 v{V_WOF+j}, {sr(S_WO,4)}, s{S_TW+m%8} offen offset:{j*1024} {pol(O.pol_wo)}lds ;@w{m}") for j in range(4)]
def a_reads(m):
    s = slot_of[m]
    ra, o = (V_RA0, s * 4096) if s < 2 else (V_RA1, (s - 2) * 4096)
    return [f"ds_read_b64_tr_b16 {areg(m,4*cq+2*e,2)}, v{ra+cq} offset:{o+e*2048} ;@a{m}" for cq in range(4) for e in range(2)]
S_WBO = 8; S_SO = 33; S_PST = 20; S_PLD = 21; S_BIT = 22
def b_loads(n):
    pre = [f"s_add_u32 s{S_SO+n%2}, s{S_WBO+n//8}, s{S_TO+n%8}"]
    return [(pre if rt == 0 else [], f"buffer_load_dwordx4 {ar(28*(n%NB)+4*rt)}, v{V_LANE16 if rt<4 else V_L2}, {sr(S_OO,4)}, s{S_SO+n%2} offen offset:{(rt%4)*1024} {O.pol_old} ;@b{n}") for rt in range(7)]
def p3_mfmas(n):
    return [f"{MF} {vr(ACC+16*rt+4*cq)}, {areg(n,4*cq,4)}, {ar(28*(n%NB)+4*rt)}, " + ("0" if n % 16 == 0 else vr(ACC+16*rt+4*cq)) for rt in range(7) for cq in range(4)]

def gen():
    K = NAME + "_kernel"
    A(f".globl {K}\n.p2align 8\n.type {K},@function\n{K}:")
    I("s_cmp_ge_u32 s2, 256"); I("s_cbranch_scc1 L_done")
    if O.dbgst: I("s_memrealtime s[68:69]")
    I("s_load_dwordx16 s[52:67], s[0:1], 0")
    I("s_getpc_b64 s[4:5]")
    A("L_pc:")
    if O.cp0 == 0:
        I("v_lshlrev_b32 v14, 7, v0"); I("global_load_dword v15, v14, s[4:5]"); I("v_lshrrev_b32 v14, 1, v14"); I("v_add_u32 v14, 0x8000, v14"); I("global_load_dword v15, v14, s[4:5]")
    elif O.cp0 == 1:
        I("s_lshl_b32 s6, s2, 9"); I("s_and_b32 s6, s6, 0x3000"); I("v_lshl_add_u32 v14, v0, 4, s6"); I("global_load_dword v15, v14, s[4:5] offset:512")
    I("v_lshrrev_b32 v14, 6, v0")
    I("v_and_b32 v0, 63, v0")
    I(f"v_readfirstlane_b32 s{S_WAVE}, v14")
    I(f"s_and_b32 s{S_T0}, s2, 7"); I(f"s_lshr_b32 s{S_T1}, s2, 3")
    I(f"s_and_b32 s{S_B}, s{S_T0}, 1"); I(f"s_lshl_b32 s{S_B}, s{S_B}, 2"); I(f"s_and_b32 s{S_T2}, s{S_T1}, 3"); I(f"s_add_u32 s{S_B}, s{S_B}, s{S_T2}")
    I(f"s_lshr_b32 s{S_H}, s{S_T0}, 1"); I(f"s_lshl_b32 s{S_H}, s{S_H}, 3"); I(f"s_lshr_b32 s{S_T3}, s{S_T1}, 2"); I(f"s_add_u32 s{S_H}, s{S_H}, s{S_T3}")
    if O.lin_map: I(f"s_lshr_b32 s{S_B}, s2, 5"); I(f"s_and_b32 s{S_H}, s2, 31")
    I(f"s_mul_i32 s{S_XM}, s{S_T2}, {O.xb}"); I(f"s_add_u32 s{S_XM}, s{S_XM}, s{S_T3}"); I(f"s_and_b32 s{S_XM}, s{S_XM}, {O.xp-1}"); I(f"s_mul_i32 s{S_XM}, s{S_XM}, {O.xd*128}")
    I(f"s_mul_i32 s{S_T3}, s{S_T3}, {O.rotmul_h*128}"); I(f"s_mul_i32 s{S_T2}, s{S_T2}, {O.rotmul_b*128}"); I(f"s_add_u32 s{S_OX}, s{S_T2}, s{S_T3}")
    if O.rotmul_x: I(f"s_mul_i32 s{S_T0}, s{S_T0}, {O.rotmul_x*128}"); I(f"s_add_u32 s{S_OX}, s{S_OX}, s{S_T0}")
    I(f"s_and_b32 s{S_XR}, s{S_OX}, 2047"); I(f"s_mov_b32 s{S_OC}, 0")
    I(f"s_add_u32 s{S_OX}, s{S_XM}, s{S_XR}"); I(f"s_and_b32 s{S_OX}, s{S_OX}, 2047"); I(f"s_lshl_b32 s{S_OW}, s{S_OX}, 12")
    I(f"s_lshr_b32 s{S_R}, s{S_WAVE}, 1"); I(f"s_and_b32 s{S_C}, s{S_WAVE}, 1")
    I(f"s_lshl_b32 s{S_W4K}, s{S_WAVE}, 12"); I(f"s_add_u32 s{S_W4KK}, s{S_W4K}, {KOFF}"); I(f"s_add_u32 s{S_WXT}, s{S_W4K}, {XT}"); I(f"s_mul_i32 s{S_T0}, s{S_R}, {14*1024}"); I(f"s_lshl_b32 s{S_MXA}, s{S_C}, 12"); I(f"s_add_u32 s{S_MXA}, s{S_MXA}, s{S_T0}")
    I(f"s_mul_i32 s{S_MXB}, s{S_C}, 3072"); I(f"s_add_u32 s{S_MXB}, s{S_MXB}, s{S_T0}"); I(f"s_add_u32 s{S_MXB}, s{S_MXB}, 8192")
    T = V_TMP
    I(f"v_and_b32 v{T}, 15, v0"); I(f"v_lshrrev_b32 v{T+1}, 4, v0")
    I(f"v_and_b32 v{T+4}, 7, v0"); I(f"v_xor_b32 v{T+4}, v{T+4}, v{T+1}")
    I(f"v_lshrrev_b32 v{T+5}, 3, v0"); I(f"v_lshlrev_b32 v{T+7}, 11, v{T+5}"); I(f"v_lshl_add_u32 v{T+4}, v{T+4}, 4, v{T+7}")
    I(f"s_lshl_b32 s{S_T0}, s{S_C}, 16"); I(f"v_add_u32 v{V_XOFF}, s{S_T0}, v{T+4}"); I(f"v_xor_b32 v{T+5}, 64, v{V_XOFF}")
    for j in range(1, 4): I(f"v_add_u32 v{V_XOFF+j}, {j*16384-j*1024}, v{V_XOFF if j%2==0 else T+5}")
    I(f"s_lshl_b32 s{S_T0}, s{S_C}, 6"); I(f"v_xor_b32 v{T+4}, s{S_T0}, v{T+4}"); I(f"s_mul_i32 s{S_T0}, s{S_C}, {24*2048}"); I(f"s_add_u32 s{S_T0}, s{S_T0}, {64*2048}")
    I(f"v_add_u32 v{V_XOFF+4}, s{S_T0}, v{T+4}"); I(f"v_xor_b32 v{T+5}, 64, v{V_XOFF+4}")
    for j in range(1, 3): I(f"v_add_u32 v{V_XOFF+4+j}, {j*16384-j*1024}, v{V_XOFF+4 if j%2==0 else T+5}")
    I(f"v_lshlrev_b32 v{T+4}, 2, v{T+1}"); I(f"v_xor_b32 v{T+4}, v{T+4}, v{T}"); I(f"v_lshlrev_b32 v{T+5}, 13, v{T+1}"); I(f"v_lshl_add_u32 v{V_WOFF}, v{T+4}, 4, v{T+5}")
    for j in range(1, 4): I(f"v_add_u32 v{V_WOFF+j}, {j*32768-j*1024}, v{V_WOFF}")
    I(f"s_mul_i32 s{S_T0}, s{S_B}, 458752"); I(f"s_mul_i32 s{S_T1}, s{S_R}, {112*2048}"); I(f"s_add_u32 s{S_T0}, s{S_T0}, s{S_T1}")
    I(f"s_lshl_b32 s{S_T1}, s{S_H}, 8"); I(f"s_lshl_b32 s{S_T2}, s{S_WAVE}, 17"); I(f"s_add_u32 s{S_T1}, s{S_T1}, s{S_T2}")
    I("s_waitcnt lgkmcnt(0)")
    if O.dbgst: I(f"v_writelane_b32 v{V_STAMP}, s68, 62")
    stamp()
    srd(S_X, P_X, 3670016, S_T0); srd(S_WQ, P_WQ, 8388608, S_T1)
    Q = []
    for k in range(16):
        Q += [(-1 if k <= 2 else (0 if k == 3 else 2 * (k - 4) + 1), x) for x in d_w(k)]
        Q += [(-1 if k <= 2 else 2 * (k - 3), x) for x in d_xa(k)]
        Q += [(-1 if k <= 2 else 2 * (k - 3) + 1, x) for x in d_xb(k)]
    def take(hh, cap, cap2):
        out = []
        pend = 0
        while pend < len(Q) and Q[pend][0] <= hh: pend += 1
        n = min(pend, cap if (hh < 0 or pend <= cap + (2 if hh % 2 else 0)) else cap2)
        for _ in range(n): out.append(Q.pop(0)[1])
        return out
    emit_dma(take(-1, min(O.n_up, O.n_up0), 0), post=True)
    I(f"s_lshl_b32 s{S_T0}, s{S_B}, 5"); I(f"s_add_u32 s{S_T0}, s{S_T0}, s{S_H}"); I(f"s_lshl_b32 s{S_T0}, s{S_T0}, 18")
    srd(S_K, P_K, 262144, S_T0, sub=False); srd(S_V, P_V, 262144, S_T0, sub=False)
    if O.tlbw:
        I("v_mov_b32 v14, 0")
        I(f"buffer_load_dword v15, v14, {sr(S_K,4)}, 0 offen {O.pol_kv}"); I(f"buffer_load_dword v15, v14, {sr(S_V,4)}, 0 offen {O.pol_kv}")
    if O.tlbw > 1:
        I("v_and_b32 v14, 3, v0"); I("v_lshlrev_b32 v14, 21, v14"); I(f"global_load_dword v15, v14, {sr(P_WQ)}")
    if O.tlbw > 2:
        I(f"global_load_dword v15, v14, {sr(P_WO)}")
        I("v_and_b32 v14, 7, v0"); I("v_lshlrev_b32 v14, 21, v14"); I("v_add_u32 v14, 0x1000000, v14"); I("v_subrev_u32 v14, 0x1000000, v14")
    srd(S_O, P_WS, PART + 256 * 28672); srd(S_OUT, P_OUT, 3670016)
    I(f"s_lshr_b32 s{S_T0}, s2, 3"); I(f"s_mul_i32 s{S_T0}, s{S_T0}, {O.kv_rot_j}"); I(f"s_and_b32 s{S_T1}, s2, 7"); I(f"s_mul_i32 s{S_T1}, s{S_T1}, {O.kv_rot_x}")
    I(f"s_add_u32 s{S_T0}, s{S_T0}, s{S_T1}"); I(f"s_and_b32 s{S_T0}, s{S_T0}, 15"); I(f"s_lshl_b32 s{S_T0}, s{S_T0}, 14"); I(f"s_add_u32 s{S_KV0}, s{S_T0}, s{S_W4K}")
    n_it = 11 + O.nskip
    I(f"s_mov_b32 s{S_MASK}, {((1 << n_it) - 1) << 1:#x}")
    if O.nskip:
        span = n_it - O.sk0 + 1
        I(f"s_mul_i32 s{S_T0}, s2, 37"); I(f"s_and_b32 s{S_T0}, s{S_T0}, 255"); I(f"s_mul_i32 s{S_T0}, s{S_T0}, {span}"); I(f"s_lshr_b32 s{S_T0}, s{S_T0}, 8")
        for k in range(O.nskip):
            I(f"s_add_u32 s{S_T1}, s{S_T0}, {(k * span) // O.nskip}"); I(f"s_cmp_ge_u32 s{S_T1}, {span}"); I(f"s_cselect_b32 s{S_T2}, {span}, 0"); I(f"s_sub_u32 s{S_T1}, s{S_T1}, s{S_T2}")
            I(f"s_add_u32 s{S_T1}, s{S_T1}, {O.sk0}"); I(f"s_bitset0_b32 s{S_MASK}, s{S_T1}")
    I(f"s_mov_b32 s{S_FB}, 0"); I(f"s_mov_b32 s{S_KVG}, s{S_KV0}"); I(f"s_mov_b32 s{S_SCALE}, {f2u(SCALE):#x}")
    I(f"s_lshl_b32 s{S_T0}, s{S_B}, 1"); I(f"s_add_u32 s{S_T0}, s{S_T0}, s{S_R}"); I(f"s_lshl_b32 s{S_T0}, s{S_T0}, 5"); I(f"s_add_u32 s{S_T0}, s{S_T0}, s{S_H}")
    I(f"s_lshl_b32 s{S_T0}, s{S_T0}, 1"); I(f"s_add_u32 s{S_T0}, s{S_T0}, s{S_C}"); I(f"s_mul_i32 s{S_OST}, s{S_T0}, 14336")
    I(f"s_lshl_b32 s{S_T0}, s{S_B}, 5"); I(f"s_add_u32 s{S_T0}, s{S_T0}, s{S_H}")
    I(f"s_lshr_b32 s{S_SIG}, s{S_T0}, 2"); I(f"s_lshl_b32 s{S_SIG}, s{S_SIG}, 7"); I(f"s_and_b32 s{S_T1}, s{S_H}, 3"); I(f"s_lshl_b32 s{S_T1}, s{S_T1}, 2"); I(f"s_add_u32 s{S_SIG}, s{S_SIG}, s{S_T1}"); I(f"s_add_u32 s{S_SIG}, s{S_SIG}, {FLG}")
    I(f"s_lshl_b32 s{S_T0}, s{S_T0}, 2"); I(f"s_add_u32 s{S_T0}, s{S_T0}, s{S_WAVE}"); I(f"s_mul_i32 s{S_INB}, s{S_T0}, 7168"); I(f"s_add_u32 s{S_INB}, s{S_INB}, {PART}")
    I(f"s_lshl_b32 s101, s{S_T0}, 7"); I(f"s_add_u32 s101, s101, {FLG + 65536}")
    KH = S_SL0; CG = S_SL1; U = S_SL2
    I(f"s_bfe_u32 s{KH}, s{S_H}, 0x10003"); I(f"s_and_b32 s{S_T3}, s{S_H}, 7"); I(f"s_lshr_b32 s{CG}, s{S_H}, 4"); I(f"s_lshl_b32 s{CG}, s{CG}, 3"); I(f"s_add_u32 s{CG}, s{CG}, s{S_T3}")
    I(f"s_lshr_b32 s{S_T1}, s2, 3"); I(f"s_and_b32 s{S_T2}, s{S_B}, 3")
    I(f"s_lshl_b32 s{S_PFO}, s{S_T1}, 14"); I(f"s_lshl_b32 s6, s{S_T3}, 7"); I(f"s_sub_u32 s{S_PFO}, s{S_PFO}, s6")
    I(f"s_mul_i32 s{S_T2}, s{S_T2}, {O.k2_rot_r}"); I(f"s_mul_i32 s{S_T3}, s{S_T3}, {O.k2_rot_c}"); I(f"s_add_u32 s{U}, s{S_T2}, s{S_T3}")
    I(f"s_xor_b32 s{S_T1}, s{KH}, 1"); I(f"s_lshl_b32 s{S_T1}, s{S_T1}, 1"); I(f"s_add_u32 s{S_T1}, s{S_T1}, s{S_C}"); I(f"s_lshl_b32 s{S_T2}, s{S_R}, 2"); I(f"s_add_u32 s{S_T1}, s{S_T1}, s{S_T2}")
    I(f"s_lshl_b32 s{S_T0}, s{S_B}, 4"); I(f"s_add_u32 s{S_T0}, s{S_T0}, s{S_T1}"); I(f"s_mul_i32 s{S_T0}, s{S_T0}, {16*7168}")
    srd(S_OO, P_WS, 144 * 7168, S_T0, sub=False)
    I(f"s_lshl_b32 s{S_POLL}, s{S_B}, 3"); I(f"s_add_u32 s{S_POLL}, s{S_POLL}, s{S_T1}"); I(f"s_lshl_b32 s{S_POLL}, s{S_POLL}, 7"); I(f"s_add_u32 s{S_POLL}, s{S_POLL}, {FLG}")
    I(f"s_lshl_b32 s{S_T1}, s{S_T1}, 20"); I(f"s_lshl_b32 s{S_T2}, s{CG}, 7"); I(f"s_add_u32 s{S_T1}, s{S_T1}, s{S_T2}")
    srd(S_WO, P_WO, 8388608, S_T1)
    I(f"s_lshl_b32 s{S_T0}, s{S_B}, 1"); I(f"s_add_u32 s{S_T0}, s{S_T0}, s{KH}")
    I(f"s_mul_i32 s{S_OUTOFF}, s{S_T0}, {112*2048}"); I(f"s_add_u32 s{S_OUTOFF}, s{S_OUTOFF}, s{S_T2}"); I(f"s_lshl_b32 s{S_T1}, s{S_WAVE}, 5"); I(f"s_add_u32 s{S_OUTOFF}, s{S_OUTOFF}, s{S_T1}")
    for u in range(8):
        I(f"s_add_u32 s{S_T0}, s{U}, {u}"); I(f"s_and_b32 s{S_T0}, s{S_T0}, 7"); I(f"s_lshl_b32 s{S_TW+u}, s{S_T0}, 16"); I(f"s_mul_i32 s{S_TO+u}, s{S_T0}, 7168")
    I(f"s_lshl_b32 s{S_LB0}, s{S_WAVE}, 13"); I(f"s_add_u32 s{S_LB0}, s{S_LB0}, 98304"); I(f"s_xor_b32 s{S_T3}, s{S_WAVE}, 1")
    I(f"s_mul_i32 s{S_LB1}, s{S_T3}, 28672"); I(f"s_cmp_eq_u32 s{S_T3}, 3"); I(f"s_cselect_b32 s{S_LB1}, 131072, s{S_LB1}")
    I(f"s_mul_i32 s{S_CA}, s{S_WAVE}, 28672"); I(f"s_cmp_eq_u32 s{S_WAVE}, 3"); I(f"s_cselect_b32 s{S_CA}, 131072, s{S_CA}")
    I(f"s_lshl_b32 s{S_STW}, s{S_WAVE}, 10"); I(f"s_add_u32 s{S_STW}, s{S_STW}, {ST0}")
    I(f"v_lshlrev_b32 v{T+4}, 1, v{T+1}"); I(f"v_and_b32 v{T+6}, 7, v0"); I(f"v_xor_b32 v{T+6}, v{T+4}, v{T+6}"); I(f"v_lshl_add_u32 v{V_WOB}, v{T+6}, 4, v{T+7}")
    I(f"v_xor_b32 v{T+4}, v{T+4}, v{T}"); I(f"v_lshlrev_b32 v{T+5}, 8, v{T+1}")
    for j in range(4):
        I(f"v_xor_b32 v{T+6}, {8*(j&1) + (j>>1)}, v{T+4}"); I(f"v_lshl_add_u32 v{V_KVOFF+j}, v{T+6}, 4, v{T+5}")
    if O.kv_noswz:
        for j in range(4): I(f"v_lshlrev_b32 v{V_KVOFF+j}, 4, v0")
    I(f"v_lshlrev_b32 v{V_LANE16}, 4, v0"); I(f"v_bfe_u32 v{T+2}, v0, 2, 2"); I(f"v_and_b32 v{T+3}, 3, v0")
    I(f"v_lshrrev_b32 v{T+4}, 1, v{T}"); I(f"v_xor_b32 v{T+4}, v{T+4}, v{T+1}"); I(f"s_mul_i32 s{S_T0}, s{S_R}, {112*128}")
    I(f"v_lshlrev_b32 v{T+5}, 7, v{T}"); I(f"v_add_u32 v{T+5}, s{S_T0}, v{T+5}"); I(f"v_lshl_add_u32 v{V_XB}, v{T+4}, 4, v{T+5}"); I(f"v_xor_b32 v{V_XB+1}, 64, v{V_XB}")
    I(f"v_lshrrev_b32 v{T+4}, 1, v{T+3}"); I(f"v_and_b32 v{T+5}, 1, v{T+3}"); I(f"v_lshl_add_u32 v{T+4}, v{T+5}, 1, v{T+4}")
    I(f"s_lshl_b32 s{S_T0}, s{S_C}, 1"); I(f"v_xor_b32 v{T+5}, s{S_T0}, v{T+2}"); I(f"v_lshl_add_u32 v{T+4}, v{T+5}, 2, v{T+4}")
    I(f"v_lshl_add_u32 v{T+5}, v{T+1}, 3, v{T+2}"); I(f"v_lshlrev_b32 v{T+5}, 8, v{T+5}"); I(f"v_lshl_add_u32 v{V_WB}, v{T+4}, 4, v{T+5}"); I(f"v_xor_b32 v{V_WB+1}, 64, v{V_WB}")
    I(f"v_lshrrev_b32 v{T+4}, 1, v{T+1}"); I(f"v_and_b32 v{T+5}, 1, v{T+1}"); I(f"v_lshl_add_u32 v{T+4}, v{T+5}, 1, v{T+4}")
    I(f"v_and_b32 v{T+5}, 7, v{T}"); I(f"v_lshrrev_b32 v{T+6}, 3, v{T}"); I(f"v_lshl_add_u32 v{T+5}, v{T+5}, 1, v{T+6}")
    I(f"v_xor_b32 v{T+4}, v{T+4}, v{T+5}"); I(f"s_lshl_b32 s{S_T0}, s{S_C}, 3"); I(f"v_xor_b32 v{T+4}, s{S_T0}, v{T+4}")
    I(f"s_lshl_b32 s{S_T1}, s{S_C}, 13"); I(f"s_add_u32 s{S_T2}, s{S_T1}, {KOFF}")
    I(f"v_lshlrev_b32 v{T+5}, 8, v{T}"); I(f"v_add_u32 v{T+5}, s{S_T2}, v{T+5}"); I(f"v_lshl_add_u32 v{V_KB}, v{T+4}, 4, v{T+5}")
    I(f"v_lshl_add_u32 v{T+6}, v{T+1}, 2, v{T+2}")
    I(f"v_bfe_u32 v{T+4}, v{T+6}, 1, 2"); I(f"v_xor_b32 v{T+4}, s{S_WAVE}, v{T+4}"); I(f"v_lshlrev_b32 v{T+5}, 7, v{T+6}"); I(f"v_lshl_add_u32 v{T+5}, v{T+4}, 5, v{T+5}"); I(f"v_lshl_add_u32 v{V_RAB}, v{T+3}, 3, v{T+5}")
    I(f"v_and_b32 v{T+4}, 7, v{T+6}"); I(f"v_lshrrev_b32 v{T+5}, 3, v{T+6}"); I(f"v_lshl_add_u32 v{T+4}, v{T+4}, 1, v{T+5}")
    I(f"v_bfe_u32 v{T+5}, v0, 1, 1"); I(f"v_xor_b32 v{T+4}, v{T+4}, v{T+5}"); I(f"v_xor_b32 v{T+4}, s{S_T0}, v{T+4}")
    I(f"v_lshlrev_b32 v{T+6}, 8, v{T+6}"); I(f"v_add_u32 v{T+6}, s{S_T1}, v{T+6}"); I(f"v_lshl_add_u32 v{T+6}, v{T+4}, 4, v{T+6}")
    I(f"v_and_b32 v{T+5}, 1, v0"); I(f"v_lshl_add_u32 v{V_VB}, v{T+5}, 3, v{T+6}")
    for k in range(2):
        I(f"v_mov_b32 v{V_XA+k}, v{V_XB+k}"); I(f"v_mov_b32 v{V_WA+k}, v{V_WB+k}")
    if not O.e4:
        for k in range(32): I(f"v_mov_b32 v{OK_+80+k}, 0")
    for k in range(32): I(f"v_accvgpr_write_b32 a{OS_+80+k}, 0")
    for x in v_addr((RING - 1) * 32768): I(x)
    I(f"s_mul_i32 s{S_T2}, s{S_WAVE}, 14336"); I(f"v_add_u32 v{V_T0}, s{S_T2}, v{V_LANE16}")
    I(f"s_mul_i32 s{S_T3}, s{S_T3}, 14336"); I(f"v_add_u32 v{V_QP}, s{S_T3}, v{V_LANE16}")
    I(f"v_add_u32 v{V_KW1}, s{S_W4K}, v{V_LANE16}"); I(f"v_add_u32 v{V_KW0}, 0x10000, v{V_KW1}"); I(f"v_add_u32 v{V_KW2}, 0x20000, v{V_KW1}")
    if O.cpf:
        c1 = code_pf("L_trans", 6, 215)
        for x in c1[0] + [c1[1]]: I(x)
    FS = [62, 63, 98]
    for h, rng in enumerate([O.f1, O.f2, O.f3][:O.nfar]):
        t = FS[h]
        lo, hi = [int(z) for z in rng.split(",")]; n = hi - lo + 1
        ph = [0, O.ph2, 64][h] if not (O.f1 == O.f2 == O.f3) else [0, 85, 171][h]
        I(f"s_add_u32 s{t}, s2, {ph}"); I(f"s_and_b32 s{t}, s{t}, 255"); I(f"s_mul_i32 s{t}, s{t}, {n}"); I(f"s_lshr_b32 s{t}, s{t}, 8"); I(f"s_add_u32 s{t}, s{t}, {lo}")
        I(f"s_lshl_b32 s{t}, s{t}, 14"); I(f"s_add_u32 s{t}, s{t}, s{S_KV0}"); I(f"s_and_b32 s{t}, s{t}, 0x3ffff")
    I(f"v_and_b32 v{V_TMP+10}, 15, v0"); I(f"v_lshlrev_b32 v{V_TMP+10}, 7, v{V_TMP+10}")
    if O.gmode:
        I(f"s_cmp_eq_u32 s{S_R}, 0"); I(f"s_cselect_b32 s4, s{S_K}, s{S_V}"); I(f"s_cselect_b32 s5, s{S_K+1}, s{S_V+1}"); I(f"s_cselect_b32 s{S_T0}, 16384, 0")
        I("s_mov_b32 s6, 262144"); I("s_mov_b32 s7, 0x20000")
        I(f"s_sub_u32 s{S_T1}, s{S_KV0}, s{S_W4K}"); I(f"s_add_u32 s{S_T0}, s{S_T0}, s{S_T1}"); I(f"s_lshl_b32 s{S_T1}, s{S_C}, 13"); I(f"s_add_u32 s{S_T0}, s{S_T0}, s{S_T1}")
        for r in range(O.g_rounds):
            I(f"s_add_u32 s{60+r}, s{S_T0}, {r*16384}"); I(f"s_and_b32 s{60+r}, s{60+r}, 0x3ffff")
        I(f"s_lshr_b32 s100, s2, 3"); I(f"s_mul_i32 s100, s100, {O.g_per}"); I("s_lshr_b32 s100, s100, 5")
        I(f"v_lshlrev_b32 v{V_KW0}, 7, v0")
    emit_dma(take(-1, max(0, O.n_up - O.n_up0), 0), post=True)
    I("s_waitcnt vmcnt(@xa0)"); I("s_barrier")
    stamp()
    for r in r_w(0)[:2] + r_x([0])[:1] + r_w(0)[2:] + r_x(range(4))[1:]: I(r)
    for k in range(2): I(f"v_add_u32 v{V_WA+k}, {stg(1)}, v{V_WB+k}")
    I("s_waitcnt lgkmcnt(0) vmcnt(@w_1)"); I("s_barrier")
    el = early_loads(); ew = early_writes()
    l2 = [([], f"buffer_load_dword v{V_TMP+6}, v{V_PF+p}, {sr(sq,4)}, 0 offen") for p in range(O.nl2) for sq in (S_K, S_V)]
    del THIN[:]
    l2 = []
    tl = el[len(el) - O.tail_n:] if O.tail_n else []
    THIN.extend([tl[k:k + 2] for k in range(0, len(tl), 2)])
    THIN.extend([[([], f"buffer_load_dword v{V_TMP+6}, v{V_TMP+10}, {sr(sq,4)}, s{FS[f]} offen offset:{hf*2048}")] for f in range(O.nfar) for sq in (S_K, S_V) for hf in range(2)])
    assert len(THIN) <= 12 and len(tl) <= 12
    THIN.extend([[]] * (12 - len(THIN)))
    qwork = []
    for rt in range(7):
        for kp in range(2):
            b = p1_acc(rt) + 8 * kp; t = SB + 4 * ((2 * rt + kp) % 8)
            rdy = 8 * rt + (4 * kp + 3 if O.accord else 5 + 2 * kp) + 9
            qwork += [(rdy, "v", f"v_mul_f32 v{b+k}, s{S_SCALE}, v{b+k}") for k in range(8)]
            if O.tr_early: qwork += [(rdy, "v", f"v_cvt_pk_bf16_f32 v{t+k}, v{b+2*k}, v{b+2*k+1}") for k in range(4)] + [(rdy, "w", f"ds_write_b128 v{V_T0}, {vr(t)} offset:{(2*rt+kp)*1024} ;@qw")]
    ne = 0
    NE = len(el) - O.tail_n
    nit = O.kv_last - O.kv_first
    def gat(hh):
        k = hh - O.g_start
        if not O.gmode or k < 0 or k >= O.g_per * O.g_rounds: return []
        return [([f"s_cmp_eq_u32 s100, {k % O.g_per}", f"s_cselect_b32 s101, s{60 + k // O.g_per}, 0x40000000"], f"buffer_load_dword v{V_TMP+6}, v{V_KW0}, s[4:7], s101 offen")]
    def tagd(g, t, adv=False):
        g = [(x[0], x[1] + f" ;@{t}") for x in g]
        if adv: g[3] = g[3] + ([KVG_UPD],)
        return g
    late = tagd(kv_dma("V", 4 * 32768), "v0", True) + tagd(kv_dma("K", 3 * 32768), "s1") + tagd(kv_dma("V", 3 * 32768), "s1", True) + tagd(kv_dma("K", 2 * 32768), "s2") + tagd(kv_dma("V", 2 * 32768), "s2", True)
    for i in range(16):
        if i <= 12: ma = take(2 * i, O.capA2 if i == 0 else O.capA, O.capA2)
        elif O.gmode: ma = gat(2 * i) + {13: [], 14: late[6:12], 15: late[18:20]}[i]
        elif i == 13: ma = take(26, 6, 6) + THIN[0]
        elif i == 14: ma = THIN[2] + ew[6:12]
        else: ma = THIN[4] + ew[17:20]
        if 2 * i == O.l2_at: ma = ma + l2
        rd = r_x(range(4, 7)) + (r_w(i + 1) if i < 15 else [])
        addr = [(5, f"v_add_u32 v{V_XA+k}, {stg(i+1)}, v{V_XB+k}") for k in range(2)] if i < 15 else []
        va = (qwork, 0) if i == 15 else None
        p1_half(p1_mfmas(i, range(4)), ma, rd, addr, "s_waitcnt lgkmcnt(0)" + (f" vmcnt(@xa{i+1})" if i < 15 else ""), valu=va)
        k = 0
        if O.kv_first <= i < O.kv_last and not O.gmode: k = ((i - O.kv_first + 1) * NE) // nit - ne
        mb = el[ne:ne + k] + gat(2 * i + 1); ne += k
        tk = take(2 * i + 1, O.capB2 if i == 0 else O.capB, O.capB2)
        if i == O.k0_it:
            p = [n for n, x in enumerate(tk) if x[0]][0]
            tk = tk[:p] + kv_dma("K", 4 * 32768, S_KV0) + tk[p:]
        mb += tk
        if i == 13: assert not Q and not tk
        if i == 13: mb += THIN[1] + ew[0:6]
        if i == 14: mb += THIN[3] + ew[12:17]
        if i == 15: mb += THIN[5]
        if 2 * i + 1 == O.l2_at: mb = mb + l2
        if O.cpf and i == 12: mb = mb + [([], c1[2])]
        rd = r_x(range(4)) if i < 15 else []
        addr = [(-1, f"v_add_u32 v{V_WA+k}, {stg(i+2)}, v{V_WB+k}") for k in range(2)] if i < 14 else []
        if i == 15: va = (qwork, 32)
        wait = None if i == 15 else "s_waitcnt lgkmcnt(0)" + (f" vmcnt(@w_{i+2})" if i < 14 else " vmcnt(@xb15)")
        p1_half(p1_mfmas(i, range(4, 7)), mb, rd, addr, wait, valu=va)
        if O.p1st and i < 15: stamp()
    stamp()
    A("L_trans:")
    for x in k_addr((RING - 1) * 32768): I(x)
    for f in range(8): I(k_read(f))
    assert O.tr_early
    for x in THIN[6]: I(x[1])
    for x in pendw: I(x)
    del pendw[:]
    for w in qwork: I(w[2])
    for rt in range(7):
        for kp in range(2): I(f"ds_read_b128 {ar(QA+16*rt+4*kp)}, v{V_T0} offset:{(2*rt+kp)*1024}")
    I(f"s_mov_b32 s{S_DS}, {4*32768}"); I(f"s_mov_b32 s{S_SL2}, {3*32768}"); I(f"s_mov_b32 s{S_I}, 0")
    I("s_waitcnt lgkmcnt(@qw)" + (" vmcnt(@v0)" if O.gmode else "")); I("s_barrier")
    for rt in range(7):
        for kp in range(2): I(f"ds_read_b128 {ar(QA+16*rt+8+4*kp)}, v{V_QP} offset:{(2*rt+kp)*1024} ;@qp{rt}")
    for x in THIN[7]: I(x[1])
    if O.tr2: I("s_waitcnt lgkmcnt(@qp0)")
    else:
        I(f"v_add_u32 v{V_T0}, s{S_CA}, v{V_LANE16}")
        I(f"v_add_u32 v{V_T1}, s{S_LB1}, v{V_LANE16}")
        I(f"v_mov_b32 v{V_WOF}, v{V_WOB}")
        for j in range(1, 4): I(f"v_add_u32 v{V_WOF+j}, {j*16384-j*1024}, v{V_WOB}")
        I("s_waitcnt lgkmcnt(0)"); I("s_barrier")
    if not O.s4_in: emit_dma(kv_dma("K", 0) + kv_dma("V", 0)); I(KVG_UPD)
    stamp()
    att_iter("first").emit()
    g = sm0_ops(6)
    S = SB + 8 * COL[6]; pn = sm0_nm(5)
    for x in g[0] + g[1] + [pn[2]] + g[2] + [pn[3]] + g[3]: I(x)
    for k in range(1, 8): I(f"v_sub_f32 v{S+k}, v{S+k}, v{V_TMP}")
    for x in sm0_nm(6): I(x)
    I(f"v_mov_b32 v{LS+6}, 0")
    def clear_code():
        I(f"v_mov_b32 v{V_TMP+4}, s{S_SIG}"); I(f"v_mov_b32 v{V_TMP+5}, 0"); I(f"v_writelane_b32 v{V_TMP+4}, s101, 1"); I("s_mov_b64 exec, 3")
        I(f"global_store_dword v{V_TMP+4}, v{V_TMP+5}, {sr(P_WS)} sc1"); I("s_mov_b64 exec, -1")
    def count_code():
        I(f"s_or_b32 s{S_T0}, s{S_WAVE}, s{S_FB}"); I("s_cbranch_scc1 L_nosig0")
        I(f"v_mov_b32 v{V_TMP+5}, 0"); I(f"v_mov_b32 v{V_TMP+7}, 1"); I("s_mov_b64 exec, 1")
        I(f"global_atomic_add v{V_TMP+5}, v{V_TMP+7}, {sr(P_DBG)} sc1 ;@nocount")
        I("s_mov_b64 exec, -1")
        A("L_nosig0:")
    assert O.ta >= 4
    if O.clr == 0: clear_code()
    if O.epst: stamp()
    A(".p2align 6"); A("L_att:")
    for lp in ((0, 1) if O.ta else (1,)):
        if lp and O.clr == 0: count_code()
        if lp and O.clr == 1:
            I(f"s_cmp_lg_u32 s{S_FB}, 0"); I("s_cbranch_scc1 L_noclr"); clear_code(); A("L_noclr:")
        if lp and O.ta: A(".p2align 6"); A("L_att2:")
        G = att_iter("loop", lp)
        if O.loopst:
            G.s[92].append("s_memtime s[98:99]"); G.p[94].append("s_memtime s[100:101]"); G.p[95].append("s_memtime s[62:63]")
            G.v[7].append(f"v_cmp_eq_u32 vcc, s{S_I}, v0")
            for k, sg in enumerate((98, 100, 62)):
                G.v[11 + 4 * k].append(f"v_mov_b32 v251, s{sg}"); G.v[11 + 4 * k].append(f"v_cndmask_b32 v{252+k}, v{252+k}, v251, vcc")
        G.emit()
        I("s_cbranch_scc1 " + ("L_att2" if (lp and O.ta) else "L_att"))
    if O.epst: stamp()
    if O.loopst:
        I(f"s_lshl_b32 s{S_T0}, s2, 12"); I(f"s_lshl_b32 s{S_T1}, s{S_WAVE}, 10"); I(f"s_add_u32 s{S_T0}, s{S_T0}, s{S_T1}"); I(f"s_add_u32 s{S_T0}, s{S_T0}, {(1<<26)+(1<<20)}"); I(f"v_lshl_add_u32 v251, v0, 4, s{S_T0}")
        I(f"global_store_dwordx4 v251, v[252:255], {sr(P_WS)}")
    if O.clr == 1: count_code()
    for t in range(12 + O.nskip, 15): att_iter("pen", t).emit()
    A("L_last:")
    if O.epst: stamp()
    att_iter("last").emit()
    def sendfirst(m): return m[4:] + m[:4]
    def osend(rt, k): return f"ds_write_b128 v{V_T0}, {ar(OS_+16*rt+4*k)} offset:{(4*rt+k)*1024}"
    I("s_nop 0")
    G = Gaps(sendfirst(pv_mfmas(5)))
    e, a, c = sm_ops(6)
    for k in range(8):
        G.v[k].append(e[k])
        if k: G.v[k].append(a[k - 1])
        if k in (2, 4, 6): G.v[k].append(c[k // 2 - 1])
    for k in range(4): G.m[1 + 2 * k].append(osend(4, k))
    G.emit()
    I("s_nop 0"); I(c[3]); I(a[7]); I(f"s_mov_b32 s{S_T0}, {f2u(2.0**40):#x}")
    G = Gaps(sendfirst(pv_mfmas(6)))
    for k in range(7): G.v[[1, 1, 3, 3, 5, 5, 7][k]].append(f"v_mov_b32 v{V_TMP+k}, v{LS+k}")
    for k in range(4): G.m[2 * k].append(osend(5, k))
    G.emit()
    stamp()
    regs = [LS + rt for rt in range(7)]; temps = [V_TMP + rt for rt in range(7)]
    I(osend(6, 0)); I(osend(6, 1))
    for r, t in zip(regs, temps): I(f"v_permlane32_swap_b32 v{r}, v{t}")
    I(osend(6, 2))
    for r, t in zip(regs, temps): I(f"v_add_f32 v{r}, v{r}, v{t}")
    for r, t in zip(regs, temps): I(f"v_mov_b32 v{t}, v{r}")
    I(osend(6, 3)); I("s_nop 0")
    for r, t in zip(regs, temps): I(f"v_permlane16_swap_b32 v{r}, v{t}")
    I("s_nop 0")
    for rt, (r, t) in enumerate(zip(regs, temps)): I(f"v_add_f32 v{NM+4*rt+1}, v{r}, v{t}")
    I(f"v_add_f32 v{V_TMP}, v{NM+1}, v{NM+5}"); I(f"v_add_f32 v{V_TMP+1}, v{NM+9}, v{NM+13}"); I(f"v_add_f32 v{V_TMP+2}, v{NM+17}, v{NM+21}")
    I(f"v_add_f32 v{V_TMP}, v{V_TMP}, v{NM+25}"); I(f"v_add_f32 v{V_TMP+1}, v{V_TMP+1}, v{V_TMP+2}"); I(f"v_add_f32 v{V_TMP}, v{V_TMP}, v{V_TMP+1}")
    I(f"v_cmp_nlt_f32 vcc, v{V_TMP}, s{S_T0}")
    for rt in range(7): I(f"ds_write_b64 v{V_STW}, {vr(NM+4*rt,2)} offset:{rt*128}")
    I(f"s_cmp_lg_u64 vcc, 0"); I(f"s_cselect_b32 s{S_T1}, 1, 0"); I(f"s_andn2_b32 s{S_T1}, s{S_T1}, s{S_FB}"); I(f"v_mov_b32 v{V_TMP+1}, s{S_T1}")
    I(f"ds_write_b32 v{V_STW}, v{V_TMP+1} offset:896")
    I("s_waitcnt lgkmcnt(0)"); I("s_barrier")
    if O.epst: stamp()
    I(f"ds_read_b32 v{V_TMP+4}, v{V_FLR} ;@fl")
    for rt in range(7): I(f"ds_read_b64 {vr(NM+4*rt+2,2)}, v{V_STR} offset:{rt*128} ;@st")
    RB = 128
    def recv(rt):
        for dq in range(4): I(f"ds_read_b128 {vr(RB+16*(rt%4)+4*dq)}, v{V_T1} offset:{(4*rt+dq)*1024} ;@r{rt}")
    recv(0)
    I("s_waitcnt lgkmcnt(@fl)" if O.fast_ep else "s_waitcnt lgkmcnt(@fl) vmcnt(@w1)")
    I(f"v_cmp_ne_u32 vcc, 0, v{V_TMP+4}")
    recv(1)
    I("s_cbranch_vccnz L_fallback")
    st = {"dma": 2, "rd": 0}; free = []; pend = []
    def do_read(wait=True):
        m = st["rd"]; st["rd"] += 1
        if wait: I(f"s_waitcnt vmcnt(@w{m})")
        for r in a_reads(m): I(r)
        pend.append(m)
    def release(n=None):
        k = len(pend) if n is None else n
        if not k: return
        I(f"s_waitcnt lgkmcnt(@a{pend[k-1]})")
        for _ in range(k): free.append(slot_of[pend.pop(0)])
    def do_dma():
        m = st["dma"]; st["dma"] += 1
        slot_of[m] = free.pop(0); emit_dma(wo_dma(m))
    def factors(rts):
        bs = [NM + 4 * rt for rt in rts]
        for rt, b in zip(rts, bs): I(f"v_min_f32 v{LS+rt}, v{b}, v{b+2}")
        for rt, b in zip(rts, bs): I(f"v_sub_f32 v{b}, v{LS+rt}, v{b}"); I(f"v_sub_f32 v{b+2}, v{LS+rt}, v{b+2}")
        for b in bs: I(f"v_exp_f32 v{b}, v{b}"); I(f"v_exp_f32 v{b+2}, v{b+2}")
        for b in bs: I(f"v_mul_f32 v{b+1}, v{b+1}, v{b}")
        for b in bs: I(f"v_fma_f32 v{b+1}, v{b+3}, v{b+2}, v{b+1}")
        for b in bs: I(f"v_rcp_f32 v{b+1}, v{b+1}")
        for b in bs: I(f"v_mul_f32 v{b}, v{b}, v{b+1}"); I(f"v_mul_f32 v{b+2}, v{b+2}, v{b+1}")
    if O.fast_ep:
        recv(2)
        I("s_waitcnt lgkmcnt(@st)")
        factors([0, 1])
        I("s_waitcnt lgkmcnt(@r1)"); free.extend([2, 3])
    else:
        do_read(False); do_read(False)
        recv(2)
        I("s_waitcnt lgkmcnt(@st)")
        bs = [NM + 4 * rt for rt in range(7)]
        for rt, b in enumerate(bs): I(f"v_min_f32 v{LS+rt}, v{b}, v{b+2}")
        for rt, b in enumerate(bs): I(f"v_sub_f32 v{b}, v{LS+rt}, v{b}"); I(f"v_sub_f32 v{b+2}, v{LS+rt}, v{b+2}")
        release(); free.extend([2, 3])
        for _ in range(min(2, O.pre_dma)): do_dma()
        for b in bs: I(f"v_exp_f32 v{b}, v{b}"); I(f"v_exp_f32 v{b+2}, v{b+2}")
        if O.pre_dma > 2: do_dma()
        for b in bs: I(f"v_mul_f32 v{b+1}, v{b+1}, v{b}")
        for b in bs: I(f"v_fma_f32 v{b+1}, v{b+3}, v{b+2}, v{b+1}")
        for b in bs: I(f"v_rcp_f32 v{b+1}, v{b+1}")
        if O.pre_dma > 3: do_dma()
        for b in bs: I(f"v_mul_f32 v{b}, v{b}, v{b+1}"); I(f"v_mul_f32 v{b+2}, v{b+2}, v{b+1}")
    for rt in range(7):
        if O.epst: stamp()
        if O.fast_ep and rt == 2:
            for _ in range(O.pre_dma): do_dma()
            factors([2, 3, 4, 5, 6])
        if rt + 3 < 7: recv(rt + 3)
        if rt >= 2:
            I(f"s_waitcnt lgkmcnt(@r{rt})"); free.append(2 + rt)
        if free and str(rt) in O.ep_dma: do_dma()
        b = NM + 4 * rt; o = OK_ + 16 * rt; rb = RB + 16 * (rt % 4)
        for k in range(0, 16, 2): I(f"v_pk_mul_f32 {vr(o+k,2)}, {vr(o+k,2)}, {vr(b,2)} op_sel_hi:[1,0]")
        for k in range(0, 16, 2): I(f"v_pk_fma_f32 {vr(o+k,2)}, {vr(rb+k,2)}, {vr(b+2,2)}, {vr(o+k,2)} op_sel_hi:[1,0,1]")
        for k in range(8): I(f"v_cvt_pk_bf16_f32 v{o+k}, v{o+2*k}, v{o+2*k+1}")
        I(f"s_add_u32 s{S_T1}, s{S_OST}, {rt*1024}"); I(f"s_add_u32 s{S_T2}, s{S_OST}, {rt*1024+7168}")
        I(f"buffer_store_dwordx4 {vr(o)}, v{V_LANE16}, {sr(S_O,4)}, s{S_T1} offen {O.pol_ost} ;@os")
        I(f"buffer_store_dwordx4 {vr(o+4)}, v{V_LANE16}, {sr(S_O,4)}, s{S_T2} offen {O.pol_ost} ;@os")
    stamp()
    assert RA_N == 16 and NB == 2
    def poll_loop(name, reg, addr, base, test):
        t = [f"s_mov_b32 s{S_I}, 0", f"L_poll{name}:"] + test + [f"s_cbranch_scc1 L_ready{name}", f"s_add_u32 s{S_I}, s{S_I}, 1",
             f"s_cmp_ge_u32 s{S_I}, 0x40000", f"s_cbranch_scc1 L_ready{name}", (f"s_sleep {O.slp}" if O.slp else ""), f"global_load_dword v{reg}, v{addr}, {sr(base)} sc1 ;@nocount", "s_waitcnt vmcnt(0)", f"s_branch L_poll{name}", f"L_ready{name}:"]
        return chr(10).join(t)
    allset = [f"v_cmp_ne_u32 vcc, 1, v{V_TMP+3}", "s_nop 1", "s_cmp_eq_u64 vcc, 0"]
    I(f"v_mov_b32 v{V_TMP}, s{S_SIG}"); I(f"v_mov_b32 v{V_TMP+1}, 1"); I(f"v_and_b32 v{V_TMP+2}, 3, v0"); I(f"v_lshl_add_u32 v{V_TMP+2}, v{V_TMP+2}, 2, s{S_POLL}")
    I(f"s_bfe_u32 s{S_T0}, s{S_H}, 0x10003"); I(f"s_mul_i32 s{S_WBO+2}, s{S_T0}, {128*7168}"); I(f"s_sub_u32 s{S_WBO}, {128*7168}, s{S_WBO+2}")
    I(f"s_add_u32 s{S_WBO+1}, s{S_WBO}, {8*7168}"); I(f"s_add_u32 s{S_WBO+3}, s{S_WBO+2}, {8*7168}")
    I(f"s_lshl_b32 s{S_T0}, s{S_B}, 5"); I(f"s_add_u32 s{S_T0}, s{S_T0}, s{S_H}"); I(f"s_lshl_b32 s{S_T0}, s{S_T0}, 2"); I(f"s_add_u32 s{S_T0}, s{S_T0}, s{S_WAVE}")
    I(f"s_xor_b32 s{S_T0}, s{S_T0}, 32"); I(f"s_mul_i32 s{S_PST}, s{S_T0}, 7168"); I(f"s_add_u32 s{S_PST}, s{S_PST}, {PART}")
    older = st["dma"]
    while st["rd"] < older: do_read()
    I("s_waitcnt vmcnt(0)"); I("s_barrier")
    I(f"s_cmp_lg_u32 s{S_WAVE}, 0"); I("s_cbranch_scc1 L_nosig")
    I("s_mov_b64 exec, 1")
    I(f"global_store_dword v{V_TMP}, v{V_TMP+1}, {sr(P_WS)} sc1 ;@nocount")
    I("s_mov_b64 exec, -1")
    A("L_nosig:")
    I(poll_loop("0", V_TMP + 10, V_TMP + 9, P_DBG, [f"v_readfirstlane_b32 s{S_T0}, v{V_TMP+10}", "s_nop 0", f"s_cmp_ge_u32 s{S_T0}, 256"]))
    stamp()
    release()
    pol_ = [False]
    def maybe_poll():
        if not pol_[0] and st["dma"] >= 16 - O.poll_lead:
            I(f"global_load_dword v{V_TMP+3}, v{V_TMP+2}, {sr(P_WS)} sc1 ;@poll"); pol_[0] = st["dma"]
    while free and st["dma"] < 16: maybe_poll(); do_dma()
    while st["dma"] < 16:
        do_read()
        if len(pend) > 1: release(1); maybe_poll(); do_dma()
    maybe_poll()
    RD = V_TMP + 4
    for cq in range(4):
        I(f"s_xor_b32 s{S_T0}, s{S_WAVE}, {cq}"); I(f"s_mul_i32 s{S_T0}, s{S_T0}, 28672"); I(f"v_add_u32 v{RD+cq}, s{S_T0}, v{V_LANE16}")
    V_OA = V_TMP + 8
    I(f"v_and_b32 v{V_OA}, 15, v0"); I(f"v_lshlrev_b32 v{V_OA}, 11, v{V_OA}"); I(f"v_lshrrev_b32 v{V_TMP+9}, 4, v0"); I(f"v_lshl_add_u32 v{V_OA}, v{V_TMP+9}, 3, v{V_OA}")
    I(f"v_mov_b32 v{V_TMP+9}, s101"); I(f"v_xor_b32 v{V_TMP}, {32*128}, v{V_TMP+9}")
    while st["rd"] < pol_[0]: do_read()
    I("s_waitcnt vmcnt(@poll)")
    stamp()
    I(poll_loop("1", V_TMP + 3, V_TMP + 2, P_WS, allset))
    stamp()
    def bl(n, rt):
        x = b_loads(n)[rt]
        return (x[0], x[1].replace(f";@b{n}", f";@b{n}_{rt}"))
    for rt in range(7): emit_dma([bl(0, rt), bl(1, rt)])
    while st["rd"] < 16: do_read()
    I("s_waitcnt vmcnt(@b1_0) lgkmcnt(0)")
    stamp()
    def wr_(rt, cq, tag): return f"ds_write_b128 v{RD+cq}, {vr(ACC+16*rt+4*cq)} offset:{(cq*7+rt)*1024} ;@{tag}"
    FR_ = [f"ds_read_b128 {vr(ACC+16*rt+4*cq)}, v{RD} offset:{(cq*7+rt)*1024} ;@f{rt}" for rt in range(7) for cq in range(1, 4)]
    wr = [wr_(rt, cq, f"fw{rt}") for rt in range(7) for cq in range(1, 4)]
    PR = 192; SC = 220
    GS = []
    for N in range(16):
        n = 2 * N
        m0, m1 = p3_mfmas(n), p3_mfmas(n + 1)
        order = [1, 2, 3, 0] if N == 15 else [0, 1, 2, 3]
        GS += [x for rt in range(7) for cq in order for x in (m0[4 * rt + cq], m1[4 * rt + cq])]
    G = Gaps(GS)
    for N in range(16):
        n = 2 * N; g0 = 56 * N
        if n + 2 < 32:
            for rt in range(7): place(G, [bl(n + 2, rt), bl(n + 3, rt)], [g0 + 8 * rt + 9, g0 + 8 * rt + 11])
        for rt in range(7):
            if g0 + 8 * rt - 1 >= 0: G.s[g0 + 8 * rt - 1].append(f"s_waitcnt vmcnt(@b{n+1}_{rt})")
    G.s[56 * O.bar5 + (8 if O.bar5 == 7 else 0)].append("s_barrier")
    k = 0
    for rt in range(7):
        for j in range(4): G.v[56 * 7 + 8 * rt + 13 + 2 * (j // 2)].append(f"v_mov_b32 v{PR+4*rt+j}, v{ACC+16*rt+j}")
        for cq in range(1, 4):
            g = 56 * 7 + 16 + 4 * k; k += 1
            assert 56 * 7 + 8 * rt + 2 * cq + 10 <= g < 56 * 8 + 8 * rt + 2 * cq - 1, (rt, cq)
            G.m[g].append(wr_(rt, cq, "mw"))
    g = 56 * 8 + 45
    G.s[g].append("s_waitcnt lgkmcnt(0)"); G.s[g].append("s_barrier")
    for rt in range(7):
        g = 56 * 8 + 48 + 16 * rt
        for cq in range(1, 4): G.m[g + 2 * cq - 2].append(f"ds_read_b128 {vr(SC+4*(cq-1))}, v{RD} offset:{(cq*7+rt)*1024}")
        G.s[g + 8].append("s_waitcnt lgkmcnt(0)")
        ad = [f"v_add_f32 v{PR+4*rt+k}, v{PR+4*rt+k}, v{SC+k}" for k in range(4)] + [f"v_add_f32 v{SC+4+k}, v{SC+4+k}, v{SC+8+k}" for k in range(4)] + [f"v_add_f32 v{PR+4*rt+k}, v{PR+4*rt+k}, v{SC+4+k}" for k in range(4)]
        for k, x in enumerate(ad): G.v[g + [8, 8, 10, 10, 12, 12, 13, 13, 14, 14, 15, 15][k]].append(x)
    g = 56 * 10 + 52
    for rt in range(7):
        gg = g + [0, 1, 2, 4, 6, 8, 9][rt]
        if O.ps_mode == 1: gg = 56 * 8 + 48 + 16 * rt + 21
        if O.ps_mode == 2 and rt < 4: gg = 56 * 8 + 48 + 16 * 4 + [5, 6, 7, 13][rt]
        G.m[gg].append(f"buffer_store_dwordx4 {vr(PR+4*rt)}, v{V_LANE16 if rt<4 else V_L2}, {sr(S_O,4)}, s{S_PST} offen offset:{(rt%4)*1024} {O.pol_ost} ;@ps")
    g = 56 * 11 + O.s2_g
    G.s[g].append("s_waitcnt vmcnt(@ps)"); G.s[g].append("s_mov_b64 exec, 1")
    G.m[g].append(f"global_store_dword v{V_TMP}, v{V_TMP+1}, {sr(P_WS)} sc1"); G.p[g].append("s_mov_b64 exec, -1")
    G.s[56 * 13 + 4].append("s_barrier")
    G.m[56 * 14 + O.p2_g].append(f"global_load_dword v{V_TMP+3}, v{V_TMP+9}, {sr(P_WS)} sc1 ;@poll2")
    G.p[56 * 15 + 3].append("s_waitcnt vmcnt(@poll2)"); G.p[56 * 15 + 3].append(poll_loop("2", V_TMP + 3, V_TMP + 9, P_WS, allset))
    PL = [f"buffer_load_dwordx4 {vr(PR+4*rt)}, v{V_LANE16 if rt<4 else V_L2}, {sr(S_O,4)}, s{S_INB} offen offset:{(rt%4)*1024} {O.pol_old}" for rt in range(7)]
    for rt in range(7): G.m[56 * 15 + [4, 5, 6, 8, 9, 11, 13][rt]].append(PL[rt] + " ;@pl")
    nw = 0; g0 = 56 * 15
    for rt in range(6):
        for k in range(3): G.m[g0 + 8 * rt + 10 + 2 * k].append(wr[nw]); nw += 1
    if O.fin2:
        G.s[g0 + 43].append("s_waitcnt lgkmcnt(@fw3)"); G.s[g0 + 43].append("s_barrier")
        for g, x in zip([45, 47, 48, 49, 51, 53, 55, 55, 55], FR_[:9]): G.m[g0 + g].append(x)
    if O.p3st:
        for N in range(1, 16):
            k = nstamp[0]; nstamp[0] += 1
            G.p[56 * N - 2].append(f"s_memtime {sr(S_STP)}\ns_memrealtime {sr(S_STP+2)}\ns_waitcnt lgkmcnt(0)\nv_writelane_b32 v{V_STAMP}, s{S_STP}, {2*k}\nv_writelane_b32 v{V_STAMP}, s{S_STP+2}, {2*k+1}")
    G.emit()
    stamp()
    I("s_nop 4")
    def fin(rt):
        I(f"s_waitcnt lgkmcnt(@f{rt})")
        o = ACC + 16 * rt
        for k in (0, 2):
            I(f"v_pk_add_f32 {vr(o+k,2)}, {vr(o+k,2)}, {vr(o+4+k,2)}"); I(f"v_pk_add_f32 {vr(o+8+k,2)}, {vr(o+8+k,2)}, {vr(o+12+k,2)}")
        for k in (0, 2): I(f"v_pk_add_f32 {vr(o+k,2)}, {vr(o+k,2)}, {vr(PR+4*rt+k,2)}")
        for k in (0, 2): I(f"v_pk_add_f32 {vr(o+k,2)}, {vr(o+k,2)}, {vr(o+8+k,2)}")
        I(f"v_cvt_pk_bf16_f32 v{o}, v{o}, v{o+1}"); I(f"v_cvt_pk_bf16_f32 v{o+1}, v{o+2}, v{o+3}")
        I(f"buffer_store_dwordx2 {vr(o,2)}, v{V_OA}, {sr(S_OUT,4)}, s{S_OUTOFF} offen {O.pol_out}")
        I(f"s_add_u32 s{S_OUTOFF}, s{S_OUTOFF}, {16*2048}")
    for x in wr[nw:]: I(x)
    I("s_waitcnt vmcnt(@pl)")
    if O.fin2:
        for x in FR_[9:12]: I(x)
        fin(0); fin(1)
        I("s_waitcnt lgkmcnt(@fw6)"); I("s_barrier")
        for x in FR_[12:]: I(x)
        for rt in range(2, 7): fin(rt)
    else:
        I("s_waitcnt lgkmcnt(0)"); I("s_barrier")
        for x in FR_: I(x)
        for rt in range(7): fin(rt)
    stamp()
    store_stamps()
    A("L_done:")
    I("s_endpgm")
    A("L_fallback:")
    I(f"s_mov_b32 s{S_FB}, 1")
    I("s_waitcnt vmcnt(0) lgkmcnt(0)"); I("s_barrier")
    for rt in range(7): I(f"v_mov_b32 v{NM+4*rt}, 0xff800000")
    I(f"s_mov_b32 s{S_KVG}, s{S_KV0}")
    for x in k_addr(0): I(x)
    I(f"s_mov_b32 s{S_I}, 0")
    A("L_fb_loop:")
    emit_dma(kv_dma("K", 0)); I(KVG_UPD)
    I("s_waitcnt vmcnt(0)"); I("s_barrier")
    for f in range(8): I(k_read(f))
    I("s_waitcnt lgkmcnt(0)"); I("s_barrier")
    for rt in range(7):
        for m in qk_mfmas(rt, SB, usenm=False): I(m)
        I("s_nop 7")
        b = NM + 4 * rt
        for k in range(4): I(f"v_max3_f32 v{b}, v{b}, v{SB+2*k}, v{SB+2*k+1}")
    I(f"s_add_u32 s{S_I}, s{S_I}, 1"); I(f"s_cmp_lt_u32 s{S_I}, 16"); I("s_cbranch_scc1 L_fb_loop")
    multi_reduce([NM + 4 * rt for rt in range(7)], [NM + 4 * rt + 1 for rt in range(7)], "v_max_f32")
    for rt in range(7):
        b = NM + 4 * rt
        I(f"v_sub_f32 v{b}, 0, v{b}")
        for k in range(1, 4): I(f"v_mov_b32 v{b+k}, v{b}")
    I(f"s_mov_b32 s{S_KVG}, s{S_KV0}")
    for st in range(RING - 1):
        emit_dma(kv_dma("K", (4 - st) * 32768) + kv_dma("V", (4 - st) * 32768)); I(KVG_UPD)
    for k in range(112): I(f"v_mov_b32 v{OK_+k}, 0")
    for k in range(112): I(f"v_accvgpr_write_b32 a{OS_+k}, 0")
    for k in range(32): I(f"v_mov_b32 v{VF+k}, 0")
    for k in range(12): I(f"v_mov_b32 v{PB+k}, 0")
    for k in range(7): I(f"v_mov_b32 v{LS+k}, 0")
    for k in range(8): I(f"v_mov_b32 v{SB+16+k}, 0xf149f2ca")
    I(f"s_mov_b32 s{S_MASK}, 0xfff"); I(f"s_mov_b32 s{S_DS}, 0"); I(f"s_mov_b32 s{S_SL2}, {3*32768}"); I(f"s_mov_b32 s{S_I}, -1")
    for x in next_dma_state(): I(x)
    for x in k_addr(4 * 32768) + v_addr(4 * 32768): I(x)
    I("s_waitcnt vmcnt(0)"); I("s_barrier")
    for f in range(8): I(k_read(f))
    I("s_waitcnt lgkmcnt(0)")
    I("s_branch L_att")

HEAD = """
;  phase 2  attention: wave = (112-row half, 32-key half of every 64-key stage); -m enters as the C operand of the first QK MFMA.
;           m is the true max of the wave's first 32 keys; after the loop every row sum is checked (l < 2^40, NaN fails) and the
;  hand-off O (bf16, MFMA fragment order) is written through (sc1), then a per-workgroup flag in ws; flags are cleared inside the launch
;  phase 3  out tile 224x64 over half of K; the half tile owned by the partner workgroup (b, h^8) is computed first and sent in fp32.
; @launch grid=(256,1,1) block=(256,1,1) lds=163840
"""
def main(fn):
    global RA_N, NB
    RA_N = O.ra_n; NB = O.nb
    del L[:]
    nstamp[0] = 0
    A('.amdgcn_target "amdgcn-amd-amdhsa--gfx950"')
    A(".text")
    gen()
    A("  .fill 6144, 4, 0xBF800000")
    A('.section .rodata,"a"\n.p2align 6')
    A(f".amdhsa_kernel {NAME}_kernel\n  .amdhsa_next_free_vgpr 512\n  .amdhsa_next_free_sgpr 102\n  .amdhsa_accum_offset 256\n  .amdhsa_group_segment_fixed_size 0\n  .amdhsa_kernarg_size 64\n  .amdhsa_user_sgpr_count 2\n  .amdhsa_user_sgpr_kernarg_segment_ptr 1\n  .amdhsa_system_sgpr_workgroup_id_x 1\n.end_amdhsa_kernel")
    head = HEAD.strip().split(chr(10))
    open(fn, "w").write("\n".join(head + resolve(L)) + "\n")

if __name__ == "__main__":
    fn = sys.argv[1]
    for kv in sys.argv[2:]:
        k, v = kv.split("=")
        cur = getattr(O, k)
        setattr(O, k, (v == "1") if isinstance(cur, bool) else (int(v) if isinstance(cur, int) else v.replace("+", " ")))
    main(fn)
```
